```python
import torch

def _softmax(x, axis=-1):
    return torch.softmax(x, dim=axis)
def _gelu(x):
    return torch.nn.functional.gelu(x, approximate="tanh")
def _silu(x):
    return torch.nn.functional.silu(x)
def _sigmoid(x):
    return torch.sigmoid(x)
def _layernorm(x, axis=-1, eps=1e-5):
    m = x.mean(dim=axis, keepdim=True)
    v = x.var(dim=axis, keepdim=True, unbiased=False)
    return (x - m) / torch.sqrt(v + eps)
def _scatter_add(tgt, idx, src, axis=0):
    return tgt.clone().index_add_(axis, idx, src)
def _segment_sum(src, seg, n):
    out = torch.zeros((n,) + src.shape[1:], dtype=src.dtype)
    return out.index_add_(0, seg, src)
def _pad(x, pw):
    flat = tuple(v for pair in reversed(pw) for v in pair)
    return torch.nn.functional.pad(x, flat)

kernel_name = 'interleave_layers__linear_kernel_hedgehog__spectral_fnet__prompt'

def setup_inputs():

    _w = (lambda a: (lambda t: t.to(torch.bfloat16) if t.is_floating_point() else t)(torch.as_tensor(a)))
    def _A_setup():
        B, S, D, H = 1, 2048, 640, 32
        Dh = D // H
        return {
            "x": _w((lambda *s: torch.randn(*s, dtype=torch.bfloat16) * 0.4)(B, S, D)),
            "wqkv": _w((lambda *s: torch.randn(*s, dtype=torch.bfloat16) * 1.6)(D, 3 * D)),
            "w_phi": _w((lambda *s: torch.randn(*s, dtype=torch.bfloat16) * 1.6)(H, Dh, Dh) * (Dh ** -0.5)),
            "wo": _w((lambda *s: torch.randn(*s, dtype=torch.bfloat16) * 1.6)(D, D)),
        }
    _A_in = _A_setup()

    def _B_setup():
        B, S, D = 1, 2048, 640
        ns = torch.arange(S)[:, None] * torch.arange(S)[None, :]
        nd = torch.arange(D)[:, None] * torch.arange(D)[None, :]
        Ws_re = torch.cos(-2.0 * torch.pi * ns / S).to(float)
        Ws_im = torch.sin(-2.0 * torch.pi * ns / S).to(float)
        Wd_re = torch.cos(-2.0 * torch.pi * nd / D).to(float)
        Wd_im = torch.sin(-2.0 * torch.pi * nd / D).to(float)
        return {
            "x": _w((lambda *s: torch.randn(*s, dtype=torch.bfloat16) * 0.4)(B, S, D)),
            "dft_seq_re": _w(Ws_re),
            "dft_seq_im": _w(Ws_im),
            "dft_hid_re": _w(Wd_re),
            "dft_hid_im": _w(Wd_im),
        }
    _B_in = _B_setup()

    return {
        "A_x": _A_in["x"],
        "A_wqkv": _A_in["wqkv"],
        "A_w_phi": _A_in["w_phi"],
        "A_wo": _A_in["wo"],
        "B_x": _B_in["x"],
        "B_dft_seq_re": _B_in["dft_seq_re"],
        "B_dft_seq_im": _B_in["dft_seq_im"],
        "B_dft_hid_re": _B_in["dft_hid_re"],
        "B_dft_hid_im": _B_in["dft_hid_im"],
    }

def reference(A_x, A_wqkv, A_w_phi, A_wo, B_x, B_dft_seq_re, B_dft_seq_im, B_dft_hid_re, B_dft_hid_im):
    def _A_ref(x, wqkv, w_phi, wo):
        B, S, D = x.shape
        H = 32; Dh = D // H
        qkv = (lambda x, *d: x.permute(*d))((x @ wqkv).reshape(B, S, 3, H, Dh), 2, 0, 3, 1, 4)
        q, k, v = qkv[0], qkv[1], qkv[2]
        pq = torch.einsum("bhsd,hdf->bhsf", q, w_phi)
        pk = torch.einsum("bhsd,hdf->bhsf", k, w_phi)
        phi_q = torch.concatenate([_softmax(pq, axis=-1), _softmax(-pq, axis=-1)], axis=-1)
        phi_k = torch.concatenate([_softmax(pk, axis=-1), _softmax(-pk, axis=-1)], axis=-1)
        kv = torch.einsum("bhsf,bhsd->bhfd", phi_k, v)
        z  = torch.einsum("bhsf->bhf", phi_k)
        num = torch.einsum("bhqf,bhfd->bhqd", phi_q, kv)
        den = torch.einsum("bhqf,bhf->bhq", phi_q, z)[..., None] + 1e-6
        o = num / den
        return (lambda x, *d: x.permute(*d))(o, 0, 2, 1, 3).reshape(B, S, D) @ wo

    def _B_ref(x, dft_seq_re, dft_seq_im, dft_hid_re, dft_hid_im):
        a = torch.einsum("bsd,ed->bse", x, dft_hid_re)
        b = torch.einsum("bsd,ed->bse", x, dft_hid_im)
        y = torch.einsum("ts,bse->bte", dft_seq_re, a) - torch.einsum("ts,bse->bte", dft_seq_im, b)
        return y

    x = A_x
    x = x + _A_ref(_layernorm(x, axis=-1), A_wqkv, A_w_phi, A_wo)
    x = x + _B_ref(_layernorm(x, axis=-1), B_dft_seq_re, B_dft_seq_im, B_dft_hid_re, B_dft_hid_im)
    x = x + _A_ref(_layernorm(x, axis=-1), A_wqkv, A_w_phi, A_wo)
    x = x + _B_ref(_layernorm(x, axis=-1), B_dft_seq_re, B_dft_seq_im, B_dft_hid_re, B_dft_hid_im)
    return x
```

```python
import re

class Regs:
    def __init__(self, kind, n, reserved=()):
        self.kind = kind; self.n = n; self.used = [None] * n
        for r in reserved: self.used[r] = "reserved"
        self.hi = max(list(reserved) + [-1]) + 1
    def alloc(self, name, cnt=1, align=None, at=None):
        if align is None: align = 2 if cnt >= 2 else 1
        if self.kind == 's' and cnt >= 4: align = max(align, 4)
        if at is not None:
            for i in range(at, at + cnt):
                assert self.used[i] is None, f"{self.kind}{i} already used by {self.used[i]} (alloc {name})"
            base = at
        else:
            base = None
            for b in range(0, self.n - cnt + 1, align):
                if all(self.used[i] is None for i in range(b, b + cnt)):
                    base = b; break
            assert base is not None, f"out of {self.kind} regs for {name} x{cnt}"
        for i in range(base, base + cnt): self.used[i] = name
        self.hi = max(self.hi, base + cnt)
        return R(self.kind, base, cnt)
    def free(self, *rs):
        for r in rs:
            for i in range(r.base, r.base + r.cnt):
                assert self.used[i] is not None
                self.used[i] = None
    def nfree(self): return sum(1 for u in self.used if u is None)

class R:
    def __init__(self, kind, base, cnt): self.kind = kind; self.base = base; self.cnt = cnt
    def __getitem__(self, i):
        if isinstance(i, slice):
            a = i.start or 0; b = i.stop if i.stop is not None else self.cnt
            assert 0 <= a < b <= self.cnt, (a, b, self.cnt)
            return R(self.kind, self.base + a, b - a)
        assert 0 <= i < self.cnt, (i, self.cnt)
        return R(self.kind, self.base + i, 1)
    def __str__(self):
        return f"{self.kind}{self.base}" if self.cnt == 1 else f"{self.kind}[{self.base}:{self.base + self.cnt - 1}]"
    __repr__ = __str__
    def __format__(self, spec): return str(self)

_REG = re.compile(r'^([vas])(\d+)$'); _RNG = re.compile(r'^([vas])\[(\d+):(\d+)\]$')
def regset(op):
    op = op.strip()
    if op.startswith('-'): op = op[1:]
    if op.startswith('abs(') or op.startswith('|'): op = op.replace('abs(', '').replace(')', '').replace('|', '')
    m = _REG.match(op)
    if m: return {(m.group(1), int(m.group(2)))}
    m = _RNG.match(op)
    if m: return {(m.group(1), i) for i in range(int(m.group(2)), int(m.group(3)) + 1)}
    if op == 'vcc': return {('s', 106), ('s', 107)}
    if op == 'vcc_lo': return {('s', 106)}
    if op == 'vcc_hi': return {('s', 107)}
    if op == 'exec': return {('s', 126), ('s', 127)}
    if op == 'exec_lo': return {('s', 126)}
    if op == 'exec_hi': return {('s', 127)}
    if op == 'm0': return {('s', 124)}
    return set()

TRANS = ('v_exp_f32', 'v_log_f32', 'v_rcp_f32', 'v_rsq_f32', 'v_sqrt_f32', 'v_sin_f32', 'v_cos_f32', 'v_rcp_iflag_f32')
VCC = {('s', 106), ('s', 107)}
class Ins:
    __slots__ = ('text', 'op', 'ops', 'cls', 'defs', 'uses', 'passes', 'srcC', 'srcAB', 'dpp', 'lds_dma', 'storedata', 'label', 'target')
    def __init__(self, text):
        self.text = text; self.label = None; self.target = None
        t = text.split(';')[0].strip()
        self.defs = set(); self.uses = set(); self.passes = 0; self.srcC = set(); self.srcAB = set()
        self.dpp = False; self.lds_dma = False; self.storedata = set(); self.cls = 'other'; self.op = ''; self.ops = []
        if not t: self.cls = 'none'; return
        if t.endswith(':'): self.cls = 'label'; self.label = t[:-1]; return
        if t.startswith('.'): self.cls = 'none'; return
        parts = t.split(None, 1); op = parts[0]; self.op = op
        rest = parts[1] if len(parts) > 1 else ''
        ops = []; cur = ''; depth = 0
        for ch in rest:
            if ch in '[(': depth += 1
            if ch in '])': depth -= 1
            if ch == ',' and depth == 0: ops.append(cur.strip()); cur = ''
            else: cur += ch
        if cur.strip(): ops.append(cur.strip())
        mods = ''
        if ops:
            last = ops[-1].split()
            ops[-1] = last[0]; mods = ' '.join(last[1:])
        self.ops = ops
        base = re.sub(r'_(e32|e64|dpp|sdwa)$', '', op)
        rs = [regset(o) for o in ops]
        if op.startswith('v_mfma'):
            self.cls = 'mfma'
            self.passes = 8 if '32x32x16' in op or '32x32x8' in op else 4
            assert ('32x32x16' in op) or ('16x16x32' in op), op
            self.defs = rs[0]; self.srcAB = rs[1] | rs[2]; self.srcC = rs[3]; self.uses = self.srcAB | self.srcC
        elif op.startswith('v_'):
            self.cls = 'trans' if base in TRANS else 'valu'
            self.dpp = 'quad_perm' in mods or 'row_' in mods or 'wave_' in mods or op.endswith('_dpp')
            if base.startswith('v_cmp'):
                self.defs = rs[0]; self.uses = set().union(*rs[1:])
                if base.startswith('v_cmpx'): self.defs = self.defs | {('s', 126), ('s', 127)}
            elif base in ('v_permlane32_swap_b32', 'v_permlane16_swap_b32', 'v_swap_b32'):
                self.defs = rs[0] | rs[1]; self.uses = rs[0] | rs[1]
            elif base in ('v_add_co_u32', 'v_sub_co_u32', 'v_subrev_co_u32'):
                self.defs = rs[0] | rs[1]; self.uses = set().union(*rs[2:])
            elif base in ('v_addc_co_u32', 'v_subb_co_u32'):
                self.defs = rs[0] | rs[1]; self.uses = set().union(*rs[2:])
            elif base in ('v_readfirstlane_b32', 'v_readlane_b32'):
                self.defs = rs[0]; self.uses = set().union(*rs[1:])
            else:
                self.defs = rs[0]; self.uses = set().union(*rs[1:]) if len(rs) > 1 else set()
                if base in ('v_fmac_f32', 'v_dot2c_f32_bf16', 'v_writelane_b32', 'v_pk_fmac_f16') or 'op_sel' in mods and False:
                    self.uses |= rs[0]
                if base == 'v_cndmask_b32' and len(ops) == 3: self.uses |= VCC
        elif op.startswith('ds_'):
            self.cls = 'ds'
            if op.startswith('ds_read') or op.startswith('ds_bpermute') or op.startswith('ds_swizzle') or op.startswith('ds_permute'):
                self.defs = rs[0]; self.uses = set().union(*rs[1:]) if len(rs) > 1 else set()
                if 'd16' in op: self.uses |= rs[0]
            else:
                self.uses = set().union(*rs)
        elif op.startswith('buffer_') or op.startswith('global_'):
            self.cls = 'vmem'
            self.lds_dma = ' lds' in (' ' + mods) or 'load_lds' in op
            if op.startswith('buffer_wbl2') or op.startswith('buffer_inv'):
                pass
            elif 'load' in op and not self.lds_dma:
                self.defs = rs[0]; self.uses = set().union(*rs[1:])
                if 'd16' in op: self.uses |= rs[0]
            elif 'load' in op:
                self.uses = set().union(*rs) | {('s', 124)}
            elif 'atomic' in op:
                self.uses = set().union(*rs)
                if 'sc0' in mods: self.defs = rs[0]
            else:
                self.uses = set().union(*rs)
                if 'x4' in op or 'x3' in op:
                    self.storedata = rs[0] if op.startswith('buffer_') else rs[1]
        elif op.startswith('s_'):
            self.cls = 'salu'
            if op.startswith('s_cbranch') or op == 's_branch':
                self.cls = 'branch'; self.target = ops[0]
            elif op in ('s_waitcnt', 's_barrier', 's_endpgm', 's_sleep', 's_setprio'):
                pass
            elif op == 's_nop':
                self.cls = 'nop'
            elif op.startswith('s_cmp') or op.startswith('s_bitcmp'):
                self.uses = set().union(*rs)
            elif op.startswith('s_load') or op.startswith('s_memtime') or op.startswith('s_memrealtime'):
                self.cls = 'smem'; self.defs = rs[0]; self.uses = set().union(*rs[1:]) if len(rs) > 1 else set()
            elif 'saveexec' in op:
                self.defs = rs[0] | {('s', 126), ('s', 127)}; self.uses = set().union(*rs[1:]) | {('s', 126), ('s', 127)}
            else:
                self.defs = rs[0] if rs else set(); self.uses = set().union(*rs[1:]) if len(rs) > 1 else set()
                if op in ('s_addk_i32', 's_mulk_i32'): self.uses |= rs[0]
        else:
            raise ValueError("unknown instruction: " + text)
    def slots(self):
        if self.cls == 'nop': return int(self.ops[0], 0) + 1
        if self.cls in ('label', 'none'): return 0
        return 1

def need_states(prod, cons):
    n = 0
    pv = {r for r in prod.defs if r[0] in 'va'}; ps = {r for r in prod.defs if r[0] == 's'}
    isvalu = lambda i: i.cls in ('valu', 'trans')
    if isvalu(prod):
        if cons.cls == 'mfma' and (pv & cons.uses): n = max(n, 2)
        if cons.cls == 'mfma' and (ps & {('s', 126), ('s', 127)}): n = max(n, 4)
        if isvalu(cons):
            if cons.op.startswith('v_permlane') and (pv & cons.uses): n = max(n, 2)
            if cons.op.startswith('v_permlane') and (ps & {('s', 126), ('s', 127)}): n = max(n, 4)
            if cons.dpp and (pv & cons.uses): n = max(n, 2)
            if cons.dpp and (ps & {('s', 126), ('s', 127)}): n = max(n, 5)
            if (cons.op.startswith('v_readlane') or cons.op.startswith('v_readfirstlane')) and (pv & cons.uses): n = max(n, 1)
            if (cons.op.startswith('v_readlane') or cons.op.startswith('v_writelane')) and (ps & cons.uses): n = max(n, 4)
            if ps & cons.uses: n = max(n, 2)
            if prod.cls == 'trans' and (pv & cons.uses): n = max(n, 1)
        if cons.cls == 'vmem' and (ps & cons.uses): n = max(n, 5)
        if cons.cls in ('salu', 'branch', 'smem') and (ps & cons.uses): n = max(n, 1)
    if prod.cls == 'mfma':
        p = prod.passes
        if cons.cls == 'mfma':
            if prod.defs & cons.srcC:
                if prod.defs == cons.srcC and p == cons.passes: n = max(n, 0)
                else: n = max(n, {4: 6, 8: 10}[p])
            if prod.defs & cons.srcAB: n = max(n, {4: 8, 8: 12}[p])
            if (prod.defs & cons.defs) and not (prod.defs & cons.srcC): n = max(n, {4: 8, 8: 12}[p])
        elif cons.cls in ('valu', 'trans', 'ds', 'vmem'):
            if prod.defs & (cons.uses | cons.defs): n = max(n, {4: 8, 8: 12}[p])
        if isvalu(cons) and (prod.srcC & cons.defs): n = max(n, {4: 3, 8: 7}[p])
    if prod.cls == 'salu' and ('s', 124) in prod.defs and cons.lds_dma: n = max(n, 1)
    if prod.cls == 'vmem' and prod.storedata:
        if isvalu(cons) and (prod.storedata & cons.defs): n = max(n, 2)
        elif prod.storedata & cons.defs: n = max(n, 1)
    return n

HORIZON = 24
def fix_hazards(lines):
    ins = [Ins(l) for l in lines]
    total = 0
    for it in range(12):
        snaps = getattr(fix_hazards, '_s', {})
        snaps = {}
        changed = False
        for sweep in range(2):
            state = []
            out = []
            dead = False
            for x in ins:
                if x.cls == 'label':
                    merged = {} if dead else {id(p): (p, a) for p, a in state}
                    for p, a in snaps.get(x.label, []):
                        if id(p) not in merged or merged[id(p)][1] > a: merged[id(p)] = (p, a)
                    state = list(merged.values()); dead = False
                    out.append(x); continue
                if x.cls == 'none': out.append(x); continue
                need = 0
                if sweep == 1 and x.cls != 'nop':
                    for p, a in state:
                        need = max(need, need_states(p, x) - a)
                    if need > 0:
                        nn = need
                        while nn > 0:
                            c = min(nn, 16); out.append(Ins(f"s_nop {c - 1}")); nn -= c
                        state = [(p, a + need) for p, a in state]
                        changed = True; total += need
                out.append(x)
                s = x.slots()
                state = [(p, a + s) for p, a in state if a + s < HORIZON]
                if x.cls in ('valu', 'trans', 'mfma', 'salu', 'vmem'): state.append((x, 0))
                if x.cls == 'branch':
                    old = {id(p): (p, a) for p, a in snaps.get(x.target, [])}
                    for p, a in state:
                        if id(p) not in old or old[id(p)][1] > a: old[id(p)] = (p, a)
                    snaps[x.target] = list(old.values())
                    if x.op == 's_branch': dead = True; state = []
                if x.op == 's_endpgm': dead = True; state = []
            if sweep == 1: ins = out
        if not changed: break
    return [x.text for x in ins], total

class Emit:
    def __init__(self):
        self.lines = []; self.V = Regs('v', 256, reserved=[0]); self.A = Regs('a', 256); self.S = Regs('s', 102, reserved=[0, 1, 2])
        self._lab = 0; self.vm = []; self.lg = []
    def __call__(self, s):
        for l in s.split('\n'):
            l = l.strip()
            if not l: continue
            self.lines.append(l)
            op = l.split()[0]
            if op.startswith('buffer_') or op.startswith('global_'): self.vm.append(None)
            elif op.startswith('ds_'): self.lg.append(None)
    def label(self, base):
        self._lab += 1; return f"L{base}_{self._lab}"
    def c(self, s): self.lines.append('; ' + s)
    def vm_mark(self): return len(self.vm)
    def lg_mark(self): return len(self.lg)
    def wait(self, vm=None, lg=None):
        parts = []
        if vm is not None:
            n = len(self.vm) - vm; parts.append(f"vmcnt({min(n, 63)})")
        if lg is not None:
            n = len(self.lg) - lg; parts.append(f"lgkmcnt({min(n, 15)})")
        self.lines.append("s_waitcnt " + " ".join(parts))
    def wait0(self, vm=True, lg=True):
        self.lines.append("s_waitcnt " + " ".join((["vmcnt(0)"] if vm else []) + (["lgkmcnt(0)"] if lg else [])))
```

```python
S, D, H, DH = 2048, 640, 32, 20

def tok(tb, p):
    return tb + 8 * (p >> 4) + 128 * (p & 15)

def e2_of(b, kh):
    if b == 0: return 0 if kh == 0 else 40
    if b <= 19: return 2 * b - 1 + kh
    if b == 20: return 39 if kh == 0 else 41
    return 80 - (2 * (b - 20) - 1 + kh)

def blk_of(e2):
    for b in range(40):
        for kh in range(2):
            if e2_of(b, kh) == e2: return b, kh
    raise ValueError
assert sorted(e2_of(b, kh) for b in range(40) for kh in range(2)) == list(range(80))

def col_of_k(k):
    b, kh, i = k >> 4, (k >> 3) & 1, k & 7
    return e2_of(b, kh) + 80 * i

LF = 0x0000
KVF = 0x1000
GL = 0x2000
WOFL = 0x3000
STAMP = 0x8000
STAMP2 = 0x10000
XSZ = 8 * 40 * 1024
OSZ = 256 * 1280
GSZ = 40 * 8 * 256 * 4
STSZ = 256 * 8 * 8
ZSZ = 21 * 16384
KVSZ = 4096
WHSZ = 32 * 81920
WOSZ = 8 * 5 * 20 * 1024
_off = 1 << 20
def _take(n):
    global _off
    o = _off; _off += (n + 4095) // 4096 * 4096; return o
X_IN = [_take(8 * XSZ) for _ in range(2)]
XN_IN = [_take(8 * XSZ) for _ in range(2)]
X1 = [_take(8 * XSZ) for _ in range(2)]
OB = [_take(8 * OSZ) for _ in range(2)]
GB = [_take(8 * GSZ) for _ in range(2)]
STB = [_take(8 * STSZ) for _ in range(2)]
ZB = [_take(8 * ZSZ) for _ in range(2)]
KVB = [_take(32 * 8 * KVSZ) for _ in range(2)]
WOF = _take(WOSZ)
WS_USED = _off
LAYER_STRIDE = None

L_W = 0
L_H1 = 81920
L_SCR = L_H1 + 15 * 1024
L_KVS = L_SCR
L_KVA = L_SCR + 49152 + 256
L_MISC = L_KVA + 3072
L_PHI = L_MISC + 1024
LDS_BYTES = L_PHI + 1024
L_XST = L_SCR + 12288
assert LDS_BYTES <= 163840

def unit_eps(u, g):
    if u == 0: return (0, 0 if g == 0 else 40, False)
    if u <= 19: return (2 * u - 1 + g, 2 * u - 1 + g, False)
    return (39, 39, False) if g == 0 else (39, 41, True)
if __name__ == "__main__":
    print(hex(WS_USED), LDS_BYTES)
```

```python
from emit import *
from maps import *
from gen_main import lit
BIG = 0x7ff00000
L_EX = L_SCR
L_R = L_SCR + 16384
L_ST2 = L_SCR + 20480
L_OUT = L_SCR

def global_arrive(g):
    a = g.s_a; t0, t1 = g.v_t0, g.v_t1
    g.wait0()
    g("s_barrier")
    g(f"s_add_u32 {g.s_lep}, {g.s_lep}, 1")
    sk = g.label("ga")
    g(f"s_cmp_lg_u32 {g.s_w}, 0\ns_cbranch_scc1 {sk}")
    g(f"v_mov_b32 {t1}, {g.s_lep}\ns_mov_b64 {g.s_ex}, exec\ns_mov_b64 exec, 1")
    g.lines.append(f"buffer_store_dword {t1}, {g.v_lfown}, {g.q_ws}, 0 offen" + g.sc)
    g(f"s_mov_b64 exec, {g.s_ex}")
    g(f"s_cmp_lg_u32 {g.s_j}, 31\ns_cbranch_scc1 {sk}")
    g.poll_ge(g.v_lfall, g.s_lep, "sc1")
    g(f"s_lshl_b32 {a[0]}, {g.s_tb}, 7\ns_add_u32 {a[0]}, {a[0]}, {GL}\ns_add_u32 {a[1]}, {g.s_layer}, 1")
    g(f"v_mov_b32 {t0}, {a[0]}\nv_mov_b32 {t1}, {a[1]}\ns_mov_b64 {g.s_ex}, exec\ns_mov_b64 exec, 1")
    g.lines.append(f"buffer_store_dword {t1}, {t0}, {g.q_ws}, 0 offen sc1")
    g(f"s_mov_b64 exec, {g.s_ex}")
    g(f"{sk}:")

def global_wait(g):
    a = g.s_a; t1 = g.v_t1
    sk = g.label("gw")
    g(f"s_cmp_lg_u32 {g.s_w}, 0\ns_cbranch_scc1 {sk}")
    va = g.vv("gwa")
    g(f"v_and_b32 {va}, 7, {g.v_lane}\nv_lshlrev_b32 {va}, 7, {va}\nv_add_u32 {va}, {GL}, {va}\ns_add_u32 {a[1]}, {g.s_layer}, 1")
    g.poll_ge(va, a[1], "sc1")
    g.V.free(va)
    g(f"{sk}:")
    g("s_barrier")
    g.vm = []; g.lg = []

def b1(g):
    a = g.s_a; t0, t1 = g.v_t0, g.v_t1; L = g.v_lane; V = g.V
    g.c("==== B1 ====")
    n15, gq = g.vv("n15"), g.vv("gq")
    g(f"v_and_b32 {n15}, 15, {L}\nv_lshrrev_b32 {gq}, 4, {L}")
    va, vs = g.vv("va"), g.vv("vs")
    g(f"s_lshl_b32 {a[0]}, {g.s_j}, 1\ns_sub_u32 {a[0]}, {a[0]}, 1\ns_mov_b32 {a[1]}, 1")
    g(f"s_cmp_eq_u32 {g.s_j}, 0\ns_cselect_b32 {a[0]}, 0, {a[0]}\ns_cselect_b32 {a[1]}, 0, {a[1]}")
    g(f"s_cmp_eq_u32 {g.s_j}, 20\ns_cselect_b32 {a[1]}, 0, {a[1]}")
    g(f"v_lshrrev_b32 {t0}, 1, {gq}\nv_mul_u32_u24 {t0}, {a[1]}, {t0}\nv_add_u32 {t0}, {a[0]}, {t0}")
    g(f"v_lshlrev_b32 {va}, 13, {t0}\nv_and_b32 {t0}, 1, {gq}\nv_lshl_add_u32 {va}, {t0}, 12, {va}")
    g(f"s_lshl_b32 {a[2]}, {g.s_w}, 8\nv_lshl_add_u32 {va}, {n15}, 2, {va}\nv_add_u32 {va}, {a[2]}, {va}")
    g(f"s_lshl_b32 {a[2]}, {g.s_w}, 12\nv_lshlrev_b32 {vs}, 6, {L}\nv_add_u32 {vs}, {a[2]}, {vs}")
    sg, ss = g.sv("sg"), g.sv("ss")
    g(f"s_mul_i32 {sg}, {g.s_tb}, {GSZ}\ns_add_u32 {sg}, {sg}, {g.s_gb}\ns_mul_i32 {ss}, {g.s_tb}, {STSZ}\ns_add_u32 {ss}, {ss}, {g.s_stb}")
    g.local_barrier(g.fast)
    g.stamp(23)
    done = g.label("b1d")
    g(f"s_cmp_gt_u32 {g.s_j}, 20\ns_cbranch_scc1 {done}")
    g.vm = []; g.lg = []
    st = g.vv("st", 16, 4); ga = g.vv("ga", 16, 4)
    for q in range(4): g(f"buffer_load_dwordx4 {st[4*q:4*q+4]}, {vs}, {g.q_ws}, {ss} offen offset:{16*q}")
    ms = g.vm_mark()
    gm = []
    for aa in range(4):
        for dd in range(4):
            g(f"buffer_load_dword {ga[4*aa+dd]}, {va}, {g.q_ws}, {sg} offen offset:{1024*dd + 64*aa}")
        gm.append(g.vm_mark())
    g.wait(vm=ms)
    for q in range(1, 8):
        g(f"v_pk_add_f32 {st[0:2]}, {st[0:2]}, {st[2*q:2*q+2]}")
    g(f"v_mul_f32 {st[0]}, {lit(1/640)}, {st[0]}\nv_mul_f32 {st[1]}, {lit(1/640)}, {st[1]}")
    g(f"v_fma_f32 {st[1]}, -{st[0]}, {st[0]}, {st[1]}\nv_add_f32 {st[1]}, {lit(1e-5)}, {st[1]}\nv_rsq_f32 {st[1]}, {st[1]}")
    g(f"s_lshl_b32 {a[2]}, {g.s_w}, 8\ns_add_u32 {a[2]}, {a[2]}, {L_R}\nv_lshlrev_b32 {t0}, 2, {L}\nv_add_u32 {t0}, {a[2]}, {t0}")
    g(f"ds_write_b32 {t0}, {st[1]}")
    g(f"v_lshlrev_b32 {t1}, 4, {gq}\nv_add_u32 {t1}, {a[2]}, {t1}")
    g.wait0(vm=False)
    rr = st
    for aa in range(4): g(f"ds_read_b128 {rr[4*aa:4*aa+4]}, {t1} offset:{64*aa}")
    mr = g.lg_mark()
    dre, dim = g.vv("dre", 16, 4), g.vv("dim", 16, 4)
    for aa in range(4):
        g.wait(vm=gm[aa])
        g(f"v_mfma_f32_16x16x32_bf16 {dre[4*aa:4*aa+4]}, {ga[4*aa:4*aa+4]}, {g.a_h2[0:4]}, 0")
        g(f"v_mfma_f32_16x16x32_bf16 {dim[4*aa:4*aa+4]}, {ga[4*aa:4*aa+4]}, {g.a_h2[4:8]}, 0")
    g.wait(lg=mr)
    ub = ga
    for aa in range(4):
        for h in range(2):
            g(f"v_pk_mul_f32 {dre[4*aa+2*h:4*aa+2*h+2]}, {dre[4*aa+2*h:4*aa+2*h+2]}, {rr[4*aa+2*h:4*aa+2*h+2]}")
            g(f"v_pk_mul_f32 {dim[4*aa+2*h:4*aa+2*h+2]}, {dim[4*aa+2*h:4*aa+2*h+2]}, {rr[4*aa+2*h:4*aa+2*h+2]}")
        g(f"v_cvt_pk_bf16_f32 {ub[4*aa]}, {dre[4*aa]}, {dre[4*aa+1]}\nv_cvt_pk_bf16_f32 {ub[4*aa+1]}, {dre[4*aa+2]}, {dre[4*aa+3]}")
        g(f"v_cvt_pk_bf16_f32 {ub[4*aa+2]}, {dim[4*aa]}, {dim[4*aa+1]}\nv_cvt_pk_bf16_f32 {ub[4*aa+3]}, {dim[4*aa+2]}, {dim[4*aa+3]}")
    for aa in range(4):
        g(f"v_mfma_f32_16x16x32_bf16 {dre[4*aa:4*aa+4]}, {g.a_s1[0:4]}, {ub[4*aa:4*aa+4]}, 0")
        g(f"v_mfma_f32_16x16x32_bf16 {dim[4*aa:4*aa+4]}, {g.a_s1[4:8]}, {ub[4*aa:4*aa+4]}, 0")
    g(f"v_lshlrev_b32 {t0}, 12, {gq}\nv_lshl_add_u32 {t0}, {n15}, 6, {t0}\ns_lshl_b32 {a[2]}, {g.s_w}, 4\ns_add_u32 {a[2]}, {a[2]}, {L_EX}\nv_add_u32 {t0}, {a[2]}, {t0}")
    for r in range(4):
        p = st[4*r:4*r+4]
        g(f"v_cvt_pk_bf16_f32 {p[0]}, {dre[r]}, {dre[4+r]}\nv_cvt_pk_bf16_f32 {p[1]}, {dre[8+r]}, {dre[12+r]}")
        g(f"v_cvt_pk_bf16_f32 {p[2]}, {dim[r]}, {dim[4+r]}\nv_cvt_pk_bf16_f32 {p[3]}, {dim[8+r]}, {dim[12+r]}")
        g(f"ds_write_b128 {t0}, {p} offset:{1024*r}")
    g.wait0(vm=False)
    g("s_barrier")
    g(f"s_lshl_b32 {a[2]}, {g.s_w}, 12\ns_add_u32 {a[2]}, {a[2]}, {L_EX}\nv_lshlrev_b32 {t0}, 6, {n15}\nv_lshl_add_u32 {t0}, {gq}, 4, {t0}\nv_add_u32 {t0}, {a[2]}, {t0}")
    for q in range(4): g(f"ds_read_b128 {ub[4*q:4*q+4]}, {t0} offset:{1024*q}")
    g.wait0(vm=False)
    for q in range(4):
        g(f"v_mfma_f32_16x16x32_bf16 {dre[4*q:4*q+4]}, {g.a_s2[8*q:8*q+4]}, {ub[4*q:4*q+4]}, 0")
        g(f"v_mfma_f32_16x16x32_bf16 {dim[4*q:4*q+4]}, {g.a_s2[8*q+4:8*q+8]}, {ub[4*q:4*q+4]}, 0")
    g(f"s_mul_i32 {a[2]}, {g.s_tb}, {ZSZ}\ns_add_u32 {a[2]}, {a[2]}, {g.s_zb}\ns_lshl_b32 {a[3]}, {g.s_j}, 14\ns_add_u32 {a[2]}, {a[2]}, {a[3]}")
    g(f"s_lshl_b32 {a[3]}, {g.s_w}, 12\ns_add_u32 {a[2]}, {a[2]}, {a[3]}\nv_lshlrev_b32 {t1}, 2, {L}")
    for q in range(4):
        for r in range(4):
            g(f"v_cvt_pk_bf16_f32 {st[4*q+r]}, {dre[4*q+r]}, {dim[4*q+r]}")
            g(f"buffer_store_dword {st[4*q+r]}, {t1}, {g.q_ws}, {a[2]} offen offset:{(q*4+r)*256} sc1")
    V.free(st, ga, dre, dim)
    g(f"{done}:")
    V.free(n15, gq, va, vs); g.S.free(sg, ss)
    g.stamp(24)
    global_arrive(g)
    g.stamp(25)

def b2(g, lay):
    a = g.s_a; t0, t1 = g.v_t0, g.v_t1; L = g.v_lane; V = g.V; sc = g.sc
    g.c("==== B2 ====")
    n15, gq = g.vv("n15"), g.vv("gq")
    g(f"v_and_b32 {n15}, 15, {L}\nv_lshrrev_b32 {gq}, 4, {L}")
    vd, vm_ = g.vv("vd"), g.vv("vmir"); tau = g.vv("tau")
    g(f"s_lshl_b32 {a[0]}, {g.s_j}, 3\ns_add_u32 {a[0]}, {a[0]}, {g.s_tb}")
    for mir, dst in ((0, vd), (1, vm_)):
        g(f"v_lshrrev_b32 {tau}, 1, {gq}\nv_lshlrev_b32 {tau}, 7, {tau}\nv_add_u32 {tau}, {a[0]}, {tau}")
        if mir: g(f"v_sub_u32 {tau}, 256, {tau}\nv_and_b32 {tau}, 255, {tau}")
        g(f"v_and_b32 {t0}, 15, {tau}\nv_lshlrev_b32 {dst}, 10, {t0}")
        g(f"v_bfe_u32 {t0}, {tau}, 4, 2\nv_lshl_add_u32 {dst}, {t0}, 8, {dst}")
        g(f"v_lshrrev_b32 {t0}, 6, {tau}\nv_lshl_add_u32 {dst}, {t0}, 6, {dst}")
        if mir: g(f"v_and_b32 {t0}, 8, {n15}\nv_and_b32 {t1}, 7, {n15}\nv_sub_u32 {t1}, 7, {t1}\nv_add_u32 {t0}, {t0}, {t1}\nv_lshl_add_u32 {dst}, {t0}, 2, {dst}")
        else: g(f"v_lshl_add_u32 {dst}, {n15}, 2, {dst}")
        g(f"v_and_b32 {t0}, 1, {gq}\ns_mov_b32 {a[1]}, {4*ZSZ}\nv_mul_lo_u32 {t0}, {t0}, {a[1]}\nv_add_u32 {dst}, {dst}, {t0}")
    V.free(tau)
    vx = g.vv("vx")
    g(f"s_lshr_b32 {a[1]}, {g.s_j}, 1\ns_mul_i32 {a[1]}, {a[1]}, 40960\ns_and_b32 {a[2]}, {g.s_j}, 1\ns_lshl_b32 {a[2]}, {a[2]}, 8\ns_add_u32 {a[1]}, {a[1]}, {a[2]}")
    g(f"s_mul_i32 {a[2]}, {g.s_w}, 10240\ns_add_u32 {a[1]}, {a[1]}, {a[2]}\ns_mul_i32 {a[2]}, {g.s_tb}, {XSZ}\ns_add_u32 {a[1]}, {a[1]}, {a[2]}")
    g(f"v_lshlrev_b32 {vx}, 4, {n15}\nv_lshrrev_b32 {t0}, 1, {gq}\nv_lshl_add_u32 {vx}, {t0}, 9, {vx}\nv_and_b32 {t0}, 1, {gq}\nv_lshl_add_u32 {vx}, {t0}, 3, {vx}\nv_add_u32 {vx}, {a[1]}, {vx}")
    done = g.label("b2d")
    act = g.sv("act")
    g(f"s_cmp_lt_u32 {g.s_j}, 16\ns_cselect_b32 {act}, 1, 0")
    xr = g.vv("xr", 20, 2)
    sk = g.label("b2p")
    g(f"s_cmp_eq_u32 {act}, 0\ns_cbranch_scc1 {sk}")
    for bl in range(10):
        g(f"s_add_u32 {a[2]}, {g.s_x1}, {1024*bl}")
        g.lines.append(f"buffer_load_dwordx2 {xr[2*bl:2*bl+2]}, {vx}, {g.q_ws}, {a[2]} offen")
    g.lines.append("s_waitcnt vmcnt(0)")
    g(f"{sk}:")
    global_wait(g)
    g.stamp(26)
    g(f"s_cmp_eq_u32 {act}, 0\ns_cbranch_scc1 {done}")
    za = g.vv("za", 48, 4); y = g.vv("y", 40, 4)
    marks = []
    sb, su = g.sv("sb"), g.sv("su")
    for bl in range(10):
        g(f"s_mul_i32 {sb}, {g.s_w}, 10\ns_add_u32 {sb}, {sb}, {bl}")
        g(f"s_sub_u32 {su}, {sb}, 20\ns_cmp_gt_u32 {sb}, 20\ns_cselect_b32 {su}, {su}, {sb}")
        g(f"s_lshl_b32 {su}, {su}, 14\ns_add_u32 {su}, {su}, {g.s_zb}")
        g(f"s_cselect_b32 {a[3]}, 1, 0") if False else None
        g(f"s_cmp_gt_u32 {sb}, 20\ns_cselect_b64 vcc, -1, 0\nv_cndmask_b32 {t0}, {vd}, {vm_}, vcc")
        for dd in range(4):
            g(f"buffer_load_dword {za[16*bl+dd]}, {t0}, {g.q_ws}, {su} offen") if False else None
            g(f"buffer_load_dword {za[4*bl+dd]}, {t0}, {g.q_ws}, {su} offen")
            if dd < 3: g(f"s_add_u32 {su}, {su}, {ZSZ}")
        marks.append(g.vm_mark())
    bc = g.vv("bc", 8, 4)
    for q in range(8): g(f"v_accvgpr_read_b32 {bc[q]}, {g.a_b2[q]}")
    cur = g.vv("cur", 4, 4)
    for bl in range(10):
        g(f"s_mul_i32 {sb}, {g.s_w}, 10\ns_add_u32 {sb}, {sb}, {bl}\ns_cmp_gt_u32 {sb}, 20\ns_cselect_b64 vcc, -1, 0")
        for q in range(4): g(f"v_cndmask_b32 {cur[q]}, {bc[q]}, {bc[4+q]}, vcc")
        g.wait(vm=marks[bl])
        g(f"v_mfma_f32_16x16x32_bf16 {y[4*bl:4*bl+4]}, {za[4*bl:4*bl+4]}, {cur}, 0")
        g("s_nop 3")
    V.free(bc, cur)
    xf = g.vv("xf", 4); sm, sq = g.vv("sm", 2, 2), g.vv("sq", 2, 2)
    for bl in range(10):
        g(f"v_lshlrev_b32 {xf[0]}, 16, {xr[2*bl]}\nv_and_b32 {xf[1]}, 0xffff0000, {xr[2*bl]}\nv_lshlrev_b32 {xf[2]}, 16, {xr[2*bl+1]}\nv_and_b32 {xf[3]}, 0xffff0000, {xr[2*bl+1]}")
        g(f"v_pk_add_f32 {y[4*bl:4*bl+2]}, {y[4*bl:4*bl+2]}, {xf[0:2]}\nv_pk_add_f32 {y[4*bl+2:4*bl+4]}, {y[4*bl+2:4*bl+4]}, {xf[2:4]}")
    x2p = za[0:20]
    for q in range(20): g(f"v_cvt_pk_bf16_f32 {x2p[q]}, {y[2*q]}, {y[2*q+1]}")
    last = g.label("b2last"); join = g.label("b2join")
    g(f"s_cmp_lg_u32 {g.s_layer}, 0\ns_cbranch_scc1 {last}")
    for bl in range(10):
        g(f"s_add_u32 {a[2]}, {X_IN[1]}, 0") if bl == 0 else None
        g.lines.append(f"buffer_store_dwordx2 {x2p[2*bl:2*bl+2]}, {vx}, {g.q_ws}, {a[2]} offen{sc}")
        g(f"s_add_u32 {a[2]}, {a[2]}, 1024")
    g(f"v_pk_add_f32 {sm}, {y[0:2]}, {y[2:4]}\nv_pk_mul_f32 {sq}, {y[0:2]}, {y[0:2]}\nv_pk_fma_f32 {sq}, {y[2:4]}, {y[2:4]}, {sq}")
    for q in range(2, 20):
        g(f"v_pk_add_f32 {sm}, {sm}, {y[2*q:2*q+2]}\nv_pk_fma_f32 {sq}, {y[2*q:2*q+2]}, {y[2*q:2*q+2]}, {sq}")
    g(f"v_add_f32 {sm[0]}, {sm[0]}, {sm[1]}\nv_add_f32 {sm[1]}, {sq[0]}, {sq[1]}")
    for x in (sm[0], sm[1]):
        g.xq16(x, t0, "v_add_f32"); g.xhalf(x, t0, "v_add_f32")
    g(f"s_lshl_b32 {a[2]}, {g.s_w}, 7\ns_add_u32 {a[2]}, {a[2]}, {L_ST2}\nv_lshlrev_b32 {t1}, 3, {n15}\nv_add_u32 {t0}, {a[2]}, {t1}")
    g.lines.append(f"ds_write_b64 {t0}, {sm}")
    g.lines.append("s_waitcnt lgkmcnt(0)")
    g("s_barrier")
    g(f"v_add_u32 {t1}, {L_ST2}, {t1}")
    pr = za[20:28]
    for w in range(4): g.lines.append(f"ds_read_b64 {pr[2*w:2*w+2]}, {t1} offset:{128*w}")
    g.lines.append("s_waitcnt lgkmcnt(0)")
    g(f"v_pk_add_f32 {pr[0:2]}, {pr[0:2]}, {pr[2:4]}\nv_pk_add_f32 {pr[4:6]}, {pr[4:6]}, {pr[6:8]}\nv_pk_add_f32 {sm}, {pr[0:2]}, {pr[4:6]}")
    g(f"v_mul_f32 {sm[0]}, {lit(1/640)}, {sm[0]}\nv_mul_f32 {sm[1]}, {lit(1/640)}, {sm[1]}")
    g(f"v_fma_f32 {sq[0]}, -{sm[0]}, {sm[0]}, {sm[1]}\nv_add_f32 {sq[0]}, {lit(1e-5)}, {sq[0]}\nv_rsq_f32 {sq[0]}, {sq[0]}")
    g(f"v_mul_f32_e64 {sm[0]}, -{sm[0]}, {sq[0]}")
    for q in range(20):
        g(f"v_pk_fma_f32 {y[2*q:2*q+2]}, {y[2*q:2*q+2]}, {sq}, {sm} op_sel_hi:[1,0,0]")
    xn = za[28:48]
    for q in range(20): g(f"v_cvt_pk_bf16_f32 {xn[q]}, {y[2*q]}, {y[2*q+1]}")
    g(f"s_mov_b32 {a[2]}, {XN_IN[1]}")
    for bl in range(10):
        g.lines.append(f"buffer_store_dwordx2 {xn[2*bl:2*bl+2]}, {vx}, {g.q_ws}, {a[2]} offen{sc}")
        g(f"s_add_u32 {a[2]}, {a[2]}, 1024")
    g(f"s_branch {join}")
    g(f"{last}:")
    ad = y[0]; e2c = y[1]; cod = y[2]
    for bl in range(10):
        g(f"s_mul_i32 {sb}, {g.s_w}, 20\ns_add_u32 {sb}, {sb}, {2*bl}\nv_lshrrev_b32 {cod}, 1, {gq}\nv_add_u32 {cod}, {sb}, {cod}")
        g(f"v_subrev_u32 {e2c}, 1, {cod}\nv_sub_u32 {t0}, 121, {cod}")
        g(f"v_cmp_lt_u32 vcc, 41, {cod}\nv_cndmask_b32 {e2c}, {e2c}, {t0}, vcc")
        g(f"v_cmp_eq_u32 vcc, 0, {cod}\nv_cndmask_b32_e64 {e2c}, {e2c}, 0, vcc")
        g(f"v_cmp_eq_u32 vcc, 1, {cod}\nv_cndmask_b32_e64 {e2c}, {e2c}, 40, vcc")
        g(f"v_cmp_eq_u32 vcc, 41, {cod}\nv_cndmask_b32_e64 {e2c}, {e2c}, 41, vcc")
        g(f"v_and_b32 {t0}, 1, {gq}\nv_mul_u32_u24 {t0}, 320, {t0}\nv_add_u32 {e2c}, {e2c}, {t0}")
        g(f"v_mul_u32_u24 {ad}, 1296, {n15}\nv_lshl_add_u32 {ad}, {e2c}, 1, {ad}\nv_add_u32 {ad}, {L_OUT}, {ad}")
        g.lines.append(f"ds_write_b16 {ad}, {x2p[2*bl]}")
        g.lines.append(f"ds_write_b16_d16_hi {ad}, {x2p[2*bl]} offset:160")
        g.lines.append(f"ds_write_b16 {ad}, {x2p[2*bl+1]} offset:320")
        g.lines.append(f"ds_write_b16_d16_hi {ad}, {x2p[2*bl+1]} offset:480")
    g.lines.append("s_waitcnt lgkmcnt(0)")
    g("s_barrier")
    q_out = g.q_in
    g.srd(q_out, g.p_in[8], g.p_in[9], S * 1280)
    ro = y[4:24]; oa = y[24]; la = y[25]
    g(f"v_lshrrev_b32 {t0}, 4, v0\nv_and_b32 {t1}, 15, v0\nv_mul_u32_u24 {la}, 1296, {t0}\nv_lshl_add_u32 {la}, {t1}, 4, {la}\nv_add_u32 {la}, {L_OUT}, {la}")
    g(f"s_lshl_b32 {a[2]}, {g.s_j}, 3\ns_add_u32 {a[2]}, {a[2]}, {g.s_tb}\nv_lshlrev_b32 {t0}, 7, {t0}\nv_add_u32 {t0}, {a[2]}, {t0}\nv_mul_u32_u24 {oa}, 1280, {t0}\nv_lshl_add_u32 {oa}, {t1}, 4, {oa}")
    for c in range(5): g.lines.append(f"ds_read_b128 {ro[4*c:4*c+4]}, {la} offset:{256*c}")
    g.lines.append("s_waitcnt lgkmcnt(0)")
    for c in range(5): g.lines.append(f"buffer_store_dwordx4 {ro[4*c:4*c+4]}, {oa}, {q_out}, 0 offen offset:{256*c} sc1")
    g(f"{join}:")
    V.free(za, y, xf, sm, sq); g.S.free(sb, su)
    g(f"{done}:")
    V.free(n15, gq, vd, vm_, vx, xr); g.S.free(act)
    g.stamp(27)
    fin = g.label("fin")
    g(f"s_cmp_lg_u32 {g.s_layer}, 0\ns_cbranch_scc1 {fin}")
    g.local_barrier(g.fast)
    g.stamp(28)
    g(f"s_mov_b32 {g.s_layer}, 1")
    g(f"s_branch {lay}")
    g(f"{fin}:")
```

```python
from emit import *
from maps import *
from gen_main import lit, f2u, LOG2E
BIG = 0x7ff00000
NR = 12
DUMMY = L_MISC + 512

def drain(gen):
    for _ in gen: pass

def p1_setup(g):
    t0, t1 = g.v_t0, g.v_t1; V = g.V; a = g.s_a; L = g.v_lane
    g.v_Aq = g.vv("Aq", 2); g.v_Ak = g.vv("Ak", 2)
    g.v_x16 = g.vv("x16")
    g.v_img = g.vv("img"); g.v_vA = g.vv("vA"); g.v_vC = g.vv("vC"); g.v_T = g.vv("vT"); g.v_K = g.vv("vK")
    r, c, khh, ch = g.vv("r"), g.vv("c"), g.vv("khh"), g.vv("ch")
    g(f"v_bfe_u32 {r}, {L}, 2, 2\nv_and_b32 {c}, 3, {L}\nv_lshrrev_b32 {khh}, 5, {L}\nv_bfe_u32 {ch}, {L}, 4, 1")
    g(f"v_lshl_add_u32 {t0}, {khh}, 3, {r}")
    g(f"v_lshlrev_b32 {t1}, 5, {ch}\nv_lshl_add_u32 {t1}, {c}, 3, {t1}")
    g(f"v_lshl_add_u32 {g.v_Aq[0]}, {t0}, 7, {t1}")
    g(f"v_mul_u32_u24 {g.v_T}, 192, {t0}\nv_add_u32 {g.v_T}, {g.v_T}, {t1}")
    g(f"v_bfe_u32 {t0}, {L}, 3, 1\nv_lshl_add_u32 {g.v_Aq[0]}, {t0}, 6, {g.v_Aq[0]}")
    g(f"v_xor_b32 {g.v_Ak[0]}, 64, {g.v_Aq[0]}")
    g(f"v_add_u32 {g.v_Aq[1]}, 0x10000, {g.v_Aq[0]}\nv_add_u32 {g.v_Ak[1]}, 0x10000, {g.v_Ak[0]}")
    g(f"s_mul_i32 {a[0]}, {g.s_w}, 12288\ns_add_u32 {a[0]}, {a[0]}, {L_SCR}")
    g(f"v_add_u32 {g.v_T}, {a[0]}, {g.v_T}")
    g(f"v_lshlrev_b32 {g.v_x16}, 4, {L}")
    g(f"v_and_b32 {t0}, 31, {L}\nv_mul_u32_u24 {t1}, 192, {t0}\nv_add_u32 {t1}, {a[0]}, {t1}")
    g(f"v_lshl_add_u32 {g.v_img}, {khh}, 5, {t1}")
    g(f"v_lshl_add_u32 {g.v_vA}, {khh}, 3, {t1}\nv_add_u32 {g.v_vA}, 136, {g.v_vA}")
    g(f"v_cmp_eq_u32 vcc, 0, {khh}\nv_cndmask_b32_e64 {g.v_vC}, 0, 40, vcc\nv_add_u32 {g.v_vC}, {g.v_vC}, {t1}\nv_add_u32 {g.v_vC}, 128, {g.v_vC}")
    g(f"s_mul_i32 {a[1]}, {g.s_w}, 12288\ns_add_u32 {a[1]}, {a[1]}, {L_KVS}")
    g(f"v_mul_u32_u24 {g.v_K}, 384, {khh}\nv_lshl_add_u32 {g.v_K}, {t0}, 2, {g.v_K}\nv_add_u32 {g.v_K}, {a[1]}, {g.v_K}")
    V.free(r, c, khh, ch)
    z = g.vv("z", 4)
    for i in range(4): g(f"v_mov_b32 {z[i]}, 0")
    g(f"v_lshlrev_b32 {t0}, 4, v0\nv_add_u32 {t0}, {L_KVA}, {t0}")
    g(f"v_cmp_gt_u32 vcc, 192, v0\nv_mov_b32 {t1}, {DUMMY}\nv_cndmask_b32 {t0}, {t1}, {t0}, vcc")
    g(f"ds_write_b128 {t0}, {z}")
    V.free(z)
    g.s_l2e = g.sv("l2e"); g.s_hi = g.sv("hi", 2); g.v_one = g.vv("one")
    g(f"s_mov_b32 {g.s_l2e}, {lit(LOG2E)}\ns_mov_b32 {g.s_hi[0]}, 0\ns_mov_b32 {g.s_hi[1]}, -1\nv_mov_b32 {g.v_one}, 0x3f80")

def ga_setup(g):
    t0, t1 = g.v_t0, g.v_t1; V = g.V
    g.v_ga = g.vv("ga", 4); g.v_ga3 = g.vv("gaz")
    row, q, kh, slot, c, m = g.vv("row"), g.vv("q"), g.vv("kh"), g.vv("slot"), g.vv("c"), g.vv("m")
    g(f"v_mul_u32_u24 {row}, 10923, v0\nv_lshrrev_b32 {row}, 16, {row}")
    g(f"v_mul_u32_u24 {t0}, 6, {row}\nv_sub_u32 {q}, v0, {t0}")
    g(f"v_cmp_lt_u32 vcc, 19, {row}\nv_cndmask_b32_e64 {kh}, 0, 1, vcc\nv_mul_u32_u24 {t0}, 20, {kh}\nv_sub_u32 {slot}, {row}, {t0}")
    g(f"v_mul_u32_u24 {kh}, 48, {kh}\nv_lshl_add_u32 {kh}, {slot}, 1, {kh}\nv_add_u32 {kh}, {L_KVA}, {kh}")
    for e in range(4):
        g(f"v_lshl_add_u32 {c}, {q}, 2, {e}")
        g(f"v_cmp_lt_u32 vcc, 9, {c}\nv_cndmask_b32_e64 {t0}, 0, 1, vcc\nv_mul_u32_u24 {t1}, 10, {t0}\nv_sub_u32 {t1}, {c}, {t1}")
        g(f"v_lshrrev_b32 {m}, 2, {t1}\nv_lshlrev_b32 {m}, 3, {m}\nv_lshl_add_u32 {m}, {t0}, 2, {m}\nv_and_b32 {t1}, 3, {t1}\nv_add_u32 {m}, {m}, {t1}")
        g(f"v_cmp_eq_u32 vcc, 20, {c}\nv_cndmask_b32_e64 {m}, {m}, 18, vcc")
        g(f"v_mul_u32_u24 {g.v_ga[e]}, 96, {m}\nv_add_u32 {g.v_ga[e]}, {g.v_ga[e]}, {kh}")
        g(f"v_mov_b32 {t1}, {DUMMY}\nv_cmp_lt_u32 vcc, 20, {c}\nv_cndmask_b32 {g.v_ga[e]}, {g.v_ga[e]}, {t1}, vcc")
        g(f"v_cmp_lt_u32 vcc, 239, v0\nv_cndmask_b32 {g.v_ga[e]}, {g.v_ga[e]}, {t1}, vcc")
    g(f"v_add_u32 {g.v_ga3}, 384, {g.v_ga[0]}\nv_mov_b32 {t1}, {DUMMY}\nv_cmp_ne_u32 vcc, 5, {q}\nv_cndmask_b32 {g.v_ga3}, {g.v_ga3}, {t1}, vcc")
    g(f"v_cmp_lt_u32 vcc, 239, v0\nv_cndmask_b32 {g.v_ga3}, {g.v_ga3}, {t1}, vcc")
    V.free(row, q, kh, slot, c, m)

def set_layer(g):
    for nm, arr in (("s_xn", XN_IN), ("s_xr", X_IN), ("s_kvb", KVB), ("s_ob", OB), ("s_x1", X1), ("s_gb", GB), ("s_stb", STB), ("s_zb", ZB)):
        if not hasattr(g, nm) or getattr(g, nm) is None: setattr(g, nm, g.sv(nm))
        r = getattr(g, nm)
        g(f"s_cmp_eq_u32 {g.s_layer}, 0\ns_cselect_b32 {r}, {arr[0]}, {arr[1]}") if False else None
        g(f"s_mul_i32 {r}, {g.s_layer}, {arr[1] - arr[0]}\ns_add_u32 {r}, {r}, {arr[0]}")

def softmax_gen(g, acc, pk, outp, outm, T):
    d2, ep, em = T["d2"], T["ep"], T["em"]
    mx, mn, t2, sp, sm_ = T["mx"], T["mn"], T["t2"], T["sp"], T["sm"]
    for q in range(8):
        g(f"v_cvt_pk_bf16_f32 {pk[q]}, {acc[2*q]}, {acc[2*q+1]}"); yield
    g(f"v_mfma_f32_32x32x16_bf16 {d2}, {g.v_phi[0:4]}, {pk[0:4]}, 0"); yield
    g(f"v_mfma_f32_32x32x16_bf16 {d2}, {g.v_phi[4:8]}, {pk[4:8]}, {d2}"); yield
    yield "gap"
    g(f"v_max3_f32 {mx}, {d2[0]}, {d2[1]}, {d2[2]}"); yield
    g(f"v_min3_f32 {mn}, {d2[0]}, {d2[1]}, {d2[2]}"); yield
    for i in (3, 5, 7):
        g(f"v_max3_f32 {mx}, {mx}, {d2[i]}, {d2[i+1]}"); yield
        g(f"v_min3_f32 {mn}, {mn}, {d2[i]}, {d2[i+1]}"); yield
    g(f"v_max_f32 {mx}, {mx}, {d2[9]}"); yield
    g(f"v_min_f32 {mn}, {mn}, {d2[9]}"); yield
    g(f"v_mov_b32 {t2}, {mx}"); yield
    g(f"v_mov_b32 {sp}, {mn}"); yield
    g(f"v_permlane32_swap_b32 {t2}, {mx}"); yield
    g(f"v_permlane32_swap_b32 {sp}, {mn}"); yield
    g(f"v_max_f32 {mx}, {mx}, {t2}"); yield
    g(f"v_min_f32 {mn}, {mn}, {sp}"); yield
    g(f"v_mul_f32 {mx}, {lit(-LOG2E)}, {mx}"); yield
    g(f"v_mul_f32 {mn}, {lit(LOG2E)}, {mn}"); yield
    for i in range(10):
        g(f"v_fma_f32 {ep[i]}, {d2[i]}, {g.s_l2e}, {mx}"); yield
        g(f"v_fma_f32 {em[i]}, {d2[i]}, -{g.s_l2e}, {mn}"); yield
    for i in range(10):
        g(f"v_exp_f32 {ep[i]}, {ep[i]}"); yield
        g(f"v_exp_f32 {em[i]}, {em[i]}"); yield
    for e, s in ((ep, sp), (em, sm_)):
        g(f"v_pk_add_f32 {d2[0:2]}, {e[0:2]}, {e[2:4]}"); yield
        g(f"v_pk_add_f32 {d2[2:4]}, {e[4:6]}, {e[6:8]}"); yield
        g(f"v_pk_add_f32 {d2[0:2]}, {d2[0:2]}, {e[8:10]}"); yield
        g(f"v_pk_add_f32 {d2[0:2]}, {d2[0:2]}, {d2[2:4]}"); yield
        g(f"v_add_f32 {s}, {d2[0]}, {d2[1]}"); yield
    g(f"v_mov_b32 {t2}, {sp}"); yield
    g(f"v_mov_b32 {mx}, {sm_}"); yield
    g(f"v_permlane32_swap_b32 {t2}, {sp}"); yield
    g(f"v_permlane32_swap_b32 {mx}, {sm_}"); yield
    g(f"v_add_f32 {sp}, {sp}, {t2}"); yield
    g(f"v_add_f32 {sm_}, {sm_}, {mx}"); yield
    g(f"v_rcp_f32 {d2[0]}, {sp}"); yield
    g(f"v_rcp_f32 {d2[2]}, {sm_}"); yield
    for e, k in ((ep, 0), (em, 2)):
        for i in range(5):
            g(f"v_pk_mul_f32 {e[2*i:2*i+2]}, {e[2*i:2*i+2]}, {d2[k:k+2]} op_sel_hi:[1,0]"); yield
    for i in range(5):
        g(f"v_cvt_pk_bf16_f32 {outp[i]}, {ep[2*i]}, {ep[2*i+1]}"); yield
        g(f"v_cvt_pk_bf16_f32 {outm[i]}, {em[2*i]}, {em[2*i+1]}"); yield

def k_epilogue_gen(g, pi, Aq, Ak, pq, T, KV):
    pk, fo = T["pk"], T["fo"]
    for q in range(8):
        g(f"v_cvt_pk_bf16_f32 {pq[q]}, {Aq[2*q]}, {Aq[2*q+1]}"); yield
    yield from softmax_gen(g, Ak, pk, fo[0:5], fo[6:11], T)
    ro = pi * 32 * 192
    c0, c1 = T["mx"], T["mn"]
    g(f"v_cndmask_b32_e64 {c0}, {g.v_one}, {pq[4]}, {g.s_hi}"); yield
    g(f"v_cndmask_b32_e64 {c1}, 0, {pq[5]}, {g.s_hi}"); yield
    g(f"ds_write_b128 {g.v_img}, {fo[0:4]} offset:{ro}"); yield
    g(f"ds_write_b32 {g.v_img}, {fo[4]} offset:{ro + 16}"); yield
    g(f"ds_write_b128 {g.v_img}, {fo[6:10]} offset:{ro + 64}"); yield
    g(f"ds_write_b32 {g.v_img}, {fo[10]} offset:{ro + 80}"); yield
    g(f"ds_write_b64 {g.v_vA}, {pq[6:8]} offset:{ro}"); yield
    g(f"ds_write_b64 {g.v_vA}, {pk[6:8]} offset:{ro + 16}"); yield
    g(f"ds_write_b64 {g.v_vC}, {T['cc']} offset:{ro}"); yield
    mk = g.lg_mark()
    yield "gap"
    fa = T["fa"]
    for ks in range(2):
        rb = (32 * pi + 16 * ks) * 192
        if ks == 0: g.wait(lg=mk); yield
        for tile in range(3):
            for t in range(2):
                g(f"ds_read_b64_tr_b16 {fa[4*tile+2*t:4*tile+2*t+2]}, {g.v_T} offset:{rb + 4*t*192 + 64*tile}"); yield
        m2 = g.lg_mark()
        yield "gap"
        g.wait(lg=m2); yield
        first = (pi == 0 and ks == 0)
        g(f"v_mfma_f32_32x32x16_bf16 {KV[0]}, {fa[0:4]}, {fa[8:12]}, {0 if first else KV[0]}"); yield
        g(f"v_mfma_f32_32x32x16_bf16 {KV[1]}, {fa[4:8]}, {fa[8:12]}, {0 if first else KV[1]}"); yield

def p1(g):
    V = g.V; a = g.s_a; t0, t1 = g.v_t0, g.v_t1; sc = g.sc
    import ph_s0
    g.c("==== P1 ====")
    g.stamp(8)
    ring = g.vv("ring", 4 * NR, 4)
    acc = [[g.vv("aq0", 16, 4), g.vv("ak0", 16, 4)], [g.vv("aq1", 16, 4), g.vv("ak1", 16, 4)]]
    fr = [g.vv("fr0", 8, 4), g.vv("fr1", 8, 4)]
    pq = [g.vv("pq0", 8, 4), g.vv("pq1", 8, 4)]
    T = dict(d2=g.vv("d2", 16, 4), ep=g.vv("ep", 10, 2), em=g.vv("em", 10, 2), pk=g.vv("pk", 8, 4), fo=g.vv("fo", 12, 4),
             fa=g.vv("fa", 12, 4), cc=g.vv("cc", 2, 2), sp=g.vv("sp"), sm=g.vv("sm"), t2=g.vv("t2"))
    T["mx"], T["mn"] = T["cc"][0], T["cc"][1]
    KV = [acc[0][0], acc[0][1]]
    sx = g.sv("sx")
    g(f"s_mul_i32 {sx}, {g.s_tb}, {XSZ}\ns_mul_i32 {a[0]}, {g.s_w}, 81920\ns_add_u32 {sx}, {sx}, {a[0]}\ns_add_u32 {sx}, {sx}, {g.s_xn}")
    marks = {}
    def xload(s):
        if s % 4 == 0 and s > 0: g(f"s_add_u32 {sx}, {sx}, 4096")
        r = ring[4 * (s % NR):4 * (s % NR) + 4]
        g(f"buffer_load_dwordx4 {r}, {g.v_x16}, {g.q_ws}, {sx} offen offset:{1024 * (s % 4)}")
        marks[s] = g.vm_mark()
    def aload(s):
        b = s % 40; f = fr[s % 2]; hi = 1 if b >= 32 else 0; off = (b - 32 * hi) * 2048
        for tile, ad in ((0, g.v_Aq), (1, g.v_Ak)):
            for t in range(2):
                g(f"ds_read_b64_tr_b16 {f[4*tile+2*t:4*tile+2*t+2]}, {ad[hi]} offset:{off + 512*t}")
        return g.lg_mark()
    for s in range(NR): xload(s)
    g.lines.append(f"s_waitcnt vmcnt({NR})")
    g("s_barrier")
    g.stamp(19)
    am = aload(0)
    filler = None
    for s in range(80):
        pi = s // 40
        if s == 40:
            g.stamp(18)
            filler = k_epilogue_gen(g, 0, acc[0][0], acc[0][1], pq[0], T, KV)
        nm = aload(s + 1) if s + 1 < 80 else None
        g.wait(vm=marks[s], lg=am)
        b = ring[4 * (s % NR):4 * (s % NR) + 4]; f = fr[s % 2]
        c0 = (s % 40 == 0)
        g(f"v_mfma_f32_32x32x16_bf16 {acc[pi][0]}, {f[0:4]}, {b}, {0 if c0 else acc[pi][0]}")
        if filler is not None and s >= 41: fill(filler, 2)
        g(f"v_mfma_f32_32x32x16_bf16 {acc[pi][1]}, {f[4:8]}, {b}, {0 if c0 else acc[pi][1]}")
        if s + NR < 80: xload(s + NR)
        if filler is not None and s >= 41: fill(filler, 3)
        am = nm
    if filler is not None: drain(filler)
    g.stamp(9)
    sk = g.label("wo")
    g(f"s_cmp_lg_u32 {g.s_layer}, 0\ns_cbranch_scc1 {sk}")
    wo_ready(g)
    g.stamp(14)
    ph_s0.load_wo(g)
    g.stamp(15)
    g(f"{sk}:")
    drain(k_epilogue_gen(g, 1, acc[1][0], acc[1][1], pq[1], T, KV))
    g.stamp(16)
    g(f"s_mov_b64 {g.s_ex}, exec\ns_mov_b32 exec_lo, 0x00ffffff\ns_mov_b32 exec_hi, 0x00ffffff")
    for sg in range(2):
        for i in (0, 2):
            for jj in range(4):
                g(f"ds_write_b32 {g.v_K}, {KV[sg][4*i+jj]} offset:{(((i>>1)*2 + sg)*10 + jj)*96}")
    g(f"s_mov_b32 exec_hi, 0")
    for sg in range(2):
        for i in (1, 3):
            for jj in range(2):
                g(f"ds_write_b32 {g.v_K}, {KV[sg][4*i+jj]} offset:{(((i>>1)*2 + sg)*10 + 8 + jj)*96}")
    g(f"s_mov_b64 exec, {g.s_ex}")
    g.wait0(vm=False)
    g("s_barrier")
    g.stamp(17)
    pub = T["d2"]
    g(f"v_lshlrev_b32 {t0}, 4, v0\nv_add_u32 {t1}, {L_KVS}, {t0}")
    for w in range(4): g(f"ds_read_b128 {pub[4*w:4*w+4]}, {t1} offset:{12288*w}")
    g(f"v_cmp_gt_u32 vcc, 240, v0\nv_mov_b32 {t1}, {BIG}\nv_cndmask_b32 {t0}, {t1}, {t0}, vcc")
    skv = g.sv("skv")
    g(f"s_lshl_b32 {skv}, {g.s_j}, 15\ns_add_u32 {skv}, {skv}, {g.s_kvb}")
    g(f"s_lshl_b32 {a[0]}, {g.s_tb}, 12\ns_add_u32 {a[0]}, {a[0]}, {skv}")
    g.wait0(vm=False)
    for w in range(1, 4):
        g(f"v_pk_add_f32 {pub[0:2]}, {pub[0:2]}, {pub[4*w:4*w+2]}\nv_pk_add_f32 {pub[2:4]}, {pub[2:4]}, {pub[4*w+2:4*w+4]}")
    g(f"buffer_store_dwordx4 {pub[0:4]}, {t0}, {g.q_ws}, {a[0]} offen sc1")
    g.wait0()
    g("s_barrier")
    sk = g.label("kvf")
    g(f"s_add_u32 {a[1]}, {g.s_layer}, 1")
    g(f"s_cmp_lg_u32 {g.s_w}, 0\ns_cbranch_scc1 {sk}")
    g(f"s_lshl_b32 {a[2]}, {g.s_j}, 7\ns_lshl_b32 {a[3]}, {g.s_tb}, 2\ns_add_u32 {a[2]}, {a[2]}, {a[3]}\ns_add_u32 {a[2]}, {a[2]}, {KVF}")
    g(f"v_mov_b32 {t1}, {a[2]}\nv_mov_b32 {T['t2']}, {a[1]}")
    g(f"s_mov_b64 {g.s_ex}, exec\ns_mov_b64 exec, 1")
    g.lines.append(f"buffer_store_dword {T['t2']}, {t1}, {g.q_ws}, 0 offen sc1")
    g(f"s_mov_b64 exec, {g.s_ex}")
    g(f"{sk}:")
    g.stamp(10)
    fq = [acc[1][0][0:12], acc[1][1][0:12]]
    for pi in range(2):
        g(f"v_mov_b32 {fq[pi][10]}, 0\nv_mov_b32 {fq[pi][11]}, 0")
        drain(q_softmax(g, pq[pi], fq[pi], T))
    V.free(T["d2"], T["ep"], T["em"], T["pk"], T["fo"], *fr, *pq)
    sk = g.label("cst")
    g(f"s_cmp_lg_u32 {g.s_layer}, 0\ns_cbranch_scc1 {sk}")
    ph_s0.constants(g)
    g(f"{sk}:")
    ga_setup(g)
    g.stamp(11)
    sk = g.label("kvw")
    g(f"s_cmp_lg_u32 {g.s_w}, 0\ns_cbranch_scc1 {sk}")
    g(f"s_lshl_b32 {a[2]}, {g.s_j}, 7\ns_add_u32 {a[2]}, {a[2]}, {KVF}")
    g(f"v_and_b32 {t1}, 7, {g.v_lane}\nv_lshlrev_b32 {t1}, 2, {t1}\nv_add_u32 {t1}, {a[2]}, {t1}")
    g(f"s_add_u32 {a[1]}, {g.s_layer}, 1")
    g.poll_ge(t1, a[1], "sc1")
    g(f"{sk}:")
    g("s_barrier")
    g.vm = []
    g.stamp(12)
    gd = ring
    g(f"v_lshlrev_b32 {t0}, 4, v0")
    for tb in range(8):
        g(f"buffer_load_dwordx4 {gd[4*tb:4*tb+4]}, {t0}, {g.q_ws}, {skv} offen")
        if tb < 7: g(f"s_add_u32 {skv}, {skv}, 4096")
    g.wait0(lg=False)
    for tb in range(1, 8):
        g(f"v_pk_add_f32 {gd[0:2]}, {gd[0:2]}, {gd[4*tb:4*tb+2]}\nv_pk_add_f32 {gd[2:4]}, {gd[2:4]}, {gd[4*tb+2:4*tb+4]}")
    g(f"v_cvt_pk_bf16_f32 {gd[4]}, {gd[0]}, {gd[1]}\nv_cvt_pk_bf16_f32 {gd[5]}, {gd[2]}, {gd[3]}")
    g(f"ds_write_b16 {g.v_ga[0]}, {gd[4]}\nds_write_b16_d16_hi {g.v_ga[1]}, {gd[4]}\nds_write_b16 {g.v_ga[2]}, {gd[5]}\nds_write_b16_d16_hi {g.v_ga[3]}, {gd[5]}")
    g(f"ds_write_b16 {g.v_ga3}, {gd[4]}")
    V.free(g.v_ga, g.v_ga3)
    g.wait0(vm=False)
    g("s_barrier")
    ka = T["fa"]
    g(f"v_and_b32 {t0}, 31, {g.v_lane}\nv_mul_u32_u24 {t0}, 96, {t0}\nv_lshrrev_b32 {t1}, 5, {g.v_lane}\nv_mul_u32_u24 {t1}, 48, {t1}\nv_add_u32 {t0}, {t0}, {t1}\nv_add_u32 {t0}, {L_KVA}, {t0}")
    for st in range(3): g(f"ds_read_b128 {ka[4*st:4*st+4]}, {t0} offset:{16*st}")
    vo = T["t2"]
    g(f"v_and_b32 {t0}, 31, {g.v_lane}\nv_mul_u32_u24 {vo}, 1280, {t0}\nv_lshrrev_b32 {t1}, 5, {g.v_lane}\nv_mul_u32_u24 {t1}, 20, {t1}\nv_add_u32 {vo}, {vo}, {t1}")
    g(f"s_mul_i32 {a[0]}, {g.s_tb}, {OSZ}\ns_add_u32 {a[0]}, {a[0]}, {g.s_ob}\ns_mul_i32 {a[1]}, {g.s_j}, 40\ns_add_u32 {a[0]}, {a[0]}, {a[1]}")
    g(f"s_mul_i32 {a[1]}, {g.s_w}, {64*1280}\ns_add_u32 {a[0]}, {a[0]}, {a[1]}")
    g.wait0(vm=False)
    D3 = [acc[0][0], acc[0][1]]
    for pi in range(2):
        for st in range(3):
            g(f"v_mfma_f32_32x32x16_bf16 {D3[pi]}, {ka[4*st:4*st+4]}, {fq[pi][4*st:4*st+4]}, {0 if st == 0 else D3[pi]}")
    for pi in range(2):
        d = D3[pi]
        g(f"v_add_f32 {T['cc'][0]}, {lit(1e-6)}, {d[10]}\nv_rcp_f32 {T['cc'][0]}, {T['cc'][0]}")
        for i in range(5):
            g(f"v_pk_mul_f32 {d[2*i:2*i+2]}, {d[2*i:2*i+2]}, {T['cc']} op_sel_hi:[1,0]")
        op = fq[pi]
        for i in range(5): g(f"v_cvt_pk_bf16_f32 {op[i]}, {d[2*i]}, {d[2*i+1]}")
        if pi == 1: g(f"s_add_u32 {a[0]}, {a[0]}, {32*1280}")
        g(f"buffer_store_dwordx4 {op[0:4]}, {vo}, {g.q_ws}, {a[0]} offen{sc}")
        g(f"buffer_store_dword {op[4]}, {vo}, {g.q_ws}, {a[0]} offen offset:16{sc}")
    g.stamp(13)
    V.free(ring, *acc[0], *acc[1], T["fa"], T["cc"], T["sp"], T["sm"], T["t2"])
    g.S.free(sx, skv)

def q_softmax(g, pq, out, T):
    saved = g.lines; g.lines = []
    gen = softmax_gen(g, T["d2"], pq, out[0:5], out[5:10], T)
    for _ in range(8): next(gen)
    g.lines = saved
    yield from gen

def fill(gen, n):
    for _ in range(n):
        try:
            r = next(gen)
        except StopIteration:
            return
        if r == "gap": return

def init_wait(g, cond=True):
    sk = g.label("iw"); t0 = g.v_t0
    if cond: g(f"s_cmp_lg_u32 {g.s_layer}, 0\ns_cbranch_scc1 {sk}")
    q = g.S.alloc("q_dbg", 4); pv = g.vv("pv"); pa = g.vv("pa")
    g.srd(q, g.p_in[10], g.p_in[11], 256)
    g(f"v_lshlrev_b32 {pa}, 2, {g.v_lane}")
    lp = g.label("iwp"); dn = g.label("iwd")
    g(f"s_mov_b32 {g.s_spin}, {1 << 20}")
    g(f"{lp}:")
    g.lines.append(f"buffer_load_dword {pv}, {pa}, {q}, 0 offen sc1")
    g.lines.append("s_waitcnt vmcnt(0)")
    g(f"v_subrev_u32 {t0}, 0x01010101, {pv}\nv_bfi_b32 {t0}, {pv}, 0, {t0}\nv_and_b32 {t0}, 0x80808080, {t0}")
    g(f"v_cmp_ne_u32 vcc, 0, {t0}\ns_cbranch_vccz {dn}")
    g(f"s_sub_u32 {g.s_spin}, {g.s_spin}, 1\ns_cmp_lg_u32 {g.s_spin}, 0\ns_cbranch_scc1 {lp}")
    g(f"{dn}:")
    g.S.free(q); g.V.free(pv, pa)
    g(f"{sk}:")

def wo_ready(g):
    t0 = g.v_t0
    init_wait(g, cond=False)
    pa = g.vv("pa"); pv = g.vv("pv")
    g(f"v_min_u32 {pa}, 19, {g.v_lane}\nv_lshlrev_b32 {pa}, 2, {pa}\nv_add_u32 {pa}, {WOFL}, {pa}")
    lp = g.label("wrp"); dn = g.label("wrd")
    g(f"s_mov_b32 {g.s_spin}, {1 << 20}")
    g(f"{lp}:")
    g.lines.append(f"buffer_load_dword {pv}, {pa}, {g.q_ws}, 0 offen sc1")
    g.lines.append("s_waitcnt vmcnt(0)")
    g(f"v_cmp_ne_u32 vcc, 0x01010101, {pv}\ns_cbranch_vccz {dn}")
    g(f"s_sub_u32 {g.s_spin}, {g.s_spin}, 1\ns_cmp_lg_u32 {g.s_spin}, 0\ns_cbranch_scc1 {lp}")
    g(f"{dn}:")
    g.V.free(pa, pv)
```

```python
from emit import *
from maps import *
from gen_main import lit
BIG = 0x7ff00000

def p2_setup(g):
    a = g.s_a; t0, t1 = g.v_t0, g.v_t1; L = g.v_lane; V = g.V
    g.v_xp = g.vv("xp", 5)
    e2, base, gq = g.vv("e2"), g.vv("base"), g.vv("gq")
    g(f"s_and_b32 {a[0]}, {g.s_j}, 3\ns_lshl_b32 {a[0]}, {a[0]}, 6\ns_and_b32 {a[1]}, {g.s_w}, 1\ns_lshl_b32 {a[1]}, {a[1]}, 5\ns_add_u32 {a[0]}, {a[0]}, {a[1]}")
    g(f"s_lshr_b32 {a[1]}, {g.s_w}, 1\ns_lshl_b32 {a[1]}, {a[1]}, 4\ns_add_u32 {a[0]}, {a[0]}, {a[1]}")
    g.v_p2p = g.vv("p2p")
    g(f"v_and_b32 {t0}, 15, {L}\nv_add_u32 {g.v_p2p}, {a[0]}, {t0}")
    g(f"v_lshrrev_b32 {t0}, 5, {g.v_p2p}\nv_mul_u32_u24 {base}, 40960, {t0}\nv_and_b32 {t0}, 31, {g.v_p2p}\nv_lshl_add_u32 {base}, {t0}, 4, {base}")
    g(f"v_lshrrev_b32 {gq}, 4, {L}\nv_and_b32 {t0}, 1, {gq}\nv_lshl_add_u32 {base}, {t0}, 3, {base}")
    g(f"s_lshr_b32 {a[1]}, {g.s_j}, 2")
    for i in range(5):
        g(f"v_lshrrev_b32 {t0}, 1, {gq}\nv_lshlrev_b32 {t0}, 3, {t0}\nv_add_u32 {e2}, {a[1]}, {t0}")
        if i: g(f"v_add_u32 {e2}, {16*i}, {e2}")
        g.code_of_e2(g.v_xp[i], e2, t0)
        g(f"v_lshl_add_u32 {g.v_xp[i]}, {g.v_xp[i]}, 9, {base}")
    V.free(e2, base, gq)

def p2(g):
    a = g.s_a; t0, t1 = g.v_t0, g.v_t1; L = g.v_lane; V = g.V; sc = g.sc
    g.c("==== P2 ====")
    p2_setup(g)
    xr = g.vv("xr", 10, 2)
    sxr = g.sv("sxr")
    g(f"s_mul_i32 {sxr}, {g.s_tb}, {XSZ}\ns_add_u32 {a[1]}, {sxr}, {g.s_xr}")
    res = []
    vo = g.vv("vo", 2)
    g(f"s_and_b32 {a[2]}, {g.s_j}, 3\ns_lshl_b32 {a[2]}, {a[2]}, 6\ns_and_b32 {a[3]}, {g.s_w}, 1\ns_lshl_b32 {a[3]}, {a[3]}, 5\ns_add_u32 {a[2]}, {a[2]}, {a[3]}")
    g(f"v_and_b32 {t0}, 15, {L}\nv_add_u32 {t0}, {a[2]}, {t0}\nv_mul_u32_u24 {vo[0]}, 1280, {t0}\nv_lshrrev_b32 {t0}, 4, {L}\nv_lshl_add_u32 {vo[0]}, {t0}, 4, {vo[0]}")
    g(f"s_lshr_b32 {a[3]}, {g.s_w}, 1\ns_mul_i32 {a[3]}, {a[3]}, 640\nv_add_u32 {vo[0]}, {a[3]}, {vo[0]}\nv_add_u32 {vo[1]}, {16*1280}, {vo[0]}")
    so = g.sv("so")
    g(f"s_mul_i32 {so}, {g.s_tb}, {OSZ}\ns_add_u32 {so}, {so}, {g.s_ob}")
    g.local_barrier(g.fast)
    g.stamp(20)
    ob = g.vv("ob", 80, 4)
    marks = []
    for u in range(10):
        for tt in range(2):
            r = ob[(u*2+tt)*4:(u*2+tt)*4+4]
            g(f"buffer_load_dwordx4 {r}, {vo[tt]}, {g.q_ws}, {so} offen offset:{64*u}")
        marks.append(g.vm_mark())
    for i in range(5):
        g(f"buffer_load_dwordx2 {xr[2*i:2*i+2]}, {g.v_xp[i]}, {g.q_ws}, {a[1] if False else sxr} offen") if False else None
    g(f"s_add_u32 {a[1]}, {sxr}, {g.s_xr}")
    for i in range(5):
        g(f"buffer_load_dwordx2 {xr[2*i:2*i+2]}, {g.v_xp[i]}, {g.q_ws}, {a[1]} offen")
    mx = g.vm_mark()
    acc = g.vv("acc", 40, 4)
    for u in range(10):
        g.wait(vm=marks[u])
        for tt in range(2):
            b = ob[(u*2+tt)*4:(u*2+tt)*4+4]
            for i in range(5):
                c = acc[(tt*5+i)*4:(tt*5+i)*4+4]
                g(f"v_mfma_f32_16x16x32_bf16 {c}, {g.a_wo[(u*5+i)*4:(u*5+i)*4+4]}, {b}, {0 if u == 0 else c}")
    V.free(ob, vo)
    g.stamp(21)
    ex = g.vv("ex"); h1 = g.vv("h1", 60, 4); hadr = g.vv("hadr")
    g(f"s_mul_i32 {a[2]}, {g.s_w}, 5120\ns_add_u32 {a[2]}, {a[2]}, {L_SCR}\nv_lshlrev_b32 {ex}, 4, {L}\nv_add_u32 {t1}, {a[2]}, {ex}")
    lk = g.label("k1"); lk2 = g.label("k2")
    g(f"s_cmp_ge_u32 {g.s_w}, 2\ns_cbranch_scc1 {lk}")
    for i in range(5): g.lines.append(f"ds_write_b128 {t1}, {acc[(5+i)*4:(5+i)*4+4]} offset:{1024*i}")
    g(f"s_branch {lk2}\n{lk}:")
    for i in range(5): g.lines.append(f"ds_write_b128 {t1}, {acc[i*4:i*4+4]} offset:{1024*i}")
    for q in range(20): g(f"v_mov_b32 {acc[q]}, {acc[20+q]}")
    g(f"{lk2}:")
    g(f"v_add_u32 {hadr}, {L_H1}, {ex}")
    g.lines.append("s_waitcnt lgkmcnt(0)")
    g("s_barrier")
    g(f"s_xor_b32 {a[2]}, {g.s_w}, 2\ns_mul_i32 {a[2]}, {a[2]}, 5120\ns_add_u32 {a[2]}, {a[2]}, {L_SCR}\nv_add_u32 {t1}, {a[2]}, {ex}")
    g.lg = []
    oth = acc[20:40]
    for i in range(5): g(f"ds_read_b128 {oth[4*i:4*i+4]}, {t1} offset:{1024*i}")
    mo = g.lg_mark()
    hm = []
    for f in range(15):
        g(f"ds_read_b128 {h1[4*f:4*f+4]}, {hadr} offset:{1024*f}")
    mh = g.lg_mark()
    g.wait(vm=mx, lg=mo)
    x1 = acc[0:20]
    xf = g.vv("xf", 4)
    for i in range(5):
        g(f"v_pk_add_f32 {x1[4*i:4*i+2]}, {x1[4*i:4*i+2]}, {oth[4*i:4*i+2]}\nv_pk_add_f32 {x1[4*i+2:4*i+4]}, {x1[4*i+2:4*i+4]}, {oth[4*i+2:4*i+4]}")
        g(f"v_lshlrev_b32 {xf[0]}, 16, {xr[2*i]}\nv_and_b32 {xf[1]}, 0xffff0000, {xr[2*i]}\nv_lshlrev_b32 {xf[2]}, 16, {xr[2*i+1]}\nv_and_b32 {xf[3]}, 0xffff0000, {xr[2*i+1]}")
        g(f"v_pk_add_f32 {x1[4*i:4*i+2]}, {x1[4*i:4*i+2]}, {xf[0:2]}\nv_pk_add_f32 {x1[4*i+2:4*i+4]}, {x1[4*i+2:4*i+4]}, {xf[2:4]}")
    V.free(xr, xf)
    xp = g.vv("xp1", 12, 4)
    for q in range(10): g(f"v_cvt_pk_bf16_f32 {xp[q]}, {x1[2*q]}, {x1[2*q+1]}")
    g(f"v_mov_b32 {xp[10]}, 0\nv_mov_b32 {xp[11]}, 0")
    G = oth
    g.wait(lg=mh)
    for ip in range(5):
        for u in range(3):
            c = G[4*ip:4*ip+4]
            g(f"v_mfma_f32_16x16x32_bf16 {c}, {h1[4*(ip*3+u):4*(ip*3+u)+4]}, {xp[4*u:4*u+4]}, {0 if u == 0 else c}")
    g(f"s_add_u32 {a[1]}, {sxr}, {g.s_x1}")
    for i in range(5):
        g(f"buffer_store_dwordx2 {xp[2*i:2*i+2]}, {g.v_xp[i]}, {g.q_ws}, {a[1]} offen{sc}")
    sm, sq = g.vv("sm", 2, 2), g.vv("sq", 2, 2)
    g(f"v_pk_add_f32 {sm}, {x1[0:2]}, {x1[2:4]}\nv_pk_mul_f32 {sq}, {x1[0:2]}, {x1[0:2]}\nv_pk_fma_f32 {sq}, {x1[2:4]}, {x1[2:4]}, {sq}")
    for q in range(2, 10):
        g(f"v_pk_add_f32 {sm}, {sm}, {x1[2*q:2*q+2]}\nv_pk_fma_f32 {sq}, {x1[2*q:2*q+2]}, {x1[2*q:2*q+2]}, {sq}")
    g(f"v_add_f32 {sm[0]}, {sm[0]}, {sm[1]}\nv_add_f32 {sm[1]}, {sq[0]}, {sq[1]}")
    for x in (sm[0], sm[1]):
        g.xq16(x, t0, "v_add_f32"); g.xhalf(x, t0, "v_add_f32")
    g(f"s_lshr_b32 {a[2]}, {g.s_j}, 2\ns_lshl_b32 {a[2]}, {a[2]}, 3\nv_lshlrev_b32 {t1}, 6, {g.v_p2p}\nv_add_u32 {t1}, {a[2]}, {t1}")
    g(f"v_cmp_gt_u32 vcc, 16, {L}\nv_mov_b32 {t0}, {BIG}\nv_cndmask_b32 {t1}, {t0}, {t1}, vcc")
    g(f"s_mul_i32 {a[2]}, {g.s_tb}, {STSZ}\ns_add_u32 {a[2]}, {a[2]}, {g.s_stb}")
    g(f"buffer_store_dwordx2 {sm}, {t1}, {g.q_ws}, {a[2]} offen{sc}")
    gp = xp
    gq = g.vv("gpk", 10, 2)
    for ip in range(5):
        g(f"v_cvt_pk_bf16_f32 {gq[2*ip]}, {G[4*ip]}, {G[4*ip+1]}\nv_cvt_pk_bf16_f32 {gq[2*ip+1]}, {G[4*ip+2]}, {G[4*ip+3]}")
    g(f"v_lshrrev_b32 {t0}, 4, {L}\nv_lshlrev_b32 {t1}, 14, {t0}\nv_lshl_add_u32 {t1}, {g.v_p2p}, 2, {t1}")
    g(f"s_lshr_b32 {a[2]}, {g.s_j}, 2\ns_lshl_b32 {a[2]}, {a[2]}, 10\ns_mul_i32 {a[3]}, {g.s_tb}, {GSZ}\ns_add_u32 {a[2]}, {a[2]}, {a[3]}\ns_add_u32 {a[2]}, {a[2]}, {g.s_gb}")
    for ip in range(5):
        for e in range(2):
            g(f"s_add_u32 {a[3]}, {a[2]}, {(8*ip + e) * 8192}")
            g(f"buffer_store_dword {gq[2*ip+e]}, {t1}, {g.q_ws}, {a[3]} offen{sc}")
    g.stamp(22)
    V.free(acc, ex, h1, hadr, xp, sm, sq, gq, g.v_xp, g.v_p2p)
    g.S.free(sxr, so)
```

```python
from emit import *
from maps import *
from gen_main import lit, f2u, LOG2E
BIG = 0x7ff00000
WO_STRIDE = 1296

def wo_stage(g):
    p = g.p_in; a = g.s_a
    sk = g.label("wos")
    va = g.vv("wova")
    g(f"s_cmp_ge_u32 {g.s_wost}, 80\ns_cbranch_scc1 {sk}")
    g.srd(g.q_in, p[6], p[7], 640 * 1280)
    g(f"v_lshlrev_b32 {va}, 4, {g.v_lane}")
    g(f"s_mul_i32 {a[4]}, {g.s_wost}, {8*1280}")
    for r in range(8):
        g(f"s_mov_b32 m0, {L_SCR + r*WO_STRIDE}\ns_add_u32 {a[6]}, {a[4]}, {r*1280}")
        g.lines.append(f"buffer_load_dwordx4 {va}, {g.q_in}, {a[6]} offen lds")
    g(f"s_mov_b64 {g.s_ex}, exec\ns_mov_b64 exec, 0xffff")
    for r in range(8):
        g(f"s_mov_b32 m0, {L_SCR + r*WO_STRIDE + 1024}\ns_add_u32 {a[6]}, {a[4]}, {r*1280 + 1024}")
        g.lines.append(f"buffer_load_dwordx4 {va}, {g.q_in}, {a[6]} offen lds")
    g(f"s_mov_b64 exec, {g.s_ex}")
    g(f"{sk}:")
    g.V.free(va)

def w_gather_issue(g):
    p = g.p_in; a = g.s_a; t0, t1 = g.v_t0, g.v_t1; L = g.v_lane
    g.q_w = g.S.alloc("q_w", 4)
    g.srd(g.q_w, p[2], p[3], 640 * 3840)
    src, tl, p8 = g.vv("wsrc"), g.vv("tl"), g.vv("p8")
    g.v_wdst = g.vv("wdst")
    g(f"v_bfe_u32 {tl}, {L}, 3, 1\nv_and_b32 {p8}, 7, {L}")
    g(f"v_mul_u32_u24 {src}, 1280, {tl}\nv_lshl_add_u32 {src}, {p8}, 3, {src}")
    g(f"v_lshlrev_b32 {t1}, 4, {tl}\nv_lshl_add_u32 {t1}, {p8}, 3, {t1}\nv_add_u32 {t1}, 2520, {t1}")
    g(f"v_cmp_lt_u32 vcc, 4, {p8}\nv_cndmask_b32 {src}, {src}, {t1}, vcc")
    g(f"s_mul_i32 {a[0]}, {g.s_j}, 40\nv_add_u32 {src}, {a[0]}, {src}")
    g(f"v_lshrrev_b32 {t0}, 4, {L}\ns_mov_b32 {a[0]}, {80*3840}\nv_mul_lo_u32 {t1}, {t0}, {a[0]}\nv_add_u32 {src}, {src}, {t1}")
    g(f"v_lshrrev_b32 {t1}, 1, {t0}\nv_xor_b32 {t1}, {t1}, {tl}\nv_lshlrev_b32 {t1}, 6, {t1}\nv_lshl_add_u32 {t1}, {t0}, 7, {t1}\nv_lshl_add_u32 {g.v_wdst}, {p8}, 3, {t1}")
    g(f"s_sub_u32 {a[0]}, {g.s_w}, 1\ns_mul_i32 {a[0]}, {a[0]}, 27")
    g(f"s_lshl_b32 {a[1]}, {a[0]}, 10\nv_add_u32 {g.v_wdst}, {a[1]}, {g.v_wdst}")
    done = g.label("wgd")
    for n in range(27):
        if n == 26: g(f"s_cmp_eq_u32 {g.s_w}, 3\ns_cbranch_scc1 {done}")
        g(f"s_add_u32 {a[1]}, {a[0]}, {n}")
        g.s_e2_of_code(a[2], a[1], a[3])
        g(f"s_mul_i32 {a[2]}, {a[2]}, 3840\ns_add_u32 {a[3]}, {a[2]}, {4*80*3840}")
        g.lines.append(f"buffer_load_dwordx2 {g.v_big[4*n:4*n+2]}, {src}, {g.q_w}, {a[2]} offen")
        g.lines.append(f"buffer_load_dwordx2 {g.v_big[4*n+2:4*n+4]}, {src}, {g.q_w}, {a[3]} offen")
    g(f"{done}:")
    g.V.free(src, tl, p8); g.S.free(g.q_w)

def w_gather_write(g):
    done = g.label("wgw")
    for n in range(27):
        if n == 26: g(f"s_cmp_eq_u32 {g.s_w}, 3\ns_cbranch_scc1 {done}")
        if n % 3 == 0 or n >= 25:
            last = min(n + 2, 26) if n < 25 else n
            g.lines.append(f"s_waitcnt vmcnt({max(2 * (25 - last), 0) + 1})")
        g.lines.append(f"ds_write_b64 {g.v_wdst}, {g.v_big[4*n:4*n+2]} offset:{L_W + n*1024}")
        g.lines.append(f"ds_write_b64 {g.v_wdst}, {g.v_big[4*n+2:4*n+4]} offset:{L_W + n*1024 + 512}")
    g(f"{done}:")
    g.V.free(g.v_wdst)

def phi_build(g, wait):
    t0, t1 = g.v_t0, g.v_t1; V = g.V
    l31, va, vb, f = g.vv("l31b"), g.vv("va"), g.vv("vb"), g.vv("f"); ph = g.vv("phraw", 12)
    if wait: g.lines.append("s_waitcnt vmcnt(0)")
    g(f"v_and_b32 {l31}, 31, {g.v_lane}")
    g(f"v_lshrrev_b32 {t0}, 3, {l31}\nv_lshlrev_b32 {t0}, 2, {t0}\nv_and_b32 {t1}, 3, {l31}\nv_add_u32 {t0}, {t0}, {t1}")
    g(f"v_bfe_u32 {t1}, {l31}, 2, 1\nv_mul_u32_u24 {f}, 10, {t1}\nv_add_u32 {f}, {f}, {t0}")
    g(f"v_lshrrev_b32 {t1}, 5, {g.v_lane}\nv_mul_u32_u24 {va}, 80, {t1}\nv_add_u32 {va}, {va}, {f}\nv_lshlrev_b32 {va}, 1, {va}\nv_add_u32 {va}, {L_PHI}, {va}")
    for u in range(8):
        g.lines.append(f"ds_read_u16 {ph[u]}, {va} offset:{(8*(u>>2) + (u&3))*40}")
    for u in range(4):
        g.lines.append(f"ds_read_u16 {ph[8+u]}, {va} offset:{(16+u)*40}")
    g.lines.append("s_waitcnt lgkmcnt(0)")
    for q in range(6):
        g(f"v_lshl_or_b32 {g.v_phi[q]}, {ph[2*q+1]}, 16, {ph[2*q]}")
    g(f"v_cmp_gt_u32 vcc, 10, {t0}")
    for q in range(6): g(f"v_cndmask_b32 {g.v_phi[q]}, 0, {g.v_phi[q]}, vcc")
    g(f"v_cmp_gt_u32 vcc, 32, {g.v_lane}")
    for q in (4, 5): g(f"v_cndmask_b32 {g.v_phi[q]}, 0, {g.v_phi[q]}, vcc")
    g(f"v_mov_b32 {g.v_phi[6]}, 0\nv_mov_b32 {g.v_phi[7]}, 0")
    V.free(l31, va, vb, f, ph)

def x_store(g):
    a = g.s_a; t0, t1 = g.v_t0, g.v_t1; V = g.V
    ad, ds = g.vv("ad"), g.vv("ds"); d = g.v_big
    g(f"v_lshlrev_b32 {ad}, 4, {g.v_lane}\nv_add_u32 {ad}, {L_XST}, {ad}")
    g(f"v_lshrrev_b32 {ds}, 3, {g.v_lane}\nv_lshlrev_b32 {ds}, 9, {ds}\nv_and_b32 {t0}, 7, {g.v_lane}\nv_lshl_add_u32 {ds}, {t0}, 4, {ds}")
    g(f"s_mul_i32 {a[0]}, {g.s_tb}, {XSZ}\ns_lshr_b32 {a[1]}, {g.s_j}, 2\ns_mul_i32 {a[1]}, {a[1]}, 40960\ns_add_u32 {a[0]}, {a[0]}, {a[1]}")
    g(f"s_and_b32 {a[1]}, {g.s_j}, 3\ns_lshl_b32 {a[1]}, {a[1]}, 7\ns_add_u32 {a[0]}, {a[0]}, {a[1]}")
    g.lines.append("s_waitcnt lgkmcnt(0)")
    for n in range(20):
        g.lines.append(f"ds_read_b128 {d[4*n:4*n+4]}, {ad} offset:{n*1024}")
    for n in range(20):
        if n % 4 == 0: g.lines.append(f"s_waitcnt lgkmcnt({min(15, 19 - (n + 3))})")
        buf = XN_IN[0] if n < 10 else X_IN[0]
        g(f"s_add_u32 {a[1]}, {a[0]}, {buf + (n % 10) * 4096}")
        g.lines.append(f"buffer_store_dwordx4 {d[4*n:4*n+4]}, {ds}, {g.q_ws}, {a[1]} offen sc1")
    V.free(ad, ds)

def trig4(g, ang0, slope, csts, cs, sn):
    for r in range(4):
        if csts[r] == 0: g(f"v_mov_b32 {sn[r]}, {ang0}")
        else: g(f"v_fmamk_f32 {sn[r]}, {slope}, {lit(float(csts[r]))}, {ang0}")
        g(f"v_cos_f32 {cs[r]}, {sn[r]}\nv_sin_f32 {sn[r]}, {sn[r]}")

def reim_frags(g, cs, sn, tmp, dre, dim):
    g(f"v_cvt_pk_bf16_f32 {tmp[0]}, {cs[0]}, {cs[1]}\nv_cvt_pk_bf16_f32 {tmp[1]}, {cs[2]}, {cs[3]}")
    g(f"v_cvt_pk_bf16_f32 {tmp[2]}, {sn[0]}, {sn[1]}\nv_cvt_pk_bf16_f32 {tmp[3]}, {sn[2]}, {sn[3]}")
    for q in range(4): g(f"v_accvgpr_write_b32 {dre[q]}, {tmp[q]}")
    g(f"v_accvgpr_write_b32 {dim[2]}, {tmp[0]}\nv_accvgpr_write_b32 {dim[3]}, {tmp[1]}")
    g(f"v_xor_b32 {tmp[2]}, 0x80008000, {tmp[2]}\nv_xor_b32 {tmp[3]}, 0x80008000, {tmp[3]}")
    g(f"v_accvgpr_write_b32 {dim[0]}, {tmp[2]}\nv_accvgpr_write_b32 {dim[1]}, {tmp[3]}")

def constants(g):
    a = g.s_a; t0, t1 = g.v_t0, g.v_t1; V = g.V
    n15, gq = g.vv("n15"), g.vv("gq")
    g(f"v_and_b32 {n15}, 15, {g.v_lane}\nv_lshrrev_b32 {gq}, 4, {g.v_lane}")
    cs, sn, tmp = g.vv("cs", 4), g.vv("sn", 4), g.vv("tmp", 4)
    ang, sl, f1, f2 = g.vv("ang"), g.vv("sl"), g.vv("f1"), g.vv("f2")
    g(f"v_cvt_f32_u32 {sl}, {n15}\nv_mul_f32 {sl}, {lit(1/16)}, {sl}")
    g(f"v_lshlrev_b32 {t0}, 2, {gq}\nv_cvt_f32_u32 {ang}, {t0}\nv_mul_f32 {ang}, {ang}, {sl}")
    trig4(g, ang, sl, [0, 1, 2, 3], cs, sn)
    reim_frags(g, cs, sn, tmp, g.a_s1[0:4], g.a_s1[4:8])
    g(f"v_lshlrev_b32 {t0}, 5, {gq}\nv_add_u32 {t0}, {g.s_tb}, {t0}\nv_cvt_f32_u32 {f1}, {t0}")
    g(f"s_lshl_b32 {a[4]}, {g.s_w}, 2")
    for q in range(4):
        g(f"v_lshlrev_b32 {t0}, 4, {n15}\nv_add_u32 {t0}, {a[4]}, {t0}")
        if q: g(f"v_add_u32 {t0}, {q}, {t0}")
        g(f"v_cvt_f32_u32 {sl}, {t0}\nv_mul_f32 {sl}, {lit(1/2048)}, {sl}\nv_mul_f32 {ang}, {f1}, {sl}")
        trig4(g, ang, sl, [0, 8, 16, 24], cs, sn)
        reim_frags(g, cs, sn, tmp, g.a_s2[8*q:8*q+4], g.a_s2[8*q+4:8*q+8])
    e2, P0, P1, Q1, R1, T1 = g.vv("e2"), g.vv("P0"), g.vv("P1"), g.vv("Q1"), g.vv("R1"), g.vv("T1")
    g(f"v_lshrrev_b32 {t0}, 1, {gq}")
    g(f"s_lshl_b32 {a[4]}, {g.s_j}, 1\ns_sub_u32 {a[4]}, {a[4]}, 1\ns_mov_b32 {a[5]}, 1")
    g(f"s_cmp_eq_u32 {g.s_j}, 0\ns_cselect_b32 {a[4]}, 0, {a[4]}\ns_cselect_b32 {a[5]}, 40, {a[5]}")
    g(f"s_cmp_eq_u32 {g.s_j}, 20\ns_cselect_b32 {a[5]}, 2, {a[5]}")
    g(f"v_mul_u32_u24 {e2}, {a[5]}, {t0}\nv_add_u32 {e2}, {a[4]}, {e2}")
    g(f"v_and_b32 {t1}, 7, {n15}\nv_mul_u32_u24 {t1}, 80, {t1}\nv_add_u32 {e2}, {e2}, {t1}")
    g(f"v_cvt_f32_u32 {sl}, {e2}\nv_mul_f32 {sl}, {lit(1/640)}, {sl}")
    g(f"v_lshrrev_b32 {t1}, 3, {n15}\nv_cmp_eq_u32 vcc, {t0}, {t1}\nv_cndmask_b32_e64 {f2}, 0, 1.0, vcc")
    g(f"v_cmp_eq_u32 vcc, 0, {e2}\nv_cndmask_b32_e64 {f2}, {f2}, 0, vcc")
    g(f"v_cvt_f32_u32 {f1}, {t0}")
    g(f"s_cmp_eq_u32 {g.s_j}, 0\ns_cselect_b32 {a[4]}, 1.0, 0\ns_cselect_b32 {a[6]}, 0, 1.0")
    g(f"s_cmp_eq_u32 {g.s_j}, 20\ns_cselect_b32 {a[5]}, -2.0, 0")
    g(f"v_mul_f32 {P1}, {a[4]}, {f1}")
    g(f"v_sub_f32 {P0}, 1.0, {P1}")
    g(f"v_mul_f32 {Q1}, {a[5]}, {f1}\nv_add_f32 {Q1}, 1.0, {Q1}\nv_mul_f32 {Q1}, {a[6]}, {Q1}")
    g(f"v_mov_b32 {R1}, {Q1}\nv_sub_f32 {T1}, 0, {P1}")
    for x in (P0, P1, Q1, R1, T1): g(f"v_mul_f32 {x}, {x}, {f2}")
    g(f"v_and_b32 {t0}, 1, {gq}\nv_lshlrev_b32 {t0}, 2, {t0}\nv_cvt_f32_u32 {ang}, {t0}\nv_mul_f32 {ang}, {ang}, {sl}")
    trig4(g, ang, sl, [0, 1, 2, 3], cs, sn)
    for dd in range(4):
        g(f"v_mul_f32 {t0}, {P0}, {cs[dd]}\nv_mul_f32 {t1}, {P1}, {cs[dd]}\nv_fmac_f32 {t1}, {Q1}, {sn[dd]}")
        g(f"v_cvt_pk_bf16_f32 {tmp[0]}, {t0}, {t1}\nv_accvgpr_write_b32 {g.a_h2[dd]}, {tmp[0]}")
        g(f"v_mul_f32_e64 {t0}, -{P0}, {sn[dd]}\nv_mul_f32 {t1}, {R1}, {cs[dd]}\nv_fmac_f32 {t1}, {T1}, {sn[dd]}")
        g(f"v_cvt_pk_bf16_f32 {tmp[1]}, {t0}, {t1}\nv_accvgpr_write_b32 {g.a_h2[4+dd]}, {tmp[1]}")
    V.free(e2, P0, P1, Q1, R1, T1)
    tt, msk = g.vv("tt"), g.vv("msk")
    g(f"v_and_b32 {t0}, 1, {n15}\nv_lshrrev_b32 {t1}, 1, {gq}\nv_cmp_eq_u32 vcc, {t0}, {t1}\nv_cndmask_b32_e64 {msk}, 0, 1.0, vcc")
    for mir in range(2):
        g(f"v_lshrrev_b32 {tt}, 1, {n15}")
        if mir:
            g(f"s_or_b32 {a[4]}, {g.s_tb}, {g.s_j}\ns_cmp_eq_u32 {a[4]}, 0\ns_cselect_b32 {a[4]}, 1, 0")
            g(f"v_lshrrev_b32 {t0}, 1, {gq}\nv_sub_u32 {t0}, 1, {t0}\nv_mul_u32_u24 {t0}, {a[4]}, {t0}")
            g(f"v_sub_u32 {tt}, 7, {tt}\nv_add_u32 {tt}, {tt}, {t0}\nv_and_b32 {tt}, 7, {tt}")
        g(f"v_cvt_f32_u32 {sl}, {tt}\nv_mul_f32 {sl}, {lit(1/8)}, {sl}")
        g(f"v_and_b32 {t0}, 1, {gq}\nv_lshlrev_b32 {t0}, 2, {t0}\nv_cvt_f32_u32 {ang}, {t0}\nv_mul_f32 {ang}, {ang}, {sl}")
        trig4(g, ang, sl, [0, 1, 2, 3], cs, sn)
        for dd in range(4):
            g(f"v_mul_f32 {t0}, {msk}, {cs[dd]}\nv_mul_f32 {t1}, {msk}, {sn[dd]}\nv_cvt_pk_bf16_f32 {tmp[0]}, {t0}, {t1}")
            g(f"v_accvgpr_write_b32 {g.a_b2[4*mir+dd]}, {tmp[0]}")
    V.free(tt, msk)
    d2b, K2, rho = g.vv("d2b"), g.vv("K2"), g.vv("rho")
    val = g.vv("val", 8); adr = g.vv("adr")
    g(f"v_lshrrev_b32 {t0}, 1, {gq}\nv_and_b32 {t1}, 1, {gq}\nv_mul_u32_u24 {t1}, 40, {t1}\nv_add_u32 {t0}, {t0}, {t1}\nv_cvt_f32_u32 {d2b}, {t0}")
    for n in range(4):
        sk = g.label("h1")
        g(f"s_add_u32 {a[4]}, {g.s_w}, {4*n}")
        if n == 3: g(f"s_cmp_ge_u32 {a[4]}, 15\ns_cbranch_scc1 {sk}")
        g(f"s_mul_i32 {a[5]}, {a[4]}, 43\ns_lshr_b32 {a[5]}, {a[5]}, 7")
        g(f"s_mul_i32 {a[6]}, {a[5]}, 3\ns_sub_u32 {a[6]}, {a[4]}, {a[6]}")
        g(f"s_lshl_b32 {a[7]}, {a[5]}, 4\nv_add_u32 {rho}, {a[7]}, {n15}")
        g(f"v_lshrrev_b32 {t0}, 1, {rho}\nv_cmp_eq_u32 vcc, 1, {rho}\nv_cndmask_b32_e64 {t0}, {t0}, 40, vcc")
        g(f"v_cvt_f32_u32 {sl}, {t0}\nv_mul_f32 {sl}, {lit(1/80)}, {sl}")
        g(f"v_and_b32 {t1}, 1, {rho}\nv_cndmask_b32_e64 {t1}, {t1}, 0, vcc\nv_cvt_f32_u32 {K2}, {t1}\nv_mul_f32 {K2}, 0.25, {K2}")
        g(f"s_lshl_b32 {a[7]}, {a[6]}, 2\nv_cvt_f32_u32 {ang}, {a[7]}\nv_add_f32 {ang}, {d2b}, {ang}\nv_fma_f32 {ang}, {ang}, {sl}, {K2}")
        g(f"s_cmp_eq_u32 {a[6]}, 2\ns_cselect_b32 {a[7]}, 0, 1.0")
        for u in range(8):
            c = 2 * (u >> 2) + 10 * (u & 3)
            if c: g(f"v_fmamk_f32 {val[u]}, {sl}, {lit(float(c))}, {ang}")
            else: g(f"v_mov_b32 {val[u]}, {ang}")
            g(f"v_cos_f32 {val[u]}, {val[u]}")
            if u >= 4: g(f"v_mul_f32 {val[u]}, {a[7]}, {val[u]}")
        for q in range(4): g(f"v_cvt_pk_bf16_f32 {tmp[q]}, {val[2*q]}, {val[2*q+1]}")
        g(f"s_lshl_b32 {a[7]}, {a[4]}, 10\ns_add_u32 {a[7]}, {a[7]}, {L_H1}\nv_lshlrev_b32 {adr}, 4, {g.v_lane}\nv_add_u32 {adr}, {a[7]}, {adr}")
        g.lines.append(f"ds_write_b128 {adr}, {tmp}")
        g(f"{sk}:")
    V.free(d2b, K2, rho, val, adr, n15, gq, cs, sn, tmp, ang, sl, f1, f2)

def wo_frag(g):
    a = g.s_a; V = g.V; t0, t1 = g.v_t0, g.v_t1
    sk = g.label("wog")
    g(f"s_cmp_ge_u32 {g.s_wost}, 80\ns_cbranch_scc1 {sk}")
    g.lines.append("s_waitcnt vmcnt(20)")
    ad = g.vv("ad"); raw = g.vv("raw", 8); fr = g.vv("fr", 8, 4); dst = g.vv("dst")
    g(f"v_lshrrev_b32 {t0}, 4, {g.v_lane}\nv_lshlrev_b32 {ad}, 2, {t0}")
    g(f"v_mul_u32_u24 {dst}, {2*5*20*1024}, {t0}\nv_and_b32 {t1}, 15, {g.v_lane}\nv_lshl_add_u32 {dst}, {t1}, 4, {dst}")
    g(f"v_bfe_u32 {t0}, {g.v_lane}, 3, 1\nv_lshl_add_u32 {ad}, {t0}, 4, {ad}")
    g(f"v_and_b32 {t0}, 7, {g.v_lane}\nv_mul_u32_u24 {t0}, 160, {t0}\nv_add_u32 {ad}, {ad}, {t0}\nv_add_u32 {ad}, {L_SCR}, {ad}")
    g(f"s_mov_b32 {a[3]}, 0x05040100\ns_mov_b32 {a[4]}, 0x07060302")
    g(f"s_lshr_b32 {a[0]}, {g.s_wost}, 2\ns_lshl_b32 {a[0]}, {a[0]}, 10\ns_and_b32 {a[1]}, {g.s_wost}, 3\ns_lshl_b32 {a[1]}, {a[1]}, 8")
    g(f"s_add_u32 {a[0]}, {a[0]}, {a[1]}\ns_add_u32 {a[0]}, {a[0]}, {WOF}")
    for i in range(5):
        for ii in range(8):
            g.lines.append(f"ds_read_b32 {raw[ii]}, {ad} offset:{ii*WO_STRIDE + 32*i}")
        g.lines.append("s_waitcnt lgkmcnt(0)")
        for q in range(4):
            g(f"v_perm_b32 {fr[q]}, {raw[2*q+1]}, {raw[2*q]}, {a[3]}\nv_perm_b32 {fr[4+q]}, {raw[2*q+1]}, {raw[2*q]}, {a[4]}")
        g(f"s_add_u32 {a[1]}, {a[0]}, {i*20*1024}\ns_add_u32 {a[2]}, {a[1]}, {5*20*1024}")
        g.lines.append(f"buffer_store_dwordx4 {fr[0:4]}, {dst}, {g.q_ws}, {a[1]} offen sc1")
        g.lines.append(f"buffer_store_dwordx4 {fr[4:8]}, {dst}, {g.q_ws}, {a[2]} offen sc1")
        g("s_nop 1")
    g.lines.append("s_waitcnt vmcnt(0)")
    g(f"s_add_u32 {a[0]}, {g.s_wost}, {WOFL}\nv_mov_b32 {t0}, {a[0]}\nv_mov_b32 {t1}, 1")
    g(f"s_mov_b64 {g.s_ex}, exec\ns_mov_b64 exec, 1")
    g.lines.append(f"buffer_store_byte {t1}, {t0}, {g.q_ws}, 0 offen sc1")
    g(f"s_mov_b64 exec, {g.s_ex}")
    g(f"{sk}:")
    V.free(ad, raw, fr, dst)

def after_s0(g):
    V = g.V
    g.a_wo = g.A.alloc("wo", 200, at=0)
    g.a_s2 = g.A.alloc("st2", 32, at=200)
    g.a_h2 = g.A.alloc("h2", 8, at=232)
    g.a_s1 = g.A.alloc("st1", 8, at=240)
    g.a_b2 = g.A.alloc("b2", 8, at=248)
    V.free(g.v_big, g.v_l31)
    sk = g.label("pb")
    g(f"s_cmp_eq_u32 {g.s_w}, 0\ns_cbranch_scc1 {sk}")
    phi_build(g, wait=False)
    g(f"{sk}:")
    import ph_p1
    ph_p1.p1_setup(g)
    g.stamp(7)

def load_wo(g):
    a = g.s_a
    va = g.vv("va")
    g(f"v_lshlrev_b32 {va}, 4, {g.v_lane}")
    g(f"s_lshr_b32 {a[1]}, {g.s_j}, 2\ns_mul_i32 {a[1]}, {a[1]}, {5*20*1024}\ns_lshr_b32 {a[2]}, {g.s_w}, 1\ns_mul_i32 {a[2]}, {a[2]}, 10240")
    g(f"s_add_u32 {a[0]}, {a[1]}, {a[2]}\ns_add_u32 {a[0]}, {a[0]}, {WOF}")
    for u in range(10):
        for i in range(5):
            r = (u * 5 + i) * 4
            g(f"s_add_u32 {a[2]}, {a[0]}, {(i*20 + u)*1024}")
            g.lines.append(f"buffer_load_dwordx4 {g.a_wo[r:r+4]}, {va}, {g.q_ws}, {a[2]} offen")
    g.V.free(va)
```

```python
import copy, math
from emit import *
from maps import *
from gen_main import lit, f2u, LOG2E

BIG = 0x7ff00000

def emit_all(g):
    prologue(g)
    s0_loads(g)
    snapV, snapA, snapS = copy.deepcopy(g.V), copy.deepcopy(g.A), copy.deepcopy(g.S)
    for fast in g.paths:
        g.V, g.A, g.S = copy.deepcopy(snapV), copy.deepcopy(snapA), copy.deepcopy(snapS)
        g.vm = []; g.lg = []
        body(g, fast)
        g("s_endpgm")
    g("Lexit:")
    g("s_endpgm")
    g("Lcode_end:")

def goto_path(g, entry):
    if len(g.paths) == 1:
        g(f"s_branch L{entry}_{'fast' if g.paths[0] else 'slow'}")
    else:
        l = g.label("gp")
        g(f"s_cmp_eq_u32 {g.s_fast}, 0\ns_cbranch_scc1 {l}\ns_branch L{entry}_fast\n{l}:\ns_branch L{entry}_slow")

def prologue(g):
    g.paths = {"fast": [True], "slow": [False]}.get(g.force, [True, False])
    g("s_cmp_ge_u32 s2, 256\ns_cbranch_scc1 Lexit_near\ns_branch Lstart\nLexit_near:\ns_endpgm\nLstart:")
    g.p_in = g.S.alloc("ptrs", 14, at=16)
    g.q_ws = g.S.alloc("q_ws", 4, at=8)
    g.q_in = g.S.alloc("q_in", 4, at=12)
    p = g.p_in
    g(f"s_load_dwordx4 {p[0:4]}, s[0:1], 0\ns_load_dwordx4 {p[4:8]}, s[0:1], 16")
    g(f"s_load_dwordx4 {p[8:12]}, s[0:1], 72\ns_load_dwordx2 {p[12:14]}, s[0:1], 88")
    g.s_tb = g.sv("tb"); g.s_j = g.sv("j"); g.s_w = g.sv("w"); g.s_ex = g.sv("ex", 2); g.s_t = g.sv("t", 2)
    g.s_wost = g.sv("wost"); g.s_spin = g.sv("spin"); g.s_lep = g.sv("lep"); g.s_fast = g.sv("fast"); g.s_layer = g.sv("layer")
    g.s_a = g.sv("a", 8)
    if g.stamps:
        g.s_t2 = g.sv("t2", 2); g.v_st = g.vv("vst", 3)
        g(f"v_mov_b32 {g.v_st[0]}, 0\nv_mov_b32 {g.v_st[1]}, 0")
    g.v_lane = g.vv("lane"); g.v_t0 = g.vv("t0"); g.v_t1 = g.vv("t1"); g.v_lfown = g.vv("lfown"); g.v_lfall = g.vv("lfall")
    g(f"s_and_b32 {g.s_tb}, s2, 7\ns_lshr_b32 {g.s_j}, s2, 3")
    g(f"v_and_b32 {g.v_lane}, 63, v0\nv_lshrrev_b32 {g.v_t0}, 6, v0")
    g(f"v_readfirstlane_b32 {g.s_w}, {g.v_t0}")
    g(f"s_mov_b32 {g.s_lep}, 0")
    g(f"s_lshl_b32 {g.s_a[0]}, {g.s_tb}, 7")
    g(f"s_lshl_b32 {g.s_a[1]}, {g.s_j}, 2\ns_add_u32 {g.s_a[1]}, {g.s_a[1]}, {g.s_a[0]}")
    g(f"v_mov_b32 {g.v_lfown}, {g.s_a[1]}")
    g(f"v_and_b32 {g.v_lfall}, 31, {g.v_lane}\nv_lshlrev_b32 {g.v_lfall}, 2, {g.v_lfall}\nv_add_u32 {g.v_lfall}, {g.s_a[0]}, {g.v_lfall}")
    g.lines.append("s_waitcnt lgkmcnt(0)")
    g.srd(g.q_ws, p[12], p[13], 256 << 20)
    g.stamp(0)

def s0_loads(g):
    p = g.p_in; a = g.s_a
    V = g.V
    t0, t1 = g.v_t0, g.v_t1
    import ph_s0
    g.v_l31 = g.vv("l31")
    g(f"v_and_b32 {g.v_l31}, 31, {g.v_lane}")
    g.v_big = g.vv("big", 128, 4)
    g.v_phi = g.vv("phiA", 8, 4)
    lw0 = g.label("w0")
    g(f"s_cmp_eq_u32 {g.s_w}, 0\ns_cbranch_scc1 {lw0}")
    ph_s0.w_gather_issue(g)
    pf = g.vv("pf", 4, 4)
    q = g.S.alloc("q_code", 4)
    g(f"s_getpc_b64 {q[0:2]}\nLpc:\ns_and_b32 {q[1]}, {q[1]}, 0xffff\ns_mov_b32 {q[2]}, Lcode_end-Lpc\ns_mov_b32 {q[3]}, 0x20000")
    g(f"s_mul_i32 {a[0]}, {g.s_j}, 3\ns_add_u32 {a[0]}, {a[0]}, {g.s_w}\ns_sub_u32 {a[0]}, {a[0]}, 1\ns_lshl_b32 {a[0]}, {a[0]}, 10")
    g(f"v_lshlrev_b32 {t0}, 4, {g.v_lane}")
    g.lines.append(f"buffer_load_dwordx4 {pf}, {t0}, {q}, {a[0]} offen")
    g.S.free(q)
    ph_s0.w_gather_write(g)
    g.lines.append("s_waitcnt vmcnt(0) lgkmcnt(0)")
    V.free(pf)
    g("s_barrier")
    g(f"v_mov_b32 {t1}, {L_MISC}")
    g.lines.append(f"ds_read_b32 {t0}, {t1}")
    g.lines.append("s_waitcnt lgkmcnt(0)")
    g(f"v_readfirstlane_b32 {g.s_fast}, {t0}")
    goto_path(g, "entry")
    g(f"{lw0}:")
    g.srd(g.q_in, p[0], p[1], S * 1280)
    vp = g.vv("p"); vx = g.vv("vx")
    g(f"s_lshl_b32 {a[4]}, {g.s_j}, 3")
    g(f"v_lshrrev_b32 {vp}, 5, {g.v_lane}\nv_add_u32 {vp}, {a[4]}, {vp}")
    g(f"v_lshrrev_b32 {t0}, 4, {vp}\nv_lshlrev_b32 {t0}, 3, {t0}\nv_and_b32 {t1}, 15, {vp}\nv_lshl_add_u32 {t0}, {t1}, 7, {t0}\nv_add_u32 {t0}, {g.s_tb}, {t0}")
    g(f"v_mul_u32_u24 {vx}, 1280, {t0}\nv_lshl_add_u32 {vx}, {g.v_l31}, 3, {vx}")
    g(f"v_cmp_gt_u32 vcc, 20, {g.v_l31}\nv_mov_b32 {t1}, {BIG}\nv_cndmask_b32 {vx}, {t1}, {vx}, vcc")
    xd = g.v_big
    for u in range(4):
        g(f"s_mov_b32 {a[5]}, {u * 256 * 1280}")
        for i in range(8):
            g.lines.append(f"buffer_load_dwordx2 {xd[16*u+2*i:16*u+2*i+2]}, {vx}, {g.q_in}, {a[5]} offen offset:{160*i}")
    V.free(vx, vp)
    g.srd(g.q_in, p[4], p[5], 32 * 400 * 2)
    g(f"v_lshlrev_b32 {t0}, 4, {g.v_lane}\ns_mul_i32 {a[4]}, {g.s_j}, 800\ns_mov_b32 m0, {L_PHI}")
    g.lines.append(f"buffer_load_dwordx4 {t0}, {g.q_in}, {a[4]} offen lds")
    g(f"s_lshl_b32 {a[2]}, {g.s_j}, 7\ns_lshl_b32 {a[3]}, {g.s_tb}, 2\ns_add_u32 {a[2]}, {a[2]}, {a[3]}\ns_add_u32 {a[2]}, {a[2]}, {KVF}")
    g(f"s_lshl_b32 {a[3]}, {g.s_tb}, 7\ns_add_u32 {a[3]}, {a[3]}, {GL}")
    g(f"v_mov_b32 {t1}, {g.v_lfown}")
    g(f"v_cmp_eq_u32 vcc, 1, {g.v_lane}\nv_mov_b32 {t0}, {a[2]}\nv_cndmask_b32 {t1}, {t1}, {t0}, vcc")
    g(f"s_cmp_eq_u32 {g.s_j}, 31\ns_cselect_b32 {a[3]}, {a[3]}, {a[2]}")
    g(f"v_cmp_eq_u32 vcc, 2, {g.v_lane}\nv_mov_b32 {t0}, {a[3]}\nv_cndmask_b32 {t1}, {t1}, {t0}, vcc")
    g(f"v_mov_b32 {t0}, 0\ns_mov_b64 {g.s_ex}, exec\ns_mov_b64 exec, 7")
    g.lines.append(f"buffer_store_dword {t0}, {t1}, {g.q_ws}, 0 offen sc1")
    g(f"s_sub_u32 {a[4]}, {g.s_j}, 22\ns_lshl_b32 {a[4]}, {a[4]}, 3\ns_add_u32 {g.s_wost}, {a[4]}, {g.s_tb}")
    g(f"s_cmp_lt_u32 {g.s_j}, 22\ns_cselect_b32 {g.s_wost}, 99, {g.s_wost}")
    sk = g.label("wz")
    g(f"s_cmp_ge_u32 {g.s_wost}, 80\ns_cbranch_scc1 {sk}")
    g(f"s_add_u32 {a[4]}, {g.s_wost}, {WOFL}\nv_mov_b32 {t1}, {a[4]}\ns_mov_b64 exec, 1")
    g.lines.append(f"buffer_store_byte {t0}, {t1}, {g.q_ws}, 0 offen sc1")
    g(f"{sk}:")
    g(f"s_mov_b64 exec, {g.s_ex}")
    ph_s0.wo_stage(g)
    g.stamp(3)
    xf = g.vv("xf", 32, 4); sm, sq = g.vv("sm", 2, 2), g.vv("sq", 2, 2)
    st = g.vv("xst", 4); e2 = g.vv("e2"); pk = g.vv("pk", 16, 4)
    for c in range(4):
        g(f"v_lshl_add_u32 {e2}, {g.v_l31}, 2, {c}")
        g.code_of_e2(st[c], e2, t0)
        g(f"v_lshlrev_b32 {st[c]}, 7, {st[c]}\nv_lshrrev_b32 {t0}, 5, {g.v_lane}\nv_lshl_add_u32 {st[c]}, {t0}, 4, {st[c]}\nv_add_u32 {st[c]}, {L_XST}, {st[c]}")
        g(f"v_cmp_gt_u32 vcc, 20, {g.v_l31}\nv_mov_b32 {t0}, {L_XST + 20480}\nv_cndmask_b32 {st[c]}, {t0}, {st[c]}, vcc")
    V.free(e2)
    for u in range(4):
        src = xd[16*u:16*u+16]
        g.lines.append(f"s_waitcnt vmcnt({8*(3-u) + 2})")
        for i in range(8):
            g(f"v_lshlrev_b32 {xf[0*8+i]}, 16, {src[2*i]}\nv_and_b32 {xf[1*8+i]}, 0xffff0000, {src[2*i]}")
            g(f"v_lshlrev_b32 {xf[2*8+i]}, 16, {src[2*i+1]}\nv_and_b32 {xf[3*8+i]}, 0xffff0000, {src[2*i+1]}")
        for c in range(4):
            for i2 in range(4):
                g(f"v_cvt_pk_bf16_f32 {pk[c*4+i2]}, {xf[c*8+2*i2]}, {xf[c*8+2*i2+1]}")
        for c in range(4):
            g.lines.append(f"ds_write_b128 {st[c]}, {pk[4*c:4*c+4]} offset:{10240 + 32*u}")
        g(f"v_pk_add_f32 {sm}, {xf[0:2]}, {xf[2:4]}\nv_pk_mul_f32 {sq}, {xf[0:2]}, {xf[0:2]}\nv_pk_fma_f32 {sq}, {xf[2:4]}, {xf[2:4]}, {sq}")
        for i in range(2, 16):
            g(f"v_pk_add_f32 {sm}, {sm}, {xf[2*i:2*i+2]}\nv_pk_fma_f32 {sq}, {xf[2*i:2*i+2]}, {xf[2*i:2*i+2]}, {sq}")
        g(f"v_add_f32 {sm[0]}, {sm[0]}, {sm[1]}\nv_add_f32 {sq[0]}, {sq[0]}, {sq[1]}")
        g.red32(sm[0], t0); g.red32(sq[0], t1)
        g(f"v_mul_f32 {sm[0]}, {lit(1/640)}, {sm[0]}\nv_mul_f32 {sq[0]}, {lit(1/640)}, {sq[0]}")
        g(f"v_fma_f32 {sq[0]}, -{sm[0]}, {sm[0]}, {sq[0]}\nv_add_f32 {sq[0]}, {lit(1e-5)}, {sq[0]}\nv_rsq_f32 {sq[0]}, {sq[0]}")
        g(f"v_mul_f32_e64 {sm[0]}, -{sm[0]}, {sq[0]}")
        for i in range(16):
            g(f"v_pk_fma_f32 {xf[2*i:2*i+2]}, {xf[2*i:2*i+2]}, {sq}, {sm} op_sel_hi:[1,0,0]")
        for c in range(4):
            for i2 in range(4):
                g(f"v_cvt_pk_bf16_f32 {pk[c*4+i2]}, {xf[c*8+2*i2]}, {xf[c*8+2*i2+1]}")
        for c in range(4):
            g.lines.append(f"ds_write_b128 {st[c]}, {pk[4*c:4*c+4]} offset:{32*u}")
        g("s_nop 1")
    V.free(xf, sm, sq, st, pk)
    g.stamp(4)
    ph_s0.x_store(g)
    ph_s0.wo_frag(g)
    ph_s0.phi_build(g, wait=True)
    g.lines.append("s_waitcnt vmcnt(0)")
    publish_purity(g)
    g.stamp(5)
    purity(g)
    g.stamp(2)
    g.lines.append("s_waitcnt lgkmcnt(0)")
    g("s_barrier")
    goto_path(g, "entry")

def publish_purity(g):
    p = g.p_in; a = g.s_a
    q = g.S.alloc("q_dbg", 4)
    g.srd(q, p[10], p[11], 256)
    g(f"s_getreg_b32 {a[4]}, hwreg(HW_REG_XCC_ID, 0, 4)\ns_add_u32 {a[4]}, {a[4]}, 1")
    g(f"s_lshl_b32 {a[5]}, {g.s_tb}, 5\ns_add_u32 {a[5]}, {a[5]}, {g.s_j}")
    g(f"v_mov_b32 {g.v_t0}, {a[4]}\nv_mov_b32 {g.v_t1}, {a[5]}")
    g(f"s_mov_b64 {g.s_ex}, exec\ns_mov_b64 exec, 1")
    g.lines.append(f"buffer_store_byte {g.v_t0}, {g.v_t1}, {q}, 0 offen sc1")
    g(f"s_mov_b64 exec, {g.s_ex}")
    g.S.free(q)

def purity(g):
    p = g.p_in; a = g.s_a; t0, t1 = g.v_t0, g.v_t1
    pv = g.vv("pv"); pa = g.vv("pa")
    g(f"v_mov_b32 {pa}, {L_MISC}")
    q = g.S.alloc("q_dbg", 4)
    g.srd(q, p[10], p[11], 256)
    g(f"v_and_b32 {pv}, 7, {g.v_lane}\nv_lshlrev_b32 {pv}, 2, {pv}\ns_lshl_b32 {a[4]}, {g.s_tb}, 5\nv_add_u32 {t1}, {a[4]}, {pv}")
    lp = g.label("pp"); dn = g.label("ppd")
    g(f"s_mov_b32 {g.s_spin}, {1 << 20}")
    g(f"{lp}:")
    g.lines.append(f"buffer_load_dword {pv}, {t1}, {q}, 0 offen sc1")
    g.lines.append("s_waitcnt vmcnt(0)")
    g(f"v_subrev_u32 {t0}, 0x01010101, {pv}\nv_bfi_b32 {t0}, {pv}, 0, {t0}\nv_and_b32 {t0}, 0x80808080, {t0}")
    g(f"v_cmp_ne_u32 vcc, 0, {t0}\ns_cbranch_vccz {dn}")
    g(f"s_sub_u32 {g.s_spin}, {g.s_spin}, 1\ns_cmp_lg_u32 {g.s_spin}, 0\ns_cbranch_scc1 {lp}")
    g(f"{dn}:")
    g(f"v_readfirstlane_b32 {a[5]}, {pv}\ns_and_b32 {a[5]}, {a[5]}, 0xff\ns_mul_i32 {a[5]}, {a[5]}, 0x01010101")
    g(f"v_cmp_ne_u32 vcc, {a[5]}, {pv}\ns_cmp_eq_u64 vcc, 0\ns_cselect_b32 {g.s_fast}, 1, 0\nv_mov_b32 {t0}, {g.s_fast}")
    g.lines.append(f"ds_write_b32 {pa}, {t0}")
    g.S.free(q)
    g.V.free(pv, pa)

def finish(g, fast):
    g.stamp(31)
    g.wait0()
    g.flush_stamps()

def body(g, fast):
    import ph_s0, ph_p1, ph_p2, ph_b
    sc = "" if fast else " sc1"
    g.sc = sc; g.fast = fast
    tag = "fast" if fast else "slow"
    for nm in ("s_xn", "s_xr", "s_kvb", "s_ob", "s_x1", "s_gb", "s_stb", "s_zb"): setattr(g, nm, None)
    g(f"Lentry_{tag}:")
    g.vm = []; g.lg = []
    ph_s0.after_s0(g)
    if g.stop_after in ("s0", "s0b"): return finish(g, fast)
    lay = g.label("layer")
    g(f"s_mov_b32 {g.s_layer}, 0")
    g(f"{lay}:")
    g.vm = []; g.lg = []
    ph_p1.set_layer(g)
    ph_p1.p1(g)
    if g.stop_after == "p1": return finish(g, fast)
    ph_p2.p2(g)
    if g.stop_after == "p2": return finish(g, fast)
    ph_b.b1(g)
    if g.stop_after == "b1": return finish(g, fast)
    ph_b.b2(g, lay)
    finish(g, fast)
```

```python
import sys, copy, math
sys.path.insert(0, "gen")
from emit import *
from maps import *

KN = "interleave_layers__linear_kernel_hedgehog__spectral_fnet__prompt_kernel"
LOG2E = 1.4426950408889634
def f2u(x):
    import struct
    return struct.unpack('<I', struct.pack('<f', x))[0]
def lit(x): return f"0x{f2u(x):08x}"

class G(Emit):
    def __init__(self, stop_after=None, stamps=False, force=None):
        super().__init__()
        self.stop_after = stop_after; self.stamps = stamps; self.force = force
        self.nstamp = 0; self.stamp_wave = 0
    def sv(self, name, n=1): return self.S.alloc(name, n)
    def vv(self, name, n=1, align=None): return self.V.alloc(name, n, align)
    def srd(self, q, lo, hi, nbytes):
        self(f"s_mov_b32 {q[0]}, {lo}\ns_and_b32 {q[1]}, {hi}, 0xffff\ns_mov_b32 {q[2]}, {nbytes}\ns_mov_b32 {q[3]}, 0x20000")
    def stamp(self, idx):
        if not self.stamps: return
        self(f"s_memrealtime {self.s_t}\ns_memtime {self.s_t2}")
        self.lines.append("s_waitcnt lgkmcnt(0)")
        self(f"v_writelane_b32 {self.v_st[0]}, {self.s_t[0]}, {idx}\nv_writelane_b32 {self.v_st[1]}, {self.s_t2[0]}, {idx}")
    def flush_stamps(self):
        if not self.stamps: return
        sk = self.label("fs")
        self(f"s_cmp_lg_u32 {self.s_w}, {self.stamp_wave}\ns_cbranch_scc1 {sk}")
        self(f"s_lshl_b32 {self.s_t[1]}, s2, 7\nv_lshlrev_b32 {self.v_st[2]}, 2, {self.v_lane}\nv_add_u32 {self.v_st[2]}, {self.s_t[1]}, {self.v_st[2]}")
        self(f"s_mov_b64 exec, 0xffffffff")
        self.lines.append(f"buffer_store_dword {self.v_st[0]}, {self.v_st[2]}, {self.q_ws}, 0 offen offset:0 sc1".replace("offset:0 ", ""))
        self.lines[-1] = f"v_add_u32 {self.v_st[2]}, {STAMP}, {self.v_st[2]}"
        self.lines.append(f"buffer_store_dword {self.v_st[0]}, {self.v_st[2]}, {self.q_ws}, 0 offen sc1")
        self(f"v_add_u32 {self.v_st[2]}, {STAMP2 - STAMP}, {self.v_st[2]}")
        self.lines.append(f"buffer_store_dword {self.v_st[1]}, {self.v_st[2]}, {self.q_ws}, 0 offen sc1")
        self.lines.append("s_waitcnt vmcnt(0)")
        self(f"s_mov_b64 exec, -1")
        self(f"{sk}:")
    def code_of_e2(self, dst, e2, t):
        self(f"v_add_u32 {dst}, 1, {e2}")
        self(f"v_sub_u32 {t}, 121, {e2}")
        self(f"v_cmp_lt_u32 vcc, 39, {e2}\nv_cndmask_b32 {dst}, {dst}, {t}, vcc")
        self(f"v_cmp_eq_u32 vcc, 0, {e2}\nv_cndmask_b32_e64 {dst}, {dst}, 0, vcc")
        self(f"v_cmp_eq_u32 vcc, 40, {e2}\nv_cndmask_b32_e64 {dst}, {dst}, 1, vcc")
        self(f"v_cmp_eq_u32 vcc, 41, {e2}\nv_cndmask_b32_e64 {dst}, {dst}, 41, vcc")
    def s_e2_of_code(self, dst, code, t):
        self(f"s_sub_u32 {dst}, {code}, 1")
        self(f"s_sub_u32 {t}, 121, {code}")
        self(f"s_cmp_ge_u32 {code}, 42\ns_cselect_b32 {dst}, {t}, {dst}")
        self(f"s_cmp_eq_u32 {code}, 0\ns_cselect_b32 {dst}, 0, {dst}")
        self(f"s_cmp_eq_u32 {code}, 1\ns_cselect_b32 {dst}, 40, {dst}")
        self(f"s_cmp_eq_u32 {code}, 41\ns_cselect_b32 {dst}, 41, {dst}")
    def red32(self, x, t, op="v_add_f32"):
        for r in (8, 4, 2, 1):
            self(f"{op}_dpp {x}, {x}, {x} row_ror:{r} row_mask:0xf bank_mask:0xf")
        self(f"v_mov_b32 {t}, {x}\nv_permlane16_swap_b32 {t}, {x}\n{op} {x}, {x}, {t}")
    def xhalf(self, x, t, op):
        self(f"v_mov_b32 {t}, {x}\nv_permlane32_swap_b32 {t}, {x}\n{op} {x}, {x}, {t}")
    def xq16(self, x, t, op):
        self(f"v_mov_b32 {t}, {x}\nv_permlane16_swap_b32 {t}, {x}\n{op} {x}, {x}, {t}")

    def poll_ge(self, voff, target, flags):
        lp = self.label("poll"); dn = self.label("pdone")
        self(f"s_mov_b32 {self.s_spin}, {1 << 22}")
        self(f"{lp}:")
        self.lines.append(f"buffer_load_dword {self.v_t0}, {voff}, {self.q_ws}, 0 offen {flags}")
        self.lines.append("s_waitcnt vmcnt(0)")
        self(f"v_cmp_gt_u32 vcc, {target}, {self.v_t0}")
        self(f"s_cbranch_vccz {dn}")
        self(f"s_sub_u32 {self.s_spin}, {self.s_spin}, 1\ns_cmp_lg_u32 {self.s_spin}, 0\ns_cbranch_scc1 {lp}")
        self(f"{dn}:")
    def local_barrier(self, fast):
        self.wait0()
        self("s_barrier")
        sk = self.label("lb")
        self(f"s_add_u32 {self.s_lep}, {self.s_lep}, 1")
        self(f"s_cmp_lg_u32 {self.s_w}, 0\ns_cbranch_scc1 {sk}")
        self(f"v_mov_b32 {self.v_t1}, {self.s_lep}")
        self(f"s_mov_b64 {self.s_ex}, exec\ns_mov_b64 exec, 1")
        self.lines.append(f"buffer_store_dword {self.v_t1}, {self.v_lfown}, {self.q_ws}, 0 offen" + ("" if fast else " sc1"))
        self(f"s_mov_b64 exec, {self.s_ex}")
        self.poll_ge(self.v_lfall, self.s_lep, "sc1")
        self(f"{sk}:")
        self("s_barrier")
        self.vm = []; self.lg = []

def build_kernel(stop_after=None, stamps=False, force=None, sw=0):
    g = G(stop_after, stamps, force); g.stamp_wave = sw
    import phases
    phases.emit_all(g)
    lines, nn = fix_hazards(g.lines)
    body = "\n".join(("    " + l if not l.endswith(":") else l) for l in lines)
    hdr = open("interleave_layers__linear_kernel_hedgehog__spectral_fnet__prompt.s.ref").read().split("; Override launch")[0]
    txt = hdr + f"; @launch grid=(256,1,1) block=(256,1,1) lds={LDS_BYTES}\n"
    txt += f""".amdgcn_target "amdgcn-amd-amdhsa--gfx950"
.text
.globl {KN}
.p2align 8
.type {KN},@function
{KN}:
{body}
.section .rodata,"a"
.p2align 6
.amdhsa_kernel {KN}
  .amdhsa_next_free_vgpr 512
  .amdhsa_next_free_sgpr 102
  .amdhsa_accum_offset 256
  .amdhsa_group_segment_fixed_size 0
  .amdhsa_kernarg_size 96
  .amdhsa_user_sgpr_count 2
  .amdhsa_user_sgpr_kernarg_segment_ptr 1
  .amdhsa_system_sgpr_workgroup_id_x 1
.end_amdhsa_kernel
"""
    return txt, nn, g

if __name__ == "__main__":
    import argparse
    ap = argparse.ArgumentParser()
    ap.add_argument("-o", default="main.s")
    ap.add_argument("--stop", default=None)
    ap.add_argument("--stamps", action="store_true")
    ap.add_argument("--force", default=None)
    ap.add_argument("--sw", type=int, default=0)
    a = ap.parse_args()
    txt, nn, g = build_kernel(a.stop, a.stamps, a.force, a.sw)
    open(a.o, "w").write(txt)
    print(f"wrote {a.o}: {len(txt)} bytes, {txt.count(chr(10))} lines, hazard nops {nn}, vgpr hi {g.V.hi}, agpr hi {g.A.hi}, sgpr hi {g.S.hi}")
    sys.path.insert(0, "tools")
    from build import build
    print(build(a.o))
```

```python
S, D, H, DH = 2048, 640, 32, 20

def tok(tb, p):
    return tb + 8 * (p >> 4) + 128 * (p & 15)

def e2_of(b, kh):
    code = 2 * b + kh
    if code < 4: return (0, 40, 1, 79)[code]
    return code - 2 if code <= 41 else 120 - code

def blk_of(e2):
    for b in range(40):
        for kh in range(2):
            if e2_of(b, kh) == e2: return b, kh
    raise ValueError
assert sorted(e2_of(b, kh) for b in range(40) for kh in range(2)) == list(range(80))

def col_of_k(k):
    b, kh, i = k >> 4, (k >> 3) & 1, k & 7
    return e2_of(b, kh) + 80 * i

LF = 0x0000
KVF = 0x1000
GL = 0x2000
WOFL = 0x3000
STAMP = 0x10000
STAMP2 = 0x20000
XSZ = 8 * 40 * 1024
OSZ = 256 * 1280
GSZ = 40 * 8 * 256 * 4
STSZ = 256 * 8 * 8
ZSZ = 21 * 16384
KVSZ = 2048
WHSZ = 32 * 81920
WOSZ = 8 * 5 * 20 * 1024
_off = 1 << 20
def _take(n):
    global _off
    o = _off; _off += (n + 4095) // 4096 * 4096; return o
X_IN = [_take(8 * XSZ)] * 2
XN_IN = [_take(8 * XSZ)] * 2
LOCSZ = OSZ + GSZ + XSZ + STSZ
LOC = _take(8 * LOCSZ)
OB = [LOC] * 2; GB = [LOC + OSZ] * 2; X1 = [LOC + OSZ + GSZ] * 2; STB = [LOC + OSZ + GSZ + XSZ] * 2
ZB = [_take(8 * ZSZ) for _ in range(2)]
KVB = [_take(32 * 8 * KVSZ) for _ in range(2)]
WOF = _take(WOSZ)
WS_USED = _off
LAYER_STRIDE = None

L_W = 0
L_H1 = 81920
L_SCR = L_H1 + 15 * 1024
L_KVS = L_SCR
RS = 208
IMG = 64 * RS
L_KVA = L_SCR + 4 * IMG + 256
L_MISC = L_KVA + 3072
L_PHI = L_MISC + 1024
LDS_BYTES = L_PHI + 1024
L_XST = L_SCR + 12288
assert LDS_BYTES <= 163840

def unit_eps(u, g):
    if u == 0: return (0, 0 if g == 0 else 40, False)
    if u == 1: return (1, 1, False) if g == 0 else (1, 79, True)
    return (2 * u - 2 + g, 2 * u - 2 + g, False)
def wo_row(sidx, g, ii):
    U = 4 * sidx + g
    if U < 64: return 10 * U + ii
    return 40 * (U - 64) + (8, 9, 18, 19, 28, 29, 38, 39)[ii]
if __name__ == "__main__":
    print(hex(WS_USED), LDS_BYTES)
```

```python
from emit import *
from maps import *
from gen_main import lit
from ph_p2 import swap_quad, first_layer
import ph_s0
BIG = 0x7ff00000
L_EX = L_SCR
L_R = L_SCR + 16384
L_ST2 = L_SCR + 20480
L_OUT = L_SCR

def b1(g):
    a = g.s_a; t0, t1 = g.v_t0, g.v_t1; L = g.v_lane; V = g.V
    g.c("==== B1 ====")
    n15, gq = g.vv("n15"), g.vv("gq")
    g(f"v_and_b32 {n15}, 15, {L}\nv_lshrrev_b32 {gq}, 4, {L}")
    va, vs = g.vv("va"), g.vv("vs")
    g(f"s_sub_u32 {a[0]}, {g.s_j}, 1\ns_cmp_eq_u32 {g.s_j}, 0\ns_cselect_b32 {a[0]}, 0, {a[0]}")
    g(f"s_cmp_ge_u32 {g.s_j}, 2\ns_cselect_b32 {a[1]}, 1, 0\ns_cmp_eq_u32 {g.s_j}, 1\ns_cselect_b32 {a[3]}, 1, 0")
    g(f"v_lshrrev_b32 {t0}, 1, {gq}\nv_mul_u32_u24 {t0}, {a[1]}, {t0}\nv_add_u32 {t0}, {a[3]}, {t0}\nv_lshlrev_b32 {va}, 2, {t0}")
    g(f"v_and_b32 {t0}, 1, {gq}\nv_lshl_add_u32 {va}, {t0}, 13, {va}")
    g(f"s_lshl_b32 {a[0]}, {a[0]}, 14\ns_lshl_b32 {a[2]}, {g.s_w}, 9\ns_add_u32 {a[0]}, {a[0]}, {a[2]}\nv_lshl_add_u32 {va}, {n15}, 3, {va}\nv_add_u32 {va}, {a[0]}, {va}")
    g(f"s_lshl_b32 {a[2]}, {g.s_w}, 9\nv_lshlrev_b32 {vs}, 3, {L}\nv_add_u32 {vs}, {a[2]}, {vs}")
    sg, ss = g.sv("sg"), g.sv("ss")
    g(f"s_mul_i32 {sg}, {g.s_tb}, {LOCSZ}\ns_add_u32 {sg}, {sg}, {g.s_gb}\ns_mul_i32 {ss}, {g.s_tb}, {LOCSZ}\ns_add_u32 {ss}, {ss}, {g.s_stb}")
    g.local_barrier(g.fast, work=lambda: first_layer(g, lambda: ph_s0.s2_fix(g)))
    g.stamp(23)
    done = g.label("b1d")
    g(f"s_cmp_gt_u32 {g.s_j}, 20\ns_cbranch_scc1 {done}")
    g.vm = []; g.lg = []
    st = g.vv("st", 16, 4); ga = g.vv("ga", 16, 4)
    for q in range(8):
        if q == 2 or q == 4 or q == 6: g(f"s_add_u32 {ss}, {ss}, 4096")
        g(f"buffer_load_dwordx2 {st[2*q:2*q+2]}, {vs}, {g.q_ws}, {ss} offen offset:{2048*(q%2)} sc1")
    ms = g.vm_mark()
    gm = []
    sgd = g.S.alloc("sgd", 4)
    for dd in range(4): g(f"s_add_u32 {sgd[dd]}, {sg}, {2048*dd}")
    for aa in range(4):
        for dd in range(4):
            g(f"buffer_load_dword {ga[4*aa+dd]}, {va}, {g.q_ws}, {sgd[dd]} offen offset:{128*aa} sc1")
        gm.append(g.vm_mark())
    g.S.free(sgd)
    g.wait(vm=ms)
    g.stamp(6) if g.fine else None
    for q in range(1, 8):
        g(f"v_pk_add_f32 {st[0:2]}, {st[0:2]}, {st[2*q:2*q+2]}")
    g(f"v_mul_f32 {st[0]}, {lit(1/640)}, {st[0]}\nv_mul_f32 {st[1]}, {lit(1/640)}, {st[1]}")
    g(f"v_fma_f32 {st[1]}, -{st[0]}, {st[0]}, {st[1]}\nv_add_f32 {st[1]}, {lit(1e-5)}, {st[1]}\nv_rsq_f32 {st[1]}, {st[1]}")
    g(f"s_lshl_b32 {a[2]}, {g.s_w}, 8\ns_add_u32 {a[2]}, {a[2]}, {L_R}\nv_lshlrev_b32 {t0}, 2, {L}\nv_add_u32 {t0}, {a[2]}, {t0}")
    g(f"ds_write_b32 {t0}, {st[1]}")
    g(f"v_lshlrev_b32 {t1}, 4, {gq}\nv_add_u32 {t1}, {a[2]}, {t1}")
    g.wait0(vm=False)
    rr = st
    for aa in range(4): g(f"ds_read_b128 {rr[4*aa:4*aa+4]}, {t1} offset:{64*aa}")
    mr = g.lg_mark()
    dre, dim = g.vv("dre", 16, 4), g.vv("dim", 16, 4)
    for aa in range(4):
        g.wait(vm=gm[aa])
        g(f"v_mfma_f32_16x16x32_bf16 {dre[4*aa:4*aa+4]}, {ga[4*aa:4*aa+4]}, {g.a_h2[0:4]}, 0")
        g(f"v_mfma_f32_16x16x32_bf16 {dim[4*aa:4*aa+4]}, {ga[4*aa:4*aa+4]}, {g.a_h2[4:8]}, 0")
    g.wait(lg=mr)
    ub = ga
    for aa in range(4):
        for h in range(2):
            g(f"v_pk_mul_f32 {dre[4*aa+2*h:4*aa+2*h+2]}, {dre[4*aa+2*h:4*aa+2*h+2]}, {rr[4*aa+2*h:4*aa+2*h+2]}")
            g(f"v_pk_mul_f32 {dim[4*aa+2*h:4*aa+2*h+2]}, {dim[4*aa+2*h:4*aa+2*h+2]}, {rr[4*aa+2*h:4*aa+2*h+2]}")
        g(f"v_cvt_pk_bf16_f32 {ub[4*aa]}, {dre[4*aa]}, {dre[4*aa+1]}\nv_cvt_pk_bf16_f32 {ub[4*aa+1]}, {dre[4*aa+2]}, {dre[4*aa+3]}")
        g(f"v_cvt_pk_bf16_f32 {ub[4*aa+2]}, {dim[4*aa]}, {dim[4*aa+1]}\nv_cvt_pk_bf16_f32 {ub[4*aa+3]}, {dim[4*aa+2]}, {dim[4*aa+3]}")
    g.stamp(7) if g.fine else None
    for aa in range(4):
        g(f"v_mfma_f32_16x16x32_bf16 {dre[4*aa:4*aa+4]}, {g.a_s1[0:4]}, {ub[4*aa:4*aa+4]}, 0")
        g(f"v_mfma_f32_16x16x32_bf16 {dim[4*aa:4*aa+4]}, {g.a_s1[4:8]}, {ub[4*aa:4*aa+4]}, 0")
    g(f"v_lshlrev_b32 {t0}, 12, {gq}\nv_lshl_add_u32 {t0}, {n15}, 6, {t0}\ns_lshl_b32 {a[2]}, {g.s_w}, 4\ns_add_u32 {a[2]}, {a[2]}, {L_EX}\nv_add_u32 {t0}, {a[2]}, {t0}")
    for r in range(4):
        p = st[4*r:4*r+4]
        g(f"v_cvt_pk_bf16_f32 {p[0]}, {dre[r]}, {dre[4+r]}\nv_cvt_pk_bf16_f32 {p[1]}, {dre[8+r]}, {dre[12+r]}")
        g(f"v_cvt_pk_bf16_f32 {p[2]}, {dim[r]}, {dim[4+r]}\nv_cvt_pk_bf16_f32 {p[3]}, {dim[8+r]}, {dim[12+r]}")
        g(f"ds_write_b128 {t0}, {p} offset:{1024*r}")
    g.wait0(vm=False)
    g("s_barrier")
    g(f"s_lshl_b32 {a[2]}, {g.s_w}, 12\ns_add_u32 {a[2]}, {a[2]}, {L_EX}\nv_lshlrev_b32 {t0}, 6, {n15}\nv_lshl_add_u32 {t0}, {gq}, 4, {t0}\nv_add_u32 {t0}, {a[2]}, {t0}")
    for q in range(4): g(f"ds_read_b128 {ub[4*q:4*q+4]}, {t0} offset:{1024*q}")
    g.wait0(vm=False)
    for q in range(4):
        g(f"v_mfma_f32_16x16x32_bf16 {dre[4*q:4*q+4]}, {g.a_s2[8*q:8*q+4]}, {ub[4*q:4*q+4]}, 0")
        g(f"v_mfma_f32_16x16x32_bf16 {dim[4*q:4*q+4]}, {g.a_s2[8*q+4:8*q+8]}, {ub[4*q:4*q+4]}, 0")
    g.stamp(14) if g.fine else None
    g(f"s_mul_i32 {a[2]}, {g.s_tb}, {ZSZ}\ns_add_u32 {a[2]}, {a[2]}, {g.s_zb}\ns_lshl_b32 {a[3]}, {g.s_j}, 14\ns_add_u32 {a[2]}, {a[2]}, {a[3]}")
    g(f"s_lshl_b32 {a[3]}, {g.s_w}, 12\ns_add_u32 {a[2]}, {a[2]}, {a[3]}")
    g(f"v_and_b32 {t0}, 1, {gq}\nv_lshlrev_b32 {t1}, 7, {t0}\nv_lshrrev_b32 {t0}, 1, {gq}\nv_lshl_add_u32 {t1}, {t0}, 6, {t1}\nv_lshl_add_u32 {t1}, {n15}, 2, {t1}")
    for q in range(4):
        for r in range(4):
            g(f"v_cvt_pk_bf16_f32 {st[4*q+r]}, {dre[4*q+r]}, {dim[4*q+r]}")
            g(f"buffer_store_dword {st[4*q+r]}, {t1}, {g.q_ws}, {a[2]} offen offset:{(q*4+r)*256} sc1")
    V.free(st, ga, dre, dim)
    g(f"{done}:")
    V.free(n15, gq, va, vs); g.S.free(sg, ss)
    g.stamp(24)

def b2(g, lay):
    a = g.s_a; t0, t1 = g.v_t0, g.v_t1; L = g.v_lane; V = g.V; sc = g.sc
    g.c("==== B2 ====")
    n15, gq = g.vv("n15"), g.vv("gq")
    g(f"v_and_b32 {n15}, 15, {L}\nv_lshrrev_b32 {gq}, 4, {L}")
    vd, vm_ = g.vv("vd"), g.vv("vmir"); tau = g.vv("tau")
    g(f"s_lshl_b32 {a[0]}, {g.s_j}, 3\ns_add_u32 {a[0]}, {a[0]}, {g.s_tb}")
    for mir, dst in ((0, vd), (1, vm_)):
        g(f"v_lshrrev_b32 {tau}, 1, {gq}\nv_lshlrev_b32 {tau}, 7, {tau}\nv_add_u32 {tau}, {a[0]}, {tau}")
        if mir: g(f"v_sub_u32 {tau}, 256, {tau}\nv_and_b32 {tau}, 255, {tau}")
        g(f"v_and_b32 {t0}, 15, {tau}\nv_lshlrev_b32 {dst}, 10, {t0}")
        g(f"v_bfe_u32 {t0}, {tau}, 4, 2\nv_lshl_add_u32 {dst}, {t0}, 8, {dst}")
        g(f"v_bfe_u32 {t0}, {tau}, 6, 1\nv_lshl_add_u32 {dst}, {t0}, 7, {dst}\nv_lshrrev_b32 {t0}, 7, {tau}\nv_lshl_add_u32 {dst}, {t0}, 6, {dst}")
        if mir: g(f"v_and_b32 {t0}, 8, {n15}\nv_and_b32 {t1}, 7, {n15}\nv_sub_u32 {t1}, 7, {t1}\nv_add_u32 {t0}, {t0}, {t1}\nv_lshl_add_u32 {dst}, {t0}, 2, {dst}")
        else: g(f"v_lshl_add_u32 {dst}, {n15}, 2, {dst}")
        g(f"v_and_b32 {t0}, 1, {gq}\ns_mov_b32 {a[1]}, {4*ZSZ}\nv_mul_lo_u32 {t0}, {t0}, {a[1]}\nv_add_u32 {dst}, {dst}, {t0}")
    V.free(tau)
    vx = g.vv("vx")
    g(f"s_lshr_b32 {a[1]}, {g.s_j}, 1\ns_mul_i32 {a[1]}, {a[1]}, 40960\ns_and_b32 {a[2]}, {g.s_j}, 1\ns_lshl_b32 {a[2]}, {a[2]}, 8\ns_add_u32 {a[1]}, {a[1]}, {a[2]}")
    g(f"s_mul_i32 {a[2]}, {g.s_w}, 10240\ns_add_u32 {a[1]}, {a[1]}, {a[2]}\ns_mul_i32 {a[2]}, {g.s_tb}, {XSZ}\ns_add_u32 {a[1]}, {a[1]}, {a[2]}")
    g(f"v_lshlrev_b32 {vx}, 4, {n15}\nv_lshrrev_b32 {t0}, 1, {gq}\nv_lshl_add_u32 {vx}, {t0}, 9, {vx}\nv_and_b32 {t0}, 1, {gq}\nv_lshl_add_u32 {vx}, {t0}, 10, {vx}\nv_add_u32 {vx}, {a[1]}, {vx}")
    done = g.label("b2d")
    act = g.sv("act")
    g(f"s_cmp_lt_u32 {g.s_j}, 16\ns_cselect_b32 {act}, 1, 0")
    xr = g.vv("xr", 20, 4)
    sk = g.label("b2p")
    g(f"s_cmp_eq_u32 {act}, 0\ns_cbranch_scc1 {sk}")
    for q in range(5):
        g(f"s_add_u32 {a[2]}, {g.s_x1}, {2048*q}")
        g.lines.append(f"buffer_load_dwordx4 {xr[4*q:4*q+4]}, {vx}, {g.q_ws}, {a[2]} offen sc1")
    g.lines.append("s_waitcnt vmcnt(0)")
    for q in range(5): swap_quad(g, xr[4*q:4*q+4])
    g(f"{sk}:")
    g.stamp(26)
    g(f"s_cmp_eq_u32 {act}, 0\ns_cbranch_scc1 {done}")
    za = g.vv("za", 48, 4); y = g.vv("y", 40, 4)
    sb, su = g.sv("sb"), g.sv("su")
    pa = y[0:2]; pv = y[2:4]; pb = y[4]; pu = y[5]; pm = y[6]
    for q in range(2):
        g(f"v_lshrrev_b32 {pb}, 3, {L}")
        if q: g(f"v_add_u32 {pb}, 8, {pb}\nv_min_u32 {pb}, 9, {pb}")
        g(f"s_mul_i32 {sb}, {g.s_w}, 10\nv_add_u32 {pb}, {sb}, {pb}")
        g(f"v_subrev_u32 {pu}, 19, {pb}\nv_cmp_lt_u32 vcc, 20, {pb}\nv_cndmask_b32 {pu}, {pb}, {pu}, vcc")
        g(f"v_readlane_b32 {a[2]}, {vd}, 0\nv_readlane_b32 {a[3]}, {vm_}, 0")
        g(f"v_mov_b32 {pm}, {a[2]}\nv_mov_b32 {t0}, {a[3]}\nv_cndmask_b32 {pm}, {pm}, {t0}, vcc")
        g(f"v_lshl_add_u32 {pa[q]}, {pu}, 14, {pm}\nv_and_b32 {t0}, 7, {L}\ns_mov_b32 {a[2]}, {ZSZ}\nv_mul_lo_u32 {t0}, {t0}, {a[2]}\nv_add_u32 {pa[q]}, {pa[q]}, {t0}")
    lq = g.label("zq"); dq = g.label("zqd")
    g(f"s_mov_b32 {g.s_spin}, {1 << 18}")
    g(f"{lq}:")
    for q in range(2): g.lines.append(f"buffer_load_dword {pv[q]}, {pa[q]}, {g.q_ws}, {g.s_zb} offen sc1")
    g.lines.append("s_waitcnt vmcnt(0)")
    g(f"v_max_u32 {t1}, {pv[0]}, {pv[1]}\nv_cmp_eq_u32 vcc, -1, {t1}\ns_cbranch_vccz {dq}")
    g(f"s_sub_u32 {g.s_spin}, {g.s_spin}, 1\ns_cmp_lg_u32 {g.s_spin}, 0\ns_cbranch_scc1 {lq}")
    g(f"{dq}:")
    g.stamp(25)
    lp = g.label("zp"); dn = g.label("zd")
    g(f"s_mov_b32 {g.s_spin}, {1 << 16}")
    g(f"{lp}:")
    for bl in range(10):
        g(f"s_mul_i32 {sb}, {g.s_w}, 10\ns_add_u32 {sb}, {sb}, {bl}")
        g(f"s_sub_u32 {su}, {sb}, 19\ns_cmp_gt_u32 {sb}, 20\ns_cselect_b32 {su}, {su}, {sb}")
        g(f"s_lshl_b32 {su}, {su}, 14\ns_add_u32 {su}, {su}, {g.s_zb}")
        g(f"s_cmp_gt_u32 {sb}, 20\ns_cselect_b64 vcc, -1, 0\nv_cndmask_b32 {t0}, {vd}, {vm_}, vcc")
        for dd in range(4):
            g.lines.append(f"buffer_load_dword {za[4*bl+dd]}, {t0}, {g.q_ws}, {su} offen sc1")
            if dd < 3: g(f"s_add_u32 {su}, {su}, {ZSZ}")
    g.stamp(15) if g.fine else None
    g.lines.append("s_waitcnt vmcnt(0)")
    g(f"v_max3_u32 {t1}, {za[0]}, {za[1]}, {za[2]}")
    for q in range(3, 39, 2): g(f"v_max3_u32 {t1}, {t1}, {za[q]}, {za[q+1]}")
    g(f"v_max_u32 {t1}, {t1}, {za[39]}\nv_cmp_eq_u32 vcc, -1, {t1}\ns_cbranch_vccz {dn}")
    g(f"s_sub_u32 {g.s_spin}, {g.s_spin}, 1\ns_cmp_lg_u32 {g.s_spin}, 0\ns_cbranch_scc1 {lp}")
    g(f"{dn}:")
    if g.fast:
        sk = g.label("wb")
        g(f"s_cmp_lg_u32 {g.s_j}, 15\ns_cbranch_scc1 {sk}\ns_cmp_lg_u32 {g.s_layer}, 1\ns_cbranch_scc1 {sk}\ns_cmp_lg_u32 {g.s_w}, 3\ns_cbranch_scc1 {sk}")
        g.lines.append("buffer_wbl2 sc1")
        g(f"{sk}:")
    bc = g.vv("bc", 8, 4)
    for q in range(8): g(f"v_accvgpr_read_b32 {bc[q]}, {g.a_b2[q]}")
    cur = g.vv("cur", 4, 4)
    for bl in range(10):
        g(f"s_mul_i32 {sb}, {g.s_w}, 10\ns_add_u32 {sb}, {sb}, {bl}\ns_cmp_gt_u32 {sb}, 20\ns_cselect_b64 vcc, -1, 0")
        for q in range(4): g(f"v_cndmask_b32 {cur[q]}, {bc[q]}, {bc[4+q]}, vcc")
        g(f"v_mfma_f32_16x16x32_bf16 {y[4*bl:4*bl+4]}, {za[4*bl:4*bl+4]}, {cur}, 0")
    V.free(bc, cur)
    g.stamp(28) if g.fine else None
    xf = g.vv("xf", 4); sm, sq = g.vv("sm", 2, 2), g.vv("sq", 2, 2)
    for bl in range(10):
        g(f"v_lshlrev_b32 {xf[0]}, 16, {xr[2*bl]}\nv_and_b32 {xf[1]}, 0xffff0000, {xr[2*bl]}\nv_lshlrev_b32 {xf[2]}, 16, {xr[2*bl+1]}\nv_and_b32 {xf[3]}, 0xffff0000, {xr[2*bl+1]}")
        g(f"v_pk_add_f32 {y[4*bl:4*bl+2]}, {y[4*bl:4*bl+2]}, {xf[0:2]}\nv_pk_add_f32 {y[4*bl+2:4*bl+4]}, {y[4*bl+2:4*bl+4]}, {xf[2:4]}")
    x2p = za[0:20]
    for q in range(20): g(f"v_cvt_pk_bf16_f32 {x2p[q]}, {y[2*q]}, {y[2*q+1]}")
    last = g.label("b2last"); join = g.label("b2join")
    g(f"s_cmp_lg_u32 {g.s_layer}, 0\ns_cbranch_scc1 {last}")
    g(f"s_mov_b32 {a[2]}, {X_IN[1]}")
    for q in range(5):
        swap_quad(g, x2p[4*q:4*q+4])
        g.lines.append(f"buffer_store_dwordx4 {x2p[4*q:4*q+4]}, {vx}, {g.q_ws}, {a[2]} offen{sc}")
        g(f"s_add_u32 {a[2]}, {a[2]}, 2048")
    g(f"v_pk_add_f32 {sm}, {y[0:2]}, {y[2:4]}\nv_pk_mul_f32 {sq}, {y[0:2]}, {y[0:2]}\nv_pk_fma_f32 {sq}, {y[2:4]}, {y[2:4]}, {sq}")
    for q in range(2, 20):
        g(f"v_pk_add_f32 {sm}, {sm}, {y[2*q:2*q+2]}\nv_pk_fma_f32 {sq}, {y[2*q:2*q+2]}, {y[2*q:2*q+2]}, {sq}")
    g(f"v_add_f32 {sm[0]}, {sm[0]}, {sm[1]}\nv_add_f32 {sm[1]}, {sq[0]}, {sq[1]}")
    for x in (sm[0], sm[1]):
        g.xq16(x, t0, "v_add_f32"); g.xhalf(x, t0, "v_add_f32")
    g(f"s_lshl_b32 {a[2]}, {g.s_w}, 7\ns_add_u32 {a[2]}, {a[2]}, {L_ST2}\nv_lshlrev_b32 {t1}, 3, {n15}\nv_add_u32 {t0}, {a[2]}, {t1}")
    g.lines.append(f"ds_write_b64 {t0}, {sm}")
    g.lines.append("s_waitcnt lgkmcnt(0)")
    g("s_barrier")
    g(f"v_add_u32 {t1}, {L_ST2}, {t1}")
    pr = za[20:28]
    for w in range(4): g.lines.append(f"ds_read_b64 {pr[2*w:2*w+2]}, {t1} offset:{128*w}")
    g.lines.append("s_waitcnt lgkmcnt(0)")
    g(f"v_pk_add_f32 {pr[0:2]}, {pr[0:2]}, {pr[2:4]}\nv_pk_add_f32 {pr[4:6]}, {pr[4:6]}, {pr[6:8]}\nv_pk_add_f32 {sm}, {pr[0:2]}, {pr[4:6]}")
    g(f"v_mul_f32 {sm[0]}, {lit(1/640)}, {sm[0]}\nv_mul_f32 {sm[1]}, {lit(1/640)}, {sm[1]}")
    g(f"v_fma_f32 {sq[0]}, -{sm[0]}, {sm[0]}, {sm[1]}\nv_add_f32 {sq[0]}, {lit(1e-5)}, {sq[0]}\nv_rsq_f32 {sq[0]}, {sq[0]}")
    g(f"v_mul_f32_e64 {sm[0]}, -{sm[0]}, {sq[0]}")
    for q in range(20):
        g(f"v_pk_fma_f32 {y[2*q:2*q+2]}, {y[2*q:2*q+2]}, {sq}, {sm} op_sel_hi:[1,0,0]")
    xn = za[28:48]
    for q in range(20): g(f"v_cvt_pk_bf16_f32 {xn[q]}, {y[2*q]}, {y[2*q+1]}")
    g(f"s_mov_b32 {a[2]}, {XN_IN[1]}")
    for q in range(5):
        swap_quad(g, xn[4*q:4*q+4])
        g.lines.append(f"buffer_store_dwordx4 {xn[4*q:4*q+4]}, {vx}, {g.q_ws}, {a[2]} offen{sc}")
        g(f"s_add_u32 {a[2]}, {a[2]}, 2048")
    g(f"s_branch {join}")
    g(f"{last}:")
    g("s_barrier")
    ad = y[0]; e2c = y[1]; cod = y[2]
    for bl in range(10):
        g(f"s_mul_i32 {sb}, {g.s_w}, 20\ns_add_u32 {sb}, {sb}, {2*bl}\nv_lshrrev_b32 {cod}, 1, {gq}\nv_add_u32 {cod}, {sb}, {cod}")
        g.e2_of_code(e2c, cod, t0)
        g(f"v_and_b32 {t0}, 1, {gq}\nv_mul_u32_u24 {t0}, 320, {t0}\nv_add_u32 {e2c}, {e2c}, {t0}")
        g(f"v_mul_u32_u24 {ad}, 1296, {n15}\nv_lshl_add_u32 {ad}, {e2c}, 1, {ad}\nv_add_u32 {ad}, {L_OUT}, {ad}")
        g.lines.append(f"ds_write_b16 {ad}, {x2p[2*bl]}")
        g.lines.append(f"ds_write_b16_d16_hi {ad}, {x2p[2*bl]} offset:160")
        g.lines.append(f"ds_write_b16 {ad}, {x2p[2*bl+1]} offset:320")
        g.lines.append(f"ds_write_b16_d16_hi {ad}, {x2p[2*bl+1]} offset:480")
    g.lines.append("s_waitcnt lgkmcnt(0)")
    g("s_barrier")
    q_out = g.q_in
    g.srd(q_out, g.p_in[8], g.p_in[9], S * 1280)
    ro = y[4:24]; oa = y[24]; la = y[25]
    g(f"v_lshrrev_b32 {t0}, 4, v0\nv_and_b32 {t1}, 15, v0\nv_mul_u32_u24 {la}, 1296, {t0}\nv_lshl_add_u32 {la}, {t1}, 4, {la}\nv_add_u32 {la}, {L_OUT}, {la}")
    g(f"s_lshl_b32 {a[2]}, {g.s_j}, 3\ns_add_u32 {a[2]}, {a[2]}, {g.s_tb}\nv_lshlrev_b32 {t0}, 7, {t0}\nv_add_u32 {t0}, {a[2]}, {t0}\nv_mul_u32_u24 {oa}, 1280, {t0}\nv_lshl_add_u32 {oa}, {t1}, 4, {oa}")
    for c in range(5): g.lines.append(f"ds_read_b128 {ro[4*c:4*c+4]}, {la} offset:{256*c}")
    g.lines.append("s_waitcnt lgkmcnt(0)")
    for c in range(5): g.lines.append(f"buffer_store_dwordx4 {ro[4*c:4*c+4]}, {oa}, {q_out}, 0 offen offset:{256*c} sc1")
    g(f"{join}:")
    V.free(za, y, xf, sm, sq); g.S.free(sb, su)
    g(f"{done}:")
    V.free(n15, gq, vd, vm_, vx, xr); g.S.free(act)
    g.stamp(27)
    fin = g.label("fin")
    g(f"s_cmp_lg_u32 {g.s_layer}, 0\ns_cbranch_scc1 {fin}")
    g.local_barrier(g.fast)
    g.stamp(28)
    g(f"s_mov_b32 {g.s_layer}, 1")
    g(f"s_branch {lay}")
    g(f"{fin}:")
```

```python
from emit import *
from maps import *
from gen_main import lit, f2u, LOG2E
BIG = 0x7ff00000
NR = 10
DUMMY = L_MISC + 512

def drain(gen):
    for _ in gen: pass

def p1_setup(g):
    t0, t1 = g.v_t0, g.v_t1; V = g.V; a = g.s_a; L = g.v_lane
    g.v_Aq = g.vv("Aq", 2); g.v_Ak = g.vv("Ak", 2)
    g.v_x16 = g.vv("x16")
    g.v_img = g.vv("img"); g.v_vA = g.vv("vA"); g.v_vC = g.vv("vC"); g.v_T = g.vv("vT"); g.v_K = g.vv("vK")
    r, c, khh, ch = g.vv("r"), g.vv("c"), g.vv("khh"), g.vv("ch")
    g(f"v_bfe_u32 {r}, {L}, 2, 2\nv_and_b32 {c}, 3, {L}\nv_lshrrev_b32 {khh}, 5, {L}\nv_bfe_u32 {ch}, {L}, 4, 1")
    g(f"v_lshl_add_u32 {t0}, {khh}, 3, {r}")
    g(f"v_lshlrev_b32 {t1}, 5, {ch}\nv_lshl_add_u32 {t1}, {c}, 3, {t1}")
    g(f"v_lshl_add_u32 {g.v_Aq[0]}, {t0}, 7, {t1}")
    g(f"v_mul_u32_u24 {g.v_T}, 192, {t0}\nv_add_u32 {g.v_T}, {g.v_T}, {t1}")
    g(f"v_bfe_u32 {t0}, {L}, 3, 1\nv_lshl_add_u32 {g.v_Aq[0]}, {t0}, 6, {g.v_Aq[0]}")
    g(f"v_xor_b32 {g.v_Ak[0]}, 64, {g.v_Aq[0]}")
    g(f"v_add_u32 {g.v_Aq[1]}, 0x10000, {g.v_Aq[0]}\nv_add_u32 {g.v_Ak[1]}, 0x10000, {g.v_Ak[0]}")
    g(f"s_mul_i32 {a[0]}, {g.s_w}, 12288\ns_add_u32 {a[0]}, {a[0]}, {L_SCR}")
    g(f"v_add_u32 {g.v_T}, {a[0]}, {g.v_T}")
    g(f"v_lshlrev_b32 {g.v_x16}, 4, {L}")
    g(f"v_and_b32 {t0}, 31, {L}\nv_mul_u32_u24 {t1}, 192, {t0}\nv_add_u32 {t1}, {a[0]}, {t1}")
    g(f"v_lshl_add_u32 {g.v_img}, {khh}, 5, {t1}")
    g(f"v_lshl_add_u32 {g.v_vA}, {khh}, 3, {t1}\nv_add_u32 {g.v_vA}, 136, {g.v_vA}")
    g(f"v_cmp_eq_u32 vcc, 0, {khh}\nv_cndmask_b32_e64 {g.v_vC}, 0, 40, vcc\nv_add_u32 {g.v_vC}, {g.v_vC}, {t1}\nv_add_u32 {g.v_vC}, 128, {g.v_vC}")
    g(f"s_mul_i32 {a[1]}, {g.s_w}, 12288\ns_add_u32 {a[1]}, {a[1]}, {L_KVS}")
    g(f"v_mul_u32_u24 {g.v_K}, 384, {khh}\nv_lshl_add_u32 {g.v_K}, {t0}, 2, {g.v_K}\nv_add_u32 {g.v_K}, {a[1]}, {g.v_K}")
    V.free(r, c, khh, ch)
    z = g.vv("z", 4)
    for i in range(4): g(f"v_mov_b32 {z[i]}, 0")
    g(f"v_lshlrev_b32 {t0}, 4, v0\nv_add_u32 {t0}, {L_KVA}, {t0}")
    g(f"v_cmp_gt_u32 vcc, 192, v0\nv_mov_b32 {t1}, {DUMMY}\nv_cndmask_b32 {t0}, {t1}, {t0}, vcc")
    g(f"ds_write_b128 {t0}, {z}")
    V.free(z)
    g.s_l2e2 = g.sv("l2e", 2); g.s_l2e = g.s_l2e2[0]; g.s_hi = g.sv("hi", 2); g.v_one = g.vv("one")
    g(f"s_mov_b32 {g.s_l2e}, {lit(LOG2E)}\ns_mov_b32 {g.s_l2e2[1]}, {lit(LOG2E)}\ns_mov_b32 {g.s_hi[0]}, 0\ns_mov_b32 {g.s_hi[1]}, -1\nv_mov_b32 {g.v_one}, 0x3f80")

def ga_setup(g):
    t0, t1 = g.v_t0, g.v_t1; V = g.V
    g.v_ga = g.vv("ga", 4); g.v_ga3 = g.vv("gaz")
    row, q, kh, slot, c, m = g.vv("row"), g.vv("q"), g.vv("kh"), g.vv("slot"), g.vv("c"), g.vv("m")
    g(f"v_mul_u32_u24 {row}, 10923, v0\nv_lshrrev_b32 {row}, 16, {row}")
    g(f"v_mul_u32_u24 {t0}, 6, {row}\nv_sub_u32 {q}, v0, {t0}")
    g(f"v_cmp_lt_u32 vcc, 19, {row}\nv_cndmask_b32_e64 {kh}, 0, 1, vcc\nv_mul_u32_u24 {t0}, 20, {kh}\nv_sub_u32 {slot}, {row}, {t0}")
    g(f"v_mul_u32_u24 {kh}, 48, {kh}\nv_lshl_add_u32 {kh}, {slot}, 1, {kh}\nv_add_u32 {kh}, {L_KVA}, {kh}")
    for e in range(4):
        g(f"v_lshl_add_u32 {c}, {q}, 2, {e}")
        g(f"v_cmp_lt_u32 vcc, 9, {c}\nv_cndmask_b32_e64 {t0}, 0, 1, vcc\nv_mul_u32_u24 {t1}, 10, {t0}\nv_sub_u32 {t1}, {c}, {t1}")
        g(f"v_lshrrev_b32 {m}, 2, {t1}\nv_lshlrev_b32 {m}, 3, {m}\nv_lshl_add_u32 {m}, {t0}, 2, {m}\nv_and_b32 {t1}, 3, {t1}\nv_add_u32 {m}, {m}, {t1}")
        g(f"v_cmp_eq_u32 vcc, 20, {c}\nv_cndmask_b32_e64 {m}, {m}, 18, vcc")
        g(f"v_mul_u32_u24 {g.v_ga[e]}, 96, {m}\nv_add_u32 {g.v_ga[e]}, {g.v_ga[e]}, {kh}")
        g(f"v_mov_b32 {t1}, {DUMMY}\nv_cmp_lt_u32 vcc, 20, {c}\nv_cndmask_b32 {g.v_ga[e]}, {g.v_ga[e]}, {t1}, vcc")
        g(f"v_cmp_lt_u32 vcc, 239, v0\nv_cndmask_b32 {g.v_ga[e]}, {g.v_ga[e]}, {t1}, vcc")
    g(f"v_add_u32 {g.v_ga3}, 384, {g.v_ga[0]}\nv_mov_b32 {t1}, {DUMMY}\nv_cmp_ne_u32 vcc, 5, {q}\nv_cndmask_b32 {g.v_ga3}, {g.v_ga3}, {t1}, vcc")
    g(f"v_cmp_lt_u32 vcc, 239, v0\nv_cndmask_b32 {g.v_ga3}, {g.v_ga3}, {t1}, vcc")
    V.free(row, q, kh, slot, c, m)

def set_layer(g):
    for nm, arr in (("s_xn", XN_IN), ("s_xr", X_IN), ("s_kvb", KVB), ("s_ob", OB), ("s_x1", X1), ("s_gb", GB), ("s_stb", STB), ("s_zb", ZB)):
        if not hasattr(g, nm) or getattr(g, nm) is None: setattr(g, nm, g.sv(nm))
        r = getattr(g, nm)
        g(f"s_cmp_eq_u32 {g.s_layer}, 0\ns_cselect_b32 {r}, {arr[0]}, {arr[1]}") if False else None
        g(f"s_mul_i32 {r}, {g.s_layer}, {arr[1] - arr[0]}\ns_add_u32 {r}, {r}, {arr[0]}")
        if nm == "s_x1": g(f"s_mul_i32 {g.s_a[0]}, {g.s_tb}, {LOCSZ - XSZ}\ns_add_u32 {r}, {r}, {g.s_a[0]}")

def softmax_gen(g, acc, pk, outp, outm, T, packed, skip_pack=False):
    d2, ep, em = T["d2"], T["ep"], T["em"]
    mx, mn, t2, sp, sm_ = T["mx"], T["mn"], T["t2"], T["sp"], T["sm"]
    if not skip_pack:
        for q in range(8):
            g(f"v_cvt_pk_bf16_f32 {pk[q]}, {acc[2*q]}, {acc[2*q+1]}"); yield 1
    g(f"v_mfma_f32_32x32x16_bf16 {d2}, {g.v_phi[0:4]}, {pk[0:4]}, 0"); yield "mfma"
    g(f"v_mfma_f32_32x32x16_bf16 {d2}, {g.v_phi[4:8]}, {pk[4:8]}, {d2}"); yield "mfma"
    yield "gap"
    g(f"v_max3_f32 {mx}, {d2[0]}, {d2[1]}, {d2[2]}"); yield 1
    g(f"v_min3_f32 {mn}, {d2[0]}, {d2[1]}, {d2[2]}"); yield 1
    for i in (3, 5, 7):
        g(f"v_max3_f32 {mx}, {mx}, {d2[i]}, {d2[i+1]}"); yield 1
        g(f"v_min3_f32 {mn}, {mn}, {d2[i]}, {d2[i+1]}"); yield 1
    g(f"v_max_f32 {mx}, {mx}, {d2[9]}"); yield 1
    g(f"v_min_f32 {mn}, {mn}, {d2[9]}"); yield 1
    g(f"v_mov_b32 {t2}, {mx}"); yield 1
    g(f"v_mov_b32 {sp}, {mn}"); yield 1
    g("s_nop 0"); yield 1
    g(f"v_permlane32_swap_b32 {t2}, {mx}"); yield 1
    g(f"v_permlane32_swap_b32 {sp}, {mn}"); yield 1
    g(f"v_max_f32 {mx}, {mx}, {t2}"); yield 1
    g(f"v_min_f32 {mn}, {mn}, {sp}"); yield 1
    g(f"v_mul_f32 {mx}, {lit(-LOG2E)}, {mx}"); yield 1
    g(f"v_mul_f32 {mn}, {lit(LOG2E)}, {mn}"); yield 1
    if packed:
        for i in range(5):
            g(f"v_pk_fma_f32 {ep[2*i:2*i+2]}, {d2[2*i:2*i+2]}, {g.s_l2e2}, {T['cc']} op_sel_hi:[1,1,0]"); yield 1
            g(f"v_pk_fma_f32 {em[2*i:2*i+2]}, {d2[2*i:2*i+2]}, {g.s_l2e2}, {T['cc']} op_sel:[0,0,1] op_sel_hi:[1,1,1] neg_lo:[1,0,0] neg_hi:[1,0,0]"); yield 1
    else:
        for i in range(10):
            g(f"v_fma_f32 {ep[i]}, {d2[i]}, {g.s_l2e}, {mx}"); yield 1
            g(f"v_fma_f32 {em[i]}, {d2[i]}, -{g.s_l2e}, {mn}"); yield 1
    for i in range(10):
        g(f"v_exp_f32 {ep[i]}, {ep[i]}"); yield 2
        g(f"v_exp_f32 {em[i]}, {em[i]}"); yield 2
    if packed:
        for e, k in ((ep, 0), (em, 4)):
            g(f"v_pk_add_f32 {d2[k:k+2]}, {e[0:2]}, {e[2:4]}"); yield 1
            g(f"v_pk_add_f32 {d2[k+2:k+4]}, {e[4:6]}, {e[6:8]}"); yield 1
        for e, k in ((ep, 0), (em, 4)):
            g(f"v_pk_add_f32 {d2[k:k+2]}, {d2[k:k+2]}, {e[8:10]}"); yield 1
        for e, k in ((ep, 0), (em, 4)):
            g(f"v_pk_add_f32 {d2[k:k+2]}, {d2[k:k+2]}, {d2[k+2:k+4]}"); yield 1
        g(f"v_add_f32 {sp}, {d2[0]}, {d2[1]}"); yield 1
        g(f"v_add_f32 {sm_}, {d2[4]}, {d2[5]}"); yield 1
    else:
        g(f"v_add_f32 {sp}, {ep[0]}, {ep[1]}"); yield 1
        g(f"v_add_f32 {sm_}, {em[0]}, {em[1]}"); yield 1
        for i in range(2, 10):
            g(f"v_add_f32 {sp}, {sp}, {ep[i]}"); yield 1
            g(f"v_add_f32 {sm_}, {sm_}, {em[i]}"); yield 1
    g(f"v_mov_b32 {t2}, {sp}"); yield 1
    g(f"v_mov_b32 {mx}, {sm_}"); yield 1
    g("s_nop 0"); yield 1
    g(f"v_permlane32_swap_b32 {t2}, {sp}"); yield 1
    g(f"v_permlane32_swap_b32 {mx}, {sm_}"); yield 1
    g(f"v_add_f32 {sp}, {sp}, {t2}"); yield 1
    g(f"v_add_f32 {sm_}, {sm_}, {mx}"); yield 1
    g(f"v_rcp_f32 {d2[0]}, {sp}"); yield 2
    g(f"v_rcp_f32 {d2[2]}, {sm_}"); yield 2
    if packed:
        for i in range(5):
            g(f"v_pk_mul_f32 {ep[2*i:2*i+2]}, {ep[2*i:2*i+2]}, {d2[0:2]} op_sel_hi:[1,0]"); yield 1
            g(f"v_pk_mul_f32 {em[2*i:2*i+2]}, {em[2*i:2*i+2]}, {d2[2:4]} op_sel_hi:[1,0]"); yield 1
    else:
        for i in range(10):
            g(f"v_mul_f32 {ep[i]}, {ep[i]}, {d2[0]}"); yield 1
            g(f"v_mul_f32 {em[i]}, {em[i]}, {d2[2]}"); yield 1
    for i in range(5):
        g(f"v_cvt_pk_bf16_f32 {outp[i]}, {ep[2*i]}, {ep[2*i+1]}"); yield 1
        g(f"v_cvt_pk_bf16_f32 {outm[i]}, {em[2*i]}, {em[2*i+1]}"); yield 1

def k_epilogue_gen(g, pi, Aq, Ak, pq, T, KV, packed):
    pk, fo = T["pk"], T["fo"]
    ro = pi * 32 * 192
    for q in range(8):
        g(f"v_cvt_pk_bf16_f32 {pk[q]}, {Ak[2*q]}, {Ak[2*q+1]}"); yield 1
    sgen = softmax_gen(g, None, pk, fo[0:5], fo[6:11], T, packed, skip_pack=True)
    yield next(sgen); yield next(sgen)
    next(sgen)
    for q in range(8):
        g(f"v_cvt_pk_bf16_f32 {pq[q]}, {Aq[2*q]}, {Aq[2*q+1]}"); yield 1
    vc = T["fa"][0:2]
    g(f"v_cndmask_b32_e64 {vc[0]}, {g.v_one}, {pq[4]}, {g.s_hi}"); yield 1
    g(f"v_cndmask_b32_e64 {vc[1]}, 0, {pq[5]}, {g.s_hi}"); yield 1
    g(f"ds_write_b64 {g.v_vA}, {pq[6:8]} offset:{ro}"); yield 1
    g(f"ds_write_b64 {g.v_vA}, {pk[6:8]} offset:{ro + 16}"); yield 1
    g(f"ds_write_b64 {g.v_vC}, {vc} offset:{ro}"); yield 1
    yield from sgen
    g(f"ds_write_b128 {g.v_img}, {fo[0:4]} offset:{ro}"); yield 1
    g(f"ds_write_b32 {g.v_img}, {fo[4]} offset:{ro + 16}"); yield 1
    g(f"ds_write_b128 {g.v_img}, {fo[6:10]} offset:{ro + 64}"); yield 1
    g(f"ds_write_b32 {g.v_img}, {fo[10]} offset:{ro + 80}"); yield 1
    mk = g.lg_mark()
    yield "gap"
    fa = T["fa"]; fb = T["fb"]
    g.wait(lg=mk); yield 1
    ms = []
    for ks, f in ((0, fa), (1, fb)):
        rb = (32 * pi + 16 * ks) * 192
        for tile in range(3):
            for t in range(2):
                g(f"ds_read_b64_tr_b16 {f[4*tile+2*t:4*tile+2*t+2]}, {g.v_T} offset:{rb + 4*t*192 + 64*tile}"); yield 1
        ms.append(g.lg_mark())
    for ks, f in ((0, fa), (1, fb)):
        g.wait(lg=ms[ks]); yield 1
        first = (pi == 0 and ks == 0)
        g(f"v_mfma_f32_32x32x16_bf16 {KV[0]}, {f[0:4]}, {f[8:12]}, {0 if first else KV[0]}"); yield "mfma"
        g(f"v_mfma_f32_32x32x16_bf16 {KV[1]}, {f[4:8]}, {f[8:12]}, {0 if first else KV[1]}"); yield "mfma"

def p1(g):
    V = g.V; a = g.s_a; t0, t1 = g.v_t0, g.v_t1; sc = g.sc
    import ph_s0
    g.c("==== P1 ====")
    g.stamp(8)
    ring = g.vv("ring", 4 * NR, 4)
    acc = [[g.vv("aq0", 16, 4), g.vv("ak0", 16, 4)], [g.vv("aq1", 16, 4), g.vv("ak1", 16, 4)]]
    fr = [g.vv("fr0", 8, 4), g.vv("fr1", 8, 4), g.vv("fr2", 8, 4)]
    pq = [g.vv("pq0", 8, 4), g.vv("pq1", 8, 4)]
    T = dict(d2=g.vv("d2", 16, 4), ep=g.vv("ep", 10, 2), em=g.vv("em", 10, 2), pk=g.vv("pk", 8, 4), fo=g.vv("fo", 12, 4),
             fa=g.vv("fa", 12, 4), cc=g.vv("cc", 2, 2), sp=g.vv("sp"), sm=g.vv("sm"), t2=g.vv("t2"))
    T["fb"] = T["d2"][0:12]
    T["mx"], T["mn"] = T["cc"][0], T["cc"][1]
    KV = [acc[0][0], acc[0][1]]
    sx = g.sv("sx")
    g(f"s_mul_i32 {sx}, {g.s_tb}, {XSZ}\ns_mul_i32 {a[0]}, {g.s_w}, 81920\ns_add_u32 {sx}, {sx}, {a[0]}\ns_add_u32 {sx}, {sx}, {g.s_xn}")
    marks = {}
    def xload(s):
        if s % 4 == 0 and s > 0: g(f"s_add_u32 {sx}, {sx}, 4096")
        r = ring[4 * (s % NR):4 * (s % NR) + 4]
        g(f"buffer_load_dwordx4 {r}, {g.v_x16}, {g.q_ws}, {sx} offen offset:{1024 * (s % 4)} sc1")
        marks[s] = g.vm_mark()
    def aload(s, tile):
        b = s % 40; f = fr[s % 3]; hi = 1 if b >= 32 else 0; off = (b - 32 * hi) * 2048
        ad = (g.v_Aq, g.v_Ak)[tile]
        for t in range(2):
            g(f"ds_read_b64_tr_b16 {f[4*tile+2*t:4*tile+2*t+2]}, {ad[hi]} offset:{off + 512*t}")
    if g.fast:
        sk = g.label("pt")
        g(f"s_cmp_lg_u32 {g.s_layer}, 0\ns_cbranch_scc1 {sk}")
        g(f"s_lshl_b32 {a[0]}, {g.s_j}, 2\ns_add_u32 {a[0]}, {a[0]}, {g.s_w}\ns_mul_i32 {a[0]}, {a[0]}, {61*128}\ns_mul_i32 {a[1]}, {g.s_tb}, {LOCSZ}\ns_add_u32 {a[0]}, {a[0]}, {a[1]}\ns_add_u32 {a[0]}, {a[0]}, {LOC}")
        g(f"v_lshlrev_b32 {t0}, 7, {g.v_lane}\nv_cmp_gt_u32 vcc, 61, {g.v_lane}\nv_mov_b32 {t1}, {BIG}\nv_cndmask_b32 {t0}, {t1}, {t0}, vcc")
        g.lines.append(f"buffer_store_dword {t1}, {t0}, {g.q_ws}, {a[0]} offen")
        g(f"{sk}:")
    for s in range(NR): xload(s)
    g("s_barrier")
    g.stamp(19)
    am = {}
    for s in (0, 1):
        aload(s, 0); aload(s, 1); am[s] = g.lg_mark()
    filler = None; hold = 0
    def fill(budget):
        nonlocal filler, hold
        if filler is None: return
        if hold > 0:
            hold -= 1; return
        while budget > 0:
            try: r = next(filler)
            except StopIteration:
                filler = None; return
            if r == "gap": hold = 2; return
            if r == "mfma": budget -= 3
            else: budget -= r
    for s in range(80):
        pi = s // 40
        if s == 40:
            g.stamp(18)
            ph_s0.wo_flag(g)
        if s == 41: filler = k_epilogue_gen(g, 0, acc[0][0], acc[0][1], pq[0], T, KV, packed=False)
        g.wait(vm=marks[s], lg=am[s])
        b = ring[4 * (s % NR):4 * (s % NR) + 4]; f = fr[s % 3]
        c0 = (s % 40 == 0)
        g(f"v_mfma_f32_32x32x16_bf16 {acc[pi][0]}, {f[0:4]}, {b}, {0 if c0 else acc[pi][0]}")
        nA = 6
        if s + 2 < 80: aload(s + 2, 0); nA -= 2
        if s >= 1 and s - 1 + NR < 80: xload(s - 1 + NR); nA -= 1
        fill(nA)
        g(f"v_mfma_f32_32x32x16_bf16 {acc[pi][1]}, {f[4:8]}, {b}, {0 if c0 else acc[pi][1]}")
        nB = 5
        if s + 2 < 80:
            aload(s + 2, 1); nB -= 2; am[s + 2] = g.lg_mark()
        fill(nB)
    if filler is not None: drain(filler)
    g.stamp(9)
    z_poison(g)
    sk = g.label("wo")
    g(f"s_cmp_lg_u32 {g.s_layer}, 0\ns_cbranch_scc1 {sk}")
    wo_ready(g)
    g.stamp(14)
    ph_s0.load_wo(g)
    g.stamp(15)
    g(f"{sk}:")
    drain(k_epilogue_gen(g, 1, acc[1][0], acc[1][1], pq[1], T, KV, packed=True))
    g.stamp(16)
    g(f"s_mov_b64 {g.s_ex}, exec\ns_mov_b32 exec_lo, 0x00ffffff\ns_mov_b32 exec_hi, 0x00ffffff")
    for sg in range(2):
        for i in (0, 2):
            for jj in range(4):
                g(f"ds_write_b32 {g.v_K}, {KV[sg][4*i+jj]} offset:{(((i>>1)*2 + sg)*10 + jj)*96}")
    g(f"s_mov_b32 exec_hi, 0")
    for sg in range(2):
        for i in (1, 3):
            for jj in range(2):
                g(f"ds_write_b32 {g.v_K}, {KV[sg][4*i+jj]} offset:{(((i>>1)*2 + sg)*10 + 8 + jj)*96}")
    g(f"s_mov_b64 exec, {g.s_ex}")
    g.wait0(vm=False)
    g("s_barrier")
    g.stamp(17)
    pub = T["d2"]
    g(f"v_lshlrev_b32 {t0}, 4, v0\nv_add_u32 {t1}, {L_KVS}, {t0}")
    for w in range(4): g(f"ds_read_b128 {pub[4*w:4*w+4]}, {t1} offset:{12288*w}")
    skv = g.sv("skv")
    g(f"s_lshl_b32 {skv}, {g.s_j}, 14\ns_add_u32 {skv}, {skv}, {g.s_kvb}")
    g(f"s_lshl_b32 {a[0]}, {g.s_tb}, 11\ns_add_u32 {a[0]}, {a[0]}, {skv}")
    vkv = g.vv("vkv")
    g(f"v_lshrrev_b32 {vkv}, 1, {t0}")
    g(f"v_cmp_gt_u32 vcc, 240, v0\nv_mov_b32 {t1}, {BIG}\nv_cndmask_b32 {vkv}, {t1}, {vkv}, vcc")
    g.wait0(vm=False)
    for w in range(1, 4):
        g(f"v_pk_add_f32 {pub[0:2]}, {pub[0:2]}, {pub[4*w:4*w+2]}\nv_pk_add_f32 {pub[2:4]}, {pub[2:4]}, {pub[4*w+2:4*w+4]}")
    g(f"v_cvt_pk_bf16_f32 {pub[4]}, {pub[0]}, {pub[1]}\nv_cvt_pk_bf16_f32 {pub[5]}, {pub[2]}, {pub[3]}")
    g.lines.append("s_waitcnt vmcnt(0)")
    g.lines.append(f"buffer_store_dwordx2 {pub[4:6]}, {vkv}, {g.q_ws}, {a[0]} offen sc1")
    g.stamp(10)
    fq = [acc[1][0][0:12], acc[1][1][0:12]]
    gd = ring[0:16]
    g.vm = []
    def gather():
        g(f"s_mov_b32 {a[4]}, {skv}")
        for tb in range(8):
            g.lines.append(f"buffer_load_dwordx2 {gd[2*tb:2*tb+2]}, {vkv}, {g.q_ws}, {a[4]} offen sc1")
            if tb < 7: g(f"s_add_u32 {a[4]}, {a[4]}, 2048")
    for pi in range(2):
        g(f"v_mov_b32 {fq[pi][10]}, 0\nv_mov_b32 {fq[pi][11]}, 0")
        drain(q_softmax(g, pq[pi], fq[pi], T))
        if pi == 0: gather()
    V.free(T["d2"], T["ep"], T["em"], T["pk"], T["fo"], *fr, *pq)
    ga_setup(g)
    g.stamp(11)
    lp = g.label("kvp"); dn = g.label("kvd")
    g(f"s_mov_b32 {g.s_spin}, {1 << 18}")
    g(f"{lp}:")
    g.lines.append("s_waitcnt vmcnt(0)")
    mxr = ring[16]
    g(f"v_max3_u32 {mxr}, {gd[0]}, {gd[1]}, {gd[2]}")
    for q in range(3, 15, 2): g(f"v_max3_u32 {mxr}, {mxr}, {gd[q]}, {gd[q+1]}")
    g(f"v_max_u32 {mxr}, {mxr}, {gd[15]}\nv_cmp_eq_u32 vcc, -1, {mxr}\ns_cbranch_vccz {dn}")
    gather()
    g(f"s_sub_u32 {g.s_spin}, {g.s_spin}, 1\ns_cmp_lg_u32 {g.s_spin}, 0\ns_cbranch_scc1 {lp}")
    g.lines.append("s_waitcnt vmcnt(0)")
    g(f"{dn}:")
    g.stamp(12)
    sv = ring[20:28]; uv = ring[28:32]
    g(f"v_lshlrev_b32 {sv[0]}, 16, {gd[0]}\nv_and_b32 {sv[1]}, 0xffff0000, {gd[0]}\nv_lshlrev_b32 {sv[2]}, 16, {gd[1]}\nv_and_b32 {sv[3]}, 0xffff0000, {gd[1]}")
    for tb in range(1, 8):
        g(f"v_lshlrev_b32 {uv[0]}, 16, {gd[2*tb]}\nv_and_b32 {uv[1]}, 0xffff0000, {gd[2*tb]}\nv_lshlrev_b32 {uv[2]}, 16, {gd[2*tb+1]}\nv_and_b32 {uv[3]}, 0xffff0000, {gd[2*tb+1]}")
        g(f"v_pk_add_f32 {sv[0:2]}, {sv[0:2]}, {uv[0:2]}\nv_pk_add_f32 {sv[2:4]}, {sv[2:4]}, {uv[2:4]}")
    gd = ring[32:40]
    g(f"v_cvt_pk_bf16_f32 {gd[4]}, {sv[0]}, {sv[1]}\nv_cvt_pk_bf16_f32 {gd[5]}, {sv[2]}, {sv[3]}")
    g(f"ds_write_b16 {g.v_ga[0]}, {gd[4]}\nds_write_b16_d16_hi {g.v_ga[1]}, {gd[4]}\nds_write_b16 {g.v_ga[2]}, {gd[5]}\nds_write_b16_d16_hi {g.v_ga[3]}, {gd[5]}")
    g(f"ds_write_b16 {g.v_ga3}, {gd[4]}")
    V.free(vkv)
    V.free(g.v_ga, g.v_ga3)
    g.wait0(vm=False)
    g("s_barrier")
    g.stamp(30) if g.fine else None
    ka = T["fa"]
    g(f"v_and_b32 {t0}, 31, {g.v_lane}\nv_mul_u32_u24 {t0}, 96, {t0}\nv_lshrrev_b32 {t1}, 5, {g.v_lane}\nv_mul_u32_u24 {t1}, 48, {t1}\nv_add_u32 {t0}, {t0}, {t1}\nv_add_u32 {t0}, {L_KVA}, {t0}")
    for st in range(3): g(f"ds_read_b128 {ka[4*st:4*st+4]}, {t0} offset:{16*st}")
    vo = T["t2"]; vt = T["sm"]
    g(f"v_bfe_u32 {t0}, {g.v_lane}, 4, 1\nv_mul_u32_u24 {vo}, 20480, {t0}\nv_and_b32 {t0}, 15, {g.v_lane}")
    g(f"v_lshl_add_u32 {vt}, {t0}, 3, {vo}\nv_lshl_add_u32 {vo}, {t0}, 4, {vo}\nv_lshrrev_b32 {t1}, 5, {g.v_lane}\nv_lshl_add_u32 {vo}, {t1}, 8, {vo}")
    g(f"s_mul_i32 {a[0]}, {g.s_tb}, {LOCSZ}\ns_add_u32 {a[0]}, {a[0]}, {g.s_ob}\ns_mul_i32 {a[1]}, {g.s_w}, {4*20480}\ns_add_u32 {a[0]}, {a[0]}, {a[1]}")
    g(f"s_lshl_b32 {a[1]}, {g.s_j}, 7\ns_add_u32 {a[1]}, {a[1]}, {a[0]}\ns_add_u32 {a[1]}, {a[1]}, 16384")
    g(f"s_lshr_b32 {a[2]}, {g.s_j}, 1\ns_lshl_b32 {a[2]}, {a[2]}, 10\ns_add_u32 {a[0]}, {a[0]}, {a[2]}\ns_and_b32 {a[2]}, {g.s_j}, 1\ns_lshl_b32 {a[2]}, {a[2]}, 9\ns_add_u32 {a[0]}, {a[0]}, {a[2]}")
    g.wait0(vm=False)
    D3 = [acc[0][0], acc[0][1]]
    for pi in range(2):
        for st in range(3):
            g(f"v_mfma_f32_32x32x16_bf16 {D3[pi]}, {ka[4*st:4*st+4]}, {fq[pi][4*st:4*st+4]}, {0 if st == 0 else D3[pi]}")
    for pi in range(2):
        d = D3[pi]
        g(f"v_add_f32 {T['cc'][0]}, {lit(1e-6)}, {d[10]}\nv_rcp_f32 {T['cc'][0]}, {T['cc'][0]}")
        for i in range(5):
            g(f"v_pk_mul_f32 {d[2*i:2*i+2]}, {d[2*i:2*i+2]}, {T['cc']} op_sel_hi:[1,0]")
        op = fq[pi]
        for i in range(5): g(f"v_cvt_pk_bf16_f32 {op[i]}, {d[2*i]}, {d[2*i+1]}")
        if pi == 1: g(f"s_add_u32 {a[0]}, {a[0]}, {2*20480}\ns_add_u32 {a[1]}, {a[1]}, {2*20480}")
        g(f"buffer_store_dwordx4 {op[0:4]}, {vo}, {g.q_ws}, {a[0]} offen{sc}")
        g(f"v_mov_b32 {op[6]}, {op[4]}\nv_mov_b32 {op[7]}, {op[4]}\nv_permlane32_swap_b32 {op[6]}, {op[7]}")
        g(f"s_mov_b64 {g.s_ex}, exec\ns_mov_b32 exec_hi, 0")
        g(f"buffer_store_dwordx2 {op[6:8]}, {vt}, {g.q_ws}, {a[1]} offen{sc}")
        g(f"s_mov_b64 exec, {g.s_ex}")
    g.stamp(13)
    V.free(ring, *acc[0], *acc[1], T["fa"], T["cc"], T["sp"], T["sm"], T["t2"])
    g.S.free(sx, skv)

def q_softmax(g, pq, out, T):
    yield from softmax_gen(g, None, pq, out[0:5], out[5:10], T, packed=True, skip_pack=True)

def init_wait(g, cond=True):
    sk = g.label("iw"); t0 = g.v_t0
    if cond: g(f"s_cmp_lg_u32 {g.s_layer}, 0\ns_cbranch_scc1 {sk}")
    q = g.S.alloc("q_dbg", 4); pv = g.vv("pv"); pa = g.vv("pa")
    g.srd(q, g.p_in[10], g.p_in[11], 256)
    g(f"v_lshlrev_b32 {pa}, 2, {g.v_lane}")
    lp = g.label("iwp"); dn = g.label("iwd")
    g(f"s_mov_b32 {g.s_spin}, {1 << 20}")
    g(f"{lp}:")
    g.lines.append(f"buffer_load_dword {pv}, {pa}, {q}, 0 offen sc1")
    g.lines.append("s_waitcnt vmcnt(0)")
    g(f"v_subrev_u32 {t0}, 0x01010101, {pv}\nv_bfi_b32 {t0}, {pv}, 0, {t0}\nv_and_b32 {t0}, 0x80808080, {t0}")
    g(f"v_cmp_ne_u32 vcc, 0, {t0}\ns_cbranch_vccz {dn}")
    g(f"s_sub_u32 {g.s_spin}, {g.s_spin}, 1\ns_cmp_lg_u32 {g.s_spin}, 0\ns_cbranch_scc1 {lp}")
    g(f"{dn}:")
    g.S.free(q); g.V.free(pv, pa)
    g(f"{sk}:")

def wo_ready(g):
    t0 = g.v_t0
    init_wait(g, cond=False)
    pa = g.vv("pa"); pv = g.vv("pv")
    g(f"v_min_u32 {pa}, 19, {g.v_lane}\nv_lshlrev_b32 {pa}, 2, {pa}\nv_add_u32 {pa}, {WOFL}, {pa}")
    lp = g.label("wrp"); dn = g.label("wrd")
    g(f"s_mov_b32 {g.s_spin}, {1 << 20}")
    g(f"{lp}:")
    g.lines.append(f"buffer_load_dword {pv}, {pa}, {g.q_ws}, 0 offen sc1")
    g.lines.append("s_waitcnt vmcnt(0)")
    g(f"v_cmp_ne_u32 vcc, 0x01010101, {pv}\ns_cbranch_vccz {dn}")
    g(f"s_sub_u32 {g.s_spin}, {g.s_spin}, 1\ns_cmp_lg_u32 {g.s_spin}, 0\ns_cbranch_scc1 {lp}")
    g(f"{dn}:")
    g.V.free(pa, pv)

def z_poison(g):
    a = g.s_a; t0 = g.v_t0
    sk = g.label("zp")
    pz = g.vv("pz", 4, 4)
    g(f"s_cmp_gt_u32 {g.s_j}, 20\ns_cbranch_scc1 {sk}")
    for q in range(4): g(f"v_mov_b32 {pz[q]}, -1")
    g(f"s_mul_i32 {a[0]}, {g.s_tb}, {ZSZ}\ns_add_u32 {a[0]}, {a[0]}, {g.s_zb}\ns_lshl_b32 {a[1]}, {g.s_j}, 14\ns_add_u32 {a[0]}, {a[0]}, {a[1]}\ns_lshl_b32 {a[1]}, {g.s_w}, 12\ns_add_u32 {a[0]}, {a[0]}, {a[1]}")
    for q in range(4):
        g.lines.append(f"buffer_store_dwordx4 {pz}, {g.v_x16}, {g.q_ws}, {a[0]} offen offset:{1024*q} sc1")
    g(f"{sk}:")
    g.V.free(pz)
```

```python
from emit import *
from maps import *
from gen_main import lit
BIG = 0x7ff00000

def p2_setup(g):
    a = g.s_a; t0, t1 = g.v_t0, g.v_t1; L = g.v_lane; V = g.V
    g.v_xp = g.vv("xp", 3)
    e2, base, gq = g.vv("e2"), g.vv("base"), g.vv("gq")
    g(f"s_and_b32 {a[0]}, {g.s_j}, 3\ns_lshl_b32 {a[0]}, {a[0]}, 6\ns_and_b32 {a[1]}, {g.s_w}, 1\ns_lshl_b32 {a[1]}, {a[1]}, 5\ns_add_u32 {a[0]}, {a[0]}, {a[1]}")
    g(f"s_lshr_b32 {a[1]}, {g.s_w}, 1\ns_lshl_b32 {a[1]}, {a[1]}, 4\ns_add_u32 {a[0]}, {a[0]}, {a[1]}")
    g.v_p2p = g.vv("p2p")
    g(f"v_and_b32 {t0}, 15, {L}\nv_add_u32 {g.v_p2p}, {a[0]}, {t0}")
    g(f"v_lshrrev_b32 {t0}, 5, {g.v_p2p}\nv_mul_u32_u24 {base}, 40960, {t0}\nv_and_b32 {t0}, 31, {g.v_p2p}\nv_lshl_add_u32 {base}, {t0}, 4, {base}")
    g(f"v_lshrrev_b32 {gq}, 4, {L}")
    g(f"s_lshr_b32 {a[1]}, {g.s_j}, 2")
    for q in range(3):
        g(f"v_lshrrev_b32 {t0}, 1, {gq}\nv_lshlrev_b32 {e2}, 3, {t0}\nv_add_u32 {e2}, {a[1]}, {e2}")
        if q < 2: g(f"v_and_b32 {t0}, 1, {gq}\nv_lshl_add_u32 {e2}, {t0}, 4, {e2}")
        if q: g(f"v_add_u32 {e2}, {32*q}, {e2}")
        g.code_of_e2(g.v_xp[q], e2, t0)
        g(f"v_lshl_add_u32 {g.v_xp[q]}, {g.v_xp[q]}, 9, {base}")
    V.free(e2, base, gq)

def first_layer_constants(g, parts):
    import ph_s0
    sk = g.label("cst")
    g(f"s_cmp_lg_u32 {g.s_layer}, 0\ns_cbranch_scc1 {sk}")
    ph_s0.constants(g, parts)
    g(f"{sk}:")

def swap_quad(g, r):
    g(f"v_permlane16_swap_b32 {r[0]}, {r[2]}\nv_permlane16_swap_b32 {r[1]}, {r[3]}")

def p2(g):
    a = g.s_a; t0, t1 = g.v_t0, g.v_t1; L = g.v_lane; V = g.V; sc = g.sc
    g.c("==== P2 ====")
    p2_setup(g)
    xr = g.vv("xr", 12, 4)
    sxr = g.sv("sxr")
    g(f"s_mul_i32 {sxr}, {g.s_tb}, {XSZ}\ns_add_u32 {a[1]}, {sxr}, {g.s_xr}")
    res = []
    vo = g.vv("vo"); vt = g.vv("vt")
    g(f"v_lshlrev_b32 {vo}, 4, {L}")
    g(f"v_lshrrev_b32 {t0}, 4, {L}\nv_lshlrev_b32 {vt}, 8, {t0}\nv_and_b32 {t0}, 15, {L}\nv_lshl_add_u32 {vt}, {t0}, 3, {vt}")
    so = g.S.alloc("so", 4)
    g(f"s_and_b32 {a[2]}, {g.s_j}, 3\ns_lshl_b32 {a[2]}, {a[2]}, 2\ns_and_b32 {a[3]}, {g.s_w}, 1\ns_lshl_b32 {a[3]}, {a[3]}, 1\ns_add_u32 {a[2]}, {a[2]}, {a[3]}\ns_mul_i32 {a[2]}, {a[2]}, 20480")
    g(f"s_mul_i32 {a[3]}, {g.s_tb}, {LOCSZ}\ns_add_u32 {a[2]}, {a[2]}, {a[3]}\ns_add_u32 {a[2]}, {a[2]}, {g.s_ob}")
    g(f"s_lshr_b32 {a[3]}, {g.s_w}, 1\ns_lshl_b32 {so[0]}, {a[3]}, 13\ns_add_u32 {so[0]}, {so[0]}, {a[2]}\ns_add_u32 {so[1]}, {so[0]}, 20480")
    g(f"s_lshl_b32 {so[2]}, {a[3]}, 11\ns_add_u32 {so[2]}, {so[2]}, {a[2]}\ns_add_u32 {so[2]}, {so[2]}, 16384\ns_add_u32 {so[3]}, {so[2]}, 20480")
    g.local_barrier(g.fast, work=lambda: first_layer_constants(g, ('s1', 'h2', 's2')))
    g.stamp(20)
    ob = g.vv("ob", 80, 4)
    marks = []
    for u in range(10):
        for tt in range(2):
            r = ob[(u*2+tt)*4:(u*2+tt)*4+4]
            if u < 8:
                if u == 4: g(f"s_add_u32 {so[tt]}, {so[tt]}, 4096")
                g(f"buffer_load_dwordx4 {r}, {vo}, {g.q_ws}, {so[tt]} offen offset:{1024*(u%4)} sc1")
            else:
                v = u - 8
                g(f"buffer_load_dwordx2 {r[0:2]}, {vt}, {g.q_ws}, {so[2+tt]} offen offset:{1024*v} sc1")
                g(f"buffer_load_dwordx2 {r[2:4]}, {vt}, {g.q_ws}, {so[2+tt]} offen offset:{1024*v + 128} sc1")
        marks.append(g.vm_mark())
    g(f"s_add_u32 {a[1]}, {sxr}, {g.s_xr}")
    for q in range(3):
        g(f"buffer_load_dwordx4 {xr[4*q:4*q+4]}, {g.v_xp[q]}, {g.q_ws}, {a[1]} offen sc1")
    mx = g.vm_mark()
    acc = g.vv("acc", 40, 4)
    g.stamp(1) if g.fine else None
    for u in range(10):
        g.wait(vm=marks[u])
        if u == 1 and g.fine: g.stamp(2)
        if u == 5 and g.fine: g.stamp(3)
        for tt in range(2):
            b = ob[(u*2+tt)*4:(u*2+tt)*4+4]
            for i in range(5):
                c = acc[(tt*5+i)*4:(tt*5+i)*4+4]
                g(f"v_mfma_f32_16x16x32_bf16 {c}, {g.a_wo[(u*5+i)*4:(u*5+i)*4+4]}, {b}, {0 if u == 0 else c}")
    V.free(ob, vo, vt)
    g.stamp(21)
    ex = g.vv("ex"); h1 = g.vv("h1", 60, 4); hadr = g.vv("hadr")
    g(f"s_mul_i32 {a[2]}, {g.s_w}, 5120\ns_add_u32 {a[2]}, {a[2]}, {L_SCR}\nv_lshlrev_b32 {ex}, 4, {L}\nv_add_u32 {t1}, {a[2]}, {ex}")
    lk = g.label("k1"); lk2 = g.label("k2")
    g(f"s_cmp_ge_u32 {g.s_w}, 2\ns_cbranch_scc1 {lk}")
    for i in range(5): g.lines.append(f"ds_write_b128 {t1}, {acc[(5+i)*4:(5+i)*4+4]} offset:{1024*i}")
    g(f"s_branch {lk2}\n{lk}:")
    for i in range(5): g.lines.append(f"ds_write_b128 {t1}, {acc[i*4:i*4+4]} offset:{1024*i}")
    for q in range(20): g(f"v_mov_b32 {acc[q]}, {acc[20+q]}")
    g(f"{lk2}:")
    g(f"v_add_u32 {hadr}, {L_H1}, {ex}")
    g.lines.append("s_waitcnt lgkmcnt(0)")
    g("s_barrier")
    g(f"s_xor_b32 {a[2]}, {g.s_w}, 2\ns_mul_i32 {a[2]}, {a[2]}, 5120\ns_add_u32 {a[2]}, {a[2]}, {L_SCR}\nv_add_u32 {t1}, {a[2]}, {ex}")
    g.lg = []
    oth = acc[20:40]
    for i in range(5): g(f"ds_read_b128 {oth[4*i:4*i+4]}, {t1} offset:{1024*i}")
    mo = g.lg_mark()
    g.stamp(4) if g.fine else None
    hm = []
    for f in range(15):
        g(f"ds_read_b128 {h1[4*f:4*f+4]}, {hadr} offset:{1024*f}")
    mh = g.lg_mark()
    g.wait(vm=mx, lg=mo)
    x1 = acc[0:20]
    xf = g.vv("xf", 4)
    for q in range(3): swap_quad(g, xr[4*q:4*q+4])
    for i in range(5):
        g(f"v_pk_add_f32 {x1[4*i:4*i+2]}, {x1[4*i:4*i+2]}, {oth[4*i:4*i+2]}\nv_pk_add_f32 {x1[4*i+2:4*i+4]}, {x1[4*i+2:4*i+4]}, {oth[4*i+2:4*i+4]}")
        g(f"v_lshlrev_b32 {xf[0]}, 16, {xr[2*i]}\nv_and_b32 {xf[1]}, 0xffff0000, {xr[2*i]}\nv_lshlrev_b32 {xf[2]}, 16, {xr[2*i+1]}\nv_and_b32 {xf[3]}, 0xffff0000, {xr[2*i+1]}")
        g(f"v_pk_add_f32 {x1[4*i:4*i+2]}, {x1[4*i:4*i+2]}, {xf[0:2]}\nv_pk_add_f32 {x1[4*i+2:4*i+4]}, {x1[4*i+2:4*i+4]}, {xf[2:4]}")
    V.free(xf)
    xp = g.vv("xp1", 12, 4)
    for q in range(10): g(f"v_cvt_pk_bf16_f32 {xp[q]}, {x1[2*q]}, {x1[2*q+1]}")
    g(f"v_mov_b32 {xp[10]}, 0\nv_mov_b32 {xp[11]}, 0")
    for q in range(8): g(f"v_mov_b32 {xr[q]}, {xp[q]}")
    g(f"v_mov_b32 {xr[8]}, {xp[8]}\nv_mov_b32 {xr[9]}, {xp[9]}\nv_mov_b32 {xr[10]}, {xp[8]}\nv_mov_b32 {xr[11]}, {xp[9]}")
    for q in range(3): swap_quad(g, xr[4*q:4*q+4])
    G = oth
    g.wait(lg=mh)
    for ip in range(5):
        for u in range(3):
            c = G[4*ip:4*ip+4]
            g(f"v_mfma_f32_16x16x32_bf16 {c}, {h1[4*(ip*3+u):4*(ip*3+u)+4]}, {xp[4*u:4*u+4]}, {0 if u == 0 else c}")
    g.stamp(5) if g.fine else None
    g(f"s_add_u32 {a[1]}, {sxr}, {g.s_x1}")
    for q in range(3):
        g(f"buffer_store_dwordx4 {xr[4*q:4*q+4]}, {g.v_xp[q]}, {g.q_ws}, {a[1]} offen{sc}")
    sm, sq = g.vv("sm", 2, 2), g.vv("sq", 2, 2)
    g(f"v_pk_add_f32 {sm}, {x1[0:2]}, {x1[2:4]}\nv_pk_mul_f32 {sq}, {x1[0:2]}, {x1[0:2]}\nv_pk_fma_f32 {sq}, {x1[2:4]}, {x1[2:4]}, {sq}")
    for q in range(2, 10):
        g(f"v_pk_add_f32 {sm}, {sm}, {x1[2*q:2*q+2]}\nv_pk_fma_f32 {sq}, {x1[2*q:2*q+2]}, {x1[2*q:2*q+2]}, {sq}")
    g(f"v_add_f32 {sm[0]}, {sm[0]}, {sm[1]}\nv_add_f32 {sm[1]}, {sq[0]}, {sq[1]}")
    for x in (sm[0], sm[1]):
        g.xq16(x, t0, "v_add_f32"); g.xhalf(x, t0, "v_add_f32")
    g(f"s_lshr_b32 {a[2]}, {g.s_j}, 2\ns_lshl_b32 {a[2]}, {a[2]}, 11\nv_lshlrev_b32 {t1}, 3, {g.v_p2p}")
    g(f"v_cmp_gt_u32 vcc, 16, {L}\nv_mov_b32 {t0}, {BIG}\nv_cndmask_b32 {t1}, {t0}, {t1}, vcc")
    g(f"s_mul_i32 {a[3]}, {g.s_tb}, {LOCSZ}\ns_add_u32 {a[2]}, {a[2]}, {a[3]}\ns_add_u32 {a[2]}, {a[2]}, {g.s_stb}")
    g(f"buffer_store_dwordx2 {sm}, {t1}, {g.q_ws}, {a[2]} offen{sc}")
    gq = g.vv("gpk", 10, 2)
    for ip in range(5):
        g(f"v_cvt_pk_bf16_f32 {gq[2*ip]}, {G[4*ip]}, {G[4*ip+1]}\nv_cvt_pk_bf16_f32 {gq[2*ip+1]}, {G[4*ip+2]}, {G[4*ip+3]}")
    g(f"v_lshrrev_b32 {t0}, 4, {L}\nv_lshlrev_b32 {t1}, 14, {t0}\nv_lshl_add_u32 {t1}, {g.v_p2p}, 3, {t1}")
    g(f"s_lshr_b32 {a[2]}, {g.s_j}, 2\ns_lshl_b32 {a[2]}, {a[2]}, 11\ns_mul_i32 {a[3]}, {g.s_tb}, {LOCSZ}\ns_add_u32 {a[2]}, {a[2]}, {a[3]}\ns_add_u32 {a[2]}, {a[2]}, {g.s_gb}")
    for ip in range(5):
        g(f"buffer_store_dwordx2 {gq[2*ip:2*ip+2]}, {t1}, {g.q_ws}, {a[2]} offen{sc}")
        if ip < 4: g(f"s_add_u32 {a[2]}, {a[2]}, {4*16384}")
    g.stamp(22)
    V.free(acc, ex, h1, hadr, xp, sm, sq, gq, g.v_xp, g.v_p2p, xr)
    g.S.free(sxr, so)
```

```python
from emit import *
from maps import *
from gen_main import lit, f2u, LOG2E
BIG = 0x7ff00000
WO_STRIDE = 1296

def wo_stage(g):
    p = g.p_in; a = g.s_a
    sk = g.label("wos")
    va = g.vv("wova")
    g(f"s_cmp_ge_u32 {g.s_wost}, 80\ns_cbranch_scc1 {sk}")
    g.srd(g.q_in, p[6], p[7], 640 * 1280)
    g(f"v_lshlrev_b32 {va}, 4, {g.v_lane}")
    g(f"s_mul_i32 {a[4]}, {g.s_wost}, 10\ns_sub_u32 {a[5]}, {g.s_wost}, 64\ns_mul_i32 {a[5]}, {a[5]}, 40")
    g(f"s_cmp_lt_u32 {g.s_wost}, 64\ns_cselect_b32 {a[4]}, {a[4]}, {a[5]}\ns_cselect_b32 {a[5]}, 1, 0")
    tail = (8, 9, 18, 19, 28, 29, 38, 39)
    rows = g.S.alloc("worows", 8)
    for r in range(8):
        g(f"s_cmp_eq_u32 {a[5]}, 1\ns_cselect_b32 {rows[r]}, {r}, {tail[r]}\ns_add_u32 {rows[r]}, {rows[r]}, {a[4]}\ns_mul_i32 {rows[r]}, {rows[r]}, 1280")
    for r in range(8):
        g(f"s_mov_b32 m0, {L_SCR + r*WO_STRIDE}")
        g("s_nop 0")
        g.lines.append(f"buffer_load_dwordx4 {va}, {g.q_in}, {rows[r]} offen lds")
    g(f"s_mov_b64 {g.s_ex}, exec\ns_mov_b64 exec, 0xffff")
    for r in range(8):
        g(f"s_mov_b32 m0, {L_SCR + r*WO_STRIDE + 1024}\ns_add_u32 {rows[r]}, {rows[r]}, 1024")
        g.lines.append(f"buffer_load_dwordx4 {va}, {g.q_in}, {rows[r]} offen lds")
    g(f"s_mov_b64 exec, {g.s_ex}")
    g.S.free(rows)
    g(f"{sk}:")
    g.V.free(va)

def w_gather(g):
    p = g.p_in; a = g.s_a; t0, t1 = g.v_t0, g.v_t1; L = g.v_lane
    q_w = g.S.alloc("q_w", 4)
    g.srd(q_w, p[2], p[3], 640 * 3840)
    g(f"s_mul_i32 {a[0]}, {g.s_j}, 76800\ns_sub_u32 {a[1]}, {g.s_w}, 1\ns_mul_i32 {a[1]}, {a[1]}, 25600\ns_add_u32 {a[0]}, {a[0]}, {a[1]}")
    g(f"v_lshlrev_b32 {t0}, 4, {L}")
    for n in range(25):
        g.lines.append(f"buffer_load_dwordx4 {g.v_big[124:128]}, {t0}, {q_w}, {a[0]} offen offset:{1024*(n%4)}")
        if n % 4 == 3: g(f"s_add_u32 {a[0]}, {a[0]}, 4096")
    pc, tl, p8, cc = g.vv("wpc"), g.vv("tl"), g.vv("p8"), g.vv("cc")
    wd = g.vv("wdst", 2); src = g.vv("wsrc", 7); cod = g.vv("cod"); e2 = g.vv("e2")
    g(f"v_bfe_u32 {tl}, {L}, 3, 1\nv_and_b32 {p8}, 7, {L}\nv_lshrrev_b32 {cc}, 4, {L}")
    g(f"v_mul_u32_u24 {pc}, 1280, {tl}\nv_lshl_add_u32 {pc}, {p8}, 3, {pc}")
    g(f"v_lshlrev_b32 {t1}, 4, {tl}\nv_lshl_add_u32 {t1}, {p8}, 3, {t1}\nv_add_u32 {t1}, 2520, {t1}")
    g(f"v_cmp_lt_u32 vcc, 4, {p8}\nv_cndmask_b32 {pc}, {pc}, {t1}, vcc")
    g(f"s_mul_i32 {a[0]}, {g.s_j}, 40\nv_add_u32 {pc}, {a[0]}, {pc}")
    g(f"s_sub_u32 {a[2]}, {g.s_w}, 1\ns_mul_i32 {a[2]}, {a[2]}, 28")
    for q in range(7):
        g(f"v_add_u32 {cod}, {a[2]}, {cc}")
        if q: g(f"v_add_u32 {cod}, {4*q}, {cod}")
        g.e2_of_code(e2, cod, t0)
        g(f"v_mul_u32_u24 {src[q]}, 3840, {e2}\nv_add_u32 {src[q]}, {src[q]}, {pc}")
    g(f"s_lshl_b32 {a[3]}, {a[2]}, 10\nv_lshlrev_b32 {t0}, 10, {cc}\nv_add_u32 {t0}, {a[3]}, {t0}\nv_lshl_add_u32 {t0}, {p8}, 3, {t0}")
    g(f"v_lshl_add_u32 {wd[0]}, {tl}, 6, {t0}\nv_xor_b32 {wd[1]}, 64, {wd[0]}")
    constants(g, ("h1",))
    g.lines.append("s_waitcnt vmcnt(0)")
    g.stamp(6)
    si = g.S.alloc("si", 8)
    for i in range(8): g(f"s_mov_b32 {si[i]}, {80*3840*i}")
    w3 = g.label("wg3")
    for q in range(7):
        if q == 6: g(f"s_cmp_eq_u32 {g.s_w}, 3\ns_cbranch_scc1 {w3}")
        for i in range(8):
            r = 2 * (8 * q + i)
            g.lines.append(f"buffer_load_dwordx2 {g.v_big[r:r+2]}, {src[q]}, {q_w}, {si[i]} offen")
    g(f"{w3}:")
    wj = g.label("wgj")
    for q in range(7):
        if q == 6: g(f"s_cmp_eq_u32 {g.s_w}, 3\ns_cbranch_scc1 {wj}")
        for i in range(8):
            r = 2 * (8 * q + i)
            if i % 4 == 0: g.lines.append(f"s_waitcnt vmcnt({max(48 - (8*q + i + 4), 0) if q < 6 else (4 if i == 0 else 0)})")
            g.lines.append(f"ds_write_b64 {wd[(i >> 1) & 1]}, {g.v_big[r:r+2]} offset:{4096*q + 128*i}")
    g(f"{wj}:")
    g.V.free(pc, tl, p8, cc, wd, src, cod, e2); g.S.free(q_w, si)

def phi_build(g, wait):
    t0, t1 = g.v_t0, g.v_t1; V = g.V
    l31, va, vb, f = g.vv("l31b"), g.vv("va"), g.vv("vb"), g.vv("f"); ph = g.vv("phraw", 12)
    if wait: g.lines.append("s_waitcnt vmcnt(0)")
    g(f"v_and_b32 {l31}, 31, {g.v_lane}")
    g(f"v_lshrrev_b32 {t0}, 3, {l31}\nv_lshlrev_b32 {t0}, 2, {t0}\nv_and_b32 {t1}, 3, {l31}\nv_add_u32 {t0}, {t0}, {t1}")
    g(f"v_bfe_u32 {t1}, {l31}, 2, 1\nv_mul_u32_u24 {f}, 10, {t1}\nv_add_u32 {f}, {f}, {t0}")
    g(f"v_lshrrev_b32 {t1}, 5, {g.v_lane}\nv_mul_u32_u24 {va}, 80, {t1}\nv_add_u32 {va}, {va}, {f}\nv_lshlrev_b32 {va}, 1, {va}\nv_add_u32 {va}, {L_PHI}, {va}")
    for u in range(8):
        g.lines.append(f"ds_read_u16 {ph[u]}, {va} offset:{(8*(u>>2) + (u&3))*40}")
    for u in range(4):
        g.lines.append(f"ds_read_u16 {ph[8+u]}, {va} offset:{(16+u)*40}")
    g.lines.append("s_waitcnt lgkmcnt(0)")
    for q in range(6):
        g(f"v_lshl_or_b32 {g.v_phi[q]}, {ph[2*q+1]}, 16, {ph[2*q]}")
    g(f"v_cmp_gt_u32 vcc, 10, {t0}")
    for q in range(6): g(f"v_cndmask_b32 {g.v_phi[q]}, 0, {g.v_phi[q]}, vcc")
    g(f"v_cmp_gt_u32 vcc, 32, {g.v_lane}")
    for q in (4, 5): g(f"v_cndmask_b32 {g.v_phi[q]}, 0, {g.v_phi[q]}, vcc")
    g(f"v_mov_b32 {g.v_phi[6]}, 0\nv_mov_b32 {g.v_phi[7]}, 0")
    V.free(l31, va, vb, f, ph)

def x_store(g, raw):
    a = g.s_a; t0, t1 = g.v_t0, g.v_t1; V = g.V
    ad, ds = g.vv("ad"), g.vv("ds"); d = g.v_big
    g(f"v_lshlrev_b32 {ad}, 4, {g.v_lane}\nv_add_u32 {ad}, {L_XST + (10240 if raw else 0)}, {ad}")
    g(f"v_lshrrev_b32 {ds}, 3, {g.v_lane}\nv_lshlrev_b32 {ds}, 9, {ds}\nv_and_b32 {t0}, 7, {g.v_lane}\nv_lshl_add_u32 {ds}, {t0}, 4, {ds}")
    g(f"s_mul_i32 {a[0]}, {g.s_tb}, {XSZ}\ns_lshr_b32 {a[1]}, {g.s_j}, 2\ns_mul_i32 {a[1]}, {a[1]}, 40960\ns_add_u32 {a[0]}, {a[0]}, {a[1]}")
    g(f"s_and_b32 {a[1]}, {g.s_j}, 3\ns_lshl_b32 {a[1]}, {a[1]}, 7\ns_add_u32 {a[0]}, {a[0]}, {a[1]}")
    g.lines.append("s_waitcnt lgkmcnt(0)")
    for n in range(10):
        g.lines.append(f"ds_read_b128 {d[4*n:4*n+4]}, {ad} offset:{n*1024}")
    for n in range(10):
        g.lines.append(f"s_waitcnt lgkmcnt({9 - n})")
        g(f"s_add_u32 {a[1]}, {a[0]}, {(X_IN[0] if raw else XN_IN[0]) + n * 4096}")
        g.lines.append(f"buffer_store_dwordx4 {d[4*n:4*n+4]}, {ds}, {g.q_ws}, {a[1]} offen sc1")
    V.free(ad, ds)

def trig4(g, ang0, slope, csts, cs, sn):
    for r in range(4):
        if csts[r] == 0: g(f"v_mov_b32 {sn[r]}, {ang0}")
        else: g(f"v_fmamk_f32 {sn[r]}, {slope}, {lit(float(csts[r]))}, {ang0}")
        g(f"v_cos_f32 {cs[r]}, {sn[r]}\nv_sin_f32 {sn[r]}, {sn[r]}")

def reim_frags(g, cs, sn, tmp, dre, dim):
    g(f"v_cvt_pk_bf16_f32 {tmp[0]}, {cs[0]}, {cs[1]}\nv_cvt_pk_bf16_f32 {tmp[1]}, {cs[2]}, {cs[3]}")
    g(f"v_cvt_pk_bf16_f32 {tmp[2]}, {sn[0]}, {sn[1]}\nv_cvt_pk_bf16_f32 {tmp[3]}, {sn[2]}, {sn[3]}")
    for q in range(4): g(f"v_accvgpr_write_b32 {dre[q]}, {tmp[q]}")
    g(f"v_accvgpr_write_b32 {dim[2]}, {tmp[0]}\nv_accvgpr_write_b32 {dim[3]}, {tmp[1]}")
    g(f"v_xor_b32 {tmp[2]}, 0x80008000, {tmp[2]}\nv_xor_b32 {tmp[3]}, 0x80008000, {tmp[3]}")
    g(f"v_accvgpr_write_b32 {dim[0]}, {tmp[2]}\nv_accvgpr_write_b32 {dim[1]}, {tmp[3]}")

def constants(g, parts):
    a = g.s_a; t0, t1 = g.v_t0, g.v_t1; V = g.V
    n15, gq = g.vv("n15"), g.vv("gq")
    g(f"v_and_b32 {n15}, 15, {g.v_lane}\nv_lshrrev_b32 {gq}, 4, {g.v_lane}")
    cs, sn, tmp = g.vv("cs", 4), g.vv("sn", 4), g.vv("tmp", 4)
    ang, sl, f1, f2 = g.vv("ang"), g.vv("sl"), g.vv("f1"), g.vv("f2")
    if 's1' in parts:
        g(f"v_cvt_f32_u32 {sl}, {n15}\nv_mul_f32 {sl}, {lit(1/16)}, {sl}")
        g(f"v_lshlrev_b32 {t0}, 2, {gq}\nv_cvt_f32_u32 {ang}, {t0}\nv_mul_f32 {ang}, {ang}, {sl}")
        trig4(g, ang, sl, [0, 1, 2, 3], cs, sn)
        reim_frags(g, cs, sn, tmp, g.a_s1[0:4], g.a_s1[4:8])
    if 's2' in parts:
        g(f"v_lshlrev_b32 {t0}, 5, {gq}\nv_add_u32 {t0}, {g.s_tb}, {t0}\nv_cvt_f32_u32 {f1}, {t0}")
        g(f"s_lshl_b32 {a[4]}, {g.s_w}, 2")
        for q in range(4):
            g(f"v_lshlrev_b32 {t0}, 4, {n15}\nv_add_u32 {t0}, {a[4]}, {t0}")
            if q: g(f"v_add_u32 {t0}, {q}, {t0}")
            g(f"v_cvt_f32_u32 {sl}, {t0}\nv_mul_f32 {sl}, {lit(1/2048)}, {sl}\nv_mul_f32 {ang}, {f1}, {sl}")
            trig4(g, ang, sl, [0, 8, 16, 24], cs, sn)
            reim_frags(g, cs, sn, tmp, g.a_s2[8*q:8*q+4], g.a_s2[8*q+4:8*q+8])
    if 'h2' in parts:
        e2, P0, P1, Q1, R1, T1 = g.vv("e2"), g.vv("P0"), g.vv("P1"), g.vv("Q1"), g.vv("R1"), g.vv("T1")
        g(f"v_lshrrev_b32 {t0}, 1, {gq}")
        g(f"s_lshl_b32 {a[4]}, {g.s_j}, 1\ns_sub_u32 {a[4]}, {a[4]}, 2\ns_mov_b32 {a[5]}, 1")
        g(f"s_cmp_eq_u32 {g.s_j}, 0\ns_cselect_b32 {a[4]}, 0, {a[4]}\ns_cselect_b32 {a[5]}, 40, {a[5]}")
        g(f"s_cmp_eq_u32 {g.s_j}, 1\ns_cselect_b32 {a[4]}, 1, {a[4]}\ns_mov_b32 {a[6]}, 78\ns_cselect_b32 {a[5]}, {a[6]}, {a[5]}")
        g(f"v_mul_u32_u24 {e2}, {a[5]}, {t0}\nv_add_u32 {e2}, {a[4]}, {e2}")
        g(f"v_and_b32 {t1}, 7, {n15}\nv_mul_u32_u24 {t1}, 80, {t1}\nv_add_u32 {e2}, {e2}, {t1}")
        g(f"v_cvt_f32_u32 {sl}, {e2}\nv_mul_f32 {sl}, {lit(1/640)}, {sl}")
        g(f"v_lshrrev_b32 {t1}, 3, {n15}\nv_cmp_eq_u32 vcc, {t0}, {t1}\nv_cndmask_b32_e64 {f2}, 0, 1.0, vcc")
        g(f"v_cmp_eq_u32 vcc, 0, {e2}\nv_cndmask_b32_e64 {f2}, {f2}, 0, vcc")
        g(f"v_cvt_f32_u32 {f1}, {t0}")
        g(f"s_cmp_eq_u32 {g.s_j}, 0\ns_cselect_b32 {a[4]}, 1.0, 0\ns_cselect_b32 {a[6]}, 0, 1.0")
        g(f"s_cmp_eq_u32 {g.s_j}, 1\ns_cselect_b32 {a[5]}, -2.0, 0")
        g(f"v_mul_f32 {P1}, {a[4]}, {f1}")
        g(f"v_sub_f32 {P0}, 1.0, {P1}")
        g(f"v_mul_f32 {Q1}, {a[5]}, {f1}\nv_add_f32 {Q1}, 1.0, {Q1}\nv_mul_f32 {Q1}, {a[6]}, {Q1}")
        g(f"v_mov_b32 {R1}, {Q1}\nv_sub_f32 {T1}, 0, {P1}")
        for x in (P0, P1, Q1, R1, T1): g(f"v_mul_f32 {x}, {x}, {f2}")
        g(f"v_and_b32 {t0}, 1, {gq}\nv_lshlrev_b32 {t0}, 2, {t0}\nv_cvt_f32_u32 {ang}, {t0}\nv_mul_f32 {ang}, {ang}, {sl}")
        trig4(g, ang, sl, [0, 1, 2, 3], cs, sn)
        for dd in range(4):
            g(f"v_mul_f32 {t0}, {P0}, {cs[dd]}\nv_mul_f32 {t1}, {P1}, {cs[dd]}\nv_fmac_f32 {t1}, {Q1}, {sn[dd]}")
            g(f"v_cvt_pk_bf16_f32 {tmp[0]}, {t0}, {t1}\nv_accvgpr_write_b32 {g.a_h2[dd]}, {tmp[0]}")
            g(f"v_mul_f32_e64 {t0}, -{P0}, {sn[dd]}\nv_mul_f32 {t1}, {R1}, {cs[dd]}\nv_fmac_f32 {t1}, {T1}, {sn[dd]}")
            g(f"v_cvt_pk_bf16_f32 {tmp[1]}, {t0}, {t1}\nv_accvgpr_write_b32 {g.a_h2[4+dd]}, {tmp[1]}")
        V.free(e2, P0, P1, Q1, R1, T1)
    if 'b2' in parts:
        tt, msk = g.vv("tt"), g.vv("msk")
        g(f"v_and_b32 {t0}, 1, {n15}\nv_lshrrev_b32 {t1}, 1, {gq}\nv_cmp_eq_u32 vcc, {t0}, {t1}\nv_cndmask_b32_e64 {msk}, 0, 1.0, vcc")
        for mir in range(2):
            g(f"v_lshrrev_b32 {tt}, 1, {n15}")
            if mir:
                g(f"s_or_b32 {a[4]}, {g.s_tb}, {g.s_j}\ns_cmp_eq_u32 {a[4]}, 0\ns_cselect_b32 {a[4]}, 1, 0")
                g(f"v_lshrrev_b32 {t0}, 1, {gq}\nv_sub_u32 {t0}, 1, {t0}\nv_mul_u32_u24 {t0}, {a[4]}, {t0}")
                g(f"v_sub_u32 {tt}, 7, {tt}\nv_add_u32 {tt}, {tt}, {t0}\nv_and_b32 {tt}, 7, {tt}")
            g(f"v_cvt_f32_u32 {sl}, {tt}\nv_mul_f32 {sl}, {lit(1/8)}, {sl}")
            g(f"v_and_b32 {t0}, 1, {gq}\nv_lshlrev_b32 {t0}, 2, {t0}\nv_cvt_f32_u32 {ang}, {t0}\nv_mul_f32 {ang}, {ang}, {sl}")
            trig4(g, ang, sl, [0, 1, 2, 3], cs, sn)
            for dd in range(4):
                g(f"v_mul_f32 {t0}, {msk}, {cs[dd]}\nv_mul_f32 {t1}, {msk}, {sn[dd]}\nv_cvt_pk_bf16_f32 {tmp[0]}, {t0}, {t1}")
                g(f"v_accvgpr_write_b32 {g.a_b2[4*mir+dd]}, {tmp[0]}")
        V.free(tt, msk)
    if 'h1' in parts:
        d2b, K2, rho = g.vv("d2b"), g.vv("K2"), g.vv("rho")
        val = g.vv("val", 8); adr = g.vv("adr")
        g(f"v_lshrrev_b32 {t0}, 1, {gq}\nv_and_b32 {t1}, 1, {gq}\nv_mul_u32_u24 {t1}, 40, {t1}\nv_add_u32 {t0}, {t0}, {t1}\nv_cvt_f32_u32 {d2b}, {t0}")
        for n in range(5):
            sk = g.label("h1")
            g(f"s_add_u32 {a[4]}, {g.s_w}, {3*n - 1}")
            g(f"s_mul_i32 {a[5]}, {a[4]}, 43\ns_lshr_b32 {a[5]}, {a[5]}, 7")
            g(f"s_mul_i32 {a[6]}, {a[5]}, 3\ns_sub_u32 {a[6]}, {a[4]}, {a[6]}")
            g(f"s_lshl_b32 {a[7]}, {a[5]}, 4\nv_add_u32 {rho}, {a[7]}, {n15}")
            g(f"v_lshrrev_b32 {t0}, 1, {rho}\nv_cmp_eq_u32 vcc, 1, {rho}\nv_cndmask_b32_e64 {t0}, {t0}, 40, vcc")
            g(f"v_cvt_f32_u32 {sl}, {t0}\nv_mul_f32 {sl}, {lit(1/80)}, {sl}")
            g(f"v_and_b32 {t1}, 1, {rho}\nv_cndmask_b32_e64 {t1}, {t1}, 0, vcc\nv_cvt_f32_u32 {K2}, {t1}\nv_mul_f32 {K2}, 0.25, {K2}")
            g(f"s_lshl_b32 {a[7]}, {a[6]}, 2\nv_cvt_f32_u32 {ang}, {a[7]}\nv_add_f32 {ang}, {d2b}, {ang}\nv_fma_f32 {ang}, {ang}, {sl}, {K2}")
            g(f"s_cmp_eq_u32 {a[6]}, 2\ns_cselect_b32 {a[7]}, 0, 1.0")
            for u in range(8):
                c = 2 * (u >> 2) + 10 * (u & 3)
                if c: g(f"v_fmamk_f32 {val[u]}, {sl}, {lit(float(c))}, {ang}")
                else: g(f"v_mov_b32 {val[u]}, {ang}")
                g(f"v_cos_f32 {val[u]}, {val[u]}")
                if u >= 4: g(f"v_mul_f32 {val[u]}, {a[7]}, {val[u]}")
            for q in range(4): g(f"v_cvt_pk_bf16_f32 {tmp[q]}, {val[2*q]}, {val[2*q+1]}")
            g(f"s_lshl_b32 {a[7]}, {a[4]}, 10\ns_add_u32 {a[7]}, {a[7]}, {L_H1}\nv_lshlrev_b32 {adr}, 4, {g.v_lane}\nv_add_u32 {adr}, {a[7]}, {adr}")
            g.lines.append(f"ds_write_b128 {adr}, {tmp}")
            g(f"{sk}:")
        V.free(d2b, K2, rho, val, adr)
    V.free(n15, gq, cs, sn, tmp, ang, sl, f1, f2)

def wo_frag(g):
    a = g.s_a; V = g.V; t0, t1 = g.v_t0, g.v_t1
    sk = g.label("wog")
    g(f"s_cmp_ge_u32 {g.s_wost}, 80\ns_cbranch_scc1 {sk}")
    ad = g.vv("ad"); raw = g.vv("raw", 8); fr = g.vv("fr", 8, 4); dst = g.vv("dst")
    g(f"v_lshrrev_b32 {t0}, 4, {g.v_lane}\nv_lshlrev_b32 {ad}, 2, {t0}")
    g(f"v_mul_u32_u24 {dst}, {2*5*20*1024}, {t0}\nv_and_b32 {t1}, 15, {g.v_lane}\nv_lshl_add_u32 {dst}, {t1}, 4, {dst}")
    g(f"v_bfe_u32 {t0}, {g.v_lane}, 3, 1\nv_lshl_add_u32 {ad}, {t0}, 4, {ad}")
    g(f"v_and_b32 {t0}, 7, {g.v_lane}\nv_mul_u32_u24 {t0}, 160, {t0}\nv_add_u32 {ad}, {ad}, {t0}\nv_add_u32 {ad}, {L_SCR}, {ad}")
    g(f"s_mov_b32 {a[3]}, 0x05040100\ns_mov_b32 {a[4]}, 0x07060302")
    g(f"s_lshr_b32 {a[0]}, {g.s_wost}, 2\ns_lshl_b32 {a[0]}, {a[0]}, 10\ns_and_b32 {a[1]}, {g.s_wost}, 3\ns_lshl_b32 {a[1]}, {a[1]}, 8")
    g(f"s_add_u32 {a[0]}, {a[0]}, {a[1]}\ns_add_u32 {a[0]}, {a[0]}, {WOF}")
    for i in range(5):
        for ii in range(8):
            g.lines.append(f"ds_read_b32 {raw[ii]}, {ad} offset:{ii*WO_STRIDE + 32*i}")
        g.lines.append("s_waitcnt lgkmcnt(0)")
        for q in range(4):
            g(f"v_perm_b32 {fr[q]}, {raw[2*q+1]}, {raw[2*q]}, {a[3]}\nv_perm_b32 {fr[4+q]}, {raw[2*q+1]}, {raw[2*q]}, {a[4]}")
        g(f"s_add_u32 {a[1]}, {a[0]}, {i*20*1024}\ns_add_u32 {a[2]}, {a[1]}, {5*20*1024}")
        g.lines.append(f"buffer_store_dwordx4 {fr[0:4]}, {dst}, {g.q_ws}, {a[1]} offen sc1")
        g.lines.append(f"buffer_store_dwordx4 {fr[4:8]}, {dst}, {g.q_ws}, {a[2]} offen sc1")
        g("s_nop 1")
    g(f"{sk}:")
    V.free(ad, raw, fr, dst)

def after_s0(g):
    V = g.V
    g.a_wo = g.A.alloc("wo", 200, at=0)
    g.a_s2 = g.A.alloc("st2", 32, at=200)
    g.a_h2 = g.A.alloc("h2", 8, at=232)
    g.a_s1 = g.A.alloc("st1", 8, at=240)
    g.a_b2 = g.A.alloc("b2", 8, at=248)
    V.free(g.v_big, g.v_l31)
    sk = g.label("pb")
    g(f"s_cmp_eq_u32 {g.s_w}, 0\ns_cbranch_scc1 {sk}")
    phi_build(g, wait=False)
    g(f"{sk}:")
    import ph_p1
    ph_p1.p1_setup(g)
    g.stamp(7)

def load_wo(g):
    a = g.s_a
    va = g.vv("va")
    g(f"v_lshlrev_b32 {va}, 4, {g.v_lane}")
    g(f"s_lshr_b32 {a[1]}, {g.s_j}, 2\ns_mul_i32 {a[1]}, {a[1]}, {5*20*1024}\ns_add_u32 {a[1]}, {a[1]}, {WOF}")
    g(f"s_lshr_b32 {a[2]}, {g.s_w}, 1\ns_lshl_b32 {a[3]}, {a[2]}, 13\ns_add_u32 {a[0]}, {a[1]}, {a[3]}")
    g(f"s_lshl_b32 {a[3]}, {a[2]}, 11\ns_add_u32 {a[1]}, {a[1]}, {a[3]}\ns_add_u32 {a[1]}, {a[1]}, {16*1024}")
    for u in range(10):
        for i in range(5):
            r = (u * 5 + i) * 4
            if u < 8: g(f"s_add_u32 {a[2]}, {a[0]}, {(i*20 + u)*1024}")
            else: g(f"s_add_u32 {a[2]}, {a[1]}, {(i*20 + u - 8)*1024}")
            g.lines.append(f"buffer_load_dwordx4 {g.a_wo[r:r+4]}, {va}, {g.q_ws}, {a[2]} offen")
    g.V.free(va)

def wo_flag(g):
    a = g.s_a; t0, t1 = g.v_t0, g.v_t1
    sk = g.label("wf")
    g(f"s_cmp_lg_u32 {g.s_w}, 0\ns_cbranch_scc1 {sk}\ns_cmp_lg_u32 {g.s_layer}, 0\ns_cbranch_scc1 {sk}\ns_cmp_ge_u32 {g.s_wost}, 80\ns_cbranch_scc1 {sk}")
    g(f"s_add_u32 {a[0]}, {g.s_wost}, {WOFL}\nv_mov_b32 {t0}, {a[0]}\nv_mov_b32 {t1}, 1")
    g(f"s_mov_b64 {g.s_ex}, exec\ns_mov_b64 exec, 1")
    g.lines.append(f"buffer_store_byte {t1}, {t0}, {g.q_ws}, 0 offen sc1")
    g(f"s_mov_b64 exec, {g.s_ex}")
    g(f"{sk}:")
```

```python
import copy, math
from emit import *
from maps import *
from gen_main import lit, f2u, LOG2E

BIG = 0x7ff00000

def emit_all(g):
    prologue(g)
    s0_loads(g)
    snapV, snapA, snapS = copy.deepcopy(g.V), copy.deepcopy(g.A), copy.deepcopy(g.S)
    for fast in g.paths:
        g.V, g.A, g.S = copy.deepcopy(snapV), copy.deepcopy(snapA), copy.deepcopy(snapS)
        g.vm = []; g.lg = []
        body(g, fast)
        g("s_endpgm")
    g("Lexit:")
    g("s_endpgm")
    g("Lcode_end:")

def goto_path(g, entry):
    if len(g.paths) == 1:
        g(f"s_branch L{entry}_{'fast' if g.paths[0] else 'slow'}")
    else:
        l = g.label("gp")
        g(f"s_cmp_eq_u32 {g.s_fast}, 0\ns_cbranch_scc1 {l}\ns_branch L{entry}_fast\n{l}:\ns_branch L{entry}_slow")

def prologue(g):
    g.paths = {"fast": [True], "slow": [False]}.get(g.force, [True, False])
    g("s_cmp_ge_u32 s2, 256\ns_cbranch_scc1 Lexit_near\ns_branch Lstart\nLexit_near:\ns_endpgm\nLstart:")
    g.p_in = g.S.alloc("ptrs", 14, at=16)
    g.q_ws = g.S.alloc("q_ws", 4, at=8)
    g.q_in = g.S.alloc("q_in", 4, at=12)
    p = g.p_in
    g(f"s_load_dwordx4 {p[0:4]}, s[0:1], 0\ns_load_dwordx4 {p[4:8]}, s[0:1], 16")
    g(f"s_load_dwordx4 {p[8:12]}, s[0:1], 72\ns_load_dwordx2 {p[12:14]}, s[0:1], 88")
    g.s_tb = g.sv("tb"); g.s_j = g.sv("j"); g.s_w = g.sv("w"); g.s_ex = g.sv("ex", 2); g.s_t = g.sv("t", 2)
    g.s_wost = g.sv("wost"); g.s_spin = g.sv("spin"); g.s_lep = g.sv("lep"); g.s_fast = g.sv("fast"); g.s_layer = g.sv("layer")
    g.s_a = g.sv("a", 8)
    if g.stamps:
        g.s_t2 = g.sv("t2", 2); g.v_st = g.vv("vst", 3)
        g(f"v_mov_b32 {g.v_st[0]}, 0\nv_mov_b32 {g.v_st[1]}, 0")
    g.v_lane = g.vv("lane"); g.v_t0 = g.vv("t0"); g.v_t1 = g.vv("t1"); g.v_lfown = g.vv("lfown"); g.v_lfall = g.vv("lfall")
    g(f"s_and_b32 {g.s_tb}, s2, 7\ns_lshr_b32 {g.s_j}, s2, 3")
    g(f"v_and_b32 {g.v_lane}, 63, v0\nv_lshrrev_b32 {g.v_t0}, 6, v0")
    g(f"v_readfirstlane_b32 {g.s_w}, {g.v_t0}")
    g(f"s_mov_b32 {g.s_lep}, 0\ns_mov_b32 {g.s_layer}, 0")
    g(f"s_lshl_b32 {g.s_a[0]}, {g.s_tb}, 7")
    g(f"s_lshl_b32 {g.s_a[1]}, {g.s_j}, 2\ns_add_u32 {g.s_a[1]}, {g.s_a[1]}, {g.s_a[0]}")
    g(f"v_mov_b32 {g.v_lfown}, {g.s_a[1]}")
    g(f"v_and_b32 {g.v_lfall}, 31, {g.v_lane}\nv_lshlrev_b32 {g.v_lfall}, 2, {g.v_lfall}\nv_add_u32 {g.v_lfall}, {g.s_a[0]}, {g.v_lfall}")
    g.lines.append("s_waitcnt lgkmcnt(0)")
    g.srd(g.q_ws, p[12], p[13], 256 << 20)
    g.stamp(0)

def s0_loads(g):
    p = g.p_in; a = g.s_a
    V = g.V
    t0, t1 = g.v_t0, g.v_t1
    import ph_s0
    g.v_l31 = g.vv("l31")
    g(f"v_and_b32 {g.v_l31}, 31, {g.v_lane}")
    g.v_big = g.vv("big", 128, 4)
    g.v_phi = g.vv("phiA", 8, 4)
    lw0 = g.label("w0")
    g(f"s_cmp_eq_u32 {g.s_w}, 0\ns_cbranch_scc1 {lw0}")
    g("s_barrier")
    pf = g.vv("pf", 4, 4)
    q = g.S.alloc("q_code", 4)
    g(f"s_getpc_b64 {q[0:2]}\nLpc:\ns_and_b32 {q[1]}, {q[1]}, 0xffff\ns_mov_b32 {q[2]}, Lcode_end-Lpc\ns_mov_b32 {q[3]}, 0x20000")
    g(f"s_mul_i32 {a[0]}, {g.s_j}, 3\ns_add_u32 {a[0]}, {a[0]}, {g.s_w}\ns_sub_u32 {a[0]}, {a[0]}, 1\ns_lshl_b32 {a[0]}, {a[0]}, 10")
    g(f"v_lshlrev_b32 {t0}, 4, {g.v_lane}")
    g.lines.append(f"buffer_load_dwordx4 {pf}, {t0}, {q}, {a[0]} offen")
    g.S.free(q)
    ph_s0.w_gather(g)
    g.lines.append("s_waitcnt vmcnt(0) lgkmcnt(0)")
    g.stamp(1)
    V.free(pf)
    g("s_barrier")
    g(f"v_mov_b32 {t1}, {L_MISC}")
    g.lines.append(f"ds_read_b32 {t0}, {t1}")
    g.lines.append("s_waitcnt lgkmcnt(0)")
    g(f"v_readfirstlane_b32 {g.s_fast}, {t0}")
    goto_path(g, "entry")
    g(f"{lw0}:")
    g.srd(g.q_in, p[0], p[1], S * 1280)
    vp = g.vv("p"); vx = g.vv("vx")
    g(f"s_lshl_b32 {a[4]}, {g.s_j}, 3")
    g(f"v_lshrrev_b32 {vp}, 5, {g.v_lane}\nv_add_u32 {vp}, {a[4]}, {vp}")
    g(f"v_lshrrev_b32 {t0}, 4, {vp}\nv_lshlrev_b32 {t0}, 3, {t0}\nv_and_b32 {t1}, 15, {vp}\nv_lshl_add_u32 {t0}, {t1}, 7, {t0}\nv_add_u32 {t0}, {g.s_tb}, {t0}")
    g(f"v_mul_u32_u24 {vx}, 1280, {t0}\nv_lshl_add_u32 {vx}, {g.v_l31}, 3, {vx}")
    g(f"v_cmp_gt_u32 vcc, 20, {g.v_l31}\nv_mov_b32 {t1}, {BIG}\nv_cndmask_b32 {vx}, {t1}, {vx}, vcc")
    xd = g.v_big
    for u in range(4):
        g(f"s_mov_b32 {a[5]}, {u * 256 * 1280}")
        for i in range(8):
            g.lines.append(f"buffer_load_dwordx2 {xd[16*u+2*i:16*u+2*i+2]}, {vx}, {g.q_in}, {a[5]} offen offset:{160*i}")
    V.free(vx, vp)
    g("s_barrier")
    g.srd(g.q_in, p[4], p[5], 32 * 400 * 2)
    g(f"v_lshlrev_b32 {t0}, 4, {g.v_lane}\ns_mul_i32 {a[4]}, {g.s_j}, 800\ns_mov_b32 m0, {L_PHI}")
    g.lines.append(f"buffer_load_dwordx4 {t0}, {g.q_in}, {a[4]} offen lds")
    g(f"s_lshl_b32 {a[2]}, {g.s_j}, 7\ns_lshl_b32 {a[3]}, {g.s_tb}, 2\ns_add_u32 {a[2]}, {a[2]}, {a[3]}\ns_add_u32 {a[2]}, {a[2]}, {KVF}")
    g(f"s_lshl_b32 {a[3]}, {g.s_tb}, 7\ns_add_u32 {a[3]}, {a[3]}, {GL}")
    g(f"v_mov_b32 {t1}, {g.v_lfown}")
    g(f"v_cmp_eq_u32 vcc, 1, {g.v_lane}\nv_mov_b32 {t0}, {a[2]}\nv_cndmask_b32 {t1}, {t1}, {t0}, vcc")
    g(f"s_cmp_eq_u32 {g.s_j}, 31\ns_cselect_b32 {a[3]}, {a[3]}, {a[2]}")
    g(f"v_cmp_eq_u32 vcc, 2, {g.v_lane}\nv_mov_b32 {t0}, {a[3]}\nv_cndmask_b32 {t1}, {t1}, {t0}, vcc")
    g(f"v_mov_b32 {t0}, 0\ns_mov_b64 {g.s_ex}, exec\ns_mov_b64 exec, 7")
    g.lines.append(f"buffer_store_dword {t0}, {t1}, {g.q_ws}, 0 offen sc1")
    g(f"s_sub_u32 {a[4]}, {g.s_j}, 22\ns_lshl_b32 {a[4]}, {a[4]}, 3\ns_add_u32 {g.s_wost}, {a[4]}, {g.s_tb}")
    g(f"s_cmp_lt_u32 {g.s_j}, 22\ns_cselect_b32 {g.s_wost}, 99, {g.s_wost}")
    sk = g.label("wz")
    g(f"s_cmp_ge_u32 {g.s_wost}, 80\ns_cbranch_scc1 {sk}")
    g(f"s_add_u32 {a[4]}, {g.s_wost}, {WOFL}\nv_mov_b32 {t1}, {a[4]}\ns_mov_b64 exec, 1")
    g.lines.append(f"buffer_store_byte {t0}, {t1}, {g.q_ws}, 0 offen sc1")
    g(f"{sk}:")
    g(f"s_mov_b64 exec, {g.s_ex}")
    g(f"v_mov_b32 {t0}, -1\nv_mov_b32 {t1}, -1")
    kp = g.vv("kp", 4, 4)
    for q in range(4): g(f"v_mov_b32 {kp[q]}, -1")
    g(f"s_lshl_b32 {a[4]}, {g.s_j}, 14\ns_lshl_b32 {a[5]}, {g.s_tb}, 11\ns_add_u32 {a[4]}, {a[4]}, {a[5]}\nv_lshlrev_b32 {t0}, 4, {g.v_lane}")
    for l in range(2):
        g(f"s_add_u32 {a[5]}, {a[4]}, {KVB[l]}")
        g.lines.append(f"buffer_store_dwordx4 {kp}, {t0}, {g.q_ws}, {a[5]} offen sc1")
        g.lines.append(f"buffer_store_dwordx4 {kp}, {t0}, {g.q_ws}, {a[5]} offen offset:1024 sc1")
    g.V.free(kp)
    ph_s0.wo_stage(g)
    g.stamp(3)
    xf = g.vv("xf", 32, 4); sm, sq = g.vv("sm", 2, 2), g.vv("sq", 2, 2)
    st = g.vv("xst", 4); e2 = g.vv("e2"); pk = g.vv("pk", 16, 4)
    for c in range(4):
        g(f"v_lshl_add_u32 {e2}, {g.v_l31}, 2, {c}")
        g.code_of_e2(st[c], e2, t0)
        g(f"v_lshlrev_b32 {st[c]}, 7, {st[c]}\nv_lshrrev_b32 {t0}, 5, {g.v_lane}\nv_lshl_add_u32 {st[c]}, {t0}, 4, {st[c]}\nv_add_u32 {st[c]}, {L_XST}, {st[c]}")
        g(f"v_cmp_gt_u32 vcc, 20, {g.v_l31}\nv_mov_b32 {t0}, {L_XST + 20480}\nv_cndmask_b32 {st[c]}, {t0}, {st[c]}, vcc")
    V.free(e2)
    for u in range(4):
        src = xd[16*u:16*u+16]
        lw = g.label("xw"); lw2 = g.label("xw")
        g(f"s_cmp_lt_u32 {g.s_wost}, 80\ns_cbranch_scc1 {lw}")
        g.lines.append(f"s_waitcnt vmcnt({8*(3-u) + 6})")
        g(f"s_branch {lw2}\n{lw}:")
        g.lines.append(f"s_waitcnt vmcnt({8*(3-u) + 6 + 17})")
        g(f"{lw2}:")
        for i in range(8):
            g(f"v_lshlrev_b32 {xf[0*8+i]}, 16, {src[2*i]}\nv_and_b32 {xf[1*8+i]}, 0xffff0000, {src[2*i]}")
            g(f"v_lshlrev_b32 {xf[2*8+i]}, 16, {src[2*i+1]}\nv_and_b32 {xf[3*8+i]}, 0xffff0000, {src[2*i+1]}")
        for c in range(4):
            for i2 in range(4):
                g(f"v_cvt_pk_bf16_f32 {pk[c*4+i2]}, {xf[c*8+2*i2]}, {xf[c*8+2*i2+1]}")
        for c in range(4):
            g.lines.append(f"ds_write_b128 {st[c]}, {pk[4*c:4*c+4]} offset:{10240 + 32*u}")
        g(f"v_pk_add_f32 {sm}, {xf[0:2]}, {xf[2:4]}\nv_pk_mul_f32 {sq}, {xf[0:2]}, {xf[0:2]}\nv_pk_fma_f32 {sq}, {xf[2:4]}, {xf[2:4]}, {sq}")
        for i in range(2, 16):
            g(f"v_pk_add_f32 {sm}, {sm}, {xf[2*i:2*i+2]}\nv_pk_fma_f32 {sq}, {xf[2*i:2*i+2]}, {xf[2*i:2*i+2]}, {sq}")
        g(f"v_add_f32 {sm[0]}, {sm[0]}, {sm[1]}\nv_add_f32 {sq[0]}, {sq[0]}, {sq[1]}")
        g.red32(sm[0], t0); g.red32(sq[0], t1)
        g(f"v_mul_f32 {sm[0]}, {lit(1/640)}, {sm[0]}\nv_mul_f32 {sq[0]}, {lit(1/640)}, {sq[0]}")
        g(f"v_fma_f32 {sq[0]}, -{sm[0]}, {sm[0]}, {sq[0]}\nv_add_f32 {sq[0]}, {lit(1e-5)}, {sq[0]}\nv_rsq_f32 {sq[0]}, {sq[0]}")
        g(f"v_mul_f32_e64 {sm[0]}, -{sm[0]}, {sq[0]}")
        for i in range(16):
            g(f"v_pk_fma_f32 {xf[2*i:2*i+2]}, {xf[2*i:2*i+2]}, {sq}, {sm} op_sel_hi:[1,0,0]")
        for c in range(4):
            for i2 in range(4):
                g(f"v_cvt_pk_bf16_f32 {pk[c*4+i2]}, {xf[c*8+2*i2]}, {xf[c*8+2*i2+1]}")
        for c in range(4):
            g.lines.append(f"ds_write_b128 {st[c]}, {pk[4*c:4*c+4]} offset:{32*u}")
        g("s_nop 1")
    V.free(xf, sm, sq, st, pk)
    g.stamp(4)
    ph_s0.x_store(g, raw=False)
    g.lines.append("s_waitcnt vmcnt(0)")
    publish_purity(g)
    g.stamp(5)
    ph_s0.phi_build(g, wait=False)
    purity(g)
    g.stamp(2)
    ph_s0.x_store(g, raw=True)
    ph_s0.wo_frag(g)
    g.lines.append("s_waitcnt lgkmcnt(0)")
    g("s_barrier")
    goto_path(g, "entry")

def publish_purity(g):
    p = g.p_in; a = g.s_a
    q = g.S.alloc("q_dbg", 4)
    g.srd(q, p[10], p[11], 256)
    g(f"s_getreg_b32 {a[4]}, hwreg(HW_REG_XCC_ID, 0, 4)\ns_add_u32 {a[4]}, {a[4]}, 1")
    g(f"s_lshl_b32 {a[5]}, {g.s_tb}, 5\ns_add_u32 {a[5]}, {a[5]}, {g.s_j}")
    g(f"v_mov_b32 {g.v_t0}, {a[4]}\nv_mov_b32 {g.v_t1}, {a[5]}")
    g(f"s_mov_b64 {g.s_ex}, exec\ns_mov_b64 exec, 1")
    g.lines.append(f"buffer_store_byte {g.v_t0}, {g.v_t1}, {q}, 0 offen sc1")
    g(f"s_mov_b64 exec, {g.s_ex}")
    g.S.free(q)

def purity(g):
    p = g.p_in; a = g.s_a; t0, t1 = g.v_t0, g.v_t1
    pv = g.vv("pv"); pa = g.vv("pa")
    g(f"v_mov_b32 {pa}, {L_MISC}")
    q = g.S.alloc("q_dbg", 4)
    g.srd(q, p[10], p[11], 256)
    g(f"v_and_b32 {pv}, 7, {g.v_lane}\nv_lshlrev_b32 {pv}, 2, {pv}\ns_lshl_b32 {a[4]}, {g.s_tb}, 5\nv_add_u32 {t1}, {a[4]}, {pv}")
    lp = g.label("pp"); dn = g.label("ppd")
    g(f"s_mov_b32 {g.s_spin}, {1 << 20}")
    g(f"{lp}:")
    g.lines.append(f"buffer_load_dword {pv}, {t1}, {q}, 0 offen sc1")
    g.lines.append("s_waitcnt vmcnt(0)")
    g(f"v_subrev_u32 {t0}, 0x01010101, {pv}\nv_bfi_b32 {t0}, {pv}, 0, {t0}\nv_and_b32 {t0}, 0x80808080, {t0}")
    g(f"v_cmp_ne_u32 vcc, 0, {t0}\ns_cbranch_vccz {dn}")
    g(f"s_sub_u32 {g.s_spin}, {g.s_spin}, 1\ns_cmp_lg_u32 {g.s_spin}, 0\ns_cbranch_scc1 {lp}")
    g(f"{dn}:")
    g(f"v_readfirstlane_b32 {a[5]}, {pv}\ns_and_b32 {a[5]}, {a[5]}, 0xff\ns_mul_i32 {a[5]}, {a[5]}, 0x01010101")
    g(f"v_cmp_ne_u32 vcc, {a[5]}, {pv}\ns_cmp_eq_u64 vcc, 0\ns_cselect_b32 {g.s_fast}, 1, 0\nv_mov_b32 {t0}, {g.s_fast}")
    g.lines.append(f"ds_write_b32 {pa}, {t0}")
    g.S.free(q)
    g.V.free(pv, pa)

def finish(g, fast):
    g.stamp(31)
    g.wait0()
    g.flush_stamps()

def body(g, fast):
    import ph_s0, ph_p1, ph_p2, ph_b
    sc = "" if fast else " sc1"
    g.sc = sc; g.fast = fast
    tag = "fast" if fast else "slow"
    for nm in ("s_xn", "s_xr", "s_kvb", "s_ob", "s_x1", "s_gb", "s_stb", "s_zb"): setattr(g, nm, None)
    g(f"Lentry_{tag}:")
    g.vm = []; g.lg = []
    ph_s0.after_s0(g)
    if g.stop_after in ("s0", "s0b"): return finish(g, fast)
    lay = g.label("layer")
    g(f"s_mov_b32 {g.s_layer}, 0")
    g(f"{lay}:")
    g.vm = []; g.lg = []
    ph_p1.set_layer(g)
    ph_p1.p1(g)
    if g.stop_after == "p1": return finish(g, fast)
    ph_p2.p2(g)
    if g.stop_after == "p2": return finish(g, fast)
    ph_b.b1(g)
    if g.stop_after == "b1": return finish(g, fast)
    ph_b.b2(g, lay)
    finish(g, fast)
```

```python
import sys, copy, math
sys.path.insert(0, "gen")
from emit import *
from maps import *

KN = "interleave_layers__linear_kernel_hedgehog__spectral_fnet__prompt_kernel"
LOG2E = 1.4426950408889634
def f2u(x):
    import struct
    return struct.unpack('<I', struct.pack('<f', x))[0]
def lit(x): return f"0x{f2u(x):08x}"

class G(Emit):
    def __init__(self, stop_after=None, stamps=False, force=None):
        super().__init__()
        self.stop_after = stop_after; self.stamps = stamps; self.force = force
        self.nstamp = 0; self.stamp_wave = 0; self.fine = False
    def sv(self, name, n=1): return self.S.alloc(name, n)
    def vv(self, name, n=1, align=None): return self.V.alloc(name, n, align)
    def srd(self, q, lo, hi, nbytes):
        self(f"s_mov_b32 {q[0]}, {lo}\ns_and_b32 {q[1]}, {hi}, 0xffff\ns_mov_b32 {q[2]}, {nbytes}\ns_mov_b32 {q[3]}, 0x20000")
    def stamp(self, idx):
        if not self.stamps: return
        self(f"s_memrealtime {self.s_t}\ns_memtime {self.s_t2}")
        self.lines.append("s_waitcnt lgkmcnt(0)")
        self(f"s_lshl_b32 {self.s_t[1]}, {self.s_layer}, 5\ns_add_u32 m0, {self.s_t[1]}, {idx}")
        self(f"v_writelane_b32 {self.v_st[0]}, {self.s_t[0]}, m0\nv_writelane_b32 {self.v_st[1]}, {self.s_t2[0]}, m0")
    def flush_stamps(self):
        if not self.stamps: return
        sk = self.label("fs")
        self(f"s_cmp_lg_u32 {self.s_w}, {self.stamp_wave}\ns_cbranch_scc1 {sk}")
        self(f"s_lshl_b32 {self.s_t[1]}, s2, 8\nv_lshlrev_b32 {self.v_st[2]}, 2, {self.v_lane}\nv_add_u32 {self.v_st[2]}, {self.s_t[1]}, {self.v_st[2]}")
        self.lines.append(f"buffer_store_dword {self.v_st[0]}, {self.v_st[2]}, {self.q_ws}, 0 offen offset:0 sc1".replace("offset:0 ", ""))
        self.lines[-1] = f"v_add_u32 {self.v_st[2]}, {STAMP}, {self.v_st[2]}"
        self.lines.append(f"buffer_store_dword {self.v_st[0]}, {self.v_st[2]}, {self.q_ws}, 0 offen sc1")
        self(f"v_add_u32 {self.v_st[2]}, {STAMP2 - STAMP}, {self.v_st[2]}")
        self.lines.append(f"buffer_store_dword {self.v_st[1]}, {self.v_st[2]}, {self.q_ws}, 0 offen sc1")
        self.lines.append("s_waitcnt vmcnt(0)")
        self(f"s_mov_b64 exec, -1")
        self(f"{sk}:")
    def code_of_e2(self, dst, e2, t):
        self(f"v_add_u32 {dst}, 2, {e2}")
        self(f"v_sub_u32 {t}, 120, {e2}")
        self(f"v_cmp_lt_u32 vcc, 39, {e2}\nv_cndmask_b32 {dst}, {dst}, {t}, vcc")
        for k, c in ((0, 0), (40, 1), (1, 2), (79, 3)):
            self(f"v_cmp_eq_u32 vcc, {k}, {e2}\nv_cndmask_b32_e64 {dst}, {dst}, {c}, vcc")
    def e2_of_code(self, dst, code, t):
        self(f"v_subrev_u32 {dst}, 2, {code}")
        self(f"v_sub_u32 {t}, 120, {code}")
        self(f"v_cmp_lt_u32 vcc, 41, {code}\nv_cndmask_b32 {dst}, {dst}, {t}, vcc")
        one = {0: "0", 40: "40", 1: "1"}
        for c, k in ((0, 0), (1, 40), (2, 1)):
            self(f"v_cmp_eq_u32 vcc, {c}, {code}\nv_cndmask_b32_e64 {dst}, {dst}, {k}, vcc")
        self(f"v_mov_b32 {t}, 79\nv_cmp_eq_u32 vcc, 3, {code}\nv_cndmask_b32 {dst}, {dst}, {t}, vcc")
    def s_e2_of_code(self, dst, code, t):
        self(f"s_sub_u32 {dst}, {code}, 2")
        self(f"s_sub_u32 {t}, 120, {code}")
        self(f"s_cmp_ge_u32 {code}, 42\ns_cselect_b32 {dst}, {t}, {dst}")
        for c, k in ((0, 0), (1, 40), (2, 1), (3, 79)):
            self(f"s_cmp_eq_u32 {code}, {c}\ns_cselect_b32 {dst}, {k}, {dst}")
    def red32(self, x, t, op="v_add_f32"):
        for r in (8, 4, 2, 1):
            self(f"{op}_dpp {x}, {x}, {x} row_ror:{r} row_mask:0xf bank_mask:0xf")
        self(f"v_mov_b32 {t}, {x}\nv_permlane16_swap_b32 {t}, {x}\n{op} {x}, {x}, {t}")
    def xhalf(self, x, t, op):
        self(f"v_mov_b32 {t}, {x}\nv_permlane32_swap_b32 {t}, {x}\n{op} {x}, {x}, {t}")
    def xq16(self, x, t, op):
        self(f"v_mov_b32 {t}, {x}\nv_permlane16_swap_b32 {t}, {x}\n{op} {x}, {x}, {t}")

    def poll_ge(self, voff, target, flags):
        lp = self.label("poll"); dn = self.label("pdone")
        self(f"s_mov_b32 {self.s_spin}, {1 << 22}")
        self(f"{lp}:")
        self.lines.append(f"buffer_load_dword {self.v_t0}, {voff}, {self.q_ws}, 0 offen {flags}")
        self.lines.append("s_waitcnt vmcnt(0)")
        self(f"v_cmp_gt_u32 vcc, {target}, {self.v_t0}")
        self(f"s_cbranch_vccz {dn}")
        self(f"s_sub_u32 {self.s_spin}, {self.s_spin}, 1\ns_cmp_lg_u32 {self.s_spin}, 0\ns_cbranch_scc1 {lp}")
        self(f"{dn}:")
    def local_barrier(self, fast, work=None):
        self.wait0()
        self("s_barrier")
        sk = self.label("lb")
        self(f"s_add_u32 {self.s_lep}, {self.s_lep}, 1")
        self(f"s_cmp_lg_u32 {self.s_w}, 0\ns_cbranch_scc1 {sk}")
        self(f"v_mov_b32 {self.v_t1}, {self.s_lep}")
        self(f"s_mov_b64 {self.s_ex}, exec\ns_mov_b64 exec, 1")
        self.lines.append(f"buffer_store_dword {self.v_t1}, {self.v_lfown}, {self.q_ws}, 0 offen" + ("" if fast else " sc1"))
        self(f"s_mov_b64 exec, {self.s_ex}")
        if work is not None:
            self(f"{sk}:")
            work()
            sk = self.label("lb")
            self(f"s_cmp_lg_u32 {self.s_w}, 0\ns_cbranch_scc1 {sk}")
        self.poll_ge(self.v_lfall, self.s_lep, "sc1")
        self(f"{sk}:")
        self("s_barrier")
        self.vm = []; self.lg = []

def build_kernel(stop_after=None, stamps=False, force=None, sw=0, fine=False):
    g = G(stop_after, stamps, force); g.stamp_wave = sw; g.fine = fine
    import phases
    phases.emit_all(g)
    lines, nn = fix_hazards(g.lines)
    body = "\n".join(("    " + l if not l.endswith(":") else l) for l in lines)
    hdr = open("interleave_layers__linear_kernel_hedgehog__spectral_fnet__prompt.s.ref").read().split("; Override launch")[0]
    txt = hdr + f"; @launch grid=(256,1,1) block=(256,1,1) lds={LDS_BYTES}\n"
    txt += f""".amdgcn_target "amdgcn-amd-amdhsa--gfx950"
.text
.globl {KN}
.p2align 8
.type {KN},@function
{KN}:
{body}
.section .rodata,"a"
.p2align 6
.amdhsa_kernel {KN}
  .amdhsa_next_free_vgpr 512
  .amdhsa_next_free_sgpr 102
  .amdhsa_accum_offset 256
  .amdhsa_group_segment_fixed_size 0
  .amdhsa_kernarg_size 96
  .amdhsa_user_sgpr_count 2
  .amdhsa_user_sgpr_kernarg_segment_ptr 1
  .amdhsa_system_sgpr_workgroup_id_x 1
.end_amdhsa_kernel
"""
    return txt, nn, g

if __name__ == "__main__":
    import argparse
    ap = argparse.ArgumentParser()
    ap.add_argument("-o", default="main.s")
    ap.add_argument("--stop", default=None)
    ap.add_argument("--stamps", action="store_true")
    ap.add_argument("--force", default=None)
    ap.add_argument("--sw", type=int, default=0)
    ap.add_argument("--fine", action="store_true")
    a = ap.parse_args()
    txt, nn, g = build_kernel(a.stop, a.stamps, a.force, a.sw, a.fine)
    open(a.o, "w").write(txt)
    print(f"wrote {a.o}: {len(txt)} bytes, {txt.count(chr(10))} lines, hazard nops {nn}, vgpr hi {g.V.hi}, agpr hi {g.A.hi}, sgpr hi {g.S.hi}")
    sys.path.insert(0, "tools")
    from build import build
    print(build(a.o))
```

```python
from emit import *
from maps import *
from gen_main import lit, f2u, LOG2E
BIG = 0x7ff00000
NR = 10
DUMMY = L_MISC + 512

def drain(gen):
    for _ in gen: pass

def p1_alloc(g):
    g.v_Aq = g.vv("Aq", 2); g.v_Ak = g.vv("Ak", 2)
    g.v_x16 = g.vv("x16")
    g.v_img = g.vv("img"); g.v_vA = g.vv("vA"); g.v_vC = g.vv("vC"); g.v_T = g.vv("vT"); g.v_K = g.vv("vK")
    g.s_l2e2 = g.sv("l2e", 2); g.s_l2e = g.s_l2e2[0]; g.s_hi = g.sv("hi", 2); g.v_one = g.vv("one")

def p1_setup(g):
    t0, t1 = g.v_t0, g.v_t1; V = g.V; a = g.s_a; L = g.v_lane
    r, c, khh, ch = g.vv("r"), g.vv("c"), g.vv("khh"), g.vv("ch")
    g(f"v_bfe_u32 {r}, {L}, 2, 2\nv_and_b32 {c}, 3, {L}\nv_lshrrev_b32 {khh}, 5, {L}\nv_bfe_u32 {ch}, {L}, 4, 1")
    g(f"v_lshl_add_u32 {t0}, {khh}, 3, {r}")
    g(f"v_lshlrev_b32 {t1}, 5, {ch}\nv_lshl_add_u32 {t1}, {c}, 3, {t1}")
    g(f"v_lshl_add_u32 {g.v_Aq[0]}, {t0}, 7, {t1}")
    g(f"v_mul_u32_u24 {g.v_T}, 192, {t0}\nv_add_u32 {g.v_T}, {g.v_T}, {t1}")
    g(f"v_bfe_u32 {t0}, {L}, 3, 1\nv_lshl_add_u32 {g.v_Aq[0]}, {t0}, 6, {g.v_Aq[0]}")
    g(f"v_xor_b32 {g.v_Ak[0]}, 64, {g.v_Aq[0]}")
    g(f"v_add_u32 {g.v_Aq[1]}, 0x10000, {g.v_Aq[0]}\nv_add_u32 {g.v_Ak[1]}, 0x10000, {g.v_Ak[0]}")
    g(f"s_mul_i32 {a[0]}, {g.s_w}, 12288\ns_add_u32 {a[0]}, {a[0]}, {L_SCR}")
    g(f"v_add_u32 {g.v_T}, {a[0]}, {g.v_T}")
    g(f"v_lshlrev_b32 {g.v_x16}, 4, {L}")
    g(f"v_and_b32 {t0}, 31, {L}\nv_mul_u32_u24 {t1}, 192, {t0}\nv_add_u32 {t1}, {a[0]}, {t1}")
    g(f"v_lshl_add_u32 {g.v_img}, {khh}, 5, {t1}")
    g(f"v_lshl_add_u32 {g.v_vA}, {khh}, 3, {t1}\nv_add_u32 {g.v_vA}, 136, {g.v_vA}")
    g(f"v_cmp_eq_u32 vcc, 0, {khh}\nv_cndmask_b32_e64 {g.v_vC}, 0, 40, vcc\nv_add_u32 {g.v_vC}, {g.v_vC}, {t1}\nv_add_u32 {g.v_vC}, 128, {g.v_vC}")
    g(f"s_mul_i32 {a[1]}, {g.s_w}, 12288\ns_add_u32 {a[1]}, {a[1]}, {L_KVS}")
    g(f"v_mul_u32_u24 {g.v_K}, 384, {khh}\nv_lshl_add_u32 {g.v_K}, {t0}, 2, {g.v_K}\nv_add_u32 {g.v_K}, {a[1]}, {g.v_K}")
    V.free(r, c, khh, ch)
    z = g.vv("z", 4)
    for i in range(4): g(f"v_mov_b32 {z[i]}, 0")
    g(f"v_lshlrev_b32 {t0}, 4, v0\nv_add_u32 {t0}, {L_KVA}, {t0}")
    g(f"v_cmp_gt_u32 vcc, 192, v0\nv_mov_b32 {t1}, {DUMMY}\nv_cndmask_b32 {t0}, {t1}, {t0}, vcc")
    g.lines.append(f"ds_write_b128 {t0}, {z}")
    V.free(z)
    g(f"s_mov_b32 {g.s_l2e}, {lit(LOG2E)}\ns_mov_b32 {g.s_l2e2[1]}, {lit(LOG2E)}\ns_mov_b32 {g.s_hi[0]}, 0\ns_mov_b32 {g.s_hi[1]}, -1\nv_mov_b32 {g.v_one}, 0x3f80")

def ga_setup(g):
    t0, t1 = g.v_t0, g.v_t1; V = g.V
    g.v_ga = g.vv("ga", 4); g.v_ga3 = g.vv("gaz")
    row, q, kh, slot, c, m = g.vv("row"), g.vv("q"), g.vv("kh"), g.vv("slot"), g.vv("c"), g.vv("m")
    g(f"v_mul_u32_u24 {row}, 10923, v0\nv_lshrrev_b32 {row}, 16, {row}")
    g(f"v_mul_u32_u24 {t0}, 6, {row}\nv_sub_u32 {q}, v0, {t0}")
    g(f"v_cmp_lt_u32 vcc, 19, {row}\nv_cndmask_b32_e64 {kh}, 0, 1, vcc\nv_mul_u32_u24 {t0}, 20, {kh}\nv_sub_u32 {slot}, {row}, {t0}")
    g(f"v_mul_u32_u24 {kh}, 48, {kh}\nv_lshl_add_u32 {kh}, {slot}, 1, {kh}\nv_add_u32 {kh}, {L_KVA}, {kh}")
    for e in range(4):
        g(f"v_lshl_add_u32 {c}, {q}, 2, {e}")
        g(f"v_cmp_lt_u32 vcc, 9, {c}\nv_cndmask_b32_e64 {t0}, 0, 1, vcc\nv_mul_u32_u24 {t1}, 10, {t0}\nv_sub_u32 {t1}, {c}, {t1}")
        g(f"v_lshrrev_b32 {m}, 2, {t1}\nv_lshlrev_b32 {m}, 3, {m}\nv_lshl_add_u32 {m}, {t0}, 2, {m}\nv_and_b32 {t1}, 3, {t1}\nv_add_u32 {m}, {m}, {t1}")
        g(f"v_cmp_eq_u32 vcc, 20, {c}\nv_cndmask_b32_e64 {m}, {m}, 18, vcc")
        g(f"v_mul_u32_u24 {g.v_ga[e]}, 96, {m}\nv_add_u32 {g.v_ga[e]}, {g.v_ga[e]}, {kh}")
        g(f"v_mov_b32 {t1}, {DUMMY}\nv_cmp_lt_u32 vcc, 20, {c}\nv_cndmask_b32 {g.v_ga[e]}, {g.v_ga[e]}, {t1}, vcc")
        g(f"v_cmp_lt_u32 vcc, 239, v0\nv_cndmask_b32 {g.v_ga[e]}, {g.v_ga[e]}, {t1}, vcc")
    g(f"v_add_u32 {g.v_ga3}, 384, {g.v_ga[0]}\nv_mov_b32 {t1}, {DUMMY}\nv_cmp_ne_u32 vcc, 5, {q}\nv_cndmask_b32 {g.v_ga3}, {g.v_ga3}, {t1}, vcc")
    g(f"v_cmp_lt_u32 vcc, 239, v0\nv_cndmask_b32 {g.v_ga3}, {g.v_ga3}, {t1}, vcc")
    V.free(row, q, kh, slot, c, m)

def set_layer(g):
    for nm, arr in (("s_xn", XN_IN), ("s_xr", X_IN), ("s_kvb", KVB), ("s_ob", OB), ("s_x1", X1), ("s_gb", GB), ("s_stb", STB), ("s_zb", ZB)):
        if not hasattr(g, nm) or getattr(g, nm) is None: setattr(g, nm, g.sv(nm))
        r = getattr(g, nm)
        g(f"s_cmp_eq_u32 {g.s_layer}, 0\ns_cselect_b32 {r}, {arr[0]}, {arr[1]}") if False else None
        g(f"s_mul_i32 {r}, {g.s_layer}, {arr[1] - arr[0]}\ns_add_u32 {r}, {r}, {arr[0]}")
        if nm == "s_x1": g(f"s_mul_i32 {g.s_a[0]}, {g.s_tb}, {LOCSZ - XSZ}\ns_add_u32 {r}, {r}, {g.s_a[0]}")

def softmax_gen(g, acc, pk, outp, outm, T, packed, skip_pack=False):
    d2, ep, em = T["d2"], T["ep"], T["em"]
    mx, mn, t2, sp, sm_ = T["mx"], T["mn"], T["t2"], T["sp"], T["sm"]
    if not skip_pack:
        for q in range(8):
            g(f"v_cvt_pk_bf16_f32 {pk[q]}, {acc[2*q]}, {acc[2*q+1]}"); yield 1
    g(f"v_mfma_f32_32x32x16_bf16 {d2}, {g.v_phi[0:4]}, {pk[0:4]}, 0"); yield "mfma"
    g(f"v_mfma_f32_32x32x16_bf16 {d2}, {g.v_phi[4:8]}, {pk[4:8]}, {d2}"); yield "mfma"
    yield "gap"
    g(f"v_max3_f32 {mx}, {d2[0]}, {d2[1]}, {d2[2]}"); yield 1
    g(f"v_min3_f32 {mn}, {d2[0]}, {d2[1]}, {d2[2]}"); yield 1
    for i in (3, 5, 7):
        g(f"v_max3_f32 {mx}, {mx}, {d2[i]}, {d2[i+1]}"); yield 1
        g(f"v_min3_f32 {mn}, {mn}, {d2[i]}, {d2[i+1]}"); yield 1
    g(f"v_max_f32 {mx}, {mx}, {d2[9]}"); yield 1
    g(f"v_min_f32 {mn}, {mn}, {d2[9]}"); yield 1
    g(f"v_mov_b32 {t2}, {mx}"); yield 1
    g(f"v_mov_b32 {sp}, {mn}"); yield 1
    g("s_nop 0"); yield 1
    g(f"v_permlane32_swap_b32 {t2}, {mx}"); yield 1
    g(f"v_permlane32_swap_b32 {sp}, {mn}"); yield 1
    g(f"v_max_f32 {mx}, {mx}, {t2}"); yield 1
    g(f"v_min_f32 {mn}, {mn}, {sp}"); yield 1
    g(f"v_mul_f32 {mx}, {lit(-LOG2E)}, {mx}"); yield 1
    g(f"v_mul_f32 {mn}, {lit(LOG2E)}, {mn}"); yield 1
    if packed:
        for i in range(5):
            g(f"v_pk_fma_f32 {ep[2*i:2*i+2]}, {d2[2*i:2*i+2]}, {g.s_l2e2}, {T['cc']} op_sel_hi:[1,1,0]"); yield 1
            g(f"v_pk_fma_f32 {em[2*i:2*i+2]}, {d2[2*i:2*i+2]}, {g.s_l2e2}, {T['cc']} op_sel:[0,0,1] op_sel_hi:[1,1,1] neg_lo:[1,0,0] neg_hi:[1,0,0]"); yield 1
    else:
        for i in range(10):
            g(f"v_fma_f32 {ep[i]}, {d2[i]}, {g.s_l2e}, {mx}"); yield 1
            g(f"v_fma_f32 {em[i]}, {d2[i]}, -{g.s_l2e}, {mn}"); yield 1
    for i in range(10):
        g(f"v_exp_f32 {ep[i]}, {ep[i]}"); yield 2
        g(f"v_exp_f32 {em[i]}, {em[i]}"); yield 2
    if packed:
        for e, k in ((ep, 0), (em, 4)):
            g(f"v_pk_add_f32 {d2[k:k+2]}, {e[0:2]}, {e[2:4]}"); yield 1
            g(f"v_pk_add_f32 {d2[k+2:k+4]}, {e[4:6]}, {e[6:8]}"); yield 1
        for e, k in ((ep, 0), (em, 4)):
            g(f"v_pk_add_f32 {d2[k:k+2]}, {d2[k:k+2]}, {e[8:10]}"); yield 1
        for e, k in ((ep, 0), (em, 4)):
            g(f"v_pk_add_f32 {d2[k:k+2]}, {d2[k:k+2]}, {d2[k+2:k+4]}"); yield 1
        g(f"v_add_f32 {sp}, {d2[0]}, {d2[1]}"); yield 1
        g(f"v_add_f32 {sm_}, {d2[4]}, {d2[5]}"); yield 1
    else:
        g(f"v_add_f32 {sp}, {ep[0]}, {ep[1]}"); yield 1
        g(f"v_add_f32 {sm_}, {em[0]}, {em[1]}"); yield 1
        for i in range(2, 10):
            g(f"v_add_f32 {sp}, {sp}, {ep[i]}"); yield 1
            g(f"v_add_f32 {sm_}, {sm_}, {em[i]}"); yield 1
    g(f"v_mov_b32 {t2}, {sp}"); yield 1
    g(f"v_mov_b32 {mx}, {sm_}"); yield 1
    g("s_nop 0"); yield 1
    g(f"v_permlane32_swap_b32 {t2}, {sp}"); yield 1
    g(f"v_permlane32_swap_b32 {mx}, {sm_}"); yield 1
    g(f"v_add_f32 {sp}, {sp}, {t2}"); yield 1
    g(f"v_add_f32 {sm_}, {sm_}, {mx}"); yield 1
    g(f"v_rcp_f32 {d2[0]}, {sp}"); yield 2
    g(f"v_rcp_f32 {d2[2]}, {sm_}"); yield 2
    if packed:
        for i in range(5):
            g(f"v_pk_mul_f32 {ep[2*i:2*i+2]}, {ep[2*i:2*i+2]}, {d2[0:2]} op_sel_hi:[1,0]"); yield 1
            g(f"v_pk_mul_f32 {em[2*i:2*i+2]}, {em[2*i:2*i+2]}, {d2[2:4]} op_sel_hi:[1,0]"); yield 1
    else:
        for i in range(10):
            g(f"v_mul_f32 {ep[i]}, {ep[i]}, {d2[0]}"); yield 1
            g(f"v_mul_f32 {em[i]}, {em[i]}, {d2[2]}"); yield 1
    for i in range(5):
        g(f"v_cvt_pk_bf16_f32 {outp[i]}, {ep[2*i]}, {ep[2*i+1]}"); yield 1
        g(f"v_cvt_pk_bf16_f32 {outm[i]}, {em[2*i]}, {em[2*i+1]}"); yield 1

def k_epilogue_gen(g, pi, Aq, Ak, pq, T, KV, packed):
    pk, fo = T["pk"], T["fo"]
    ro = pi * 32 * 192
    for q in range(8):
        g(f"v_cvt_pk_bf16_f32 {pk[q]}, {Ak[2*q]}, {Ak[2*q+1]}"); yield 1
    sgen = softmax_gen(g, None, pk, fo[0:5], fo[6:11], T, packed, skip_pack=True)
    yield next(sgen); yield next(sgen)
    next(sgen)
    for q in range(8):
        g(f"v_cvt_pk_bf16_f32 {pq[q]}, {Aq[2*q]}, {Aq[2*q+1]}"); yield 1
    vc = T["fa"][0:2]
    g(f"v_cndmask_b32_e64 {vc[0]}, {g.v_one}, {pq[4]}, {g.s_hi}"); yield 1
    g(f"v_cndmask_b32_e64 {vc[1]}, 0, {pq[5]}, {g.s_hi}"); yield 1
    g(f"ds_write_b64 {g.v_vA}, {pq[6:8]} offset:{ro}"); yield 1
    g(f"ds_write_b64 {g.v_vA}, {pk[6:8]} offset:{ro + 16}"); yield 1
    g(f"ds_write_b64 {g.v_vC}, {vc} offset:{ro}"); yield 1
    yield from sgen
    g(f"ds_write_b128 {g.v_img}, {fo[0:4]} offset:{ro}"); yield 1
    g(f"ds_write_b32 {g.v_img}, {fo[4]} offset:{ro + 16}"); yield 1
    g(f"ds_write_b128 {g.v_img}, {fo[6:10]} offset:{ro + 64}"); yield 1
    g(f"ds_write_b32 {g.v_img}, {fo[10]} offset:{ro + 80}"); yield 1
    mk = g.lg_mark()
    yield "gap"
    fa = T["fa"]; fb = T["fb"]
    g.wait(lg=mk); yield 1
    ms = []
    for ks, f in ((0, fa), (1, fb)):
        rb = (32 * pi + 16 * ks) * 192
        for tile in range(3):
            for t in range(2):
                g(f"ds_read_b64_tr_b16 {f[4*tile+2*t:4*tile+2*t+2]}, {g.v_T} offset:{rb + 4*t*192 + 64*tile}"); yield 1
        ms.append(g.lg_mark())
    for ks, f in ((0, fa), (1, fb)):
        g.wait(lg=ms[ks]); yield 1
        first = (pi == 0 and ks == 0)
        g(f"v_mfma_f32_32x32x16_bf16 {KV[0]}, {f[0:4]}, {f[8:12]}, {0 if first else KV[0]}"); yield "mfma"
        g(f"v_mfma_f32_32x32x16_bf16 {KV[1]}, {f[4:8]}, {f[8:12]}, {0 if first else KV[1]}"); yield "mfma"

def p1(g):
    V = g.V; a = g.s_a; t0, t1 = g.v_t0, g.v_t1; sc = g.sc
    import ph_s0
    g.c("==== P1 ====")
    g.stamp(8)
    ring = g.vv("ring", 4 * NR, 4)
    acc = [[g.vv("aq0", 16, 4), g.vv("ak0", 16, 4)], [g.vv("aq1", 16, 4), g.vv("ak1", 16, 4)]]
    fr = [g.vv("fr0", 8, 4), g.vv("fr1", 8, 4), g.vv("fr2", 8, 4)]
    pq = [g.vv("pq0", 8, 4), g.vv("pq1", 8, 4)]
    T = dict(d2=g.vv("d2", 16, 4), ep=g.vv("ep", 10, 2), em=g.vv("em", 10, 2), pk=g.vv("pk", 8, 4), fo=g.vv("fo", 12, 4),
             fa=g.vv("fa", 12, 4), cc=g.vv("cc", 2, 2), sp=g.vv("sp"), sm=g.vv("sm"), t2=g.vv("t2"))
    T["fb"] = T["d2"][0:12]
    T["mx"], T["mn"] = T["cc"][0], T["cc"][1]
    KV = [acc[0][0], acc[0][1]]
    pre = g.vv("pre", 2); q_dbg = g.S.alloc("q_dbg", 4)
    g.srd(q_dbg, g.p_in[10], g.p_in[11], 256)
    sx = g.sv("sx")
    g(f"s_mul_i32 {sx}, {g.s_tb}, {XSZ}\ns_mul_i32 {a[0]}, {g.s_w}, 81920\ns_add_u32 {sx}, {sx}, {a[0]}\ns_add_u32 {sx}, {sx}, {g.s_xn}")
    marks = {}
    def xload(s):
        if s % 4 == 0 and s > 0: g(f"s_add_u32 {sx}, {sx}, 4096")
        r = ring[4 * (s % NR):4 * (s % NR) + 4]
        g(f"buffer_load_dwordx4 {r}, {g.v_x16}, {g.q_ws}, {sx} offen offset:{1024 * (s % 4)} sc1")
        marks[s] = g.vm_mark()
    def aload(s, tile):
        b = s % 40; f = fr[s % 3]; hi = 1 if b >= 32 else 0; off = (b - 32 * hi) * 2048
        ad = (g.v_Aq, g.v_Ak)[tile]
        for t in range(2):
            g(f"ds_read_b64_tr_b16 {f[4*tile+2*t:4*tile+2*t+2]}, {ad[hi]} offset:{off + 512*t}")
    if g.fast:
        sk = g.label("pt")
        g(f"s_cmp_lg_u32 {g.s_layer}, 0\ns_cbranch_scc1 {sk}")
        g(f"s_lshl_b32 {a[0]}, {g.s_j}, 2\ns_add_u32 {a[0]}, {a[0]}, {g.s_w}\ns_mul_i32 {a[0]}, {a[0]}, {61*128}\ns_mul_i32 {a[1]}, {g.s_tb}, {LOCSZ}\ns_add_u32 {a[0]}, {a[0]}, {a[1]}\ns_add_u32 {a[0]}, {a[0]}, {LOC}")
        g(f"v_lshlrev_b32 {t0}, 7, {g.v_lane}\nv_cmp_gt_u32 vcc, 61, {g.v_lane}\nv_mov_b32 {t1}, {BIG}\nv_cndmask_b32 {t0}, {t1}, {t0}, vcc")
        g.lines.append(f"buffer_store_dword {t1}, {t0}, {g.q_ws}, {a[0]} offen")
        g(f"{sk}:")
    for s in range(NR): xload(s)
    g("s_barrier")
    g.stamp(19)
    am = {}
    for s in (0, 1):
        aload(s, 0); aload(s, 1); am[s] = g.lg_mark()
    filler = None; hold = 0
    def fill(budget):
        nonlocal filler, hold
        if filler is None: return
        if hold > 0:
            hold -= 1; return
        while budget > 0:
            try: r = next(filler)
            except StopIteration:
                filler = None; return
            if r == "gap": hold = 2; return
            if r == "mfma": budget -= 3
            else: budget -= r
    for s in range(80):
        pi = s // 40
        if s == 40:
            g.stamp(18)
        if s == 41: filler = k_epilogue_gen(g, 0, acc[0][0], acc[0][1], pq[0], T, KV, packed=False)
        if s == 55:
            g(f"v_lshlrev_b32 {t0}, 2, {g.v_lane}")
            g(f"buffer_load_dword {pre[0]}, {t0}, {q_dbg}, 0 offen sc1")
        if s == 72:
            g(f"v_min_u32 {t0}, 19, {g.v_lane}\nv_lshlrev_b32 {t0}, 2, {t0}\nv_add_u32 {t0}, {WOFL}, {t0}")
            g(f"buffer_load_dword {pre[1]}, {t0}, {g.q_ws}, 0 offen sc1")
            mpre = g.vm_mark()
        g.wait(vm=marks[s], lg=am[s])
        b = ring[4 * (s % NR):4 * (s % NR) + 4]; f = fr[s % 3]
        c0 = (s % 40 == 0)
        g(f"v_mfma_f32_32x32x16_bf16 {acc[pi][0]}, {f[0:4]}, {b}, {0 if c0 else acc[pi][0]}")
        nA = 6
        if s + 2 < 80: aload(s + 2, 0); nA -= 2
        if s >= 1 and s - 1 + NR < 80: xload(s - 1 + NR); nA -= 1
        fill(nA)
        g(f"v_mfma_f32_32x32x16_bf16 {acc[pi][1]}, {f[4:8]}, {b}, {0 if c0 else acc[pi][1]}")
        nB = 5
        if s + 2 < 80:
            aload(s + 2, 1); nB -= 2; am[s + 2] = g.lg_mark()
        fill(nB)
    if filler is not None: drain(filler)
    g.stamp(9)
    wsetup, wo_gen, tab_gen, g.wo_sb = ph_s0.wo_loader(g)
    g.wo_gen = wo_gen
    sk = g.label("wo")
    g(f"s_cmp_lg_u32 {g.s_layer}, 0\ns_cbranch_scc1 {sk}")
    vm0 = list(g.vm)
    wo_ready(g, pre, mpre)
    g.vm = vm0
    g.stamp(14)
    wsetup()
    g(f"{sk}:")
    z_poison(g)
    def dual(make, extra, n, tail0=None, tail1=None, head0=None):
        l1 = g.label("d1"); l2 = g.label("d2")
        lg0 = list(g.lg); vm0 = list(g.vm)
        g(f"s_cmp_lg_u32 {g.s_layer}, 0\ns_cbranch_scc1 {l1}")
        if head0: head0()
        real = g.lines; g.lines = []
        drain(make()); body = g.lines; g.lines = real
        step = len(body) / (n + 1); k = 0
        for i, l in enumerate(body):
            g.lines.append(l)
            if k < n and i + 1 >= (k + 1) * step and not l.startswith(("v_cmp", "s_cmp")):
                next(extra); k += 1
        while k < n: next(extra); k += 1
        if tail0: tail0()
        g(f"s_branch {l2}\n{l1}:")
        g.lg = lg0; g.vm = vm0
        drain(make())
        if tail1: tail1()
        g(f"{l2}:")
    def kepi1():
        yield from k_epilogue_gen(g, 1, acc[1][0], acc[1][1], pq[1], T, KV, packed=True)
    def slabs():
        g(f"s_mov_b64 {g.s_ex}, exec\ns_mov_b32 exec_lo, 0x00ffffff\ns_mov_b32 exec_hi, 0x00ffffff")
        for sg in range(2):
            for i in (0, 2):
                for jj in range(4):
                    g(f"ds_write_b32 {g.v_K}, {KV[sg][4*i+jj]} offset:{(((i>>1)*2 + sg)*10 + jj)*96}")
        g(f"s_mov_b32 exec_hi, 0")
        for sg in range(2):
            for i in (1, 3):
                for jj in range(2):
                    g(f"ds_write_b32 {g.v_K}, {KV[sg][4*i+jj]} offset:{(((i>>1)*2 + sg)*10 + 8 + jj)*96}")
        g(f"s_mov_b64 exec, {g.s_ex}")
    NW1, NW2, NW3 = 24, 4, 16
    dual(kepi1, wo_gen, NW1)
    g.stamp(16)
    slabs()
    g.wait0(vm=False)
    g("s_barrier")
    g.stamp(17)
    pub = T["d2"]
    g(f"v_lshlrev_b32 {t0}, 4, v0\nv_add_u32 {t1}, {L_KVS}, {t0}")
    for w in range(4): g(f"ds_read_b128 {pub[4*w:4*w+4]}, {t1} offset:{12288*w}")
    skv = g.sv("skv")
    g(f"s_lshl_b32 {skv}, {g.s_j}, 14\ns_add_u32 {skv}, {skv}, {g.s_kvb}")
    g(f"s_lshl_b32 {a[0]}, {g.s_tb}, 11\ns_add_u32 {a[0]}, {a[0]}, {skv}")
    vkv = g.vv("vkv")
    g(f"v_lshrrev_b32 {vkv}, 1, {t0}")
    g(f"v_cmp_gt_u32 vcc, 240, v0\nv_mov_b32 {t1}, {BIG}\nv_cndmask_b32 {vkv}, {t1}, {vkv}, vcc")
    g.wait0(vm=False)
    for w in range(1, 4):
        g(f"v_pk_add_f32 {pub[0:2]}, {pub[0:2]}, {pub[4*w:4*w+2]}\nv_pk_add_f32 {pub[2:4]}, {pub[2:4]}, {pub[4*w+2:4*w+4]}")
    g(f"v_cvt_pk_bf16_f32 {pub[4]}, {pub[0]}, {pub[1]}\nv_cvt_pk_bf16_f32 {pub[5]}, {pub[2]}, {pub[3]}")
    l1 = g.label("zw"); l2 = g.label("zw")
    g(f"s_cmp_lg_u32 {g.s_layer}, 0\ns_cbranch_scc1 {l1}")
    g.lines.append(f"s_waitcnt vmcnt({NW1})")
    g(f"s_branch {l2}\n{l1}:")
    g.lines.append("s_waitcnt vmcnt(0)")
    g(f"{l2}:")
    g.lines.append(f"buffer_store_dwordx2 {pub[4:6]}, {vkv}, {g.q_ws}, {a[0]} offen sc1")
    g.stamp(10)
    fq = [acc[1][0][0:12], acc[1][1][0:12]]
    gd = ring[0:16]
    g.vm = []
    def gather():
        g(f"s_mov_b32 {a[4]}, {skv}")
        for tb in range(8):
            g.lines.append(f"buffer_load_dwordx2 {gd[2*tb:2*tb+2]}, {vkv}, {g.q_ws}, {a[4]} offen sc1")
            if tb < 7: g(f"s_add_u32 {a[4]}, {a[4]}, 2048")
    import itertools
    def qs(pi):
        def mk():
            g(f"v_mov_b32 {fq[pi][10]}, 0\nv_mov_b32 {fq[pi][11]}, 0")
            yield from q_softmax(g, pq[pi], fq[pi], T)
        return mk
    dual(qs(0), itertools.chain(tab_gen, wo_gen), 10 + NW2)
    gather()
    dual(qs(1), wo_gen, NW3)
    V.free(T["d2"], T["ep"], T["em"], T["pk"], T["fo"], *fr, *pq)
    ga_setup(g)
    g.stamp(11)
    lp = g.label("kvp"); dn = g.label("kvd"); ck = g.label("kvc")
    g(f"s_mov_b32 {g.s_spin}, {1 << 18}")
    g(f"s_cmp_lg_u32 {g.s_layer}, 0\ns_cbranch_scc1 {lp}")
    g.lines.append(f"s_waitcnt vmcnt({NW3})")
    g(f"s_branch {ck}")
    g(f"{lp}:")
    g.lines.append("s_waitcnt vmcnt(0)")
    g(f"{ck}:")
    mxr = ring[16]
    g(f"v_max3_u32 {mxr}, {gd[0]}, {gd[1]}, {gd[2]}")
    for q in range(3, 15, 2): g(f"v_max3_u32 {mxr}, {mxr}, {gd[q]}, {gd[q+1]}")
    g(f"v_max_u32 {mxr}, {mxr}, {gd[15]}\nv_cmp_eq_u32 vcc, -1, {mxr}\ns_cbranch_vccz {dn}")
    gather()
    g(f"s_sub_u32 {g.s_spin}, {g.s_spin}, 1\ns_cmp_lg_u32 {g.s_spin}, 0\ns_cbranch_scc1 {lp}")
    g.lines.append("s_waitcnt vmcnt(0)")
    g(f"{dn}:")
    g.stamp(12)
    sv = ring[20:28]; uv = ring[28:32]
    g(f"v_lshlrev_b32 {sv[0]}, 16, {gd[0]}\nv_and_b32 {sv[1]}, 0xffff0000, {gd[0]}\nv_lshlrev_b32 {sv[2]}, 16, {gd[1]}\nv_and_b32 {sv[3]}, 0xffff0000, {gd[1]}")
    for tb in range(1, 8):
        g(f"v_lshlrev_b32 {uv[0]}, 16, {gd[2*tb]}\nv_and_b32 {uv[1]}, 0xffff0000, {gd[2*tb]}\nv_lshlrev_b32 {uv[2]}, 16, {gd[2*tb+1]}\nv_and_b32 {uv[3]}, 0xffff0000, {gd[2*tb+1]}")
        g(f"v_pk_add_f32 {sv[0:2]}, {sv[0:2]}, {uv[0:2]}\nv_pk_add_f32 {sv[2:4]}, {sv[2:4]}, {uv[2:4]}")
    gd = ring[32:40]
    g(f"v_cvt_pk_bf16_f32 {gd[4]}, {sv[0]}, {sv[1]}\nv_cvt_pk_bf16_f32 {gd[5]}, {sv[2]}, {sv[3]}")
    g(f"ds_write_b16 {g.v_ga[0]}, {gd[4]}\nds_write_b16_d16_hi {g.v_ga[1]}, {gd[4]}\nds_write_b16 {g.v_ga[2]}, {gd[5]}\nds_write_b16_d16_hi {g.v_ga[3]}, {gd[5]}")
    g(f"ds_write_b16 {g.v_ga3}, {gd[4]}")
    V.free(vkv)
    V.free(g.v_ga, g.v_ga3)
    g.wait0(vm=False)
    g("s_barrier")
    g.stamp(30) if g.fine else None
    ka = T["fa"]
    g(f"v_and_b32 {t0}, 31, {g.v_lane}\nv_mul_u32_u24 {t0}, 96, {t0}\nv_lshrrev_b32 {t1}, 5, {g.v_lane}\nv_mul_u32_u24 {t1}, 48, {t1}\nv_add_u32 {t0}, {t0}, {t1}\nv_add_u32 {t0}, {L_KVA}, {t0}")
    for st in range(3): g(f"ds_read_b128 {ka[4*st:4*st+4]}, {t0} offset:{16*st}")
    vo = T["t2"]; vt = T["sm"]
    g(f"v_bfe_u32 {t0}, {g.v_lane}, 4, 1\nv_mul_u32_u24 {vo}, 20480, {t0}\nv_and_b32 {t0}, 15, {g.v_lane}")
    g(f"v_lshl_add_u32 {vt}, {t0}, 3, {vo}\nv_lshl_add_u32 {vo}, {t0}, 4, {vo}\nv_lshrrev_b32 {t1}, 5, {g.v_lane}\nv_lshl_add_u32 {vo}, {t1}, 8, {vo}")
    g(f"s_mul_i32 {a[0]}, {g.s_tb}, {LOCSZ}\ns_add_u32 {a[0]}, {a[0]}, {g.s_ob}\ns_mul_i32 {a[1]}, {g.s_w}, {4*20480}\ns_add_u32 {a[0]}, {a[0]}, {a[1]}")
    g(f"s_lshl_b32 {a[1]}, {g.s_j}, 7\ns_add_u32 {a[1]}, {a[1]}, {a[0]}\ns_add_u32 {a[1]}, {a[1]}, 16384")
    g(f"s_lshr_b32 {a[2]}, {g.s_j}, 1\ns_lshl_b32 {a[2]}, {a[2]}, 10\ns_add_u32 {a[0]}, {a[0]}, {a[2]}\ns_and_b32 {a[2]}, {g.s_j}, 1\ns_lshl_b32 {a[2]}, {a[2]}, 9\ns_add_u32 {a[0]}, {a[0]}, {a[2]}")
    g.wait0(vm=False)
    D3 = [acc[0][0], acc[0][1]]
    for pi in range(2):
        for st in range(3):
            g(f"v_mfma_f32_32x32x16_bf16 {D3[pi]}, {ka[4*st:4*st+4]}, {fq[pi][4*st:4*st+4]}, {0 if st == 0 else D3[pi]}")
    for pi in range(2):
        d = D3[pi]
        g(f"v_add_f32 {T['cc'][0]}, {lit(1e-6)}, {d[10]}\nv_rcp_f32 {T['cc'][0]}, {T['cc'][0]}")
        for i in range(5):
            g(f"v_pk_mul_f32 {d[2*i:2*i+2]}, {d[2*i:2*i+2]}, {T['cc']} op_sel_hi:[1,0]")
        op = fq[pi]
        for i in range(5): g(f"v_cvt_pk_bf16_f32 {op[i]}, {d[2*i]}, {d[2*i+1]}")
        if pi == 1: g(f"s_add_u32 {a[0]}, {a[0]}, {2*20480}\ns_add_u32 {a[1]}, {a[1]}, {2*20480}")
        g(f"buffer_store_dwordx4 {op[0:4]}, {vo}, {g.q_ws}, {a[0]} offen{sc}")
        g(f"v_mov_b32 {op[6]}, {op[4]}\nv_mov_b32 {op[7]}, {op[4]}\nv_permlane32_swap_b32 {op[6]}, {op[7]}")
        g(f"s_mov_b64 {g.s_ex}, exec\ns_mov_b32 exec_hi, 0")
        g(f"buffer_store_dwordx2 {op[6:8]}, {vt}, {g.q_ws}, {a[1]} offen{sc}")
        g(f"s_mov_b64 exec, {g.s_ex}")
    g.stamp(13)
    V.free(ring, *acc[0], *acc[1], T["fa"], T["cc"], T["sp"], T["sm"], T["t2"])
    g.S.free(sx, skv, q_dbg); V.free(pre)

def q_softmax(g, pq, out, T):
    yield from softmax_gen(g, None, pq, out[0:5], out[5:10], T, packed=True, skip_pack=True)

def init_wait(g, cond=True):
    sk = g.label("iw"); t0 = g.v_t0
    if cond: g(f"s_cmp_lg_u32 {g.s_layer}, 0\ns_cbranch_scc1 {sk}")
    q = g.S.alloc("q_dbg", 4); pv = g.vv("pv"); pa = g.vv("pa")
    g.srd(q, g.p_in[10], g.p_in[11], 256)
    g(f"v_lshlrev_b32 {pa}, 2, {g.v_lane}")
    lp = g.label("iwp"); dn = g.label("iwd")
    g(f"s_mov_b32 {g.s_spin}, {1 << 20}")
    g(f"{lp}:")
    g.lines.append(f"buffer_load_dword {pv}, {pa}, {q}, 0 offen sc1")
    g.lines.append("s_waitcnt vmcnt(0)")
    g(f"v_subrev_u32 {t0}, 0x01010101, {pv}\nv_bfi_b32 {t0}, {pv}, 0, {t0}\nv_and_b32 {t0}, 0x80808080, {t0}")
    g(f"v_cmp_ne_u32 vcc, 0, {t0}\ns_cbranch_vccz {dn}")
    g(f"s_sub_u32 {g.s_spin}, {g.s_spin}, 1\ns_cmp_lg_u32 {g.s_spin}, 0\ns_cbranch_scc1 {lp}")
    g(f"{dn}:")
    g.S.free(q); g.V.free(pv, pa)
    g(f"{sk}:")

def wo_ready(g, pre, mpre):
    t0 = g.v_t0
    ok = g.label("wok"); slow = g.label("wsl")
    g.wait(vm=mpre)
    pv = pre[0]
    g(f"v_subrev_u32 {t0}, 0x01010101, {pv}\nv_bfi_b32 {t0}, {pv}, 0, {t0}\nv_and_b32 {t0}, 0x80808080, {t0}")
    g(f"v_cmp_ne_u32 vcc, 0, {t0}\ns_cbranch_vccnz {slow}")
    g(f"v_cmp_ne_u32 vcc, 0x01010101, {pre[1]}\ns_cbranch_vccz {ok}")
    g(f"{slow}:")
    init_wait(g, cond=False)
    pa = g.vv("pa"); pv = g.vv("pv")
    g(f"v_min_u32 {pa}, 19, {g.v_lane}\nv_lshlrev_b32 {pa}, 2, {pa}\nv_add_u32 {pa}, {WOFL}, {pa}")
    lp = g.label("wrp"); dn = g.label("wrd")
    g(f"s_mov_b32 {g.s_spin}, {1 << 20}")
    g(f"{lp}:")
    g.lines.append(f"buffer_load_dword {pv}, {pa}, {g.q_ws}, 0 offen sc1")
    g.lines.append("s_waitcnt vmcnt(0)")
    g(f"v_cmp_ne_u32 vcc, 0x01010101, {pv}\ns_cbranch_vccz {dn}")
    g(f"s_sub_u32 {g.s_spin}, {g.s_spin}, 1\ns_cmp_lg_u32 {g.s_spin}, 0\ns_cbranch_scc1 {lp}")
    g(f"{dn}:")
    g.V.free(pa, pv)
    g(f"{ok}:")

def z_poison(g):
    a = g.s_a; t0 = g.v_t0
    sk = g.label("zp")
    pz = g.vv("pz", 4, 4)
    g(f"s_cmp_gt_u32 {g.s_j}, 20\ns_cbranch_scc1 {sk}")
    for q in range(4): g(f"v_mov_b32 {pz[q]}, -1")
    g(f"s_mul_i32 {a[0]}, {g.s_tb}, {ZSZ}\ns_add_u32 {a[0]}, {a[0]}, {g.s_zb}\ns_lshl_b32 {a[1]}, {g.s_j}, 14\ns_add_u32 {a[0]}, {a[0]}, {a[1]}\ns_lshl_b32 {a[1]}, {g.s_w}, 12\ns_add_u32 {a[0]}, {a[0]}, {a[1]}")
    for q in range(4):
        g.lines.append(f"buffer_store_dwordx4 {pz}, {g.v_x16}, {g.q_ws}, {a[0]} offen offset:{1024*q} sc1")
    g(f"{sk}:")
    g.V.free(pz)
```

```python
from emit import *
from maps import *
from gen_main import lit
BIG = 0x7ff00000

def p2_setup(g):
    a = g.s_a; t0, t1 = g.v_t0, g.v_t1; L = g.v_lane; V = g.V
    g.v_xp = g.vv("xp", 3)
    e2, base, gq = g.vv("e2"), g.vv("base"), g.vv("gq")
    g(f"s_and_b32 {a[0]}, {g.s_j}, 3\ns_lshl_b32 {a[0]}, {a[0]}, 6\ns_and_b32 {a[1]}, {g.s_w}, 1\ns_lshl_b32 {a[1]}, {a[1]}, 5\ns_add_u32 {a[0]}, {a[0]}, {a[1]}")
    g(f"s_lshr_b32 {a[1]}, {g.s_w}, 1\ns_lshl_b32 {a[1]}, {a[1]}, 4\ns_add_u32 {a[0]}, {a[0]}, {a[1]}")
    g.v_p2p = g.vv("p2p")
    g(f"v_and_b32 {t0}, 15, {L}\nv_add_u32 {g.v_p2p}, {a[0]}, {t0}")
    g(f"v_lshrrev_b32 {t0}, 5, {g.v_p2p}\nv_mul_u32_u24 {base}, 40960, {t0}\nv_and_b32 {t0}, 31, {g.v_p2p}\nv_lshl_add_u32 {base}, {t0}, 4, {base}")
    g(f"v_lshrrev_b32 {gq}, 4, {L}")
    g(f"s_lshr_b32 {a[1]}, {g.s_j}, 2")
    for q in range(3):
        g(f"v_lshrrev_b32 {t0}, 1, {gq}\nv_lshlrev_b32 {e2}, 3, {t0}\nv_add_u32 {e2}, {a[1]}, {e2}")
        if q < 2: g(f"v_and_b32 {t0}, 1, {gq}\nv_lshl_add_u32 {e2}, {t0}, 4, {e2}")
        if q: g(f"v_add_u32 {e2}, {32*q}, {e2}")
        g.code_of_e2(g.v_xp[q], e2, t0)
        g(f"v_lshl_add_u32 {g.v_xp[q]}, {g.v_xp[q]}, 9, {base}")
    V.free(e2, base, gq)

def first_layer(g, fn):
    sk = g.label("cst")
    g(f"s_cmp_lg_u32 {g.s_layer}, 0\ns_cbranch_scc1 {sk}")
    fn()
    g(f"{sk}:")
def drain_n(gen, n):
    for _ in range(n):
        try: next(gen)
        except StopIteration: return

def swap_quad(g, r):
    g(f"v_permlane16_swap_b32 {r[0]}, {r[2]}\nv_permlane16_swap_b32 {r[1]}, {r[3]}")

def p2(g):
    a = g.s_a; t0, t1 = g.v_t0, g.v_t1; L = g.v_lane; V = g.V; sc = g.sc
    g.c("==== P2 ====")
    p2_setup(g)
    xr = g.vv("xr", 12, 4)
    sxr = g.sv("sxr")
    g(f"s_mul_i32 {sxr}, {g.s_tb}, {XSZ}\ns_add_u32 {a[1]}, {sxr}, {g.s_xr}")
    res = []
    vo = g.vv("vo"); vt = g.vv("vt")
    g(f"v_lshlrev_b32 {vo}, 4, {L}")
    g(f"v_lshrrev_b32 {t0}, 4, {L}\nv_lshlrev_b32 {vt}, 8, {t0}\nv_and_b32 {t0}, 15, {L}\nv_lshl_add_u32 {vt}, {t0}, 3, {vt}")
    so = g.S.alloc("so", 4)
    g(f"s_and_b32 {a[2]}, {g.s_j}, 3\ns_lshl_b32 {a[2]}, {a[2]}, 2\ns_and_b32 {a[3]}, {g.s_w}, 1\ns_lshl_b32 {a[3]}, {a[3]}, 1\ns_add_u32 {a[2]}, {a[2]}, {a[3]}\ns_mul_i32 {a[2]}, {a[2]}, 20480")
    g(f"s_mul_i32 {a[3]}, {g.s_tb}, {LOCSZ}\ns_add_u32 {a[2]}, {a[2]}, {a[3]}\ns_add_u32 {a[2]}, {a[2]}, {g.s_ob}")
    g(f"s_lshr_b32 {a[3]}, {g.s_w}, 1\ns_lshl_b32 {so[0]}, {a[3]}, 13\ns_add_u32 {so[0]}, {so[0]}, {a[2]}\ns_add_u32 {so[1]}, {so[0]}, 20480")
    g(f"s_lshl_b32 {so[2]}, {a[3]}, 11\ns_add_u32 {so[2]}, {so[2]}, {a[2]}\ns_add_u32 {so[2]}, {so[2]}, 16384\ns_add_u32 {so[3]}, {so[2]}, 20480")
    g.local_barrier(g.fast, work=lambda: first_layer(g, lambda: drain_n(g.wo_gen, 99)))
    g.S.free(g.wo_sb)
    g.stamp(20)
    ob = g.vv("ob", 80, 4)
    marks = []
    for u in range(10):
        for tt in range(2):
            r = ob[(u*2+tt)*4:(u*2+tt)*4+4]
            if u < 8:
                if u == 4: g(f"s_add_u32 {so[tt]}, {so[tt]}, 4096")
                g(f"buffer_load_dwordx4 {r}, {vo}, {g.q_ws}, {so[tt]} offen offset:{1024*(u%4)} sc1")
            else:
                v = u - 8
                g(f"buffer_load_dwordx2 {r[0:2]}, {vt}, {g.q_ws}, {so[2+tt]} offen offset:{1024*v} sc1")
                g(f"buffer_load_dwordx2 {r[2:4]}, {vt}, {g.q_ws}, {so[2+tt]} offen offset:{1024*v + 128} sc1")
        marks.append(g.vm_mark())
    g(f"s_add_u32 {a[1]}, {sxr}, {g.s_xr}")
    for q in range(3):
        g(f"buffer_load_dwordx4 {xr[4*q:4*q+4]}, {g.v_xp[q]}, {g.q_ws}, {a[1]} offen sc1")
    mx = g.vm_mark()
    acc = g.vv("acc", 40, 4)
    g.stamp(1) if g.fine else None
    for u in range(10):
        g.wait(vm=marks[u])
        if u == 1 and g.fine: g.stamp(2)
        if u == 5 and g.fine: g.stamp(3)
        for tt in range(2):
            b = ob[(u*2+tt)*4:(u*2+tt)*4+4]
            for i in range(5):
                c = acc[(tt*5+i)*4:(tt*5+i)*4+4]
                g(f"v_mfma_f32_16x16x32_bf16 {c}, {g.a_wo[(u*5+i)*4:(u*5+i)*4+4]}, {b}, {0 if u == 0 else c}")
    V.free(ob, vo, vt)
    g.stamp(21)
    ex = g.vv("ex"); h1 = g.vv("h1", 60, 4); hadr = g.vv("hadr")
    g(f"s_mul_i32 {a[2]}, {g.s_w}, 5120\ns_add_u32 {a[2]}, {a[2]}, {L_SCR}\nv_lshlrev_b32 {ex}, 4, {L}\nv_add_u32 {t1}, {a[2]}, {ex}")
    lk = g.label("k1"); lk2 = g.label("k2")
    g(f"s_cmp_ge_u32 {g.s_w}, 2\ns_cbranch_scc1 {lk}")
    for i in range(5): g.lines.append(f"ds_write_b128 {t1}, {acc[(5+i)*4:(5+i)*4+4]} offset:{1024*i}")
    g(f"s_branch {lk2}\n{lk}:")
    for i in range(5): g.lines.append(f"ds_write_b128 {t1}, {acc[i*4:i*4+4]} offset:{1024*i}")
    for q in range(20): g(f"v_mov_b32 {acc[q]}, {acc[20+q]}")
    g(f"{lk2}:")
    g(f"v_add_u32 {hadr}, {L_H1}, {ex}")
    g.lines.append("s_waitcnt lgkmcnt(0)")
    g("s_barrier")
    g(f"s_xor_b32 {a[2]}, {g.s_w}, 2\ns_mul_i32 {a[2]}, {a[2]}, 5120\ns_add_u32 {a[2]}, {a[2]}, {L_SCR}\nv_add_u32 {t1}, {a[2]}, {ex}")
    g.lg = []
    oth = acc[20:40]
    for i in range(5): g(f"ds_read_b128 {oth[4*i:4*i+4]}, {t1} offset:{1024*i}")
    mo = g.lg_mark()
    g.stamp(4) if g.fine else None
    hm = []
    for f in range(15):
        g(f"ds_read_b128 {h1[4*f:4*f+4]}, {hadr} offset:{1024*f}")
    mh = g.lg_mark()
    g.wait(vm=mx, lg=mo)
    x1 = acc[0:20]
    xf = g.vv("xf", 4)
    for q in range(3): swap_quad(g, xr[4*q:4*q+4])
    for i in range(5):
        g(f"v_pk_add_f32 {x1[4*i:4*i+2]}, {x1[4*i:4*i+2]}, {oth[4*i:4*i+2]}\nv_pk_add_f32 {x1[4*i+2:4*i+4]}, {x1[4*i+2:4*i+4]}, {oth[4*i+2:4*i+4]}")
        g(f"v_lshlrev_b32 {xf[0]}, 16, {xr[2*i]}\nv_and_b32 {xf[1]}, 0xffff0000, {xr[2*i]}\nv_lshlrev_b32 {xf[2]}, 16, {xr[2*i+1]}\nv_and_b32 {xf[3]}, 0xffff0000, {xr[2*i+1]}")
        g(f"v_pk_add_f32 {x1[4*i:4*i+2]}, {x1[4*i:4*i+2]}, {xf[0:2]}\nv_pk_add_f32 {x1[4*i+2:4*i+4]}, {x1[4*i+2:4*i+4]}, {xf[2:4]}")
    V.free(xf)
    xp = g.vv("xp1", 12, 4)
    for q in range(10): g(f"v_cvt_pk_bf16_f32 {xp[q]}, {x1[2*q]}, {x1[2*q+1]}")
    g(f"v_mov_b32 {xp[10]}, 0\nv_mov_b32 {xp[11]}, 0")
    for q in range(8): g(f"v_mov_b32 {xr[q]}, {xp[q]}")
    g(f"v_mov_b32 {xr[8]}, {xp[8]}\nv_mov_b32 {xr[9]}, {xp[9]}\nv_mov_b32 {xr[10]}, {xp[8]}\nv_mov_b32 {xr[11]}, {xp[9]}")
    for q in range(3): swap_quad(g, xr[4*q:4*q+4])
    G = oth
    g.wait(lg=mh)
    for ip in range(5):
        for u in range(3):
            c = G[4*ip:4*ip+4]
            g(f"v_mfma_f32_16x16x32_bf16 {c}, {h1[4*(ip*3+u):4*(ip*3+u)+4]}, {xp[4*u:4*u+4]}, {0 if u == 0 else c}")
    g.stamp(5) if g.fine else None
    g(f"s_add_u32 {a[1]}, {sxr}, {g.s_x1}")
    for q in range(3):
        g(f"buffer_store_dwordx4 {xr[4*q:4*q+4]}, {g.v_xp[q]}, {g.q_ws}, {a[1]} offen{sc}")
    sm, sq = g.vv("sm", 2, 2), g.vv("sq", 2, 2)
    g(f"v_pk_add_f32 {sm}, {x1[0:2]}, {x1[2:4]}\nv_pk_mul_f32 {sq}, {x1[0:2]}, {x1[0:2]}\nv_pk_fma_f32 {sq}, {x1[2:4]}, {x1[2:4]}, {sq}")
    for q in range(2, 10):
        g(f"v_pk_add_f32 {sm}, {sm}, {x1[2*q:2*q+2]}\nv_pk_fma_f32 {sq}, {x1[2*q:2*q+2]}, {x1[2*q:2*q+2]}, {sq}")
    g(f"v_add_f32 {sm[0]}, {sm[0]}, {sm[1]}\nv_add_f32 {sm[1]}, {sq[0]}, {sq[1]}")
    for x in (sm[0], sm[1]):
        g.xq16(x, t0, "v_add_f32"); g.xhalf(x, t0, "v_add_f32")
    g(f"s_lshr_b32 {a[2]}, {g.s_j}, 2\ns_lshl_b32 {a[2]}, {a[2]}, 11\nv_lshlrev_b32 {t1}, 3, {g.v_p2p}")
    g(f"v_cmp_gt_u32 vcc, 16, {L}\nv_mov_b32 {t0}, {BIG}\nv_cndmask_b32 {t1}, {t0}, {t1}, vcc")
    g(f"s_mul_i32 {a[3]}, {g.s_tb}, {LOCSZ}\ns_add_u32 {a[2]}, {a[2]}, {a[3]}\ns_add_u32 {a[2]}, {a[2]}, {g.s_stb}")
    g(f"buffer_store_dwordx2 {sm}, {t1}, {g.q_ws}, {a[2]} offen{sc}")
    gq = g.vv("gpk", 10, 2)
    for ip in range(5):
        g(f"v_cvt_pk_bf16_f32 {gq[2*ip]}, {G[4*ip]}, {G[4*ip+1]}\nv_cvt_pk_bf16_f32 {gq[2*ip+1]}, {G[4*ip+2]}, {G[4*ip+3]}")
    g(f"v_lshrrev_b32 {t0}, 4, {L}\nv_lshlrev_b32 {t1}, 14, {t0}\nv_lshl_add_u32 {t1}, {g.v_p2p}, 3, {t1}")
    g(f"s_lshr_b32 {a[2]}, {g.s_j}, 2\ns_lshl_b32 {a[2]}, {a[2]}, 11\ns_mul_i32 {a[3]}, {g.s_tb}, {LOCSZ}\ns_add_u32 {a[2]}, {a[2]}, {a[3]}\ns_add_u32 {a[2]}, {a[2]}, {g.s_gb}")
    for ip in range(5):
        g(f"buffer_store_dwordx2 {gq[2*ip:2*ip+2]}, {t1}, {g.q_ws}, {a[2]} offen{sc}")
        if ip < 4: g(f"s_add_u32 {a[2]}, {a[2]}, {4*16384}")
    g.stamp(22)
    V.free(acc, ex, h1, hadr, xp, sm, sq, gq, g.v_xp, g.v_p2p, xr)
    g.S.free(sxr, so)
```

```python
from emit import *
from maps import *
from gen_main import lit, f2u, LOG2E
BIG = 0x7ff00000
WO_STRIDE = 1296

def wo_stage(g):
    p = g.p_in; a = g.s_a
    va = g.vv("wova")
    g.srd(g.q_in, p[6], p[7], 640 * 1280)
    g(f"v_lshlrev_b32 {va}, 4, {g.v_lane}")
    g(f"s_mul_i32 {a[4]}, {g.s_wost}, 10\ns_sub_u32 {a[5]}, {g.s_wost}, 64\ns_mul_i32 {a[5]}, {a[5]}, 40")
    g(f"s_cmp_lt_u32 {g.s_wost}, 64\ns_cselect_b32 {a[4]}, {a[4]}, {a[5]}\ns_cselect_b32 {a[5]}, 1, 0")
    tail = (8, 9, 18, 19, 28, 29, 38, 39)
    rows = g.S.alloc("worows", 8)
    for r in range(8):
        g(f"s_cmp_eq_u32 {a[5]}, 1\ns_cselect_b32 {rows[r]}, {r}, {tail[r]}\ns_add_u32 {rows[r]}, {rows[r]}, {a[4]}\ns_mul_i32 {rows[r]}, {rows[r]}, 1280")
    for r in range(8):
        g(f"s_mov_b32 m0, {L_SCR + r*WO_STRIDE}")
        g("s_nop 0")
        g.lines.append(f"buffer_load_dwordx4 {va}, {g.q_in}, {rows[r]} offen lds")
    g(f"s_mov_b64 {g.s_ex}, exec\ns_mov_b64 exec, 0xffff")
    for r in range(8):
        g(f"s_mov_b32 m0, {L_SCR + r*WO_STRIDE + 1024}\ns_add_u32 {rows[r]}, {rows[r]}, 1024")
        g.lines.append(f"buffer_load_dwordx4 {va}, {g.q_in}, {rows[r]} offen lds")
    g(f"s_mov_b64 exec, {g.s_ex}")
    g.S.free(rows)
    g.V.free(va)

def wo_touch(g):
    p = g.p_in; a = g.s_a; t0, t1 = g.v_t0, g.v_t1; L = g.v_lane
    va = g.vv("wta")
    g.srd(g.q_in, p[6], p[7], 640 * 1280)
    g(f"s_mul_i32 {a[4]}, {g.s_wost}, 12800\ns_sub_u32 {a[5]}, {g.s_wost}, 64\ns_mul_i32 {a[5]}, {a[5]}, 51200\ns_add_u32 {a[5]}, {a[5]}, 10240")
    g(f"s_cmp_lt_u32 {g.s_wost}, 64\ns_cselect_b32 {a[4]}, {a[4]}, {a[5]}\ns_mov_b32 {a[6]}, 12800\ns_cselect_b32 {a[5]}, 2560, {a[6]}")
    g(f"v_cmp_lt_u32 vcc, 19, {L}\nv_cndmask_b32_e64 {t0}, 0, 1, vcc\nv_mul_u32_u24 {t1}, 20, {t0}\nv_sub_u32 {t1}, {L}, {t1}\nv_lshlrev_b32 {t1}, 7, {t1}")
    g(f"v_mul_u32_u24 {va}, {a[5]}, {t0}\nv_add_u32 {va}, {va}, {t1}\nv_cmp_gt_u32 vcc, 40, {L}\nv_mov_b32 {t1}, {BIG}\nv_cndmask_b32 {va}, {t1}, {va}, vcc")
    g.lines.append(f"buffer_load_dword {g.v_big[120]}, {va}, {g.q_in}, {a[4]} offen")
    g(f"s_lshl_b32 {a[5]}, {a[5]}, 1\ns_add_u32 {a[4]}, {a[4]}, {a[5]}")
    g.lines.append(f"buffer_load_dword {g.v_big[121]}, {va}, {g.q_in}, {a[4]} offen")
    g.V.free(va)

def w_prefetch(g, first, q_w, pf):
    a = g.s_a; L = g.v_lane
    so, va = pf
    g(f"s_mul_i32 {so}, {g.s_j}, 76800\ns_mul_i32 {a[1]}, {g.s_w}, 20480\ns_sub_u32 {a[1]}, {a[1]}, 4096\ns_max_i32 {a[1]}, {a[1]}, 0\ns_add_u32 {so}, {so}, {a[1]}")
    g(f"v_lshlrev_b32 {va}, 4, {L}")
    def gen():
        for n in range(20):
            g.lines.append(f"buffer_load_dwordx4 {g.v_big[124:128]}, {va}, {q_w}, {so} offen offset:{1024*(n%4)}")
            if n % 4 == 3: g(f"s_add_u32 {so}, {so}, 4096")
            yield
    it = gen()
    for _ in range(first): next(it)
    return it

def gather_alloc(g):
    return dict(q_w=g.S.alloc("q_wg", 4), si=g.S.alloc("si", 8), wd=g.vv("wdst", 2), src=g.vv("wsrc", 7))
def gather_free(g, gs):
    g.S.free(gs["q_w"], gs["si"]); g.V.free(gs["wd"], gs["src"])

def gather_setup(g, gs):
    p = g.p_in; a = g.s_a; t0, t1 = g.v_t0, g.v_t1; L = g.v_lane
    q_w, si, wd, src = gs["q_w"], gs["si"], gs["wd"], gs["src"]
    pc, tl, p8, cc = g.vv("wpc"), g.vv("tl"), g.vv("p8"), g.vv("cc")
    cod = g.vv("cod"); e2 = g.vv("e2"); up, dn = g.vv("up"), g.vv("dn")
    g(f"v_bfe_u32 {tl}, {L}, 3, 1\nv_and_b32 {p8}, 7, {L}\nv_lshrrev_b32 {cc}, 4, {L}")
    g(f"v_mul_u32_u24 {pc}, 1280, {tl}\nv_lshl_add_u32 {pc}, {p8}, 3, {pc}")
    g(f"v_lshlrev_b32 {t1}, 4, {tl}\nv_lshl_add_u32 {t1}, {p8}, 3, {t1}\nv_add_u32 {t1}, 2520, {t1}")
    g(f"v_cmp_lt_u32 vcc, 4, {p8}\nv_cndmask_b32 {pc}, {pc}, {t1}, vcc")
    g(f"s_mul_i32 {a[0]}, {g.s_j}, 40\nv_add_u32 {pc}, {a[0]}, {pc}")
    g(f"s_sub_u32 {a[2]}, {g.s_w}, 1\ns_mul_i32 {a[2]}, {a[2]}, 28")
    g(f"v_add_u32 {cod}, {a[2]}, {cc}")
    g.e2_of_code(e2, cod, t0)
    g(f"v_mul_u32_u24 {src[0]}, 3840, {e2}\nv_add_u32 {src[0]}, {src[0]}, {pc}")
    g(f"v_mul_u32_u24 {t0}, 3840, {cod}\nv_add_u32 {up}, {t0}, {pc}\nv_sub_u32 {dn}, {pc}, {t0}")
    g(f"v_add_u32 {up}, {-2*3840 & 0xffffffff}, {up}\nv_add_u32 {dn}, {120*3840}, {dn}")
    for q in range(1, 7):
        g(f"v_add_u32 {up}, {4*3840}, {up}\nv_subrev_u32 {dn}, {4*3840}, {dn}")
        g(f"v_cmp_lt_u32 vcc, {41 - 4*q}, {cod}\nv_cndmask_b32 {src[q]}, {up}, {dn}, vcc")
    g(f"v_lshlrev_b32 {t0}, 10, {cod}\nv_lshl_add_u32 {t0}, {p8}, 3, {t0}")
    g(f"v_lshl_add_u32 {wd[0]}, {tl}, 6, {t0}\nv_xor_b32 {wd[1]}, 64, {wd[0]}")
    for i in range(8): g(f"s_mov_b32 {si[i]}, {80*3840*i}")
    g.V.free(pc, tl, p8, cc, cod, e2, up, dn)

def w_gather(g, gs):
    q_w, si, wd, src = gs["q_w"], gs["si"], gs["wd"], gs["src"]
    dbg = g.stop_after == "s0b"
    LAG = 24
    def load(n):
        g.lines.append(f"buffer_load_dwordx2 {g.v_big[2*n:2*n+2]}, {src[n // 8]}, {q_w}, {si[n % 8]} offen")
    def write(n, cnt):
        if cnt is not None: g.lines.append(f"s_waitcnt vmcnt({cnt})")
        g.lines.append(f"ds_write_b64 {wd[((n % 8) >> 1) & 1]}, {g.v_big[2*n:2*n+2]} offset:{4096*(n // 8) + 128*(n % 8)}")
    if dbg: g.stamp(9)
    for n in range(48):
        load(n)
        if n >= LAG: write(n - LAG, LAG)
    w3 = g.label("wg3"); wj = g.label("wgj")
    g(f"s_cmp_eq_u32 {g.s_w}, 3\ns_cbranch_scc1 {w3}")
    for n in range(48, 56):
        load(n); write(n - LAG, LAG)
    if dbg: g.stamp(12)
    g("s_barrier")
    for n in range(56 - LAG, 56): write(n, (52 - n) if n % 4 == 0 else None)
    g(f"s_branch {wj}\n{w3}:")
    g("s_barrier")
    for n in range(48 - LAG, 48): write(n, (44 - n) if n % 4 == 0 else None)
    g(f"{wj}:")

def phi_build(g, wait):
    t0, t1 = g.v_t0, g.v_t1; V = g.V
    l31, va, vb, f = g.vv("l31b"), g.vv("va"), g.vv("vb"), g.vv("f"); ph = g.vv("phraw", 12)
    if wait: g.lines.append("s_waitcnt vmcnt(0)")
    g(f"v_and_b32 {l31}, 31, {g.v_lane}")
    g(f"v_lshrrev_b32 {t0}, 3, {l31}\nv_lshlrev_b32 {t0}, 2, {t0}\nv_and_b32 {t1}, 3, {l31}\nv_add_u32 {t0}, {t0}, {t1}")
    g(f"v_bfe_u32 {t1}, {l31}, 2, 1\nv_mul_u32_u24 {f}, 10, {t1}\nv_add_u32 {f}, {f}, {t0}")
    g(f"v_lshrrev_b32 {t1}, 5, {g.v_lane}\nv_mul_u32_u24 {va}, 80, {t1}\nv_add_u32 {va}, {va}, {f}\nv_lshlrev_b32 {va}, 1, {va}\nv_add_u32 {va}, {L_PHI}, {va}")
    for u in range(8):
        g.lines.append(f"ds_read_u16 {ph[u]}, {va} offset:{(8*(u>>2) + (u&3))*40}")
    for u in range(4):
        g.lines.append(f"ds_read_u16 {ph[8+u]}, {va} offset:{(16+u)*40}")
    g.lines.append("s_waitcnt lgkmcnt(0)")
    for q in range(6):
        g(f"v_lshl_or_b32 {g.v_phi[q]}, {ph[2*q+1]}, 16, {ph[2*q]}")
    g(f"v_cmp_gt_u32 vcc, 10, {t0}")
    for q in range(6): g(f"v_cndmask_b32 {g.v_phi[q]}, 0, {g.v_phi[q]}, vcc")
    g(f"v_cmp_gt_u32 vcc, 32, {g.v_lane}")
    for q in (4, 5): g(f"v_cndmask_b32 {g.v_phi[q]}, 0, {g.v_phi[q]}, vcc")
    g(f"v_mov_b32 {g.v_phi[6]}, 0\nv_mov_b32 {g.v_phi[7]}, 0")
    V.free(l31, va, vb, f, ph)

def x_store(g, raw, sc):
    a = g.s_a; t0, t1 = g.v_t0, g.v_t1; V = g.V
    ad, ds = g.vv("ad"), g.vv("ds"); d = g.v_big
    g(f"v_lshlrev_b32 {ad}, 4, {g.v_lane}\nv_add_u32 {ad}, {L_XST + (10240 if raw else 0)}, {ad}")
    g(f"v_lshrrev_b32 {ds}, 3, {g.v_lane}\nv_lshlrev_b32 {ds}, 9, {ds}\nv_and_b32 {t0}, 7, {g.v_lane}\nv_lshl_add_u32 {ds}, {t0}, 4, {ds}")
    g(f"s_mul_i32 {a[0]}, {g.s_tb}, {XSZ}\ns_lshr_b32 {a[1]}, {g.s_j}, 2\ns_mul_i32 {a[1]}, {a[1]}, 40960\ns_add_u32 {a[0]}, {a[0]}, {a[1]}")
    g(f"s_and_b32 {a[1]}, {g.s_j}, 3\ns_lshl_b32 {a[1]}, {a[1]}, 7\ns_add_u32 {a[0]}, {a[0]}, {a[1]}")
    g.lines.append("s_waitcnt lgkmcnt(0)")
    for n in range(10):
        g.lines.append(f"ds_read_b128 {d[4*n:4*n+4]}, {ad} offset:{n*1024}")
    for n in range(10):
        g.lines.append(f"s_waitcnt lgkmcnt({9 - n})")
        g(f"s_add_u32 {a[1]}, {a[0]}, {(X_IN[0] if raw else XN_IN[0]) + n * 4096}")
        g.lines.append(f"buffer_store_dwordx4 {d[4*n:4*n+4]}, {ds}, {g.q_ws}, {a[1]} offen{sc}")
    V.free(ad, ds)

def trig4(g, ang0, slope, csts, cs, sn):
    for r in range(4):
        if csts[r] == 0: g(f"v_mov_b32 {sn[r]}, {ang0}")
        else: g(f"v_fmamk_f32 {sn[r]}, {slope}, {lit(float(csts[r]))}, {ang0}")
        g(f"v_cos_f32 {cs[r]}, {sn[r]}\nv_sin_f32 {sn[r]}, {sn[r]}")

def reim_frags(g, cs, sn, tmp, dre, dim):
    g(f"v_cvt_pk_bf16_f32 {tmp[0]}, {cs[0]}, {cs[1]}\nv_cvt_pk_bf16_f32 {tmp[1]}, {cs[2]}, {cs[3]}")
    g(f"v_cvt_pk_bf16_f32 {tmp[2]}, {sn[0]}, {sn[1]}\nv_cvt_pk_bf16_f32 {tmp[3]}, {sn[2]}, {sn[3]}")
    for q in range(4): g(f"v_accvgpr_write_b32 {dre[q]}, {tmp[q]}")
    g(f"v_accvgpr_write_b32 {dim[2]}, {tmp[0]}\nv_accvgpr_write_b32 {dim[3]}, {tmp[1]}")
    g(f"v_xor_b32 {tmp[2]}, 0x80008000, {tmp[2]}\nv_xor_b32 {tmp[3]}, 0x80008000, {tmp[3]}")
    g(f"v_accvgpr_write_b32 {dim[0]}, {tmp[2]}\nv_accvgpr_write_b32 {dim[1]}, {tmp[3]}")

def constants(g, parts):
    a = g.s_a; t0, t1 = g.v_t0, g.v_t1; V = g.V
    n15, gq = g.vv("n15"), g.vv("gq")
    g(f"v_and_b32 {n15}, 15, {g.v_lane}\nv_lshrrev_b32 {gq}, 4, {g.v_lane}")
    cs, sn, tmp = g.vv("cs", 4), g.vv("sn", 4), g.vv("tmp", 4)
    ang, sl, f1, f2 = g.vv("ang"), g.vv("sl"), g.vv("f1"), g.vv("f2")
    if 's1' in parts:
        g(f"v_cvt_f32_u32 {sl}, {n15}\nv_mul_f32 {sl}, {lit(1/16)}, {sl}")
        g(f"v_lshlrev_b32 {t0}, 2, {gq}\nv_cvt_f32_u32 {ang}, {t0}\nv_mul_f32 {ang}, {ang}, {sl}")
        trig4(g, ang, sl, [0, 1, 2, 3], cs, sn)
        reim_frags(g, cs, sn, tmp, g.a_s1[0:4], g.a_s1[4:8])
    if 's2' in parts:
        g(f"v_lshlrev_b32 {t0}, 5, {gq}\nv_add_u32 {t0}, {g.s_tb}, {t0}\nv_cvt_f32_u32 {f1}, {t0}")
        g(f"s_lshl_b32 {a[4]}, {g.s_w}, 2")
        for q in range(4):
            g(f"v_lshlrev_b32 {t0}, 4, {n15}\nv_add_u32 {t0}, {a[4]}, {t0}")
            if q: g(f"v_add_u32 {t0}, {q}, {t0}")
            g(f"v_cvt_f32_u32 {sl}, {t0}\nv_mul_f32 {sl}, {lit(1/2048)}, {sl}\nv_mul_f32 {ang}, {f1}, {sl}")
            trig4(g, ang, sl, [0, 8, 16, 24], cs, sn)
            reim_frags(g, cs, sn, tmp, g.a_s2[8*q:8*q+4], g.a_s2[8*q+4:8*q+8])
    if 'h2' in parts:
        e2, P0, P1, Q1, R1, T1 = g.vv("e2"), g.vv("P0"), g.vv("P1"), g.vv("Q1"), g.vv("R1"), g.vv("T1")
        g(f"v_lshrrev_b32 {t0}, 1, {gq}")
        g(f"s_lshl_b32 {a[4]}, {g.s_j}, 1\ns_sub_u32 {a[4]}, {a[4]}, 2\ns_mov_b32 {a[5]}, 1")
        g(f"s_cmp_eq_u32 {g.s_j}, 0\ns_cselect_b32 {a[4]}, 0, {a[4]}\ns_cselect_b32 {a[5]}, 40, {a[5]}")
        g(f"s_cmp_eq_u32 {g.s_j}, 1\ns_cselect_b32 {a[4]}, 1, {a[4]}\ns_mov_b32 {a[6]}, 78\ns_cselect_b32 {a[5]}, {a[6]}, {a[5]}")
        g(f"v_mul_u32_u24 {e2}, {a[5]}, {t0}\nv_add_u32 {e2}, {a[4]}, {e2}")
        g(f"v_and_b32 {t1}, 7, {n15}\nv_mul_u32_u24 {t1}, 80, {t1}\nv_add_u32 {e2}, {e2}, {t1}")
        g(f"v_cvt_f32_u32 {sl}, {e2}\nv_mul_f32 {sl}, {lit(1/640)}, {sl}")
        g(f"v_lshrrev_b32 {t1}, 3, {n15}\nv_cmp_eq_u32 vcc, {t0}, {t1}\nv_cndmask_b32_e64 {f2}, 0, 1.0, vcc")
        g(f"v_cmp_eq_u32 vcc, 0, {e2}\nv_cndmask_b32_e64 {f2}, {f2}, 0, vcc")
        g(f"v_cvt_f32_u32 {f1}, {t0}")
        g(f"s_cmp_eq_u32 {g.s_j}, 0\ns_cselect_b32 {a[4]}, 1.0, 0\ns_cselect_b32 {a[6]}, 0, 1.0")
        g(f"s_cmp_eq_u32 {g.s_j}, 1\ns_cselect_b32 {a[5]}, -2.0, 0")
        g(f"v_mul_f32 {P1}, {a[4]}, {f1}")
        g(f"v_sub_f32 {P0}, 1.0, {P1}")
        g(f"v_mul_f32 {Q1}, {a[5]}, {f1}\nv_add_f32 {Q1}, 1.0, {Q1}\nv_mul_f32 {Q1}, {a[6]}, {Q1}")
        g(f"v_mov_b32 {R1}, {Q1}\nv_sub_f32 {T1}, 0, {P1}")
        for x in (P0, P1, Q1, R1, T1): g(f"v_mul_f32 {x}, {x}, {f2}")
        g(f"v_and_b32 {t0}, 1, {gq}\nv_lshlrev_b32 {t0}, 2, {t0}\nv_cvt_f32_u32 {ang}, {t0}\nv_mul_f32 {ang}, {ang}, {sl}")
        trig4(g, ang, sl, [0, 1, 2, 3], cs, sn)
        for dd in range(4):
            g(f"v_mul_f32 {t0}, {P0}, {cs[dd]}\nv_mul_f32 {t1}, {P1}, {cs[dd]}\nv_fmac_f32 {t1}, {Q1}, {sn[dd]}")
            g(f"v_cvt_pk_bf16_f32 {tmp[0]}, {t0}, {t1}\nv_accvgpr_write_b32 {g.a_h2[dd]}, {tmp[0]}")
            g(f"v_mul_f32_e64 {t0}, -{P0}, {sn[dd]}\nv_mul_f32 {t1}, {R1}, {cs[dd]}\nv_fmac_f32 {t1}, {T1}, {sn[dd]}")
            g(f"v_cvt_pk_bf16_f32 {tmp[1]}, {t0}, {t1}\nv_accvgpr_write_b32 {g.a_h2[4+dd]}, {tmp[1]}")
        V.free(e2, P0, P1, Q1, R1, T1)
    if 'b2' in parts:
        tt, msk = g.vv("tt"), g.vv("msk")
        g(f"v_and_b32 {t0}, 1, {n15}\nv_lshrrev_b32 {t1}, 1, {gq}\nv_cmp_eq_u32 vcc, {t0}, {t1}\nv_cndmask_b32_e64 {msk}, 0, 1.0, vcc")
        for mir in range(2):
            g(f"v_lshrrev_b32 {tt}, 1, {n15}")
            if mir:
                g(f"s_or_b32 {a[4]}, {g.s_tb}, {g.s_j}\ns_cmp_eq_u32 {a[4]}, 0\ns_cselect_b32 {a[4]}, 1, 0")
                g(f"v_lshrrev_b32 {t0}, 1, {gq}\nv_sub_u32 {t0}, 1, {t0}\nv_mul_u32_u24 {t0}, {a[4]}, {t0}")
                g(f"v_sub_u32 {tt}, 7, {tt}\nv_add_u32 {tt}, {tt}, {t0}\nv_and_b32 {tt}, 7, {tt}")
            g(f"v_cvt_f32_u32 {sl}, {tt}\nv_mul_f32 {sl}, {lit(1/8)}, {sl}")
            g(f"v_and_b32 {t0}, 1, {gq}\nv_lshlrev_b32 {t0}, 2, {t0}\nv_cvt_f32_u32 {ang}, {t0}\nv_mul_f32 {ang}, {ang}, {sl}")
            trig4(g, ang, sl, [0, 1, 2, 3], cs, sn)
            for dd in range(4):
                g(f"v_mul_f32 {t0}, {msk}, {cs[dd]}\nv_mul_f32 {t1}, {msk}, {sn[dd]}\nv_cvt_pk_bf16_f32 {tmp[0]}, {t0}, {t1}")
                g(f"v_accvgpr_write_b32 {g.a_b2[4*mir+dd]}, {tmp[0]}")
        V.free(tt, msk)
    if 'h1' in parts:
        d2b, K2, rho = g.vv("d2b"), g.vv("K2"), g.vv("rho")
        val = g.vv("val", 8); adr = g.vv("adr")
        g(f"v_lshrrev_b32 {t0}, 1, {gq}\nv_and_b32 {t1}, 1, {gq}\nv_mul_u32_u24 {t1}, 40, {t1}\nv_add_u32 {t0}, {t0}, {t1}\nv_cvt_f32_u32 {d2b}, {t0}")
        for n in range(5):
            sk = g.label("h1")
            g(f"s_add_u32 {a[4]}, {g.s_w}, {3*n - 1}")
            g(f"s_mul_i32 {a[5]}, {a[4]}, 43\ns_lshr_b32 {a[5]}, {a[5]}, 7")
            g(f"s_mul_i32 {a[6]}, {a[5]}, 3\ns_sub_u32 {a[6]}, {a[4]}, {a[6]}")
            g(f"s_lshl_b32 {a[7]}, {a[5]}, 4\nv_add_u32 {rho}, {a[7]}, {n15}")
            g(f"v_lshrrev_b32 {t0}, 1, {rho}\nv_cmp_eq_u32 vcc, 1, {rho}\nv_cndmask_b32_e64 {t0}, {t0}, 40, vcc")
            g(f"v_cvt_f32_u32 {sl}, {t0}\nv_mul_f32 {sl}, {lit(1/80)}, {sl}")
            g(f"v_and_b32 {t1}, 1, {rho}\nv_cndmask_b32_e64 {t1}, {t1}, 0, vcc\nv_cvt_f32_u32 {K2}, {t1}\nv_mul_f32 {K2}, 0.25, {K2}")
            g(f"s_lshl_b32 {a[7]}, {a[6]}, 2\nv_cvt_f32_u32 {ang}, {a[7]}\nv_add_f32 {ang}, {d2b}, {ang}\nv_fma_f32 {ang}, {ang}, {sl}, {K2}")
            g(f"s_cmp_eq_u32 {a[6]}, 2\ns_cselect_b32 {a[7]}, 0, 1.0")
            for u in range(8):
                c = 2 * (u >> 2) + 10 * (u & 3)
                if c: g(f"v_fmamk_f32 {val[u]}, {sl}, {lit(float(c))}, {ang}")
                else: g(f"v_mov_b32 {val[u]}, {ang}")
                g(f"v_cos_f32 {val[u]}, {val[u]}")
                if u >= 4: g(f"v_mul_f32 {val[u]}, {a[7]}, {val[u]}")
            for q in range(4): g(f"v_cvt_pk_bf16_f32 {tmp[q]}, {val[2*q]}, {val[2*q+1]}")
            g(f"s_lshl_b32 {a[7]}, {a[4]}, 10\ns_add_u32 {a[7]}, {a[7]}, {L_H1}\nv_lshlrev_b32 {adr}, 4, {g.v_lane}\nv_add_u32 {adr}, {a[7]}, {adr}")
            g.lines.append(f"ds_write_b128 {adr}, {tmp}")
            g(f"{sk}:")
        V.free(d2b, K2, rho, val, adr)
    V.free(n15, gq, cs, sn, tmp, ang, sl, f1, f2)

def wo_frag_a(g):
    a = g.s_a; V = g.V; t0, t1 = g.v_t0, g.v_t1
    sk = g.label("wog")
    g(f"s_cmp_ge_u32 {g.s_wost}, 80\ns_cbranch_scc1 {sk}")
    ad = g.vv("ad"); raw = g.vv("raw", 8); fr = g.v_big[64:104]; dst = g.vv("dst")
    g(f"v_lshrrev_b32 {t0}, 4, {g.v_lane}\nv_lshlrev_b32 {ad}, 2, {t0}")
    g(f"v_mul_u32_u24 {dst}, {2*5*20*1024}, {t0}\nv_and_b32 {t1}, 15, {g.v_lane}\nv_lshl_add_u32 {dst}, {t1}, 4, {dst}")
    g(f"v_bfe_u32 {t0}, {g.v_lane}, 3, 1\nv_lshl_add_u32 {ad}, {t0}, 4, {ad}")
    g(f"v_and_b32 {t0}, 7, {g.v_lane}\nv_mul_u32_u24 {t0}, 160, {t0}\nv_add_u32 {ad}, {ad}, {t0}\nv_add_u32 {ad}, {L_SCR}, {ad}")
    g(f"s_mov_b32 {a[3]}, 0x05040100\ns_mov_b32 {a[4]}, 0x07060302")
    g.lines.append("s_waitcnt vmcnt(1)")
    for i in range(5):
        for ii in range(8):
            g.lines.append(f"ds_read_b32 {raw[ii]}, {ad} offset:{ii*WO_STRIDE + 32*i}")
        g.lines.append("s_waitcnt lgkmcnt(0)")
        for q in range(4):
            g(f"v_perm_b32 {fr[8*i+q]}, {raw[2*q+1]}, {raw[2*q]}, {a[3]}\nv_perm_b32 {fr[8*i+4+q]}, {raw[2*q+1]}, {raw[2*q]}, {a[4]}")
    g(f"{sk}:")
    V.free(ad, raw)
    return fr, dst

def wo_frag_b(g, wf):
    a = g.s_a; fr, dst = wf
    sk = g.label("wog")
    g(f"s_cmp_ge_u32 {g.s_wost}, 80\ns_cbranch_scc1 {sk}")
    g(f"s_lshr_b32 {a[0]}, {g.s_wost}, 2\ns_lshl_b32 {a[0]}, {a[0]}, 10\ns_and_b32 {a[1]}, {g.s_wost}, 3\ns_lshl_b32 {a[1]}, {a[1]}, 8")
    g(f"s_add_u32 {a[0]}, {a[0]}, {a[1]}\ns_add_u32 {a[0]}, {a[0]}, {WOF}")
    for i in range(5):
        g(f"s_add_u32 {a[1]}, {a[0]}, {i*20*1024}\ns_add_u32 {a[2]}, {a[1]}, {5*20*1024}")
        g.lines.append(f"buffer_store_dwordx4 {fr[8*i:8*i+4]}, {dst}, {g.q_ws}, {a[1]} offen sc1")
        g.lines.append(f"buffer_store_dwordx4 {fr[8*i+4:8*i+8]}, {dst}, {g.q_ws}, {a[2]} offen sc1")
    g(f"{sk}:")
    g.V.free(dst)

def after_s0(g):
    V = g.V
    sk = g.label("xr")
    g(f"s_cmp_lg_u32 {g.s_w}, 0\ns_cbranch_scc1 {sk}")
    x_store(g, raw=True, sc=g.sc)
    g(f"{sk}:")
    g.a_wo = g.A.alloc("wo", 200, at=0)
    g.a_s2 = g.A.alloc("st2", 32, at=200)
    g.a_h2 = g.A.alloc("h2", 8, at=232)
    g.a_s1 = g.A.alloc("st1", 8, at=240)
    g.a_b2 = g.A.alloc("b2", 8, at=248)
    V.free(g.v_big, g.v_l31)
    g.stamp(7)

def wo_loader(g):
    a = g.s_a
    sb = g.S.alloc("wob", 3)
    def setup():
        g(f"s_lshr_b32 {sb[1]}, {g.s_j}, 2\ns_mul_i32 {sb[1]}, {sb[1]}, {5*20*1024}\ns_add_u32 {sb[1]}, {sb[1]}, {WOF}")
        g(f"s_lshr_b32 {sb[2]}, {g.s_w}, 1\ns_lshl_b32 {sb[0]}, {sb[2]}, 13\ns_add_u32 {sb[0]}, {sb[1]}, {sb[0]}")
        g(f"s_lshl_b32 {sb[2]}, {sb[2]}, 11\ns_add_u32 {sb[1]}, {sb[1]}, {sb[2]}\ns_add_u32 {sb[1]}, {sb[1]}, {16*1024}")
    def wo():
        for u in range(10):
            for i in range(5):
                r = (u * 5 + i) * 4
                if u < 8: g(f"s_add_u32 {sb[2]}, {sb[0]}, {(i*20 + u)*1024}")
                else: g(f"s_add_u32 {sb[2]}, {sb[1]}, {(i*20 + u - 8)*1024}")
                g.lines.append(f"buffer_load_dwordx4 {g.a_wo[r:r+4]}, {g.v_x16}, {g.q_ws}, {sb[2]} offen")
                yield
    def tab():
        T = g.toff; base = "fnet_tab-Lpc+"
        def ld(dst):
            g.lines.append(f"buffer_load_dwordx4 {dst}, {g.v_x16}, {g.q_tab}, {sb[2]} offen")
        for h in range(2):
            g(f"s_mov_b32 {sb[2]}, {base}{T['S1'] + 1024*h}"); ld(g.a_s1[4*h:4*h+4]); yield
        for h in range(2):
            g(f"s_min_u32 {sb[2]}, {g.s_j}, 20\ns_lshl_b32 {sb[2]}, {sb[2]}, 11\ns_add_u32 {sb[2]}, {sb[2]}, {base}{T['H2'] + 1024*h}"); ld(g.a_h2[4*h:4*h+4]); yield
        g(f"s_mov_b32 {sb[2]}, {base}{T['B2']}"); ld(g.a_b2[0:4]); yield
        g(f"s_or_b32 {sb[2]}, {g.s_tb}, {g.s_j}\ns_cmp_eq_u32 {sb[2]}, 0\ns_cselect_b32 {sb[2]}, 2048, 1024\ns_add_u32 {sb[2]}, {sb[2]}, {base}{T['B2']}" if False else
          f"s_or_b32 {sb[2]}, {g.s_tb}, {g.s_j}\ns_min_u32 {sb[2]}, {sb[2]}, 1\ns_lshl_b32 {sb[2]}, {sb[2]}, 10\ns_sub_u32 {sb[2]}, {base}{T['B2'] + 2048}, {sb[2]}"); ld(g.a_b2[4:8]); yield
        for q in range(4):
            g(f"s_lshl_b32 {sb[2]}, {g.s_tb}, 2\ns_add_u32 {sb[2]}, {sb[2]}, {g.s_w}\ns_lshl_b32 {sb[2]}, {sb[2]}, 12\ns_add_u32 {sb[2]}, {sb[2]}, {base}{T['S2'] + 1024*q}")
            ld(g.a_s2[8*q:8*q+4]); yield
    return setup, wo(), tab(), sb

def s2_fix(g):
    t0, t1 = g.v_t0, g.v_t1
    for q in range(4):
        re, im = g.a_s2[8*q:8*q+4], g.a_s2[8*q+4:8*q+8]
        g(f"v_accvgpr_read_b32 {t0}, {re[2]}\nv_accvgpr_read_b32 {t1}, {re[3]}")
        g(f"v_accvgpr_mov_b32 {im[2]}, {re[0]}\nv_accvgpr_mov_b32 {im[3]}, {re[1]}")
        g(f"v_xor_b32 {t0}, 0x80008000, {t0}\nv_xor_b32 {t1}, 0x80008000, {t1}")
        g(f"v_accvgpr_write_b32 {im[0]}, {t0}\nv_accvgpr_write_b32 {im[1]}, {t1}")

def tab_touch(g, va):
    a = g.s_a; T = g.toff
    g(f"s_lshl_b32 {a[0]}, {g.s_j}, 13\ns_lshl_b32 {a[1]}, {g.s_tb}, 14\ns_add_u32 {a[1]}, {a[1]}, {T['S2'] - 8*8192}\ns_add_u32 {a[1]}, {a[1]}, {a[0]}")
    g(f"s_cmp_lt_u32 {g.s_j}, 8\ns_cselect_b32 {a[0]}, {a[0]}, {a[1]}\ns_add_u32 {a[0]}, {a[0]}, fnet_tab-Lpc")
    g(f"s_min_u32 {a[0]}, {a[0]}, fnet_tab_end-Lpc-8192")
    g(f"s_cmp_lt_u32 {g.s_j}, 10\ns_cselect_b32 {a[1]}, 1, 0\ns_cmp_eq_u32 {g.s_w}, 3\ns_cselect_b32 {a[1]}, {a[1]}, 0\ns_cmp_eq_u32 {a[1]}, 1\ns_cselect_b32 {a[1]}, 0, {BIG}")
    g(f"v_lshlrev_b32 {va}, 7, {g.v_lane}\nv_add_u32 {va}, {a[1]}, {va}")
    g.lines.append(f"buffer_load_dword {g.v_big[123]}, {va}, {g.q_tab}, {a[0]} offen")

def wo_flag(g):
    a = g.s_a; t0, t1 = g.v_t0, g.v_t1
    sk = g.label("wf")
    g(f"s_cmp_ge_u32 {g.s_wost}, 80\ns_cbranch_scc1 {sk}")
    g(f"s_add_u32 {a[0]}, {g.s_wost}, {WOFL}\nv_mov_b32 {t0}, {a[0]}\nv_mov_b32 {t1}, 1")
    g.lines.append("s_waitcnt vmcnt(0)")
    g(f"s_mov_b64 {g.s_ex}, exec\ns_mov_b64 exec, 1")
    g.lines.append(f"buffer_store_byte {t1}, {t0}, {g.q_ws}, 0 offen sc1")
    g(f"s_mov_b64 exec, {g.s_ex}")
    g(f"{sk}:")
```

```python
import copy, math
from emit import *
from maps import *
from gen_main import lit, f2u, LOG2E

BIG = 0x7ff00000

def emit_all(g):
    prologue(g)
    s0_loads(g)
    snapV, snapA, snapS = copy.deepcopy(g.V), copy.deepcopy(g.A), copy.deepcopy(g.S)
    for fast in g.paths:
        g.V, g.A, g.S = copy.deepcopy(snapV), copy.deepcopy(snapA), copy.deepcopy(snapS)
        g.vm = []; g.lg = []
        body(g, fast)
        g("s_endpgm")
    g.lines.extend(g.subs)
    g("Lexit:")
    g("s_endpgm")
    g("Lcode_end:")

def goto_path(g, entry):
    if len(g.paths) == 1:
        g(f"s_branch L{entry}_{'fast' if g.paths[0] else 'slow'}")
    else:
        l = g.label("gp")
        g(f"s_cmp_eq_u32 {g.s_fast}, 0\ns_cbranch_scc1 {l}\ns_branch L{entry}_fast\n{l}:\ns_branch L{entry}_slow")

def prologue(g):
    g.paths = {"fast": [True], "slow": [False]}.get(g.force, [True, False])
    g("s_cmp_ge_u32 s2, 256\ns_cbranch_scc1 Lexit_near\ns_branch Lstart\nLexit_near:\ns_endpgm\nLstart:")
    g.p_in = g.S.alloc("ptrs", 14, at=16)
    g.q_ws = g.S.alloc("q_ws", 4, at=8)
    g.q_in = g.S.alloc("q_in", 4, at=12)
    g.q_tab = g.S.alloc("q_tab", 4, at=32); g.s_ret = g.S.alloc("ret", 2, at=36)
    p = g.p_in
    g(f"s_load_dwordx4 {p[0:4]}, s[0:1], 0\ns_load_dwordx4 {p[4:8]}, s[0:1], 16")
    g(f"s_load_dwordx4 {p[8:12]}, s[0:1], 72\ns_load_dwordx2 {p[12:14]}, s[0:1], 88")
    g.s_tb = g.sv("tb"); g.s_j = g.sv("j"); g.s_w = g.sv("w"); g.s_ex = g.sv("ex", 2); g.s_t = g.sv("t", 2)
    g.s_wost = g.sv("wost"); g.s_spin = g.sv("spin"); g.s_lep = g.sv("lep"); g.s_fast = g.sv("fast"); g.s_layer = g.sv("layer")
    g.s_a = g.sv("a", 8)
    if g.stamps:
        g.s_t2 = g.sv("t2", 2); g.v_st = g.vv("vst", 3)
        g(f"v_mov_b32 {g.v_st[0]}, 0\nv_mov_b32 {g.v_st[1]}, 0")
    g.v_lane = g.vv("lane"); g.v_t0 = g.vv("t0"); g.v_t1 = g.vv("t1"); g.v_lfown = g.vv("lfown"); g.v_lfall = g.vv("lfall")
    g(f"s_and_b32 {g.s_tb}, s2, 7\ns_lshr_b32 {g.s_j}, s2, 3")
    g(f"v_and_b32 {g.v_lane}, 63, v0\nv_lshrrev_b32 {g.v_t0}, 6, v0")
    g(f"v_readfirstlane_b32 {g.s_w}, {g.v_t0}")
    g(f"s_mov_b32 {g.s_lep}, 0\ns_mov_b32 {g.s_layer}, 0")
    g(f"s_lshl_b32 {g.s_a[0]}, {g.s_tb}, 7")
    g(f"s_lshl_b32 {g.s_a[1]}, {g.s_j}, 2\ns_add_u32 {g.s_a[1]}, {g.s_a[1]}, {g.s_a[0]}")
    g(f"v_mov_b32 {g.v_lfown}, {g.s_a[1]}")
    g(f"v_and_b32 {g.v_lfall}, 31, {g.v_lane}\nv_lshlrev_b32 {g.v_lfall}, 2, {g.v_lfall}\nv_add_u32 {g.v_lfall}, {g.s_a[0]}, {g.v_lfall}")
    g.lines.append("s_waitcnt lgkmcnt(0)")
    g.srd(g.q_ws, p[12], p[13], 256 << 20)
    import tables
    g.toff, _ = tables.build()
    q = g.q_tab
    g(f"s_getpc_b64 {q[0:2]}\nLpc:\ns_and_b32 {q[1]}, {q[1]}, 0xffff\ns_mov_b32 {q[2]}, fnet_tab_end-Lpc\ns_mov_b32 {q[3]}, 0x20000")
    g.stamp(0)

def s0_loads(g):
    p = g.p_in; a = g.s_a
    V = g.V
    t0, t1 = g.v_t0, g.v_t1
    import ph_s0, ph_p1
    g.v_l31 = g.vv("l31")
    g(f"v_and_b32 {g.v_l31}, 31, {g.v_lane}")
    g.v_big = g.vv("big", 128, 4)
    g.v_phi = g.vv("phiA", 8, 4)
    sk = g.label("ph")
    g(f"s_cmp_lg_u32 {g.s_w}, 0\ns_cbranch_scc1 {sk}")
    g.srd(g.q_in, p[4], p[5], 32 * 400 * 2)
    g(f"v_lshlrev_b32 {t0}, 4, {g.v_lane}\ns_mul_i32 {a[4]}, {g.s_j}, 800\ns_mov_b32 m0, {L_PHI}")
    g("s_nop 0")
    g.lines.append(f"buffer_load_dwordx4 {t0}, {g.q_in}, {a[4]} offen lds")
    g(f"{sk}:")
    g.srd(g.q_in, p[0], p[1], S * 1280)
    vp = g.vv("p"); vx = g.vv("vx")
    g(f"s_lshl_b32 {a[4]}, {g.s_j}, 3\ns_lshl_b32 {a[5]}, {g.s_w}, 1\ns_add_u32 {a[4]}, {a[4]}, {a[5]}")
    g(f"v_lshrrev_b32 {vp}, 5, {g.v_lane}\nv_add_u32 {vp}, {a[4]}, {vp}")
    g(f"v_lshrrev_b32 {t0}, 4, {vp}\nv_lshlrev_b32 {t0}, 3, {t0}\nv_and_b32 {t1}, 15, {vp}\nv_lshl_add_u32 {t0}, {t1}, 7, {t0}\nv_add_u32 {t0}, {g.s_tb}, {t0}")
    g(f"v_mul_u32_u24 {vx}, 1280, {t0}\nv_lshl_add_u32 {vx}, {g.v_l31}, 3, {vx}")
    g(f"v_cmp_gt_u32 vcc, 20, {g.v_l31}\nv_mov_b32 {t1}, {BIG}\nv_cndmask_b32 {vx}, {t1}, {vx}, vcc")
    src = g.vv("xsrc", 16, 4)
    for i in range(8):
        g.lines.append(f"buffer_load_dwordx2 {src[2*i:2*i+2]}, {vx}, {g.q_in}, 0 offen offset:{160*i}")
    V.free(vx, vp)
    PM = sum(1 << j for j in (13, 14, 15, 16, 17, 18, 20, 21, 23, 24))
    g(f"s_lshl_b32 {a[4]}, 1, {g.s_j}\ns_sub_u32 {a[5]}, {a[4]}, 1\ns_and_b32 {a[5]}, {a[5]}, {PM}\ns_bcnt1_i32_b32 {a[5]}, {a[5]}")
    g(f"s_lshl_b32 {a[5]}, {a[5]}, 3\ns_add_u32 {a[5]}, {a[5]}, {g.s_tb}\ns_and_b32 {a[4]}, {a[4]}, {PM}\ns_cselect_b32 {g.s_wost}, {a[5]}, 99")
    lw0 = g.label("w0"); lx = g.label("lx")
    ph_p1.p1_alloc(g)
    pb = g.vv("pub", 4); q_dbg = g.S.alloc("q_dbg", 4)
    gs = ph_s0.gather_alloc(g)
    pf = (g.sv("wpf"), g.vv("wpfa"))
    g.srd(gs["q_w"], p[2], p[3], 640 * 3840)
    g.srd(q_dbg, p[10], p[11], 256)
    g(f"s_mov_b32 {g.s_fast}, 0")
    g(f"s_cmp_eq_u32 {g.s_w}, 0\ns_cbranch_scc1 {lw0}")
    g(f"s_mul_i32 {a[0]}, {g.s_j}, 3\ns_add_u32 {a[0]}, {a[0]}, {g.s_w}\ns_sub_u32 {a[0]}, {a[0]}, 1\ns_lshl_b32 {a[0]}, {a[0]}, 10")
    g(f"v_lshlrev_b32 {t0}, 4, {g.v_lane}")
    g.lines.append(f"buffer_load_dwordx4 {g.v_big[124:128]}, {t0}, {g.q_tab}, {a[0]} offen")
    g(f"s_mul_i32 {a[0]}, {g.s_w}, 5120\ns_add_u32 {a[1]}, {a[0]}, {L_H1 - 5120}\ns_add_u32 {a[0]}, {a[0]}, fnet_tab-Lpc+{g.toff['H1'] - 5120}")
    for n in range(5):
        g(f"s_add_u32 m0, {a[1]}, {1024*n}")
        g(f"s_add_u32 {a[2]}, {a[0]}, {1024*n}")
        g.lines.append(f"buffer_load_dwordx4 {t0}, {g.q_tab}, {a[2]} offen lds")
    ph_s0.tab_touch(g, t0)
    g(f"s_branch {lx}")
    g(f"{lw0}:")
    g(f"v_mov_b32 {t1}, {g.v_lfown}")
    g(f"v_mov_b32 {t0}, 0\ns_mov_b64 {g.s_ex}, exec\ns_mov_b64 exec, 1")
    g.lines.append(f"buffer_store_dword {t0}, {t1}, {g.q_ws}, 0 offen sc1")
    g(f"s_mov_b32 {g.s_fast}, 1")
    sk = g.label("wz")
    g(f"s_cmp_ge_u32 {g.s_wost}, 80\ns_cbranch_scc1 {sk}")
    g(f"s_add_u32 {a[4]}, {g.s_wost}, {WOFL}\nv_mov_b32 {t1}, {a[4]}")
    g.lines.append(f"buffer_store_byte {t0}, {t1}, {g.q_ws}, 0 offen sc1")
    g(f"s_mov_b64 exec, {g.s_ex}")
    ph_s0.wo_touch(g)
    g(f"s_mov_b32 {g.s_fast}, 2")
    g(f"{sk}:")
    g(f"s_mov_b64 exec, {g.s_ex}")
    kp = g.v_big[0:4]
    for q_ in range(4): g(f"v_mov_b32 {kp[q_]}, -1")
    g(f"s_lshl_b32 {a[4]}, {g.s_j}, 14\ns_lshl_b32 {a[5]}, {g.s_tb}, 11\ns_add_u32 {a[4]}, {a[4]}, {a[5]}\nv_lshlrev_b32 {t0}, 4, {g.v_lane}")
    for l in range(2):
        g(f"s_add_u32 {a[5]}, {a[4]}, {KVB[l]}")
        g.lines.append(f"buffer_store_dwordx4 {kp}, {t0}, {g.q_ws}, {a[5]} offen sc1")
        g.lines.append(f"buffer_store_dwordx4 {kp}, {t0}, {g.q_ws}, {a[5]} offen offset:1024 sc1")
    g(f"{lx}:")
    NPF0, NPF1 = 10, 8
    rest = ph_s0.w_prefetch(g, NPF0, gs["q_w"], pf)
    ph_s0.gather_setup(g, gs)
    ph_p1.p1_setup(g)
    publish_setup(g, pb, q_dbg)
    st = ln_addr(g)
    call_phi = g.make_sub("phi", lambda: ph_s0.phi_build(g, wait=False))
    call_raw = g.make_sub("raw", lambda: raw_stage(g, src, st))
    xa = g.label("xa"); xb = g.label("xb"); xc = g.label("xc")
    g(f"s_cmp_eq_u32 {g.s_fast}, 0\ns_cbranch_scc1 {xa}\ns_cmp_eq_u32 {g.s_fast}, 1\ns_cbranch_scc1 {xb}")
    g.lines.append(f"s_waitcnt vmcnt({NPF0 + 8})")
    g(f"s_branch {xc}\n{xb}:")
    g.lines.append(f"s_waitcnt vmcnt({NPF0 + 5})")
    g(f"s_branch {xc}\n{xa}:")
    g.lines.append(f"s_waitcnt vmcnt({NPF0 + 7})")
    g(f"{xc}:")
    g.stamp(3)
    emit_ln(g, src, st, rest, NPF1)
    lw0 = g.label("w0b")
    g(f"s_cmp_eq_u32 {g.s_w}, 0\ns_cbranch_scc1 {lw0}")
    g("s_barrier")
    g.stamp(4)
    for _ in rest: pass
    call_raw()
    call_phi()
    g.lines.append("s_waitcnt vmcnt(0)")
    g.stamp(6)
    g("s_barrier")
    ph_s0.w_gather(g, gs)
    g.lines.append("s_waitcnt vmcnt(0) lgkmcnt(0)")
    g.stamp(1)
    g("s_barrier")
    g(f"v_mov_b32 {t1}, {L_MISC}")
    g.lines.append(f"ds_read_b32 {t0}, {t1}")
    g.lines.append("s_waitcnt lgkmcnt(0)")
    g(f"v_readfirstlane_b32 {g.s_fast}, {t0}")
    goto_path(g, "entry")
    g(f"{lw0}:")
    g("s_barrier")
    g.stamp(4)
    ph_s0.x_store(g, raw=False, sc=" sc1")
    np_ = g.label("np"); nk = g.label("nk")
    g(f"s_cmp_ge_u32 {g.s_wost}, 80\ns_cbranch_scc1 {np_}")
    ph_s0.wo_stage(g)
    g.lines.append("s_waitcnt vmcnt(16)")
    g(f"s_branch {nk}\n{np_}:")
    g.lines.append("s_waitcnt vmcnt(0)")
    g(f"{nk}:")
    if g.stop_after == "s0b": g.stamp(10)
    publish_purity(g, pb, q_dbg)
    g("s_barrier")
    g.stamp(5)
    call_raw()
    call_phi()
    wf = ph_s0.wo_frag_a(g)
    ph_s0.wo_frag_b(g, wf)
    g("s_barrier")
    ph_s0.wo_flag(g)
    purity(g, pb, q_dbg)
    g.stamp(2)
    g.lines.append("s_waitcnt lgkmcnt(0)")
    g("s_barrier")
    V.free(src, st)
    V.free(pb); g.S.free(q_dbg)
    ph_s0.gather_free(g, gs)
    g.S.free(pf[0]); V.free(pf[1])
    goto_path(g, "entry")

def ln_addr(g):
    a = g.s_a; V = g.V; t0, t1 = g.v_t0, g.v_t1
    st = g.vv("xst", 4); e2 = g.vv("e2"); rb = g.vv("rb")
    g(f"s_lshl_b32 {a[4]}, {g.s_w}, 5\ns_add_u32 {a[4]}, {a[4]}, {L_XST}\nv_lshrrev_b32 {rb}, 5, {g.v_lane}\nv_lshlrev_b32 {rb}, 4, {rb}\nv_add_u32 {rb}, {a[4]}, {rb}")
    for c in range(4):
        g(f"v_lshl_add_u32 {e2}, {g.v_l31}, 2, {c}")
        g.code_of_e2(st[c], e2, t0)
        g(f"v_lshl_add_u32 {st[c]}, {st[c]}, 7, {rb}")
    g(f"v_cmp_gt_u32 vcc, 20, {g.v_l31}\nv_mov_b32 {t0}, {L_XST + 20480}")
    for c in range(4): g(f"v_cndmask_b32 {st[c]}, {t0}, {st[c]}, vcc")
    V.free(e2, rb)
    return st

def sprinkle(g, body, filler, every):
    k = 0
    for l in body:
        g.lines.append(l); k += 1
        if filler is not None and k % every == 0 and not l.startswith("v_cmp") and not l.endswith(":"):
            try: next(filler)
            except StopIteration: filler = None

def emit_ln(g, src, st, filler, nfill=0):
    a = g.s_a; V = g.V; t0, t1 = g.v_t0, g.v_t1
    real = g.lines
    g.lines = []
    xf = g.vv("xf", 32, 4); sm, sq = g.vv("sm", 2, 2), g.vv("sq", 2, 2)
    pk = g.vv("pk", 16, 4)
    for i in range(8):
        g(f"v_lshlrev_b32 {xf[0*8+i]}, 16, {src[2*i]}\nv_and_b32 {xf[1*8+i]}, 0xffff0000, {src[2*i]}")
        g(f"v_lshlrev_b32 {xf[2*8+i]}, 16, {src[2*i+1]}\nv_and_b32 {xf[3*8+i]}, 0xffff0000, {src[2*i+1]}")
    g(f"v_pk_add_f32 {sm}, {xf[0:2]}, {xf[2:4]}\nv_pk_mul_f32 {sq}, {xf[0:2]}, {xf[0:2]}\nv_pk_fma_f32 {sq}, {xf[2:4]}, {xf[2:4]}, {sq}")
    for i in range(2, 16):
        g(f"v_pk_add_f32 {sm}, {sm}, {xf[2*i:2*i+2]}\nv_pk_fma_f32 {sq}, {xf[2*i:2*i+2]}, {xf[2*i:2*i+2]}, {sq}")
    g(f"v_add_f32 {sm[0]}, {sm[0]}, {sm[1]}\nv_add_f32 {sq[0]}, {sq[0]}, {sq[1]}")
    g.red32(sm[0], t0); g.red32(sq[0], t1)
    g(f"v_mul_f32 {sm[0]}, {lit(1/640)}, {sm[0]}\nv_mul_f32 {sq[0]}, {lit(1/640)}, {sq[0]}")
    g(f"v_fma_f32 {sq[0]}, -{sm[0]}, {sm[0]}, {sq[0]}\nv_add_f32 {sq[0]}, {lit(1e-5)}, {sq[0]}\nv_rsq_f32 {sq[0]}, {sq[0]}")
    g(f"v_mul_f32_e64 {sm[0]}, -{sm[0]}, {sq[0]}")
    for i in range(16):
        g(f"v_pk_fma_f32 {xf[2*i:2*i+2]}, {xf[2*i:2*i+2]}, {sq}, {sm} op_sel_hi:[1,0,0]")
    for c in range(4):
        for i2 in range(4):
            g(f"v_cvt_pk_bf16_f32 {pk[c*4+i2]}, {xf[c*8+2*i2]}, {xf[c*8+2*i2+1]}")
        g.lines.append(f"ds_write_b128 {st[c]}, {pk[4*c:4*c+4]}")
    g.lines.append("s_waitcnt lgkmcnt(0)")
    V.free(xf, sm, sq, pk)
    body = g.lines; g.lines = real
    if nfill:
        import itertools
        sprinkle(g, body, itertools.islice(filler, nfill), len(body) // (nfill + 1))
    else: g.lines.extend(body)

def raw_stage(g, src, st):
    a = g.s_a
    pk = g.vv("pkr", 8, 4)
    g(f"s_mov_b32 {a[3]}, 0x05040100\ns_mov_b32 {a[4]}, 0x07060302")
    for c in range(4):
        r = pk[4*(c & 1):4*(c & 1) + 4]
        for i2 in range(4):
            g(f"v_perm_b32 {r[i2]}, {src[2*(2*i2+1) + (c >> 1)]}, {src[2*(2*i2) + (c >> 1)]}, {a[3 + (c & 1)]}")
        g.lines.append(f"ds_write_b128 {st[c]}, {r} offset:10240")
    g.V.free(pk)

def publish_setup(g, pb, q):
    p = g.p_in; a = g.s_a
    g(f"s_getreg_b32 {a[4]}, hwreg(HW_REG_XCC_ID, 0, 4)\ns_add_u32 {a[4]}, {a[4]}, 1")
    g(f"s_lshl_b32 {a[5]}, {g.s_tb}, 5\ns_add_u32 {a[6]}, {a[5]}, {g.s_j}")
    g(f"v_mov_b32 {pb[0]}, {a[4]}\nv_mov_b32 {pb[1]}, {a[6]}")
    g(f"v_and_b32 {pb[2]}, 7, {g.v_lane}\nv_lshlrev_b32 {pb[2]}, 2, {pb[2]}\nv_add_u32 {pb[2]}, {a[5]}, {pb[2]}")
    g(f"v_mov_b32 {pb[3]}, {L_MISC}")

def publish_purity(g, pb, q):
    g(f"s_mov_b64 {g.s_ex}, exec\ns_mov_b64 exec, 1")
    g.lines.append(f"buffer_store_byte {pb[0]}, {pb[1]}, {q}, 0 offen sc1")
    g(f"s_mov_b64 exec, {g.s_ex}")

def purity(g, pb, q):
    a = g.s_a; t0, t1 = g.v_t0, g.v_t1
    pv = pb[0]
    lp = g.label("pp"); dn = g.label("ppd")
    g(f"s_mov_b32 {g.s_spin}, {1 << 20}")
    g(f"{lp}:")
    g.lines.append(f"buffer_load_dword {pv}, {pb[2]}, {q}, 0 offen sc1")
    g.lines.append("s_waitcnt vmcnt(0)")
    g(f"v_subrev_u32 {t0}, 0x01010101, {pv}\nv_bfi_b32 {t0}, {pv}, 0, {t0}\nv_and_b32 {t0}, 0x80808080, {t0}")
    g(f"v_cmp_ne_u32 vcc, 0, {t0}\ns_cbranch_vccz {dn}")
    g(f"s_sub_u32 {g.s_spin}, {g.s_spin}, 1\ns_cmp_lg_u32 {g.s_spin}, 0\ns_cbranch_scc1 {lp}")
    g(f"{dn}:")
    g(f"v_readfirstlane_b32 {a[5]}, {pv}\ns_and_b32 {a[5]}, {a[5]}, 0xff\ns_mul_i32 {a[5]}, {a[5]}, 0x01010101")
    g(f"v_cmp_ne_u32 vcc, {a[5]}, {pv}\ns_cmp_eq_u64 vcc, 0\ns_cselect_b32 {g.s_fast}, 1, 0\nv_mov_b32 {t0}, {g.s_fast}")
    g.lines.append(f"ds_write_b32 {pb[3]}, {t0}")

def finish(g, fast):
    g.stamp(31)
    g.wait0()
    g.flush_stamps()

def body(g, fast):
    import ph_s0, ph_p1, ph_p2, ph_b
    sc = "" if fast else " sc1"
    g.sc = sc; g.fast = fast
    tag = "fast" if fast else "slow"
    for nm in ("s_xn", "s_xr", "s_kvb", "s_ob", "s_x1", "s_gb", "s_stb", "s_zb"): setattr(g, nm, None)
    g(f"Lentry_{tag}:")
    g.vm = []; g.lg = []
    ph_s0.after_s0(g)
    if g.stop_after in ("s0", "s0b"): return finish(g, fast)
    lay = g.label("layer")
    g(f"s_mov_b32 {g.s_layer}, 0")
    g(f"{lay}:")
    g.vm = []; g.lg = []
    ph_p1.set_layer(g)
    ph_p1.p1(g)
    if g.stop_after == "p1": return finish(g, fast)
    ph_p2.p2(g)
    if g.stop_after == "p2": return finish(g, fast)
    ph_b.b1(g)
    if g.stop_after == "b1": return finish(g, fast)
    ph_b.b2(g, lay)
    finish(g, fast)
```

```python
import numpy as np, math
def bf(x):
    u = np.ascontiguousarray(np.asarray(x, np.float64).astype(np.float32)).view(np.uint32)
    return ((u + 0x7fff + ((u >> 16) & 1)) >> 16).astype(np.uint32)
def pk(lo, hi): return bf(lo) | (bf(hi) << 16)
lane = np.arange(64); n15 = lane & 15; gq = lane >> 4
def cs(num, den):
    num = np.mod(np.asarray(num, np.int64), den)
    ang = 2 * np.pi * num / den
    c = np.cos(ang); s = np.sin(ang)
    c[np.abs(c) < 1e-12] = 0; s[np.abs(s) < 1e-12] = 0
    return c, s
def frag(regs):
    return np.stack(regs, 1).astype(np.uint32)

def h1():
    out = []
    for fr in range(15):
        i, u_ = fr // 3, fr % 3
        rho = 16 * i + n15
        epsp = np.where(rho == 1, 40, rho >> 1); K2 = np.where(rho == 1, 0, rho & 1)
        d2b = (gq >> 1) + 40 * (gq & 1)
        val = []
        for u in range(8):
            c = 2 * (u >> 2) + 10 * (u & 3)
            d = d2b + 4 * u_ + c
            v, _ = cs(d * epsp + 20 * K2, 80)
            if u >= 4 and u_ == 2: v = v * 0
            val.append(v)
        out.append(frag([pk(val[2*q], val[2*q+1]) for q in range(4)]))
    return np.stack(out)
def reim(c, s):
    c01, c23, s01, s23 = pk(c[0], c[1]), pk(c[2], c[3]), pk(s[0], s[1]), pk(s[2], s[3])
    return frag([c01, c23, s01, s23]), frag([s01 ^ 0x80008000, s23 ^ 0x80008000, c01, c23])
def s1():
    c, s = zip(*[cs((4 * gq + r) * n15, 16) for r in range(4)])
    return np.stack(reim(c, s))
def s2():
    out = np.empty((8, 4, 4, 64, 4), np.uint32)
    for tb in range(8):
        for w in range(4):
            for q in range(4):
                tau = 16 * n15 + 4 * w + q
                c, s = zip(*[cs((tb + 32 * gq + 8 * r) * tau, 2048) for r in range(4)])
                out[tb, w, q] = reim(c, s)[0]
    return out
def h2():
    out = np.empty((21, 2, 64, 4), np.uint32)
    for j in range(21):
        gam = gq >> 1
        a4 = 0 if j == 0 else (1 if j == 1 else 2 * j - 2); a5 = 40 if j == 0 else (78 if j == 1 else 1)
        e = a4 + a5 * gam + 80 * (n15 & 7)
        msk = ((gam == (n15 >> 3)) & (e != 0)).astype(np.float64)
        isU0 = 1.0 if j == 0 else 0.0; conj = 1.0 if j == 1 else 0.0
        P1 = isU0 * gam; P0 = 1 - P1
        Q1 = (1 - 2 * conj * gam) * (1 - isU0); R1 = Q1.copy(); T1 = -P1
        P0, P1, Q1, R1, T1 = [x * msk for x in (P0, P1, Q1, R1, T1)]
        re, im = [], []
        for dd in range(4):
            c, s = cs((4 * (gq & 1) + dd) * e, 640)
            re.append(pk(P0 * c, P1 * c + Q1 * s)); im.append(pk(-P0 * s, R1 * c + T1 * s))
        out[j, 0] = frag(re); out[j, 1] = frag(im)
    return out
def b2():
    out = []
    msk = ((n15 & 1) == (gq >> 1)).astype(np.float64)
    for var in range(3):
        tt = n15 >> 1
        if var: tt = (7 - tt + (1 - (gq >> 1)) * (1 if var == 2 else 0)) & 7
        regs = []
        for dd in range(4):
            c, s = cs((4 * (gq & 1) + dd) * tt, 8)
            regs.append(pk(msk * c, msk * s))
        out.append(frag(regs))
    return np.stack(out)

def build():
    parts = [("H1", h1()), ("S1", s1()), ("B2", b2()), ("H2", h2()), ("S2", s2())]
    off = {}; data = []; o = 0
    for nm, arr in parts:
        off[nm] = o; data.append(arr.reshape(-1)); o += arr.size * 4
    return off, np.concatenate(data).astype(np.uint32)
def text(data):
    q = data[0::2].astype(np.uint64) | (data[1::2].astype(np.uint64) << np.uint64(32))
    lines = []
    for i in range(0, len(q), 16):
        lines.append(".quad " + ",".join("0" if v == 0 else hex(int(v)) for v in q[i:i+16]))
    return "\n".join(lines)
if __name__ == "__main__":
    off, d = build(); print(off, d.nbytes, len(text(d)))
```

```python
import sys, copy, math
sys.path.insert(0, "gen")
from emit import *
from maps import *

KN = "interleave_layers__linear_kernel_hedgehog__spectral_fnet__prompt_kernel"
LOG2E = 1.4426950408889634
def f2u(x):
    import struct
    return struct.unpack('<I', struct.pack('<f', x))[0]
def lit(x): return f"0x{f2u(x):08x}"

class G(Emit):
    def __init__(self, stop_after=None, stamps=False, force=None):
        super().__init__()
        self.stop_after = stop_after; self.stamps = stamps; self.force = force
        self.subs = []
        self.nstamp = 0; self.stamp_wave = 0; self.fine = False
    def sv(self, name, n=1): return self.S.alloc(name, n)
    def vv(self, name, n=1, align=None): return self.V.alloc(name, n, align)
    def srd(self, q, lo, hi, nbytes):
        self(f"s_mov_b32 {q[0]}, {lo}\ns_and_b32 {q[1]}, {hi}, 0xffff\ns_mov_b32 {q[2]}, {nbytes}\ns_mov_b32 {q[3]}, 0x20000")
    def stamp(self, idx):
        if not self.stamps: return
        self(f"s_memrealtime {self.s_t}\ns_memtime {self.s_t2}")
        self.lines.append("s_waitcnt lgkmcnt(0)")
        self(f"s_lshl_b32 {self.s_t[1]}, {self.s_layer}, 5\ns_add_u32 m0, {self.s_t[1]}, {idx}")
        self(f"v_writelane_b32 {self.v_st[0]}, {self.s_t[0]}, m0\nv_writelane_b32 {self.v_st[1]}, {self.s_t2[0]}, m0")
    def flush_stamps(self):
        if not self.stamps: return
        sk = self.label("fs")
        self(f"s_cmp_lg_u32 {self.s_w}, {self.stamp_wave}\ns_cbranch_scc1 {sk}")
        self(f"s_lshl_b32 {self.s_t[1]}, s2, 8\nv_lshlrev_b32 {self.v_st[2]}, 2, {self.v_lane}\nv_add_u32 {self.v_st[2]}, {self.s_t[1]}, {self.v_st[2]}")
        self.lines.append(f"buffer_store_dword {self.v_st[0]}, {self.v_st[2]}, {self.q_ws}, 0 offen offset:0 sc1".replace("offset:0 ", ""))
        self.lines[-1] = f"v_add_u32 {self.v_st[2]}, {STAMP}, {self.v_st[2]}"
        self.lines.append(f"buffer_store_dword {self.v_st[0]}, {self.v_st[2]}, {self.q_ws}, 0 offen sc1")
        self(f"v_add_u32 {self.v_st[2]}, {STAMP2 - STAMP}, {self.v_st[2]}")
        self.lines.append(f"buffer_store_dword {self.v_st[1]}, {self.v_st[2]}, {self.q_ws}, 0 offen sc1")
        self.lines.append("s_waitcnt vmcnt(0)")
        self(f"s_mov_b64 exec, -1")
        self(f"{sk}:")
    def code_of_e2(self, dst, e2, t):
        self(f"v_add_u32 {dst}, 2, {e2}")
        self(f"v_sub_u32 {t}, 120, {e2}")
        self(f"v_cmp_lt_u32 vcc, 39, {e2}\nv_cndmask_b32 {dst}, {dst}, {t}, vcc")
        for k, c in ((0, 0), (40, 1), (1, 2), (79, 3)):
            self(f"v_cmp_eq_u32 vcc, {k}, {e2}\nv_cndmask_b32_e64 {dst}, {dst}, {c}, vcc")
    def e2_of_code(self, dst, code, t):
        self(f"v_subrev_u32 {dst}, 2, {code}")
        self(f"v_sub_u32 {t}, 120, {code}")
        self(f"v_cmp_lt_u32 vcc, 41, {code}\nv_cndmask_b32 {dst}, {dst}, {t}, vcc")
        one = {0: "0", 40: "40", 1: "1"}
        for c, k in ((0, 0), (1, 40), (2, 1)):
            self(f"v_cmp_eq_u32 vcc, {c}, {code}\nv_cndmask_b32_e64 {dst}, {dst}, {k}, vcc")
        self(f"v_mov_b32 {t}, 79\nv_cmp_eq_u32 vcc, 3, {code}\nv_cndmask_b32 {dst}, {dst}, {t}, vcc")
    def s_e2_of_code(self, dst, code, t):
        self(f"s_sub_u32 {dst}, {code}, 2")
        self(f"s_sub_u32 {t}, 120, {code}")
        self(f"s_cmp_ge_u32 {code}, 42\ns_cselect_b32 {dst}, {t}, {dst}")
        for c, k in ((0, 0), (1, 40), (2, 1), (3, 79)):
            self(f"s_cmp_eq_u32 {code}, {c}\ns_cselect_b32 {dst}, {k}, {dst}")
    def red32(self, x, t, op="v_add_f32"):
        for r in (8, 4, 2, 1):
            self(f"{op}_dpp {x}, {x}, {x} row_ror:{r} row_mask:0xf bank_mask:0xf")
        self(f"v_mov_b32 {t}, {x}\nv_permlane16_swap_b32 {t}, {x}\n{op} {x}, {x}, {t}")
    def xhalf(self, x, t, op):
        self(f"v_mov_b32 {t}, {x}\nv_permlane32_swap_b32 {t}, {x}\n{op} {x}, {x}, {t}")
    def xq16(self, x, t, op):
        self(f"v_mov_b32 {t}, {x}\nv_permlane16_swap_b32 {t}, {x}\n{op} {x}, {x}, {t}")

    def make_sub(self, name, fn):
        real = self.lines; self.lines = []
        ret = self.S.alloc("ret_" + name, 2, align=2) if False else self.s_ret
        self(f"Lsub_{name}:")
        self("s_nop 1")
        fn()
        self("s_nop 1")
        self(f"s_setpc_b64 {ret}")
        self.subs.extend(self.lines); self.lines = real
        return lambda: self(f"s_call_b64 {ret}, Lsub_{name}")
    def poll_ge(self, voff, target, flags):
        lp = self.label("poll"); dn = self.label("pdone")
        self(f"s_mov_b32 {self.s_spin}, {1 << 22}")
        self(f"{lp}:")
        self.lines.append(f"buffer_load_dword {self.v_t0}, {voff}, {self.q_ws}, 0 offen {flags}")
        self.lines.append("s_waitcnt vmcnt(0)")
        self(f"v_cmp_gt_u32 vcc, {target}, {self.v_t0}")
        self(f"s_cbranch_vccz {dn}")
        self(f"s_sub_u32 {self.s_spin}, {self.s_spin}, 1\ns_cmp_lg_u32 {self.s_spin}, 0\ns_cbranch_scc1 {lp}")
        self(f"{dn}:")
    def local_barrier(self, fast, work=None):
        self.wait0()
        self("s_barrier")
        sk = self.label("lb")
        self(f"s_add_u32 {self.s_lep}, {self.s_lep}, 1")
        self(f"s_cmp_lg_u32 {self.s_w}, 0\ns_cbranch_scc1 {sk}")
        self(f"v_mov_b32 {self.v_t1}, {self.s_lep}")
        self(f"s_mov_b64 {self.s_ex}, exec\ns_mov_b64 exec, 1")
        self.lines.append(f"buffer_store_dword {self.v_t1}, {self.v_lfown}, {self.q_ws}, 0 offen" + ("" if fast else " sc1"))
        self(f"s_mov_b64 exec, {self.s_ex}")
        if work is not None:
            self(f"{sk}:")
            work()
            sk = self.label("lb")
            self(f"s_cmp_lg_u32 {self.s_w}, 0\ns_cbranch_scc1 {sk}")
        self.poll_ge(self.v_lfall, self.s_lep, "sc1")
        self(f"{sk}:")
        self("s_barrier")
        self.vm = []; self.lg = []

def build_kernel(stop_after=None, stamps=False, force=None, sw=0, fine=False):
    g = G(stop_after, stamps, force); g.stamp_wave = sw; g.fine = fine
    import phases
    phases.emit_all(g)
    lines, nn = fix_hazards(g.lines)
    body = "\n".join((" " + l if not l.endswith(":") else l) for l in lines)
    import tables
    toff, tdata = tables.build()
    body += "\n.p2align 8\n.type fnet_tab,@object\nfnet_tab:\n" + tables.text(tdata) + f"\nfnet_tab_end:\n.size fnet_tab, {tdata.nbytes}\n"
    hdr = open("interleave_layers__linear_kernel_hedgehog__spectral_fnet__prompt.s.ref").read().split("; Override launch")[0]
    txt = hdr + f"; @launch grid=(256,1,1) block=(256,1,1) lds={LDS_BYTES}\n"
    txt += f""".amdgcn_target "amdgcn-amd-amdhsa--gfx950"
.text
.globl {KN}
.p2align 8
.type {KN},@function
{KN}:
{body}
.section .rodata,"a"
.p2align 6
.amdhsa_kernel {KN}
  .amdhsa_next_free_vgpr 512
  .amdhsa_next_free_sgpr 102
  .amdhsa_accum_offset 256
  .amdhsa_group_segment_fixed_size 0
  .amdhsa_kernarg_size 96
  .amdhsa_user_sgpr_count 2
  .amdhsa_user_sgpr_kernarg_segment_ptr 1
  .amdhsa_system_sgpr_workgroup_id_x 1
.end_amdhsa_kernel
"""
    return txt, nn, g

if __name__ == "__main__":
    import argparse
    ap = argparse.ArgumentParser()
    ap.add_argument("-o", default="main.s")
    ap.add_argument("--stop", default=None)
    ap.add_argument("--stamps", action="store_true")
    ap.add_argument("--force", default=None)
    ap.add_argument("--sw", type=int, default=0)
    ap.add_argument("--fine", action="store_true")
    a = ap.parse_args()
    txt, nn, g = build_kernel(a.stop, a.stamps, a.force, a.sw, a.fine)
    open(a.o, "w").write(txt)
    print(f"wrote {a.o}: {len(txt)} bytes, {txt.count(chr(10))} lines, hazard nops {nn}, vgpr hi {g.V.hi}, agpr hi {g.A.hi}, sgpr hi {g.S.hi}")
    sys.path.insert(0, "tools")
    from build import build
    print(build(a.o))
```

```python
from emit import *
from maps import *
from gen_main import lit
from ph_p2 import swap_quad, first_layer
import ph_s0, os
BIG = 0x7ff00000
L_EX = L_SCR
L_R = L_SCR + 16384
L_ST2 = L_SCR + 20480
L_OUT = L_SCR

def b1(g):
    a = g.s_a; t0, t1 = g.v_t0, g.v_t1; L = g.v_lane; V = g.V
    g.c("==== B1 ====")
    n15, gq = g.vv("n15"), g.vv("gq")
    g(f"v_and_b32 {n15}, 15, {L}\nv_lshrrev_b32 {gq}, 4, {L}")
    va, vs = g.vv("va"), g.vv("vs")
    g(f"s_sub_u32 {a[0]}, {g.s_j}, 1\ns_cmp_eq_u32 {g.s_j}, 0\ns_cselect_b32 {a[0]}, 0, {a[0]}")
    g(f"s_cmp_ge_u32 {g.s_j}, 2\ns_cselect_b32 {a[1]}, 1, 0\ns_cmp_eq_u32 {g.s_j}, 1\ns_cselect_b32 {a[3]}, 1, 0")
    g(f"v_lshrrev_b32 {t0}, 1, {gq}\nv_mul_u32_u24 {t0}, {a[1]}, {t0}\nv_add_u32 {t0}, {a[3]}, {t0}\nv_lshlrev_b32 {va}, 2, {t0}")
    g(f"v_and_b32 {t0}, 1, {gq}\nv_lshl_add_u32 {va}, {t0}, 13, {va}")
    g(f"s_lshl_b32 {a[0]}, {a[0]}, 14\ns_lshl_b32 {a[2]}, {g.s_w}, 9\ns_add_u32 {a[0]}, {a[0]}, {a[2]}\nv_lshl_add_u32 {va}, {n15}, 3, {va}\nv_add_u32 {va}, {a[0]}, {va}")
    g(f"s_lshl_b32 {a[2]}, {g.s_w}, 9\nv_lshlrev_b32 {vs}, 3, {L}\nv_add_u32 {vs}, {a[2]}, {vs}")
    sg, ss = g.sv("sg"), g.sv("ss")
    g(f"s_mul_i32 {sg}, {g.s_tb}, {LOCSZ}\ns_add_u32 {sg}, {sg}, {g.s_gb}\ns_mul_i32 {ss}, {g.s_tb}, {LOCSZ}\ns_add_u32 {ss}, {ss}, {g.s_stb}")
    g.local_barrier(g.fast, work=lambda: first_layer(g, lambda: ph_s0.s2_fix(g)))
    g.stamp(23)
    if g.fast and os.environ.get("WB") == "lbg":
        sk = g.label("wb")
        g(f"s_cmp_lg_u32 {g.s_j}, 31\ns_cbranch_scc1 {sk}\ns_cmp_lg_u32 {g.s_layer}, 1\ns_cbranch_scc1 {sk}\ns_cmp_lg_u32 {g.s_w}, 3\ns_cbranch_scc1 {sk}")
        g.lines.append("buffer_wbl2 sc1")
        g(f"{sk}:")
    done = g.label("b1d")
    g(f"s_cmp_gt_u32 {g.s_j}, 20\ns_cbranch_scc1 {done}")
    g.vm = []; g.lg = []
    st = g.vv("st", 16, 4); ga = g.vv("ga", 16, 4)
    for q in range(8):
        if q == 2 or q == 4 or q == 6: g(f"s_add_u32 {ss}, {ss}, 4096")
        g(f"buffer_load_dwordx2 {st[2*q:2*q+2]}, {vs}, {g.q_ws}, {ss} offen offset:{2048*(q%2)} sc1")
    ms = g.vm_mark()
    gm = []
    sgd = g.S.alloc("sgd", 4)
    for dd in range(4): g(f"s_add_u32 {sgd[dd]}, {sg}, {2048*dd}")
    for aa in range(4):
        for dd in range(4):
            g(f"buffer_load_dword {ga[4*aa+dd]}, {va}, {g.q_ws}, {sgd[dd]} offen offset:{128*aa} sc1")
        gm.append(g.vm_mark())
    g.S.free(sgd)
    g.wait(vm=ms)
    g.stamp(6) if g.fine else None
    for q in range(1, 8):
        g(f"v_pk_add_f32 {st[0:2]}, {st[0:2]}, {st[2*q:2*q+2]}")
    g(f"v_mul_f32 {st[0]}, {lit(1/640)}, {st[0]}\nv_mul_f32 {st[1]}, {lit(1/640)}, {st[1]}")
    g(f"v_fma_f32 {st[1]}, -{st[0]}, {st[0]}, {st[1]}\nv_add_f32 {st[1]}, {lit(1e-5)}, {st[1]}\nv_rsq_f32 {st[1]}, {st[1]}")
    g(f"s_lshl_b32 {a[2]}, {g.s_w}, 8\ns_add_u32 {a[2]}, {a[2]}, {L_R}\nv_lshlrev_b32 {t0}, 2, {L}\nv_add_u32 {t0}, {a[2]}, {t0}")
    g(f"ds_write_b32 {t0}, {st[1]}")
    g(f"v_lshlrev_b32 {t1}, 4, {gq}\nv_add_u32 {t1}, {a[2]}, {t1}")
    g.wait0(vm=False)
    rr = st
    for aa in range(4): g(f"ds_read_b128 {rr[4*aa:4*aa+4]}, {t1} offset:{64*aa}")
    mr = g.lg_mark()
    dre, dim = g.vv("dre", 16, 4), g.vv("dim", 16, 4)
    for aa in range(4):
        g.wait(vm=gm[aa])
        g(f"v_mfma_f32_16x16x32_bf16 {dre[4*aa:4*aa+4]}, {ga[4*aa:4*aa+4]}, {g.a_h2[0:4]}, 0")
        g(f"v_mfma_f32_16x16x32_bf16 {dim[4*aa:4*aa+4]}, {ga[4*aa:4*aa+4]}, {g.a_h2[4:8]}, 0")
    g.wait(lg=mr)
    ub = ga
    for aa in range(4):
        for h in range(2):
            g(f"v_pk_mul_f32 {dre[4*aa+2*h:4*aa+2*h+2]}, {dre[4*aa+2*h:4*aa+2*h+2]}, {rr[4*aa+2*h:4*aa+2*h+2]}")
            g(f"v_pk_mul_f32 {dim[4*aa+2*h:4*aa+2*h+2]}, {dim[4*aa+2*h:4*aa+2*h+2]}, {rr[4*aa+2*h:4*aa+2*h+2]}")
        g(f"v_cvt_pk_bf16_f32 {ub[4*aa]}, {dre[4*aa]}, {dre[4*aa+1]}\nv_cvt_pk_bf16_f32 {ub[4*aa+1]}, {dre[4*aa+2]}, {dre[4*aa+3]}")
        g(f"v_cvt_pk_bf16_f32 {ub[4*aa+2]}, {dim[4*aa]}, {dim[4*aa+1]}\nv_cvt_pk_bf16_f32 {ub[4*aa+3]}, {dim[4*aa+2]}, {dim[4*aa+3]}")
    g.stamp(7) if g.fine else None
    for aa in range(4):
        g(f"v_mfma_f32_16x16x32_bf16 {dre[4*aa:4*aa+4]}, {g.a_s1[0:4]}, {ub[4*aa:4*aa+4]}, 0")
        g(f"v_mfma_f32_16x16x32_bf16 {dim[4*aa:4*aa+4]}, {g.a_s1[4:8]}, {ub[4*aa:4*aa+4]}, 0")
    g(f"v_lshlrev_b32 {t0}, 12, {gq}\nv_lshl_add_u32 {t0}, {n15}, 6, {t0}\ns_lshl_b32 {a[2]}, {g.s_w}, 4\ns_add_u32 {a[2]}, {a[2]}, {L_EX}\nv_add_u32 {t0}, {a[2]}, {t0}")
    for r in range(4):
        p = st[4*r:4*r+4]
        g(f"v_cvt_pk_bf16_f32 {p[0]}, {dre[r]}, {dre[4+r]}\nv_cvt_pk_bf16_f32 {p[1]}, {dre[8+r]}, {dre[12+r]}")
        g(f"v_cvt_pk_bf16_f32 {p[2]}, {dim[r]}, {dim[4+r]}\nv_cvt_pk_bf16_f32 {p[3]}, {dim[8+r]}, {dim[12+r]}")
        g(f"ds_write_b128 {t0}, {p} offset:{1024*r}")
    g.wait0(vm=False)
    g("s_barrier")
    g(f"s_lshl_b32 {a[2]}, {g.s_w}, 12\ns_add_u32 {a[2]}, {a[2]}, {L_EX}\nv_lshlrev_b32 {t0}, 6, {n15}\nv_lshl_add_u32 {t0}, {gq}, 4, {t0}\nv_add_u32 {t0}, {a[2]}, {t0}")
    for q in range(4): g(f"ds_read_b128 {ub[4*q:4*q+4]}, {t0} offset:{1024*q}")
    g.wait0(vm=False)
    for q in range(4):
        g(f"v_mfma_f32_16x16x32_bf16 {dre[4*q:4*q+4]}, {g.a_s2[8*q:8*q+4]}, {ub[4*q:4*q+4]}, 0")
        g(f"v_mfma_f32_16x16x32_bf16 {dim[4*q:4*q+4]}, {g.a_s2[8*q+4:8*q+8]}, {ub[4*q:4*q+4]}, 0")
    g.stamp(14) if g.fine else None
    g(f"s_mul_i32 {a[2]}, {g.s_tb}, {ZSZ}\ns_add_u32 {a[2]}, {a[2]}, {g.s_zb}\ns_lshl_b32 {a[3]}, {g.s_j}, 14\ns_add_u32 {a[2]}, {a[2]}, {a[3]}")
    g(f"s_lshl_b32 {a[3]}, {g.s_w}, 12\ns_add_u32 {a[2]}, {a[2]}, {a[3]}")
    g(f"v_and_b32 {t0}, 1, {gq}\nv_lshlrev_b32 {t1}, 7, {t0}\nv_lshrrev_b32 {t0}, 1, {gq}\nv_lshl_add_u32 {t1}, {t0}, 6, {t1}\nv_lshl_add_u32 {t1}, {n15}, 2, {t1}")
    for q in range(4):
        for r in range(4):
            g(f"v_cvt_pk_bf16_f32 {st[4*q+r]}, {dre[4*q+r]}, {dim[4*q+r]}")
            g(f"buffer_store_dword {st[4*q+r]}, {t1}, {g.q_ws}, {a[2]} offen offset:{(q*4+r)*256} sc1")
    V.free(st, ga, dre, dim)
    g(f"{done}:")
    V.free(n15, gq, va, vs); g.S.free(sg, ss)
    g.stamp(24)

def b2(g, lay):
    a = g.s_a; t0, t1 = g.v_t0, g.v_t1; L = g.v_lane; V = g.V; sc = g.sc
    g.c("==== B2 ====")
    n15, gq = g.vv("n15"), g.vv("gq")
    g(f"v_and_b32 {n15}, 15, {L}\nv_lshrrev_b32 {gq}, 4, {L}")
    vd, vm_ = g.vv("vd"), g.vv("vmir"); tau = g.vv("tau")
    g(f"s_lshl_b32 {a[0]}, {g.s_j}, 3\ns_add_u32 {a[0]}, {a[0]}, {g.s_tb}")
    for mir, dst in ((0, vd), (1, vm_)):
        g(f"v_lshrrev_b32 {tau}, 1, {gq}\nv_lshlrev_b32 {tau}, 7, {tau}\nv_add_u32 {tau}, {a[0]}, {tau}")
        if mir: g(f"v_sub_u32 {tau}, 256, {tau}\nv_and_b32 {tau}, 255, {tau}")
        g(f"v_and_b32 {t0}, 15, {tau}\nv_lshlrev_b32 {dst}, 10, {t0}")
        g(f"v_bfe_u32 {t0}, {tau}, 4, 2\nv_lshl_add_u32 {dst}, {t0}, 8, {dst}")
        g(f"v_bfe_u32 {t0}, {tau}, 6, 1\nv_lshl_add_u32 {dst}, {t0}, 7, {dst}\nv_lshrrev_b32 {t0}, 7, {tau}\nv_lshl_add_u32 {dst}, {t0}, 6, {dst}")
        if mir: g(f"v_and_b32 {t0}, 8, {n15}\nv_and_b32 {t1}, 7, {n15}\nv_sub_u32 {t1}, 7, {t1}\nv_add_u32 {t0}, {t0}, {t1}\nv_lshl_add_u32 {dst}, {t0}, 2, {dst}")
        else: g(f"v_lshl_add_u32 {dst}, {n15}, 2, {dst}")
        g(f"v_and_b32 {t0}, 1, {gq}\ns_mov_b32 {a[1]}, {4*ZSZ}\nv_mul_lo_u32 {t0}, {t0}, {a[1]}\nv_add_u32 {dst}, {dst}, {t0}")
    V.free(tau)
    vx = g.vv("vx")
    g(f"s_lshr_b32 {a[1]}, {g.s_j}, 1\ns_mul_i32 {a[1]}, {a[1]}, 40960\ns_and_b32 {a[2]}, {g.s_j}, 1\ns_lshl_b32 {a[2]}, {a[2]}, 8\ns_add_u32 {a[1]}, {a[1]}, {a[2]}")
    g(f"s_mul_i32 {a[2]}, {g.s_w}, 10240\ns_add_u32 {a[1]}, {a[1]}, {a[2]}\ns_mul_i32 {a[2]}, {g.s_tb}, {XSZ}\ns_add_u32 {a[1]}, {a[1]}, {a[2]}")
    g(f"v_lshlrev_b32 {vx}, 4, {n15}\nv_lshrrev_b32 {t0}, 1, {gq}\nv_lshl_add_u32 {vx}, {t0}, 9, {vx}\nv_and_b32 {t0}, 1, {gq}\nv_lshl_add_u32 {vx}, {t0}, 10, {vx}\nv_add_u32 {vx}, {a[1]}, {vx}")
    done = g.label("b2d")
    act = g.sv("act")
    g(f"s_cmp_lt_u32 {g.s_j}, 16\ns_cselect_b32 {act}, 1, 0")
    xr = g.vv("xr", 20, 4)
    sk = g.label("b2p")
    g(f"s_cmp_eq_u32 {act}, 0\ns_cbranch_scc1 {sk}")
    for q in range(5):
        g(f"s_add_u32 {a[2]}, {g.s_x1}, {2048*q}")
        g.lines.append(f"buffer_load_dwordx4 {xr[4*q:4*q+4]}, {vx}, {g.q_ws}, {a[2]} offen sc1")
    g.lines.append("s_waitcnt vmcnt(0)")
    for q in range(5): swap_quad(g, xr[4*q:4*q+4])
    g(f"{sk}:")
    g.stamp(26)
    g(f"s_cmp_eq_u32 {act}, 0\ns_cbranch_scc1 {done}")
    za = g.vv("za", 48, 4); y = g.vv("y", 40, 4)
    sb, su = g.sv("sb"), g.sv("su")
    pa = y[0:2]; pv = y[2:4]; pb = y[4]; pu = y[5]; pm = y[6]
    for q in range(2):
        g(f"v_lshrrev_b32 {pb}, 3, {L}")
        if q: g(f"v_add_u32 {pb}, 8, {pb}\nv_min_u32 {pb}, 9, {pb}")
        g(f"s_mul_i32 {sb}, {g.s_w}, 10\nv_add_u32 {pb}, {sb}, {pb}")
        g(f"v_subrev_u32 {pu}, 19, {pb}\nv_cmp_lt_u32 vcc, 20, {pb}\nv_cndmask_b32 {pu}, {pb}, {pu}, vcc")
        g(f"v_readlane_b32 {a[2]}, {vd}, 0\nv_readlane_b32 {a[3]}, {vm_}, 0")
        g(f"v_mov_b32 {pm}, {a[2]}\nv_mov_b32 {t0}, {a[3]}\nv_cndmask_b32 {pm}, {pm}, {t0}, vcc")
        g(f"v_lshl_add_u32 {pa[q]}, {pu}, 14, {pm}\nv_and_b32 {t0}, 7, {L}\ns_mov_b32 {a[2]}, {ZSZ}\nv_mul_lo_u32 {t0}, {t0}, {a[2]}\nv_add_u32 {pa[q]}, {pa[q]}, {t0}")
    oad = g.vv("oad", 10)
    skl = g.label("oa")
    g(f"s_cmp_eq_u32 {g.s_layer}, 0\ns_cbranch_scc1 {skl}")
    cod, up, dn_, bs = y[8], y[9], y[10], y[11]
    g(f"s_mul_i32 {sb}, {g.s_w}, 20\nv_lshrrev_b32 {cod}, 1, {gq}\nv_add_u32 {cod}, {sb}, {cod}")
    g(f"v_and_b32 {t0}, 1, {gq}\nv_mul_u32_u24 {bs}, 640, {t0}\nv_mul_u32_u24 {t0}, 1296, {n15}\nv_add_u32 {bs}, {bs}, {t0}\nv_add_u32 {bs}, {L_OUT}, {bs}")
    g(f"v_lshl_add_u32 {up}, {cod}, 1, {bs}\nv_subrev_u32 {up}, 4, {up}")
    g(f"v_lshlrev_b32 {t0}, 1, {cod}\nv_sub_u32 {dn_}, {bs}, {t0}\nv_add_u32 {dn_}, 240, {dn_}")
    for bl in range(10):
        if bl: g(f"v_add_u32 {up}, 4, {up}\nv_subrev_u32 {dn_}, 4, {dn_}")
        g(f"v_cmp_lt_u32 vcc, {41 - 2*bl}, {cod}\nv_cndmask_b32 {oad[bl]}, {up}, {dn_}, vcc")
    g(f"v_lshrrev_b32 {t0}, 1, {gq}\nv_mul_u32_u24 {t1}, 80, {t0}\nv_add_u32 {t1}, {t1}, {bs}\ns_cmp_eq_u32 {g.s_w}, 0\ns_cselect_b64 vcc, -1, 0\nv_cndmask_b32 {oad[0]}, {oad[0]}, {t1}, vcc")
    g(f"v_mul_u32_u24 {t1}, 156, {t0}\nv_add_u32 {t1}, {t1}, {bs}\nv_add_u32 {t1}, 2, {t1}\nv_cndmask_b32 {oad[1]}, {oad[1]}, {t1}, vcc")
    g(f"{skl}:")
    g("s_barrier")
    lq = g.label("zq"); dq = g.label("zqd")
    g(f"s_mov_b32 {g.s_spin}, {1 << 18}")
    g(f"{lq}:")
    for q in range(2): g.lines.append(f"buffer_load_dword {pv[q]}, {pa[q]}, {g.q_ws}, {g.s_zb} offen sc1")
    g.lines.append("s_waitcnt vmcnt(0)")
    g(f"v_max_u32 {t1}, {pv[0]}, {pv[1]}\nv_cmp_eq_u32 vcc, -1, {t1}\ns_cbranch_vccz {dq}")
    g(f"s_sub_u32 {g.s_spin}, {g.s_spin}, 1\ns_cmp_lg_u32 {g.s_spin}, 0\ns_cbranch_scc1 {lq}")
    g(f"{dq}:")
    g.stamp(25)
    lp = g.label("zp"); dn = g.label("zd")
    g(f"s_mov_b32 {g.s_spin}, {1 << 16}")
    g(f"{lp}:")
    for bl in range(10):
        g(f"s_mul_i32 {sb}, {g.s_w}, 10\ns_add_u32 {sb}, {sb}, {bl}")
        g(f"s_sub_u32 {su}, {sb}, 19\ns_cmp_gt_u32 {sb}, 20\ns_cselect_b32 {su}, {su}, {sb}")
        g(f"s_lshl_b32 {su}, {su}, 14\ns_add_u32 {su}, {su}, {g.s_zb}")
        g(f"s_cmp_gt_u32 {sb}, 20\ns_cselect_b64 vcc, -1, 0\nv_cndmask_b32 {t0}, {vd}, {vm_}, vcc")
        for dd in range(4):
            g.lines.append(f"buffer_load_dword {za[4*bl+dd]}, {t0}, {g.q_ws}, {su} offen sc1")
            if dd < 3: g(f"s_add_u32 {su}, {su}, {ZSZ}")
    g.stamp(15) if g.fine else None
    g.lines.append("s_waitcnt vmcnt(0)")
    g(f"v_max3_u32 {t1}, {za[0]}, {za[1]}, {za[2]}")
    for q in range(3, 39, 2): g(f"v_max3_u32 {t1}, {t1}, {za[q]}, {za[q+1]}")
    g(f"v_max_u32 {t1}, {t1}, {za[39]}\nv_cmp_eq_u32 vcc, -1, {t1}\ns_cbranch_vccz {dn}")
    g(f"s_sub_u32 {g.s_spin}, {g.s_spin}, 1\ns_cmp_lg_u32 {g.s_spin}, 0\ns_cbranch_scc1 {lp}")
    g(f"{dn}:")
    if g.fast and os.environ.get("WB", "b2") == "b2":
        sk = g.label("wb")
        g(f"s_cmp_lg_u32 {g.s_j}, 15\ns_cbranch_scc1 {sk}\ns_cmp_lg_u32 {g.s_layer}, 1\ns_cbranch_scc1 {sk}\ns_cmp_lg_u32 {g.s_w}, 3\ns_cbranch_scc1 {sk}")
        g.lines.append("buffer_wbl2 sc1")
        g(f"{sk}:")
    bc = g.vv("bc", 8, 4)
    for q in range(8): g(f"v_accvgpr_read_b32 {bc[q]}, {g.a_b2[q]}")
    cur = g.vv("cur", 4, 4)
    for bl in range(10):
        g(f"s_mul_i32 {sb}, {g.s_w}, 10\ns_add_u32 {sb}, {sb}, {bl}\ns_cmp_gt_u32 {sb}, 20\ns_cselect_b64 vcc, -1, 0")
        for q in range(4): g(f"v_cndmask_b32 {cur[q]}, {bc[q]}, {bc[4+q]}, vcc")
        g(f"v_mfma_f32_16x16x32_bf16 {y[4*bl:4*bl+4]}, {za[4*bl:4*bl+4]}, {cur}, 0")
    V.free(bc, cur)
    g.stamp(28) if g.fine else None
    xf = g.vv("xf", 4); sm, sq = g.vv("sm", 2, 2), g.vv("sq", 2, 2)
    for bl in range(10):
        g(f"v_lshlrev_b32 {xf[0]}, 16, {xr[2*bl]}\nv_and_b32 {xf[1]}, 0xffff0000, {xr[2*bl]}\nv_lshlrev_b32 {xf[2]}, 16, {xr[2*bl+1]}\nv_and_b32 {xf[3]}, 0xffff0000, {xr[2*bl+1]}")
        g(f"v_pk_add_f32 {y[4*bl:4*bl+2]}, {y[4*bl:4*bl+2]}, {xf[0:2]}\nv_pk_add_f32 {y[4*bl+2:4*bl+4]}, {y[4*bl+2:4*bl+4]}, {xf[2:4]}")
    x2p = za[0:20]
    for q in range(20): g(f"v_cvt_pk_bf16_f32 {x2p[q]}, {y[2*q]}, {y[2*q+1]}")
    last = g.label("b2last"); join = g.label("b2join")
    g(f"s_cmp_lg_u32 {g.s_layer}, 0\ns_cbranch_scc1 {last}")
    g(f"s_mov_b32 {a[2]}, {X_IN[1]}")
    for q in range(5):
        swap_quad(g, x2p[4*q:4*q+4])
        g.lines.append(f"buffer_store_dwordx4 {x2p[4*q:4*q+4]}, {vx}, {g.q_ws}, {a[2]} offen{sc}")
        g(f"s_add_u32 {a[2]}, {a[2]}, 2048")
    g(f"v_pk_add_f32 {sm}, {y[0:2]}, {y[2:4]}\nv_pk_mul_f32 {sq}, {y[0:2]}, {y[0:2]}\nv_pk_fma_f32 {sq}, {y[2:4]}, {y[2:4]}, {sq}")
    for q in range(2, 20):
        g(f"v_pk_add_f32 {sm}, {sm}, {y[2*q:2*q+2]}\nv_pk_fma_f32 {sq}, {y[2*q:2*q+2]}, {y[2*q:2*q+2]}, {sq}")
    g(f"v_add_f32 {sm[0]}, {sm[0]}, {sm[1]}\nv_add_f32 {sm[1]}, {sq[0]}, {sq[1]}")
    for x in (sm[0], sm[1]):
        g.xq16(x, t0, "v_add_f32"); g.xhalf(x, t0, "v_add_f32")
    g(f"s_lshl_b32 {a[2]}, {g.s_w}, 7\ns_add_u32 {a[2]}, {a[2]}, {L_ST2}\nv_lshlrev_b32 {t1}, 3, {n15}\nv_add_u32 {t0}, {a[2]}, {t1}")
    g.lines.append(f"ds_write_b64 {t0}, {sm}")
    g.lines.append("s_waitcnt lgkmcnt(0)")
    g("s_barrier")
    g(f"v_add_u32 {t1}, {L_ST2}, {t1}")
    pr = za[20:28]
    for w in range(4): g.lines.append(f"ds_read_b64 {pr[2*w:2*w+2]}, {t1} offset:{128*w}")
    g.lines.append("s_waitcnt lgkmcnt(0)")
    g(f"v_pk_add_f32 {pr[0:2]}, {pr[0:2]}, {pr[2:4]}\nv_pk_add_f32 {pr[4:6]}, {pr[4:6]}, {pr[6:8]}\nv_pk_add_f32 {sm}, {pr[0:2]}, {pr[4:6]}")
    g(f"v_mul_f32 {sm[0]}, {lit(1/640)}, {sm[0]}\nv_mul_f32 {sm[1]}, {lit(1/640)}, {sm[1]}")
    g(f"v_fma_f32 {sq[0]}, -{sm[0]}, {sm[0]}, {sm[1]}\nv_add_f32 {sq[0]}, {lit(1e-5)}, {sq[0]}\nv_rsq_f32 {sq[0]}, {sq[0]}")
    g(f"v_mul_f32_e64 {sm[0]}, -{sm[0]}, {sq[0]}")
    for q in range(20):
        g(f"v_pk_fma_f32 {y[2*q:2*q+2]}, {y[2*q:2*q+2]}, {sq}, {sm} op_sel_hi:[1,0,0]")
    xn = za[28:48]
    for q in range(20): g(f"v_cvt_pk_bf16_f32 {xn[q]}, {y[2*q]}, {y[2*q+1]}")
    g(f"s_mov_b32 {a[2]}, {XN_IN[1]}")
    for q in range(5):
        swap_quad(g, xn[4*q:4*q+4])
        g.lines.append(f"buffer_store_dwordx4 {xn[4*q:4*q+4]}, {vx}, {g.q_ws}, {a[2]} offen{sc}")
        g(f"s_add_u32 {a[2]}, {a[2]}, 2048")
    g(f"s_branch {join}")
    g(f"{last}:")
    for bl in range(10):
        ad = oad[bl]
        g.lines.append(f"ds_write_b16 {ad}, {x2p[2*bl]}")
        g.lines.append(f"ds_write_b16_d16_hi {ad}, {x2p[2*bl]} offset:160")
        g.lines.append(f"ds_write_b16 {ad}, {x2p[2*bl+1]} offset:320")
        g.lines.append(f"ds_write_b16_d16_hi {ad}, {x2p[2*bl+1]} offset:480")
    g.lines.append("s_waitcnt lgkmcnt(0)")
    g("s_barrier")
    q_out = g.q_in
    g.srd(q_out, g.p_in[8], g.p_in[9], S * 1280)
    ro = y[4:24]; oa = y[24]; la = y[25]
    g(f"v_lshrrev_b32 {t0}, 4, v0\nv_and_b32 {t1}, 15, v0\nv_mul_u32_u24 {la}, 1296, {t0}\nv_lshl_add_u32 {la}, {t1}, 4, {la}\nv_add_u32 {la}, {L_OUT}, {la}")
    g(f"s_lshl_b32 {a[2]}, {g.s_j}, 3\ns_add_u32 {a[2]}, {a[2]}, {g.s_tb}\nv_lshlrev_b32 {t0}, 7, {t0}\nv_add_u32 {t0}, {a[2]}, {t0}\nv_mul_u32_u24 {oa}, 1280, {t0}\nv_lshl_add_u32 {oa}, {t1}, 4, {oa}")
    for c in range(5): g.lines.append(f"ds_read_b128 {ro[4*c:4*c+4]}, {la} offset:{256*c}")
    g.lines.append("s_waitcnt lgkmcnt(0)")
    for c in range(5): g.lines.append(f"buffer_store_dwordx4 {ro[4*c:4*c+4]}, {oa}, {q_out}, 0 offen offset:{256*c} sc1")
    g(f"{join}:")
    V.free(za, y, xf, sm, sq, oad); g.S.free(sb, su)
    g(f"{done}:")
    V.free(n15, gq, vd, vm_, vx, xr); g.S.free(act)
    g.stamp(27)
    fin = g.label("fin")
    g(f"s_cmp_lg_u32 {g.s_layer}, 0\ns_cbranch_scc1 {fin}")
    g.local_barrier(g.fast)
    g.stamp(28)
    g(f"s_mov_b32 {g.s_layer}, 1")
    g(f"s_branch {lay}")
    g(f"{fin}:")
```

```python
from emit import *
from maps import *
from gen_main import lit
BIG = 0x7ff00000

def p2_setup(g):
    a = g.s_a; t0, t1 = g.v_t0, g.v_t1; L = g.v_lane; V = g.V
    g.v_xp = g.vv("xp", 3)
    e2, base, gq = g.vv("e2"), g.vv("base"), g.vv("gq")
    g(f"s_and_b32 {a[0]}, {g.s_j}, 3\ns_lshl_b32 {a[0]}, {a[0]}, 6\ns_and_b32 {a[1]}, {g.s_w}, 1\ns_lshl_b32 {a[1]}, {a[1]}, 5\ns_add_u32 {a[0]}, {a[0]}, {a[1]}")
    g(f"s_lshr_b32 {a[1]}, {g.s_w}, 1\ns_lshl_b32 {a[1]}, {a[1]}, 4\ns_add_u32 {a[0]}, {a[0]}, {a[1]}")
    g.v_p2p = g.vv("p2p")
    g(f"v_and_b32 {t0}, 15, {L}\nv_add_u32 {g.v_p2p}, {a[0]}, {t0}")
    g(f"v_lshrrev_b32 {t0}, 5, {g.v_p2p}\nv_mul_u32_u24 {base}, 40960, {t0}\nv_and_b32 {t0}, 31, {g.v_p2p}\nv_lshl_add_u32 {base}, {t0}, 4, {base}")
    g(f"v_lshrrev_b32 {gq}, 4, {L}")
    g(f"s_lshr_b32 {a[1]}, {g.s_j}, 2")
    for q in range(3):
        g(f"v_lshrrev_b32 {t0}, 1, {gq}\nv_lshlrev_b32 {e2}, 3, {t0}\nv_add_u32 {e2}, {a[1]}, {e2}")
        if q < 2: g(f"v_and_b32 {t0}, 1, {gq}\nv_lshl_add_u32 {e2}, {t0}, 4, {e2}")
        if q: g(f"v_add_u32 {e2}, {32*q}, {e2}")
        g.code_of_e2(g.v_xp[q], e2, t0)
        g(f"v_lshl_add_u32 {g.v_xp[q]}, {g.v_xp[q]}, 9, {base}")
    V.free(e2, base, gq)

def first_layer(g, fn):
    sk = g.label("cst")
    g(f"s_cmp_lg_u32 {g.s_layer}, 0\ns_cbranch_scc1 {sk}")
    fn()
    g(f"{sk}:")
def drain_n(gen, n):
    for _ in range(n):
        try: next(gen)
        except StopIteration: return

def swap_quad(g, r):
    g(f"v_permlane16_swap_b32 {r[0]}, {r[2]}\nv_permlane16_swap_b32 {r[1]}, {r[3]}")

def p2(g):
    a = g.s_a; t0, t1 = g.v_t0, g.v_t1; L = g.v_lane; V = g.V; sc = g.sc
    g.c("==== P2 ====")
    p2_setup(g)
    xr = g.vv("xr", 12, 4)
    sxr = g.sv("sxr")
    g(f"s_mul_i32 {sxr}, {g.s_tb}, {XSZ}\ns_add_u32 {a[1]}, {sxr}, {g.s_xr}")
    res = []
    vo = g.vv("vo"); vt = g.vv("vt")
    g(f"v_lshlrev_b32 {vo}, 4, {L}")
    g(f"v_lshrrev_b32 {t0}, 4, {L}\nv_lshlrev_b32 {vt}, 8, {t0}\nv_and_b32 {t0}, 15, {L}\nv_lshl_add_u32 {vt}, {t0}, 3, {vt}")
    so = g.S.alloc("so", 4)
    g(f"s_and_b32 {a[2]}, {g.s_j}, 3\ns_lshl_b32 {a[2]}, {a[2]}, 2\ns_and_b32 {a[3]}, {g.s_w}, 1\ns_lshl_b32 {a[3]}, {a[3]}, 1\ns_add_u32 {a[2]}, {a[2]}, {a[3]}\ns_mul_i32 {a[2]}, {a[2]}, 20480")
    g(f"s_mul_i32 {a[3]}, {g.s_tb}, {LOCSZ}\ns_add_u32 {a[2]}, {a[2]}, {a[3]}\ns_add_u32 {a[2]}, {a[2]}, {g.s_ob}")
    g(f"s_lshr_b32 {a[3]}, {g.s_w}, 1\ns_lshl_b32 {so[0]}, {a[3]}, 13\ns_add_u32 {so[0]}, {so[0]}, {a[2]}\ns_add_u32 {so[1]}, {so[0]}, 20480")
    g(f"s_lshl_b32 {so[2]}, {a[3]}, 11\ns_add_u32 {so[2]}, {so[2]}, {a[2]}\ns_add_u32 {so[2]}, {so[2]}, 16384\ns_add_u32 {so[3]}, {so[2]}, 20480")
    g.local_barrier(g.fast, work=lambda: first_layer(g, lambda: drain_n(g.wo_gen, 99)))
    g.S.free(g.wo_sb)
    g.stamp(20)
    ob = g.vv("ob", 80, 4)
    marks = {}
    def oload(u):
        for tt in range(2):
            r = ob[(u*2+tt)*4:(u*2+tt)*4+4]
            if u < 8:
                if u == 4: g(f"s_add_u32 {so[tt]}, {so[tt]}, 4096")
                g(f"buffer_load_dwordx4 {r}, {vo}, {g.q_ws}, {so[tt]} offen offset:{1024*(u%4)} sc1")
            else:
                v = u - 8
                g(f"buffer_load_dwordx2 {r[0:2]}, {vt}, {g.q_ws}, {so[2+tt]} offen offset:{1024*v} sc1")
                g(f"buffer_load_dwordx2 {r[2:4]}, {vt}, {g.q_ws}, {so[2+tt]} offen offset:{1024*v + 128} sc1")
        marks[u] = g.vm_mark()
    AHEAD = 4
    for u in range(AHEAD): oload(u)
    acc = g.vv("acc", 40, 4)
    g.stamp(1) if g.fine else None
    for u in range(10):
        g.wait(vm=marks[u])
        if u == 1 and g.fine: g.stamp(2)
        if u == 5 and g.fine: g.stamp(3)
        n = 0
        for tt in range(2):
            b = ob[(u*2+tt)*4:(u*2+tt)*4+4]
            for i in range(5):
                c = acc[(tt*5+i)*4:(tt*5+i)*4+4]
                g(f"v_mfma_f32_16x16x32_bf16 {c}, {g.a_wo[(u*5+i)*4:(u*5+i)*4+4]}, {b}, {0 if u == 0 else c}")
                n += 1
                if n == 2 and u + AHEAD < 10: oload(u + AHEAD)
                if n == 2 and u == 6:
                    g(f"s_add_u32 {a[1]}, {sxr}, {g.s_xr}")
                    for q in range(3):
                        g(f"buffer_load_dwordx4 {xr[4*q:4*q+4]}, {g.v_xp[q]}, {g.q_ws}, {a[1]} offen sc1")
                    mx = g.vm_mark()
    V.free(ob, vo, vt)
    g.stamp(21)
    ex = g.vv("ex"); h1 = g.vv("h1", 60, 4); hadr = g.vv("hadr")
    g(f"s_mul_i32 {a[2]}, {g.s_w}, 5120\ns_add_u32 {a[2]}, {a[2]}, {L_SCR}\nv_lshlrev_b32 {ex}, 4, {L}\nv_add_u32 {t1}, {a[2]}, {ex}")
    lk = g.label("k1"); lk2 = g.label("k2")
    g(f"s_cmp_ge_u32 {g.s_w}, 2\ns_cbranch_scc1 {lk}")
    for i in range(5): g.lines.append(f"ds_write_b128 {t1}, {acc[(5+i)*4:(5+i)*4+4]} offset:{1024*i}")
    g(f"s_branch {lk2}\n{lk}:")
    for i in range(5): g.lines.append(f"ds_write_b128 {t1}, {acc[i*4:i*4+4]} offset:{1024*i}")
    for q in range(20): g(f"v_mov_b32 {acc[q]}, {acc[20+q]}")
    g(f"{lk2}:")
    g(f"v_add_u32 {hadr}, {L_H1}, {ex}")
    g.lines.append("s_waitcnt lgkmcnt(0)")
    g("s_barrier")
    g(f"s_xor_b32 {a[2]}, {g.s_w}, 2\ns_mul_i32 {a[2]}, {a[2]}, 5120\ns_add_u32 {a[2]}, {a[2]}, {L_SCR}\nv_add_u32 {t1}, {a[2]}, {ex}")
    g.lg = []
    oth = acc[20:40]
    for i in range(5): g(f"ds_read_b128 {oth[4*i:4*i+4]}, {t1} offset:{1024*i}")
    mo = g.lg_mark()
    g.stamp(4) if g.fine else None
    hm = []
    for f in range(15):
        g(f"ds_read_b128 {h1[4*f:4*f+4]}, {hadr} offset:{1024*f}")
    mh = g.lg_mark()
    g.wait(vm=mx, lg=mo)
    x1 = acc[0:20]
    xf = g.vv("xf", 4)
    for q in range(3): swap_quad(g, xr[4*q:4*q+4])
    for i in range(5):
        g(f"v_pk_add_f32 {x1[4*i:4*i+2]}, {x1[4*i:4*i+2]}, {oth[4*i:4*i+2]}\nv_pk_add_f32 {x1[4*i+2:4*i+4]}, {x1[4*i+2:4*i+4]}, {oth[4*i+2:4*i+4]}")
        g(f"v_lshlrev_b32 {xf[0]}, 16, {xr[2*i]}\nv_and_b32 {xf[1]}, 0xffff0000, {xr[2*i]}\nv_lshlrev_b32 {xf[2]}, 16, {xr[2*i+1]}\nv_and_b32 {xf[3]}, 0xffff0000, {xr[2*i+1]}")
        g(f"v_pk_add_f32 {x1[4*i:4*i+2]}, {x1[4*i:4*i+2]}, {xf[0:2]}\nv_pk_add_f32 {x1[4*i+2:4*i+4]}, {x1[4*i+2:4*i+4]}, {xf[2:4]}")
    V.free(xf)
    xp = g.vv("xp1", 12, 4)
    for q in range(10): g(f"v_cvt_pk_bf16_f32 {xp[q]}, {x1[2*q]}, {x1[2*q+1]}")
    g(f"v_mov_b32 {xp[10]}, 0\nv_mov_b32 {xp[11]}, 0")
    for q in range(8): g(f"v_mov_b32 {xr[q]}, {xp[q]}")
    g(f"v_mov_b32 {xr[8]}, {xp[8]}\nv_mov_b32 {xr[9]}, {xp[9]}\nv_mov_b32 {xr[10]}, {xp[8]}\nv_mov_b32 {xr[11]}, {xp[9]}")
    for q in range(3): swap_quad(g, xr[4*q:4*q+4])
    G = oth
    g.wait(lg=mh)
    for ip in range(5):
        for u in range(3):
            c = G[4*ip:4*ip+4]
            g(f"v_mfma_f32_16x16x32_bf16 {c}, {h1[4*(ip*3+u):4*(ip*3+u)+4]}, {xp[4*u:4*u+4]}, {0 if u == 0 else c}")
    g.stamp(5) if g.fine else None
    g(f"s_add_u32 {a[1]}, {sxr}, {g.s_x1}")
    for q in range(3):
        g(f"buffer_store_dwordx4 {xr[4*q:4*q+4]}, {g.v_xp[q]}, {g.q_ws}, {a[1]} offen{sc}")
    sm, sq = g.vv("sm", 2, 2), g.vv("sq", 2, 2)
    g(f"v_pk_add_f32 {sm}, {x1[0:2]}, {x1[2:4]}\nv_pk_mul_f32 {sq}, {x1[0:2]}, {x1[0:2]}\nv_pk_fma_f32 {sq}, {x1[2:4]}, {x1[2:4]}, {sq}")
    for q in range(2, 10):
        g(f"v_pk_add_f32 {sm}, {sm}, {x1[2*q:2*q+2]}\nv_pk_fma_f32 {sq}, {x1[2*q:2*q+2]}, {x1[2*q:2*q+2]}, {sq}")
    g(f"v_add_f32 {sm[0]}, {sm[0]}, {sm[1]}\nv_add_f32 {sm[1]}, {sq[0]}, {sq[1]}")
    for x in (sm[0], sm[1]):
        g.xq16(x, t0, "v_add_f32"); g.xhalf(x, t0, "v_add_f32")
    g(f"s_lshr_b32 {a[2]}, {g.s_j}, 2\ns_lshl_b32 {a[2]}, {a[2]}, 11\nv_lshlrev_b32 {t1}, 3, {g.v_p2p}")
    g(f"v_cmp_gt_u32 vcc, 16, {L}\nv_mov_b32 {t0}, {BIG}\nv_cndmask_b32 {t1}, {t0}, {t1}, vcc")
    g(f"s_mul_i32 {a[3]}, {g.s_tb}, {LOCSZ}\ns_add_u32 {a[2]}, {a[2]}, {a[3]}\ns_add_u32 {a[2]}, {a[2]}, {g.s_stb}")
    g(f"buffer_store_dwordx2 {sm}, {t1}, {g.q_ws}, {a[2]} offen{sc}")
    gq = g.vv("gpk", 10, 2)
    for ip in range(5):
        g(f"v_cvt_pk_bf16_f32 {gq[2*ip]}, {G[4*ip]}, {G[4*ip+1]}\nv_cvt_pk_bf16_f32 {gq[2*ip+1]}, {G[4*ip+2]}, {G[4*ip+3]}")
    g(f"v_lshrrev_b32 {t0}, 4, {L}\nv_lshlrev_b32 {t1}, 14, {t0}\nv_lshl_add_u32 {t1}, {g.v_p2p}, 3, {t1}")
    g(f"s_lshr_b32 {a[2]}, {g.s_j}, 2\ns_lshl_b32 {a[2]}, {a[2]}, 11\ns_mul_i32 {a[3]}, {g.s_tb}, {LOCSZ}\ns_add_u32 {a[2]}, {a[2]}, {a[3]}\ns_add_u32 {a[2]}, {a[2]}, {g.s_gb}")
    for ip in range(5):
        g(f"buffer_store_dwordx2 {gq[2*ip:2*ip+2]}, {t1}, {g.q_ws}, {a[2]} offen{sc}")
        if ip < 4: g(f"s_add_u32 {a[2]}, {a[2]}, {4*16384}")
    g.stamp(22)
    V.free(acc, ex, h1, hadr, xp, sm, sq, gq, g.v_xp, g.v_p2p, xr)
    g.S.free(sxr, so)
```

```python
from emit import *
from maps import *
from gen_main import lit, f2u, LOG2E
BIG = 0x7ff00000
NR = 10
DUMMY = L_MISC + 512

def drain(gen):
    for _ in gen: pass

def p1_alloc(g):
    g.v_Aq = g.vv("Aq", 2); g.v_Ak = g.vv("Ak", 2)
    g.v_x16 = g.vv("x16")
    g.v_img = g.vv("img"); g.v_vA = g.vv("vA"); g.v_vC = g.vv("vC"); g.v_T = g.vv("vT"); g.v_K = g.vv("vK")
    g.s_l2e2 = g.sv("l2e", 2); g.s_l2e = g.s_l2e2[0]; g.s_hi = g.sv("hi", 2); g.v_one = g.vv("one")

def p1_setup(g):
    t0, t1 = g.v_t0, g.v_t1; V = g.V; a = g.s_a; L = g.v_lane
    r, c, khh, ch = g.vv("r"), g.vv("c"), g.vv("khh"), g.vv("ch")
    g(f"v_bfe_u32 {r}, {L}, 2, 2\nv_and_b32 {c}, 3, {L}\nv_lshrrev_b32 {khh}, 5, {L}\nv_bfe_u32 {ch}, {L}, 4, 1")
    g(f"v_lshl_add_u32 {t0}, {khh}, 3, {r}")
    g(f"v_lshlrev_b32 {t1}, 5, {ch}\nv_lshl_add_u32 {t1}, {c}, 3, {t1}")
    g(f"v_lshl_add_u32 {g.v_Aq[0]}, {t0}, 7, {t1}")
    g(f"v_mul_u32_u24 {g.v_T}, 192, {t0}\nv_add_u32 {g.v_T}, {g.v_T}, {t1}")
    g(f"v_bfe_u32 {t0}, {L}, 3, 1\nv_lshl_add_u32 {g.v_Aq[0]}, {t0}, 6, {g.v_Aq[0]}")
    g(f"v_xor_b32 {g.v_Ak[0]}, 64, {g.v_Aq[0]}")
    g(f"v_add_u32 {g.v_Aq[1]}, 0x10000, {g.v_Aq[0]}\nv_add_u32 {g.v_Ak[1]}, 0x10000, {g.v_Ak[0]}")
    g(f"s_mul_i32 {a[0]}, {g.s_w}, 12288\ns_add_u32 {a[0]}, {a[0]}, {L_SCR}")
    g(f"v_add_u32 {g.v_T}, {a[0]}, {g.v_T}")
    g(f"v_lshlrev_b32 {g.v_x16}, 4, {L}")
    g(f"v_and_b32 {t0}, 31, {L}\nv_mul_u32_u24 {t1}, 192, {t0}\nv_add_u32 {t1}, {a[0]}, {t1}")
    g(f"v_lshl_add_u32 {g.v_img}, {khh}, 5, {t1}")
    g(f"v_lshl_add_u32 {g.v_vA}, {khh}, 3, {t1}\nv_add_u32 {g.v_vA}, 136, {g.v_vA}")
    g(f"v_cmp_eq_u32 vcc, 0, {khh}\nv_cndmask_b32_e64 {g.v_vC}, 0, 40, vcc\nv_add_u32 {g.v_vC}, {g.v_vC}, {t1}\nv_add_u32 {g.v_vC}, 128, {g.v_vC}")
    g(f"s_mul_i32 {a[1]}, {g.s_w}, 12288\ns_add_u32 {a[1]}, {a[1]}, {L_KVS}")
    g(f"v_mul_u32_u24 {g.v_K}, 384, {khh}\nv_lshl_add_u32 {g.v_K}, {t0}, 2, {g.v_K}\nv_add_u32 {g.v_K}, {a[1]}, {g.v_K}")
    V.free(r, c, khh, ch)
    z = g.vv("z", 4)
    for i in range(4): g(f"v_mov_b32 {z[i]}, 0")
    g(f"v_lshlrev_b32 {t0}, 4, v0\nv_add_u32 {t0}, {L_KVA}, {t0}")
    g(f"v_cmp_gt_u32 vcc, 192, v0\nv_mov_b32 {t1}, {DUMMY}\nv_cndmask_b32 {t0}, {t1}, {t0}, vcc")
    g.lines.append(f"ds_write_b128 {t0}, {z}")
    V.free(z)
    g(f"s_mov_b32 {g.s_l2e}, {lit(LOG2E)}\ns_mov_b32 {g.s_l2e2[1]}, {lit(LOG2E)}\ns_mov_b32 {g.s_hi[0]}, 0\ns_mov_b32 {g.s_hi[1]}, -1\nv_mov_b32 {g.v_one}, 0x3f80")

def ga_setup(g):
    t0, t1 = g.v_t0, g.v_t1; V = g.V
    g.v_ga = g.vv("ga", 4); g.v_ga3 = g.vv("gaz")
    row, q, kh, slot, c, m = g.vv("row"), g.vv("q"), g.vv("kh"), g.vv("slot"), g.vv("c"), g.vv("m")
    g(f"v_mul_u32_u24 {row}, 10923, v0\nv_lshrrev_b32 {row}, 16, {row}")
    g(f"v_mul_u32_u24 {t0}, 6, {row}\nv_sub_u32 {q}, v0, {t0}")
    g(f"v_cmp_lt_u32 vcc, 19, {row}\nv_cndmask_b32_e64 {kh}, 0, 1, vcc\nv_mul_u32_u24 {t0}, 20, {kh}\nv_sub_u32 {slot}, {row}, {t0}")
    g(f"v_mul_u32_u24 {kh}, 48, {kh}\nv_lshl_add_u32 {kh}, {slot}, 1, {kh}\nv_add_u32 {kh}, {L_KVA}, {kh}")
    for e in range(4):
        g(f"v_lshl_add_u32 {c}, {q}, 2, {e}")
        g(f"v_cmp_lt_u32 vcc, 9, {c}\nv_cndmask_b32_e64 {t0}, 0, 1, vcc\nv_mul_u32_u24 {t1}, 10, {t0}\nv_sub_u32 {t1}, {c}, {t1}")
        g(f"v_lshrrev_b32 {m}, 2, {t1}\nv_lshlrev_b32 {m}, 3, {m}\nv_lshl_add_u32 {m}, {t0}, 2, {m}\nv_and_b32 {t1}, 3, {t1}\nv_add_u32 {m}, {m}, {t1}")
        g(f"v_cmp_eq_u32 vcc, 20, {c}\nv_cndmask_b32_e64 {m}, {m}, 18, vcc")
        g(f"v_mul_u32_u24 {g.v_ga[e]}, 96, {m}\nv_add_u32 {g.v_ga[e]}, {g.v_ga[e]}, {kh}")
        g(f"v_mov_b32 {t1}, {DUMMY}\nv_cmp_lt_u32 vcc, 20, {c}\nv_cndmask_b32 {g.v_ga[e]}, {g.v_ga[e]}, {t1}, vcc")
        g(f"v_cmp_lt_u32 vcc, 239, v0\nv_cndmask_b32 {g.v_ga[e]}, {g.v_ga[e]}, {t1}, vcc")
    g(f"v_add_u32 {g.v_ga3}, 384, {g.v_ga[0]}\nv_mov_b32 {t1}, {DUMMY}\nv_cmp_ne_u32 vcc, 5, {q}\nv_cndmask_b32 {g.v_ga3}, {g.v_ga3}, {t1}, vcc")
    g(f"v_cmp_lt_u32 vcc, 239, v0\nv_cndmask_b32 {g.v_ga3}, {g.v_ga3}, {t1}, vcc")
    V.free(row, q, kh, slot, c, m)

def set_layer(g):
    for nm, arr in (("s_xn", XN_IN), ("s_xr", X_IN), ("s_kvb", KVB), ("s_ob", OB), ("s_x1", X1), ("s_gb", GB), ("s_stb", STB), ("s_zb", ZB)):
        if not hasattr(g, nm) or getattr(g, nm) is None: setattr(g, nm, g.sv(nm))
        r = getattr(g, nm)
        g(f"s_cmp_eq_u32 {g.s_layer}, 0\ns_cselect_b32 {r}, {arr[0]}, {arr[1]}") if False else None
        g(f"s_mul_i32 {r}, {g.s_layer}, {arr[1] - arr[0]}\ns_add_u32 {r}, {r}, {arr[0]}")
        if nm == "s_x1": g(f"s_mul_i32 {g.s_a[0]}, {g.s_tb}, {LOCSZ - XSZ}\ns_add_u32 {r}, {r}, {g.s_a[0]}")

def softmax_gen(g, acc, pk, outp, outm, T, packed, skip_pack=False):
    d2, ep, em = T["d2"], T["ep"], T["em"]
    mx, mn, t2, sp, sm_ = T["mx"], T["mn"], T["t2"], T["sp"], T["sm"]
    if not skip_pack:
        for q in range(8):
            g(f"v_cvt_pk_bf16_f32 {pk[q]}, {acc[2*q]}, {acc[2*q+1]}"); yield 1
    g(f"v_mfma_f32_32x32x16_bf16 {d2}, {g.v_phi[0:4]}, {pk[0:4]}, 0"); yield "mfma"
    g(f"v_mfma_f32_32x32x16_bf16 {d2}, {g.v_phi[4:8]}, {pk[4:8]}, {d2}"); yield "mfma"
    yield "gap"
    g(f"v_max3_f32 {mx}, {d2[0]}, {d2[1]}, {d2[2]}"); yield 1
    g(f"v_min3_f32 {mn}, {d2[0]}, {d2[1]}, {d2[2]}"); yield 1
    for i in (3, 5, 7):
        g(f"v_max3_f32 {mx}, {mx}, {d2[i]}, {d2[i+1]}"); yield 1
        g(f"v_min3_f32 {mn}, {mn}, {d2[i]}, {d2[i+1]}"); yield 1
    g(f"v_max_f32 {mx}, {mx}, {d2[9]}"); yield 1
    g(f"v_min_f32 {mn}, {mn}, {d2[9]}"); yield 1
    g(f"v_mov_b32 {t2}, {mx}"); yield 1
    g(f"v_mov_b32 {sp}, {mn}"); yield 1
    g("s_nop 0"); yield 1
    g(f"v_permlane32_swap_b32 {t2}, {mx}"); yield 1
    g(f"v_permlane32_swap_b32 {sp}, {mn}"); yield 1
    g(f"v_max_f32 {mx}, {mx}, {t2}"); yield 1
    g(f"v_min_f32 {mn}, {mn}, {sp}"); yield 1
    g(f"v_mul_f32 {mx}, {lit(-LOG2E)}, {mx}"); yield 1
    g(f"v_mul_f32 {mn}, {lit(LOG2E)}, {mn}"); yield 1
    if packed:
        for i in range(5):
            g(f"v_pk_fma_f32 {ep[2*i:2*i+2]}, {d2[2*i:2*i+2]}, {g.s_l2e2}, {T['cc']} op_sel_hi:[1,1,0]"); yield 1
            g(f"v_pk_fma_f32 {em[2*i:2*i+2]}, {d2[2*i:2*i+2]}, {g.s_l2e2}, {T['cc']} op_sel:[0,0,1] op_sel_hi:[1,1,1] neg_lo:[1,0,0] neg_hi:[1,0,0]"); yield 1
    else:
        for i in range(10):
            g(f"v_fma_f32 {ep[i]}, {d2[i]}, {g.s_l2e}, {mx}"); yield 1
            g(f"v_fma_f32 {em[i]}, {d2[i]}, -{g.s_l2e}, {mn}"); yield 1
    for i in range(10):
        g(f"v_exp_f32 {ep[i]}, {ep[i]}"); yield 2
        g(f"v_exp_f32 {em[i]}, {em[i]}"); yield 2
    if packed:
        for e, k in ((ep, 0), (em, 4)):
            g(f"v_pk_add_f32 {d2[k:k+2]}, {e[0:2]}, {e[2:4]}"); yield 1
            g(f"v_pk_add_f32 {d2[k+2:k+4]}, {e[4:6]}, {e[6:8]}"); yield 1
        for e, k in ((ep, 0), (em, 4)):
            g(f"v_pk_add_f32 {d2[k:k+2]}, {d2[k:k+2]}, {e[8:10]}"); yield 1
        for e, k in ((ep, 0), (em, 4)):
            g(f"v_pk_add_f32 {d2[k:k+2]}, {d2[k:k+2]}, {d2[k+2:k+4]}"); yield 1
        g(f"v_add_f32 {sp}, {d2[0]}, {d2[1]}"); yield 1
        g(f"v_add_f32 {sm_}, {d2[4]}, {d2[5]}"); yield 1
    else:
        g(f"v_add_f32 {sp}, {ep[0]}, {ep[1]}"); yield 1
        g(f"v_add_f32 {sm_}, {em[0]}, {em[1]}"); yield 1
        for i in range(2, 10):
            g(f"v_add_f32 {sp}, {sp}, {ep[i]}"); yield 1
            g(f"v_add_f32 {sm_}, {sm_}, {em[i]}"); yield 1
    g(f"v_mov_b32 {t2}, {sp}"); yield 1
    g(f"v_mov_b32 {mx}, {sm_}"); yield 1
    g("s_nop 0"); yield 1
    g(f"v_permlane32_swap_b32 {t2}, {sp}"); yield 1
    g(f"v_permlane32_swap_b32 {mx}, {sm_}"); yield 1
    g(f"v_add_f32 {sp}, {sp}, {t2}"); yield 1
    g(f"v_add_f32 {sm_}, {sm_}, {mx}"); yield 1
    g(f"v_rcp_f32 {d2[0]}, {sp}"); yield 2
    g(f"v_rcp_f32 {d2[2]}, {sm_}"); yield 2
    if packed:
        for i in range(5):
            g(f"v_pk_mul_f32 {ep[2*i:2*i+2]}, {ep[2*i:2*i+2]}, {d2[0:2]} op_sel_hi:[1,0]"); yield 1
            g(f"v_pk_mul_f32 {em[2*i:2*i+2]}, {em[2*i:2*i+2]}, {d2[2:4]} op_sel_hi:[1,0]"); yield 1
    else:
        for i in range(10):
            g(f"v_mul_f32 {ep[i]}, {ep[i]}, {d2[0]}"); yield 1
            g(f"v_mul_f32 {em[i]}, {em[i]}, {d2[2]}"); yield 1
    for i in range(5):
        g(f"v_cvt_pk_bf16_f32 {outp[i]}, {ep[2*i]}, {ep[2*i+1]}"); yield 1
        g(f"v_cvt_pk_bf16_f32 {outm[i]}, {em[2*i]}, {em[2*i+1]}"); yield 1

def k_epilogue_gen(g, pi, Aq, Ak, pq, T, KV, packed):
    pk, fo = T["pk"], T["fo"]
    ro = pi * 32 * 192
    for q in range(8):
        g(f"v_cvt_pk_bf16_f32 {pk[q]}, {Ak[2*q]}, {Ak[2*q+1]}"); yield 1
    sgen = softmax_gen(g, None, pk, fo[0:5], fo[6:11], T, packed, skip_pack=True)
    yield next(sgen); yield next(sgen)
    next(sgen)
    for q in range(8):
        g(f"v_cvt_pk_bf16_f32 {pq[q]}, {Aq[2*q]}, {Aq[2*q+1]}"); yield 1
    vc = T["fa"][0:2]
    g(f"v_cndmask_b32_e64 {vc[0]}, {g.v_one}, {pq[4]}, {g.s_hi}"); yield 1
    g(f"v_cndmask_b32_e64 {vc[1]}, 0, {pq[5]}, {g.s_hi}"); yield 1
    g(f"ds_write_b64 {g.v_vA}, {pq[6:8]} offset:{ro}"); yield 1
    g(f"ds_write_b64 {g.v_vA}, {pk[6:8]} offset:{ro + 16}"); yield 1
    g(f"ds_write_b64 {g.v_vC}, {vc} offset:{ro}"); yield 1
    yield from sgen
    g(f"ds_write_b128 {g.v_img}, {fo[0:4]} offset:{ro}"); yield 1
    g(f"ds_write_b32 {g.v_img}, {fo[4]} offset:{ro + 16}"); yield 1
    g(f"ds_write_b128 {g.v_img}, {fo[6:10]} offset:{ro + 64}"); yield 1
    g(f"ds_write_b32 {g.v_img}, {fo[10]} offset:{ro + 80}"); yield 1
    mk = g.lg_mark()
    yield "gap"
    fa = T["fa"]; fb = T["fb"]
    g.wait(lg=mk); yield 1
    ms = []
    for ks, f in ((0, fa), (1, fb)):
        rb = (32 * pi + 16 * ks) * 192
        for tile in range(3):
            for t in range(2):
                g(f"ds_read_b64_tr_b16 {f[4*tile+2*t:4*tile+2*t+2]}, {g.v_T} offset:{rb + 4*t*192 + 64*tile}"); yield 1
        ms.append(g.lg_mark())
    for ks, f in ((0, fa), (1, fb)):
        g.wait(lg=ms[ks]); yield 1
        first = (pi == 0 and ks == 0)
        g(f"v_mfma_f32_32x32x16_bf16 {KV[0]}, {f[0:4]}, {f[8:12]}, {0 if first else KV[0]}"); yield "mfma"
        g(f"v_mfma_f32_32x32x16_bf16 {KV[1]}, {f[4:8]}, {f[8:12]}, {0 if first else KV[1]}"); yield "mfma"

def p1(g):
    V = g.V; a = g.s_a; t0, t1 = g.v_t0, g.v_t1; sc = g.sc
    import ph_s0
    g.c("==== P1 ====")
    g.stamp(8)
    ring = g.vv("ring", 4 * NR, 4)
    acc = [[g.vv("aq0", 16, 4), g.vv("ak0", 16, 4)], [g.vv("aq1", 16, 4), g.vv("ak1", 16, 4)]]
    fr = [g.vv("fr0", 8, 4), g.vv("fr1", 8, 4), g.vv("fr2", 8, 4)]
    pq = [g.vv("pq0", 8, 4), g.vv("pq1", 8, 4)]
    T = dict(d2=g.vv("d2", 16, 4), ep=g.vv("ep", 10, 2), em=g.vv("em", 10, 2), pk=g.vv("pk", 8, 4), fo=g.vv("fo", 12, 4),
             fa=g.vv("fa", 12, 4), cc=g.vv("cc", 2, 2), sp=g.vv("sp"), sm=g.vv("sm"), t2=g.vv("t2"))
    T["fb"] = T["d2"][0:12]
    T["mx"], T["mn"] = T["cc"][0], T["cc"][1]
    KV = [acc[0][0], acc[0][1]]
    pre = g.vv("pre", 3, 1); q_dbg = g.S.alloc("q_dbg", 4)
    g.srd(q_dbg, g.p_in[10], g.p_in[11], 256)
    sx = g.sv("sx")
    g(f"s_mul_i32 {sx}, {g.s_tb}, {XSZ}\ns_mul_i32 {a[0]}, {g.s_w}, 81920\ns_add_u32 {sx}, {sx}, {a[0]}\ns_add_u32 {sx}, {sx}, {g.s_xn}")
    marks = {}
    def xload(s):
        if s % 4 == 0 and s > 0: g(f"s_add_u32 {sx}, {sx}, 4096")
        r = ring[4 * (s % NR):4 * (s % NR) + 4]
        g(f"buffer_load_dwordx4 {r}, {g.v_x16}, {g.q_ws}, {sx} offen offset:{1024 * (s % 4)} sc1")
        marks[s] = g.vm_mark()
    def aload(s, tile):
        b = s % 40; f = fr[s % 3]; hi = 1 if b >= 32 else 0; off = (b - 32 * hi) * 2048
        ad = (g.v_Aq, g.v_Ak)[tile]
        for t in range(2):
            g(f"ds_read_b64_tr_b16 {f[4*tile+2*t:4*tile+2*t+2]}, {ad[hi]} offset:{off + 512*t}")
    if g.fast:
        sk = g.label("pt")
        g(f"s_cmp_lg_u32 {g.s_layer}, 0\ns_cbranch_scc1 {sk}")
        g(f"s_lshl_b32 {a[0]}, {g.s_j}, 2\ns_add_u32 {a[0]}, {a[0]}, {g.s_w}\ns_mul_i32 {a[0]}, {a[0]}, {61*128}\ns_mul_i32 {a[1]}, {g.s_tb}, {LOCSZ}\ns_add_u32 {a[0]}, {a[0]}, {a[1]}\ns_add_u32 {a[0]}, {a[0]}, {LOC}")
        g(f"v_lshlrev_b32 {t0}, 7, {g.v_lane}\nv_cmp_gt_u32 vcc, 61, {g.v_lane}\nv_mov_b32 {t1}, {BIG}\nv_cndmask_b32 {t0}, {t1}, {t0}, vcc")
        g.lines.append(f"buffer_store_dword {t1}, {t0}, {g.q_ws}, {a[0]} offen")
        g(f"{sk}:")
    for s in range(NR): xload(s)
    g("s_barrier")
    g.stamp(19)
    am = {}
    for s in (0, 1):
        aload(s, 0); aload(s, 1); am[s] = g.lg_mark()
    filler = None; hold = 0
    def fill(budget):
        nonlocal filler, hold
        if filler is None: return
        if hold > 0:
            hold -= 1; return
        while budget > 0:
            try: r = next(filler)
            except StopIteration:
                filler = None; return
            if r == "gap": hold = 2; return
            if r == "mfma": budget -= 3
            else: budget -= r
    mpre_ = {}
    def step(s, hooks=None):
        nonlocal filler
        pi = s // 40
        if s == 40:
            g.stamp(18)
        if s == 41: filler = k_epilogue_gen(g, 0, acc[0][0], acc[0][1], pq[0], T, KV, packed=False)
        if s == 55:
            g(f"v_lshlrev_b32 {t0}, 2, {g.v_lane}")
            g(f"buffer_load_dword {pre[0]}, {t0}, {q_dbg}, 0 offen sc1")
        if s == 72:
            g(f"v_lshlrev_b32 {t0}, 6, {g.v_lane}\nv_add_u32 {t0}, {WOFL}, {t0}")
            g(f"buffer_load_dword {pre[1]}, {t0}, {g.q_ws}, 0 offen sc1")
            g(f"v_min_u32 {t0}, 15, {g.v_lane}\nv_lshlrev_b32 {t0}, 6, {t0}\nv_add_u32 {t0}, {WOFL + 4096}, {t0}")
            g(f"buffer_load_dword {pre[2]}, {t0}, {g.q_ws}, 0 offen sc1")
            mpre_[0] = g.vm_mark()
        if hooks: hooks[0](s)
        g.wait(vm=marks[s], lg=am[s])
        b = ring[4 * (s % NR):4 * (s % NR) + 4]; f = fr[s % 3]
        c0 = (s % 40 == 0)
        g(f"v_mfma_f32_32x32x16_bf16 {acc[pi][0]}, {f[0:4]}, {b}, {0 if c0 else acc[pi][0]}")
        nA = 6
        if s + 2 < 80: aload(s + 2, 0); nA -= 2
        if s >= 1 and s - 1 + NR < 80: xload(s - 1 + NR); nA -= 1
        if hooks: hooks[1](s)
        fill(nA)
        g(f"v_mfma_f32_32x32x16_bf16 {acc[pi][1]}, {f[4:8]}, {b}, {0 if c0 else acc[pi][1]}")
        nB = 5
        if s + 2 < 80:
            aload(s + 2, 1); nB -= 2; am[s + 2] = g.lg_mark()
        if hooks: hooks[2](s)
        fill(nB)
    Q0, LAGS = 9, 8
    def stream_setup():
        L = g.v_lane; e = T["ep"]
        R = dict(up=e[0], dn=e[1], src=e[2], wd0=e[3], wd1=e[4], cc=e[5], q_w=g.S.alloc("q_ws2", 4), si=g.S.alloc("si2", 2))
        tl, p8, pc = e[6], e[7], e[8]
        g.srd(R["q_w"], g.p_in[2], g.p_in[3], 640 * 3840)
        g(f"v_bfe_u32 {tl}, {L}, 3, 1\nv_and_b32 {p8}, 7, {L}\nv_lshrrev_b32 {R['cc']}, 4, {L}")
        g(f"v_mul_u32_u24 {pc}, 1280, {tl}\nv_lshl_add_u32 {pc}, {p8}, 3, {pc}")
        g(f"v_lshlrev_b32 {t1}, 4, {tl}\nv_lshl_add_u32 {t1}, {p8}, 3, {t1}\nv_add_u32 {t1}, 2520, {t1}")
        g(f"v_cmp_lt_u32 vcc, 4, {p8}\nv_cndmask_b32 {pc}, {pc}, {t1}, vcc")
        g(f"s_mul_i32 {a[0]}, {g.s_j}, 40\nv_add_u32 {pc}, {a[0]}, {pc}")
        g(f"v_mul_u32_u24 {t0}, 3840, {R['cc']}\nv_add_u32 {R['up']}, {t0}, {pc}\nv_add_u32 {R['up']}, {(4*Q0 - 2)*3840}, {R['up']}")
        g(f"v_sub_u32 {R['dn']}, {pc}, {t0}\nv_add_u32 {R['dn']}, {(120 - 4*(Q0 + 1))*3840}, {R['dn']}")
        g(f"s_and_b32 {a[0]}, {g.s_w}, 1\nv_xor_b32 {tl}, {a[0]}, {tl}\nv_lshlrev_b32 {t0}, 10, {R['cc']}\nv_lshl_add_u32 {t0}, {p8}, 3, {t0}\nv_lshl_add_u32 {t0}, {tl}, 6, {t0}")
        g(f"s_lshl_b32 {a[0]}, {g.s_w}, 8\nv_add_u32 {R['wd0']}, {a[0]}, {t0}\nv_add_u32 {R['wd1']}, 0x10000, {R['wd0']}")
        g(f"s_mul_i32 {R['si'][0]}, {g.s_w}, {2*80*3840}\ns_add_u32 {R['si'][1]}, {R['si'][0]}, {80*3840}")
        return R
    def stream_hooks(R):
        slots = [T["fo"][2*k:2*k+2] for k in range(6)] + [T["fa"][2*k:2*k+2] for k in range(4)]
        gm = {}; wm = {}
        NL = 2 * (20 - Q0)
        def h0(s):
            if s in (16, 24, 32):
                g.wait(lg=wm[min(s - 1, NL - 1 + LAGS)])
                g("s_barrier")
        def h1(s):
            if s < NL:
                q, t = Q0 + (s >> 1), s & 1
                if t == 0 and q == 10:
                    g(f"v_add_u32 {R['up']}, {4*3840}, {R['up']}\nv_cmp_gt_u32 vcc, 2, {R['cc']}\nv_cndmask_b32 {R['src']}, {R['dn']}, {R['up']}, vcc")
                if t == 0 and q > 10: g(f"v_subrev_u32 {R['dn']}, {4*3840}, {R['dn']}")
                ad = R["up"] if q < 10 else (R["src"] if q == 10 else R["dn"])
                g(f"buffer_load_dwordx2 {slots[s % 10]}, {ad}, {R['q_w']}, {R['si'][t]} offen")
                gm[s] = g.vm_mark()
        def h2(s):
            n = s - LAGS
            if 0 <= n < NL:
                q, t = Q0 + (n >> 1), n & 1
                g.wait(vm=gm[n])
                g(f"ds_write_b64 {R['wd1'] if q >= 16 else R['wd0']}, {slots[n % 10]} offset:{(q % 16) * 4096 + 128 * t}")
                wm[s] = g.lg_mark()
        return (h0, h1, h2)
    if ph_s0.STREAM:
        l1 = g.label("p0n"); l2 = g.label("p0j")
        vm0, lg0, marks0, am0 = list(g.vm), list(g.lg), dict(marks), dict(am)
        g(f"s_cmp_lg_u32 {g.s_layer}, 0\ns_cbranch_scc1 {l1}")
        R = stream_setup()
        hk = stream_hooks(R)
        for s in range(40): step(s, hk)
        g.S.free(R["q_w"], R["si"])
        g(f"s_branch {l2}\n{l1}:")
        g.vm, g.lg = vm0, lg0; marks.clear(); marks.update(marks0); am.clear(); am.update(am0)
        for s in range(40): step(s)
        g(f"{l2}:")
    else:
        for s in range(40): step(s)
    for s in range(40, 80): step(s)
    mpre = mpre_[0]
    if filler is not None: drain(filler)
    g.stamp(9)
    wsetup, wo_gen, tab_gen, g.wo_sb = ph_s0.wo_loader(g)
    g.wo_gen = wo_gen
    sk = g.label("wo")
    g(f"s_cmp_lg_u32 {g.s_layer}, 0\ns_cbranch_scc1 {sk}")
    vm0 = list(g.vm)
    wo_ready(g, pre, mpre)
    g.vm = vm0
    g.stamp(14)
    wsetup()
    g(f"{sk}:")
    z_poison(g)
    def dual(make, extra, n, tail0=None, tail1=None, head0=None):
        l1 = g.label("d1"); l2 = g.label("d2")
        lg0 = list(g.lg); vm0 = list(g.vm)
        g(f"s_cmp_lg_u32 {g.s_layer}, 0\ns_cbranch_scc1 {l1}")
        if head0: head0()
        real = g.lines; g.lines = []
        drain(make()); body = g.lines; g.lines = real
        step = len(body) / (n + 1); k = 0
        for i, l in enumerate(body):
            g.lines.append(l)
            if k < n and i + 1 >= (k + 1) * step and not l.startswith(("v_cmp", "s_cmp")):
                next(extra); k += 1
        while k < n: next(extra); k += 1
        if tail0: tail0()
        g(f"s_branch {l2}\n{l1}:")
        g.lg = lg0; g.vm = vm0
        drain(make())
        if tail1: tail1()
        g(f"{l2}:")
    def kepi1():
        yield from k_epilogue_gen(g, 1, acc[1][0], acc[1][1], pq[1], T, KV, packed=True)
    def slabs():
        g(f"s_mov_b64 {g.s_ex}, exec\ns_mov_b32 exec_lo, 0x00ffffff\ns_mov_b32 exec_hi, 0x00ffffff")
        for sg in range(2):
            for i in (0, 2):
                for jj in range(4):
                    g(f"ds_write_b32 {g.v_K}, {KV[sg][4*i+jj]} offset:{(((i>>1)*2 + sg)*10 + jj)*96}")
        g(f"s_mov_b32 exec_hi, 0")
        for sg in range(2):
            for i in (1, 3):
                for jj in range(2):
                    g(f"ds_write_b32 {g.v_K}, {KV[sg][4*i+jj]} offset:{(((i>>1)*2 + sg)*10 + 8 + jj)*96}")
        g(f"s_mov_b64 exec, {g.s_ex}")
    NW1, NW2, NW3 = 24, 4, 16
    dual(kepi1, wo_gen, NW1)
    g.stamp(16)
    slabs()
    g.wait0(vm=False)
    g("s_barrier")
    g.stamp(17)
    pub = T["d2"]
    g(f"v_lshlrev_b32 {t0}, 4, v0\nv_add_u32 {t1}, {L_KVS}, {t0}")
    for w in range(4): g(f"ds_read_b128 {pub[4*w:4*w+4]}, {t1} offset:{12288*w}")
    skv = g.sv("skv")
    g(f"s_lshl_b32 {skv}, {g.s_j}, 14\ns_add_u32 {skv}, {skv}, {g.s_kvb}")
    g(f"s_lshl_b32 {a[0]}, {g.s_tb}, 11\ns_add_u32 {a[0]}, {a[0]}, {skv}")
    vkv = g.vv("vkv")
    g(f"v_lshrrev_b32 {vkv}, 1, {t0}")
    g(f"v_cmp_gt_u32 vcc, 240, v0\nv_mov_b32 {t1}, {BIG}\nv_cndmask_b32 {vkv}, {t1}, {vkv}, vcc")
    g.wait0(vm=False)
    for w in range(1, 4):
        g(f"v_pk_add_f32 {pub[0:2]}, {pub[0:2]}, {pub[4*w:4*w+2]}\nv_pk_add_f32 {pub[2:4]}, {pub[2:4]}, {pub[4*w+2:4*w+4]}")
    g(f"v_cvt_pk_bf16_f32 {pub[4]}, {pub[0]}, {pub[1]}\nv_cvt_pk_bf16_f32 {pub[5]}, {pub[2]}, {pub[3]}")
    l1 = g.label("zw"); l2 = g.label("zw")
    g(f"s_cmp_lg_u32 {g.s_layer}, 0\ns_cbranch_scc1 {l1}")
    g.lines.append(f"s_waitcnt vmcnt({NW1})")
    g(f"s_branch {l2}\n{l1}:")
    g.lines.append("s_waitcnt vmcnt(0)")
    g(f"{l2}:")
    g.lines.append(f"buffer_store_dwordx2 {pub[4:6]}, {vkv}, {g.q_ws}, {a[0]} offen sc1")
    g.stamp(10)
    fq = [acc[1][0][0:12], acc[1][1][0:12]]
    gd = ring[0:16]
    g.vm = []
    def gather():
        g(f"s_mov_b32 {a[4]}, {skv}")
        for tb in range(8):
            g.lines.append(f"buffer_load_dwordx2 {gd[2*tb:2*tb+2]}, {vkv}, {g.q_ws}, {a[4]} offen sc1")
            if tb < 7: g(f"s_add_u32 {a[4]}, {a[4]}, 2048")
    import itertools
    def qs(pi):
        def mk():
            g(f"v_mov_b32 {fq[pi][10]}, 0\nv_mov_b32 {fq[pi][11]}, 0")
            yield from q_softmax(g, pq[pi], fq[pi], T)
        return mk
    dual(qs(0), itertools.chain(tab_gen, wo_gen), 10 + NW2)
    gather()
    dual(qs(1), wo_gen, NW3)
    V.free(T["d2"], T["ep"], T["em"], T["pk"], T["fo"], *fr, *pq)
    ga_setup(g)
    g.stamp(11)
    lp = g.label("kvp"); dn = g.label("kvd"); ck = g.label("kvc")
    g(f"s_mov_b32 {g.s_spin}, {1 << 18}")
    g(f"s_cmp_lg_u32 {g.s_layer}, 0\ns_cbranch_scc1 {lp}")
    g.lines.append(f"s_waitcnt vmcnt({NW3})")
    g(f"s_branch {ck}")
    g(f"{lp}:")
    g.lines.append("s_waitcnt vmcnt(0)")
    g(f"{ck}:")
    mxr = ring[16]
    g(f"v_max3_u32 {mxr}, {gd[0]}, {gd[1]}, {gd[2]}")
    for q in range(3, 15, 2): g(f"v_max3_u32 {mxr}, {mxr}, {gd[q]}, {gd[q+1]}")
    g(f"v_max_u32 {mxr}, {mxr}, {gd[15]}\nv_cmp_eq_u32 vcc, -1, {mxr}\ns_cbranch_vccz {dn}")
    gather()
    g(f"s_sub_u32 {g.s_spin}, {g.s_spin}, 1\ns_cmp_lg_u32 {g.s_spin}, 0\ns_cbranch_scc1 {lp}")
    g.lines.append("s_waitcnt vmcnt(0)")
    g(f"{dn}:")
    g.stamp(12)
    sv = ring[20:28]; uv = ring[28:32]
    g(f"v_lshlrev_b32 {sv[0]}, 16, {gd[0]}\nv_and_b32 {sv[1]}, 0xffff0000, {gd[0]}\nv_lshlrev_b32 {sv[2]}, 16, {gd[1]}\nv_and_b32 {sv[3]}, 0xffff0000, {gd[1]}")
    for tb in range(1, 8):
        g(f"v_lshlrev_b32 {uv[0]}, 16, {gd[2*tb]}\nv_and_b32 {uv[1]}, 0xffff0000, {gd[2*tb]}\nv_lshlrev_b32 {uv[2]}, 16, {gd[2*tb+1]}\nv_and_b32 {uv[3]}, 0xffff0000, {gd[2*tb+1]}")
        g(f"v_pk_add_f32 {sv[0:2]}, {sv[0:2]}, {uv[0:2]}\nv_pk_add_f32 {sv[2:4]}, {sv[2:4]}, {uv[2:4]}")
    gd = ring[32:40]
    g(f"v_cvt_pk_bf16_f32 {gd[4]}, {sv[0]}, {sv[1]}\nv_cvt_pk_bf16_f32 {gd[5]}, {sv[2]}, {sv[3]}")
    g(f"ds_write_b16 {g.v_ga[0]}, {gd[4]}\nds_write_b16_d16_hi {g.v_ga[1]}, {gd[4]}\nds_write_b16 {g.v_ga[2]}, {gd[5]}\nds_write_b16_d16_hi {g.v_ga[3]}, {gd[5]}")
    g(f"ds_write_b16 {g.v_ga3}, {gd[4]}")
    V.free(vkv)
    V.free(g.v_ga, g.v_ga3)
    g.wait0(vm=False)
    g("s_barrier")
    g.stamp(30) if g.fine else None
    ka = T["fa"]
    g(f"v_and_b32 {t0}, 31, {g.v_lane}\nv_mul_u32_u24 {t0}, 96, {t0}\nv_lshrrev_b32 {t1}, 5, {g.v_lane}\nv_mul_u32_u24 {t1}, 48, {t1}\nv_add_u32 {t0}, {t0}, {t1}\nv_add_u32 {t0}, {L_KVA}, {t0}")
    for st in range(3): g(f"ds_read_b128 {ka[4*st:4*st+4]}, {t0} offset:{16*st}")
    vo = T["t2"]; vt = T["sm"]
    g(f"v_bfe_u32 {t0}, {g.v_lane}, 4, 1\nv_mul_u32_u24 {vo}, 20480, {t0}\nv_and_b32 {t0}, 15, {g.v_lane}")
    g(f"v_lshl_add_u32 {vt}, {t0}, 3, {vo}\nv_lshl_add_u32 {vo}, {t0}, 4, {vo}\nv_lshrrev_b32 {t1}, 5, {g.v_lane}\nv_lshl_add_u32 {vo}, {t1}, 8, {vo}")
    g(f"s_mul_i32 {a[0]}, {g.s_tb}, {LOCSZ}\ns_add_u32 {a[0]}, {a[0]}, {g.s_ob}\ns_mul_i32 {a[1]}, {g.s_w}, {4*20480}\ns_add_u32 {a[0]}, {a[0]}, {a[1]}")
    g(f"s_lshl_b32 {a[1]}, {g.s_j}, 7\ns_add_u32 {a[1]}, {a[1]}, {a[0]}\ns_add_u32 {a[1]}, {a[1]}, 16384")
    g(f"s_lshr_b32 {a[2]}, {g.s_j}, 1\ns_lshl_b32 {a[2]}, {a[2]}, 10\ns_add_u32 {a[0]}, {a[0]}, {a[2]}\ns_and_b32 {a[2]}, {g.s_j}, 1\ns_lshl_b32 {a[2]}, {a[2]}, 9\ns_add_u32 {a[0]}, {a[0]}, {a[2]}")
    g.wait0(vm=False)
    D3 = [acc[0][0], acc[0][1]]
    for pi in range(2):
        for st in range(3):
            g(f"v_mfma_f32_32x32x16_bf16 {D3[pi]}, {ka[4*st:4*st+4]}, {fq[pi][4*st:4*st+4]}, {0 if st == 0 else D3[pi]}")
    for pi in range(2):
        d = D3[pi]
        g(f"v_add_f32 {T['cc'][0]}, {lit(1e-6)}, {d[10]}\nv_rcp_f32 {T['cc'][0]}, {T['cc'][0]}")
        for i in range(5):
            g(f"v_pk_mul_f32 {d[2*i:2*i+2]}, {d[2*i:2*i+2]}, {T['cc']} op_sel_hi:[1,0]")
        op = fq[pi]
        for i in range(5): g(f"v_cvt_pk_bf16_f32 {op[i]}, {d[2*i]}, {d[2*i+1]}")
        if pi == 1: g(f"s_add_u32 {a[0]}, {a[0]}, {2*20480}\ns_add_u32 {a[1]}, {a[1]}, {2*20480}")
        g(f"buffer_store_dwordx4 {op[0:4]}, {vo}, {g.q_ws}, {a[0]} offen{sc}")
        g(f"v_mov_b32 {op[6]}, {op[4]}\nv_mov_b32 {op[7]}, {op[4]}\nv_permlane32_swap_b32 {op[6]}, {op[7]}")
        g(f"s_mov_b64 {g.s_ex}, exec\ns_mov_b32 exec_hi, 0")
        g(f"buffer_store_dwordx2 {op[6:8]}, {vt}, {g.q_ws}, {a[1]} offen{sc}")
        g(f"s_mov_b64 exec, {g.s_ex}")
    g.stamp(13)
    V.free(ring, *acc[0], *acc[1], T["fa"], T["cc"], T["sp"], T["sm"], T["t2"])
    g.S.free(sx, skv, q_dbg); V.free(pre)

def q_softmax(g, pq, out, T):
    yield from softmax_gen(g, None, pq, out[0:5], out[5:10], T, packed=True, skip_pack=True)

def init_wait(g, cond=True):
    sk = g.label("iw"); t0 = g.v_t0
    if cond: g(f"s_cmp_lg_u32 {g.s_layer}, 0\ns_cbranch_scc1 {sk}")
    q = g.S.alloc("q_dbg", 4); pv = g.vv("pv"); pa = g.vv("pa")
    g.srd(q, g.p_in[10], g.p_in[11], 256)
    g(f"v_lshlrev_b32 {pa}, 2, {g.v_lane}")
    lp = g.label("iwp"); dn = g.label("iwd")
    g(f"s_mov_b32 {g.s_spin}, {1 << 20}")
    g(f"{lp}:")
    g.lines.append(f"buffer_load_dword {pv}, {pa}, {q}, 0 offen sc1")
    g.lines.append("s_waitcnt vmcnt(0)")
    g(f"v_subrev_u32 {t0}, 0x01010101, {pv}\nv_bfi_b32 {t0}, {pv}, 0, {t0}\nv_and_b32 {t0}, 0x80808080, {t0}")
    g(f"v_cmp_ne_u32 vcc, 0, {t0}\ns_cbranch_vccz {dn}")
    g(f"s_sub_u32 {g.s_spin}, {g.s_spin}, 1\ns_cmp_lg_u32 {g.s_spin}, 0\ns_cbranch_scc1 {lp}")
    g(f"{dn}:")
    g.S.free(q); g.V.free(pv, pa)
    g(f"{sk}:")

def wo_ready(g, pre, mpre):
    t0 = g.v_t0
    ok = g.label("wok"); slow = g.label("wsl")
    g.wait(vm=mpre)
    pv = pre[0]
    g(f"v_subrev_u32 {t0}, 0x01010101, {pv}\nv_bfi_b32 {t0}, {pv}, 0, {t0}\nv_and_b32 {t0}, 0x80808080, {t0}")
    g(f"v_cmp_ne_u32 vcc, 0, {t0}\ns_cbranch_vccnz {slow}")
    g(f"v_and_b32 {t0}, {pre[1]}, {pre[2]}\nv_cmp_ne_u32 vcc, 1, {t0}\ns_cbranch_vccz {ok}")
    g(f"{slow}:")
    init_wait(g, cond=False)
    pa = g.vv("pa", 2, 1); pv = pre[1:3]
    g(f"v_lshlrev_b32 {pa[0]}, 6, {g.v_lane}\nv_add_u32 {pa[0]}, {WOFL}, {pa[0]}")
    g(f"v_min_u32 {pa[1]}, 15, {g.v_lane}\nv_lshlrev_b32 {pa[1]}, 6, {pa[1]}\nv_add_u32 {pa[1]}, {WOFL + 4096}, {pa[1]}")
    lp = g.label("wrp"); dn = g.label("wrd")
    g(f"s_mov_b32 {g.s_spin}, {1 << 20}")
    g(f"{lp}:")
    for q in range(2): g.lines.append(f"buffer_load_dword {pv[q]}, {pa[q]}, {g.q_ws}, 0 offen sc1")
    g.lines.append("s_waitcnt vmcnt(0)")
    g(f"v_and_b32 {t0}, {pv[0]}, {pv[1]}\nv_cmp_ne_u32 vcc, 1, {t0}\ns_cbranch_vccz {dn}")
    g(f"s_sub_u32 {g.s_spin}, {g.s_spin}, 1\ns_cmp_lg_u32 {g.s_spin}, 0\ns_cbranch_scc1 {lp}")
    g(f"{dn}:")
    g.V.free(pa)
    g(f"{ok}:")

def z_poison(g):
    a = g.s_a; t0 = g.v_t0
    sk = g.label("zp")
    pz = g.vv("pz", 4, 4)
    g(f"s_cmp_gt_u32 {g.s_j}, 20\ns_cbranch_scc1 {sk}")
    for q in range(4): g(f"v_mov_b32 {pz[q]}, -1")
    g(f"s_mul_i32 {a[0]}, {g.s_tb}, {ZSZ}\ns_add_u32 {a[0]}, {a[0]}, {g.s_zb}\ns_lshl_b32 {a[1]}, {g.s_j}, 14\ns_add_u32 {a[0]}, {a[0]}, {a[1]}\ns_lshl_b32 {a[1]}, {g.s_w}, 12\ns_add_u32 {a[0]}, {a[0]}, {a[1]}")
    for q in range(4):
        g.lines.append(f"buffer_store_dwordx4 {pz}, {g.v_x16}, {g.q_ws}, {a[0]} offen offset:{1024*q} sc1")
    g(f"{sk}:")
    g.V.free(pz)
```

```python
from emit import *
from maps import *
from gen_main import lit, f2u, LOG2E
BIG = 0x7ff00000
WO_STRIDE = 1296

def wo_stage(g):
    p = g.p_in; a = g.s_a
    va = g.vv("wova")
    g.srd(g.q_in, p[6], p[7], 640 * 1280)
    g(f"v_lshlrev_b32 {va}, 4, {g.v_lane}")
    g(f"s_mul_i32 {a[4]}, {g.s_wost}, 10\ns_sub_u32 {a[5]}, {g.s_wost}, 64\ns_mul_i32 {a[5]}, {a[5]}, 40")
    g(f"s_cmp_lt_u32 {g.s_wost}, 64\ns_cselect_b32 {a[4]}, {a[4]}, {a[5]}\ns_cselect_b32 {a[5]}, 1, 0")
    tail = (8, 9, 18, 19, 28, 29, 38, 39)
    rows = g.S.alloc("worows", 8)
    for r in range(8):
        g(f"s_cmp_eq_u32 {a[5]}, 1\ns_cselect_b32 {rows[r]}, {r}, {tail[r]}\ns_add_u32 {rows[r]}, {rows[r]}, {a[4]}\ns_mul_i32 {rows[r]}, {rows[r]}, 1280")
    for r in range(8):
        g(f"s_mov_b32 m0, {L_SCR + r*WO_STRIDE}")
        g("s_nop 0")
        g.lines.append(f"buffer_load_dwordx4 {va}, {g.q_in}, {rows[r]} offen lds")
    g(f"s_mov_b64 {g.s_ex}, exec\ns_mov_b64 exec, 0xffff")
    for r in range(8):
        g(f"s_mov_b32 m0, {L_SCR + r*WO_STRIDE + 1024}\ns_add_u32 {rows[r]}, {rows[r]}, 1024")
        g.lines.append(f"buffer_load_dwordx4 {va}, {g.q_in}, {rows[r]} offen lds")
    g(f"s_mov_b64 exec, {g.s_ex}")
    g.S.free(rows)
    g.V.free(va)

def wo_touch(g):
    p = g.p_in; a = g.s_a; t0, t1 = g.v_t0, g.v_t1; L = g.v_lane
    va = g.vv("wta")
    g.srd(g.q_in, p[6], p[7], 640 * 1280)
    g(f"s_mul_i32 {a[4]}, {g.s_wost}, 12800\ns_sub_u32 {a[5]}, {g.s_wost}, 64\ns_mul_i32 {a[5]}, {a[5]}, 51200\ns_add_u32 {a[5]}, {a[5]}, 10240")
    g(f"s_cmp_lt_u32 {g.s_wost}, 64\ns_cselect_b32 {a[4]}, {a[4]}, {a[5]}\ns_mov_b32 {a[6]}, 12800\ns_cselect_b32 {a[5]}, 2560, {a[6]}")
    g(f"v_cmp_lt_u32 vcc, 19, {L}\nv_cndmask_b32_e64 {t0}, 0, 1, vcc\nv_mul_u32_u24 {t1}, 20, {t0}\nv_sub_u32 {t1}, {L}, {t1}\nv_lshlrev_b32 {t1}, 7, {t1}")
    g(f"v_mul_u32_u24 {va}, {a[5]}, {t0}\nv_add_u32 {va}, {va}, {t1}\nv_cmp_gt_u32 vcc, 40, {L}\nv_mov_b32 {t1}, {BIG}\nv_cndmask_b32 {va}, {t1}, {va}, vcc")
    g.lines.append(f"buffer_load_dword {g.v_big[120]}, {va}, {g.q_in}, {a[4]} offen")
    g(f"s_lshl_b32 {a[5]}, {a[5]}, 1\ns_add_u32 {a[4]}, {a[4]}, {a[5]}")
    g.lines.append(f"buffer_load_dword {g.v_big[121]}, {va}, {g.q_in}, {a[4]} offen")
    g.V.free(va)

def w_prefetch(g, first, q_w, pf):
    a = g.s_a; L = g.v_lane
    so, va = pf
    g(f"s_mul_i32 {so}, {g.s_j}, 76800\ns_mul_i32 {a[1]}, {g.s_w}, 20480\ns_sub_u32 {a[1]}, {a[1]}, 4096\ns_max_i32 {a[1]}, {a[1]}, 0\ns_add_u32 {so}, {so}, {a[1]}")
    g(f"v_lshlrev_b32 {va}, 4, {L}")
    def gen():
        for n in range(20):
            g.lines.append(f"buffer_load_dwordx4 {g.v_big[124:128]}, {va}, {q_w}, {so} offen offset:{1024*(n%4)}")
            if n % 4 == 3: g(f"s_add_u32 {so}, {so}, 4096")
            yield
    it = gen()
    for _ in range(first): next(it)
    return it

import os
STREAM = os.environ.get("STREAM", "0") == "1"
NQW = 3 if STREAM else 7
def gather_alloc(g):
    return dict(q_w=g.S.alloc("q_wg", 4), si=g.S.alloc("si", 8), wd=g.vv("wdst", 2), src=g.vv("wsrc", NQW))
def gather_free(g, gs):
    g.S.free(gs["q_w"], gs["si"]); g.V.free(gs["wd"], gs["src"])

def gather_setup(g, gs):
    p = g.p_in; a = g.s_a; t0, t1 = g.v_t0, g.v_t1; L = g.v_lane
    q_w, si, wd, src = gs["q_w"], gs["si"], gs["wd"], gs["src"]
    pc, tl, p8, cc = g.vv("wpc"), g.vv("tl"), g.vv("p8"), g.vv("cc")
    cod = g.vv("cod"); e2 = g.vv("e2"); up, dn = g.vv("up"), g.vv("dn")
    g(f"v_bfe_u32 {tl}, {L}, 3, 1\nv_and_b32 {p8}, 7, {L}\nv_lshrrev_b32 {cc}, 4, {L}")
    g(f"v_mul_u32_u24 {pc}, 1280, {tl}\nv_lshl_add_u32 {pc}, {p8}, 3, {pc}")
    g(f"v_lshlrev_b32 {t1}, 4, {tl}\nv_lshl_add_u32 {t1}, {p8}, 3, {t1}\nv_add_u32 {t1}, 2520, {t1}")
    g(f"v_cmp_lt_u32 vcc, 4, {p8}\nv_cndmask_b32 {pc}, {pc}, {t1}, vcc")
    g(f"s_mul_i32 {a[0]}, {g.s_j}, 40\nv_add_u32 {pc}, {a[0]}, {pc}")
    g(f"s_sub_u32 {a[2]}, {g.s_w}, 1\ns_mul_i32 {a[2]}, {a[2]}, {4*NQW}")
    g(f"v_add_u32 {cod}, {a[2]}, {cc}")
    g.e2_of_code(e2, cod, t0)
    g(f"v_mul_u32_u24 {src[0]}, 3840, {e2}\nv_add_u32 {src[0]}, {src[0]}, {pc}")
    g(f"v_mul_u32_u24 {t0}, 3840, {cod}\nv_add_u32 {up}, {t0}, {pc}\nv_sub_u32 {dn}, {pc}, {t0}")
    g(f"v_add_u32 {up}, {-2*3840 & 0xffffffff}, {up}\nv_add_u32 {dn}, {120*3840}, {dn}")
    for q in range(1, NQW):
        g(f"v_add_u32 {up}, {4*3840}, {up}\nv_subrev_u32 {dn}, {4*3840}, {dn}")
        g(f"v_cmp_lt_u32 vcc, {41 - 4*q}, {cod}\nv_cndmask_b32 {src[q]}, {up}, {dn}, vcc")
    g(f"v_lshlrev_b32 {t0}, 10, {cod}\nv_lshl_add_u32 {t0}, {p8}, 3, {t0}")
    g(f"v_lshl_add_u32 {wd[0]}, {tl}, 6, {t0}\nv_xor_b32 {wd[1]}, 64, {wd[0]}")
    for i in range(8): g(f"s_mov_b32 {si[i]}, {80*3840*i}")
    g.V.free(pc, tl, p8, cc, cod, e2, up, dn)

def w_gather(g, gs):
    q_w, si, wd, src = gs["q_w"], gs["si"], gs["wd"], gs["src"]
    dbg = g.stop_after == "s0b"
    LAG = 24
    def load(n):
        g.lines.append(f"buffer_load_dwordx2 {g.v_big[2*n:2*n+2]}, {src[n // 8]}, {q_w}, {si[n % 8]} offen")
    def write(n, cnt):
        if cnt is not None: g.lines.append(f"s_waitcnt vmcnt({cnt})")
        g.lines.append(f"ds_write_b64 {wd[((n % 8) >> 1) & 1]}, {g.v_big[2*n:2*n+2]} offset:{4096*(n // 8) + 128*(n % 8)}")
    if dbg: g.stamp(9)
    if STREAM:
        N = 8 * NQW
        for n in range(N): load(n)
        if dbg: g.stamp(12)
        g("s_barrier")
        for n in range(N): write(n, (N - 4 - n) if n % 4 == 0 else None)
        return
    for n in range(48):
        load(n)
        if n >= LAG: write(n - LAG, LAG)
    w3 = g.label("wg3"); wj = g.label("wgj")
    g(f"s_cmp_eq_u32 {g.s_w}, 3\ns_cbranch_scc1 {w3}")
    for n in range(48, 56):
        load(n); write(n - LAG, LAG)
    if dbg: g.stamp(12)
    g("s_barrier")
    for n in range(56 - LAG, 56): write(n, (52 - n) if n % 4 == 0 else None)
    g(f"s_branch {wj}\n{w3}:")
    g("s_barrier")
    for n in range(48 - LAG, 48): write(n, (44 - n) if n % 4 == 0 else None)
    g(f"{wj}:")

def phi_build(g, wait):
    t0, t1 = g.v_t0, g.v_t1; V = g.V
    l31, va, vb, f = g.vv("l31b"), g.vv("va"), g.vv("vb"), g.vv("f"); ph = g.vv("phraw", 12)
    if wait: g.lines.append("s_waitcnt vmcnt(0)")
    g(f"v_and_b32 {l31}, 31, {g.v_lane}")
    g(f"v_lshrrev_b32 {t0}, 3, {l31}\nv_lshlrev_b32 {t0}, 2, {t0}\nv_and_b32 {t1}, 3, {l31}\nv_add_u32 {t0}, {t0}, {t1}")
    g(f"v_bfe_u32 {t1}, {l31}, 2, 1\nv_mul_u32_u24 {f}, 10, {t1}\nv_add_u32 {f}, {f}, {t0}")
    g(f"v_lshrrev_b32 {t1}, 5, {g.v_lane}\nv_mul_u32_u24 {va}, 80, {t1}\nv_add_u32 {va}, {va}, {f}\nv_lshlrev_b32 {va}, 1, {va}\nv_add_u32 {va}, {L_PHI}, {va}")
    for u in range(8):
        g.lines.append(f"ds_read_u16 {ph[u]}, {va} offset:{(8*(u>>2) + (u&3))*40}")
    for u in range(4):
        g.lines.append(f"ds_read_u16 {ph[8+u]}, {va} offset:{(16+u)*40}")
    g.lines.append("s_waitcnt lgkmcnt(0)")
    for q in range(6):
        g(f"v_lshl_or_b32 {g.v_phi[q]}, {ph[2*q+1]}, 16, {ph[2*q]}")
    g(f"v_cmp_gt_u32 vcc, 10, {t0}")
    for q in range(6): g(f"v_cndmask_b32 {g.v_phi[q]}, 0, {g.v_phi[q]}, vcc")
    g(f"v_cmp_gt_u32 vcc, 32, {g.v_lane}")
    for q in (4, 5): g(f"v_cndmask_b32 {g.v_phi[q]}, 0, {g.v_phi[q]}, vcc")
    g(f"v_mov_b32 {g.v_phi[6]}, 0\nv_mov_b32 {g.v_phi[7]}, 0")
    V.free(l31, va, vb, f, ph)

def x_store(g, raw, sc):
    a = g.s_a; t0, t1 = g.v_t0, g.v_t1; V = g.V
    ad, ds = g.vv("ad"), g.vv("ds"); d = g.v_big
    g(f"v_lshlrev_b32 {ad}, 4, {g.v_lane}\nv_add_u32 {ad}, {L_XST + (10240 if raw else 0)}, {ad}")
    g(f"v_lshrrev_b32 {ds}, 3, {g.v_lane}\nv_lshlrev_b32 {ds}, 9, {ds}\nv_and_b32 {t0}, 7, {g.v_lane}\nv_lshl_add_u32 {ds}, {t0}, 4, {ds}")
    g(f"s_mul_i32 {a[0]}, {g.s_tb}, {XSZ}\ns_lshr_b32 {a[1]}, {g.s_j}, 2\ns_mul_i32 {a[1]}, {a[1]}, 40960\ns_add_u32 {a[0]}, {a[0]}, {a[1]}")
    g(f"s_and_b32 {a[1]}, {g.s_j}, 3\ns_lshl_b32 {a[1]}, {a[1]}, 7\ns_add_u32 {a[0]}, {a[0]}, {a[1]}")
    g.lines.append("s_waitcnt lgkmcnt(0)")
    for n in range(10):
        g.lines.append(f"ds_read_b128 {d[4*n:4*n+4]}, {ad} offset:{n*1024}")
    for n in range(10):
        g.lines.append(f"s_waitcnt lgkmcnt({9 - n})")
        g(f"s_add_u32 {a[1]}, {a[0]}, {(X_IN[0] if raw else XN_IN[0]) + n * 4096}")
        g.lines.append(f"buffer_store_dwordx4 {d[4*n:4*n+4]}, {ds}, {g.q_ws}, {a[1]} offen{sc}")
    V.free(ad, ds)

def trig4(g, ang0, slope, csts, cs, sn):
    for r in range(4):
        if csts[r] == 0: g(f"v_mov_b32 {sn[r]}, {ang0}")
        else: g(f"v_fmamk_f32 {sn[r]}, {slope}, {lit(float(csts[r]))}, {ang0}")
        g(f"v_cos_f32 {cs[r]}, {sn[r]}\nv_sin_f32 {sn[r]}, {sn[r]}")

def reim_frags(g, cs, sn, tmp, dre, dim):
    g(f"v_cvt_pk_bf16_f32 {tmp[0]}, {cs[0]}, {cs[1]}\nv_cvt_pk_bf16_f32 {tmp[1]}, {cs[2]}, {cs[3]}")
    g(f"v_cvt_pk_bf16_f32 {tmp[2]}, {sn[0]}, {sn[1]}\nv_cvt_pk_bf16_f32 {tmp[3]}, {sn[2]}, {sn[3]}")
    for q in range(4): g(f"v_accvgpr_write_b32 {dre[q]}, {tmp[q]}")
    g(f"v_accvgpr_write_b32 {dim[2]}, {tmp[0]}\nv_accvgpr_write_b32 {dim[3]}, {tmp[1]}")
    g(f"v_xor_b32 {tmp[2]}, 0x80008000, {tmp[2]}\nv_xor_b32 {tmp[3]}, 0x80008000, {tmp[3]}")
    g(f"v_accvgpr_write_b32 {dim[0]}, {tmp[2]}\nv_accvgpr_write_b32 {dim[1]}, {tmp[3]}")

def constants(g, parts):
    a = g.s_a; t0, t1 = g.v_t0, g.v_t1; V = g.V
    n15, gq = g.vv("n15"), g.vv("gq")
    g(f"v_and_b32 {n15}, 15, {g.v_lane}\nv_lshrrev_b32 {gq}, 4, {g.v_lane}")
    cs, sn, tmp = g.vv("cs", 4), g.vv("sn", 4), g.vv("tmp", 4)
    ang, sl, f1, f2 = g.vv("ang"), g.vv("sl"), g.vv("f1"), g.vv("f2")
    if 's1' in parts:
        g(f"v_cvt_f32_u32 {sl}, {n15}\nv_mul_f32 {sl}, {lit(1/16)}, {sl}")
        g(f"v_lshlrev_b32 {t0}, 2, {gq}\nv_cvt_f32_u32 {ang}, {t0}\nv_mul_f32 {ang}, {ang}, {sl}")
        trig4(g, ang, sl, [0, 1, 2, 3], cs, sn)
        reim_frags(g, cs, sn, tmp, g.a_s1[0:4], g.a_s1[4:8])
    if 's2' in parts:
        g(f"v_lshlrev_b32 {t0}, 5, {gq}\nv_add_u32 {t0}, {g.s_tb}, {t0}\nv_cvt_f32_u32 {f1}, {t0}")
        g(f"s_lshl_b32 {a[4]}, {g.s_w}, 2")
        for q in range(4):
            g(f"v_lshlrev_b32 {t0}, 4, {n15}\nv_add_u32 {t0}, {a[4]}, {t0}")
            if q: g(f"v_add_u32 {t0}, {q}, {t0}")
            g(f"v_cvt_f32_u32 {sl}, {t0}\nv_mul_f32 {sl}, {lit(1/2048)}, {sl}\nv_mul_f32 {ang}, {f1}, {sl}")
            trig4(g, ang, sl, [0, 8, 16, 24], cs, sn)
            reim_frags(g, cs, sn, tmp, g.a_s2[8*q:8*q+4], g.a_s2[8*q+4:8*q+8])
    if 'h2' in parts:
        e2, P0, P1, Q1, R1, T1 = g.vv("e2"), g.vv("P0"), g.vv("P1"), g.vv("Q1"), g.vv("R1"), g.vv("T1")
        g(f"v_lshrrev_b32 {t0}, 1, {gq}")
        g(f"s_lshl_b32 {a[4]}, {g.s_j}, 1\ns_sub_u32 {a[4]}, {a[4]}, 2\ns_mov_b32 {a[5]}, 1")
        g(f"s_cmp_eq_u32 {g.s_j}, 0\ns_cselect_b32 {a[4]}, 0, {a[4]}\ns_cselect_b32 {a[5]}, 40, {a[5]}")
        g(f"s_cmp_eq_u32 {g.s_j}, 1\ns_cselect_b32 {a[4]}, 1, {a[4]}\ns_mov_b32 {a[6]}, 78\ns_cselect_b32 {a[5]}, {a[6]}, {a[5]}")
        g(f"v_mul_u32_u24 {e2}, {a[5]}, {t0}\nv_add_u32 {e2}, {a[4]}, {e2}")
        g(f"v_and_b32 {t1}, 7, {n15}\nv_mul_u32_u24 {t1}, 80, {t1}\nv_add_u32 {e2}, {e2}, {t1}")
        g(f"v_cvt_f32_u32 {sl}, {e2}\nv_mul_f32 {sl}, {lit(1/640)}, {sl}")
        g(f"v_lshrrev_b32 {t1}, 3, {n15}\nv_cmp_eq_u32 vcc, {t0}, {t1}\nv_cndmask_b32_e64 {f2}, 0, 1.0, vcc")
        g(f"v_cmp_eq_u32 vcc, 0, {e2}\nv_cndmask_b32_e64 {f2}, {f2}, 0, vcc")
        g(f"v_cvt_f32_u32 {f1}, {t0}")
        g(f"s_cmp_eq_u32 {g.s_j}, 0\ns_cselect_b32 {a[4]}, 1.0, 0\ns_cselect_b32 {a[6]}, 0, 1.0")
        g(f"s_cmp_eq_u32 {g.s_j}, 1\ns_cselect_b32 {a[5]}, -2.0, 0")
        g(f"v_mul_f32 {P1}, {a[4]}, {f1}")
        g(f"v_sub_f32 {P0}, 1.0, {P1}")
        g(f"v_mul_f32 {Q1}, {a[5]}, {f1}\nv_add_f32 {Q1}, 1.0, {Q1}\nv_mul_f32 {Q1}, {a[6]}, {Q1}")
        g(f"v_mov_b32 {R1}, {Q1}\nv_sub_f32 {T1}, 0, {P1}")
        for x in (P0, P1, Q1, R1, T1): g(f"v_mul_f32 {x}, {x}, {f2}")
        g(f"v_and_b32 {t0}, 1, {gq}\nv_lshlrev_b32 {t0}, 2, {t0}\nv_cvt_f32_u32 {ang}, {t0}\nv_mul_f32 {ang}, {ang}, {sl}")
        trig4(g, ang, sl, [0, 1, 2, 3], cs, sn)
        for dd in range(4):
            g(f"v_mul_f32 {t0}, {P0}, {cs[dd]}\nv_mul_f32 {t1}, {P1}, {cs[dd]}\nv_fmac_f32 {t1}, {Q1}, {sn[dd]}")
            g(f"v_cvt_pk_bf16_f32 {tmp[0]}, {t0}, {t1}\nv_accvgpr_write_b32 {g.a_h2[dd]}, {tmp[0]}")
            g(f"v_mul_f32_e64 {t0}, -{P0}, {sn[dd]}\nv_mul_f32 {t1}, {R1}, {cs[dd]}\nv_fmac_f32 {t1}, {T1}, {sn[dd]}")
            g(f"v_cvt_pk_bf16_f32 {tmp[1]}, {t0}, {t1}\nv_accvgpr_write_b32 {g.a_h2[4+dd]}, {tmp[1]}")
        V.free(e2, P0, P1, Q1, R1, T1)
    if 'b2' in parts:
        tt, msk = g.vv("tt"), g.vv("msk")
        g(f"v_and_b32 {t0}, 1, {n15}\nv_lshrrev_b32 {t1}, 1, {gq}\nv_cmp_eq_u32 vcc, {t0}, {t1}\nv_cndmask_b32_e64 {msk}, 0, 1.0, vcc")
        for mir in range(2):
            g(f"v_lshrrev_b32 {tt}, 1, {n15}")
            if mir:
                g(f"s_or_b32 {a[4]}, {g.s_tb}, {g.s_j}\ns_cmp_eq_u32 {a[4]}, 0\ns_cselect_b32 {a[4]}, 1, 0")
                g(f"v_lshrrev_b32 {t0}, 1, {gq}\nv_sub_u32 {t0}, 1, {t0}\nv_mul_u32_u24 {t0}, {a[4]}, {t0}")
                g(f"v_sub_u32 {tt}, 7, {tt}\nv_add_u32 {tt}, {tt}, {t0}\nv_and_b32 {tt}, 7, {tt}")
            g(f"v_cvt_f32_u32 {sl}, {tt}\nv_mul_f32 {sl}, {lit(1/8)}, {sl}")
            g(f"v_and_b32 {t0}, 1, {gq}\nv_lshlrev_b32 {t0}, 2, {t0}\nv_cvt_f32_u32 {ang}, {t0}\nv_mul_f32 {ang}, {ang}, {sl}")
            trig4(g, ang, sl, [0, 1, 2, 3], cs, sn)
            for dd in range(4):
                g(f"v_mul_f32 {t0}, {msk}, {cs[dd]}\nv_mul_f32 {t1}, {msk}, {sn[dd]}\nv_cvt_pk_bf16_f32 {tmp[0]}, {t0}, {t1}")
                g(f"v_accvgpr_write_b32 {g.a_b2[4*mir+dd]}, {tmp[0]}")
        V.free(tt, msk)
    if 'h1' in parts:
        d2b, K2, rho = g.vv("d2b"), g.vv("K2"), g.vv("rho")
        val = g.vv("val", 8); adr = g.vv("adr")
        g(f"v_lshrrev_b32 {t0}, 1, {gq}\nv_and_b32 {t1}, 1, {gq}\nv_mul_u32_u24 {t1}, 40, {t1}\nv_add_u32 {t0}, {t0}, {t1}\nv_cvt_f32_u32 {d2b}, {t0}")
        for n in range(5):
            sk = g.label("h1")
            g(f"s_add_u32 {a[4]}, {g.s_w}, {3*n - 1}")
            g(f"s_mul_i32 {a[5]}, {a[4]}, 43\ns_lshr_b32 {a[5]}, {a[5]}, 7")
            g(f"s_mul_i32 {a[6]}, {a[5]}, 3\ns_sub_u32 {a[6]}, {a[4]}, {a[6]}")
            g(f"s_lshl_b32 {a[7]}, {a[5]}, 4\nv_add_u32 {rho}, {a[7]}, {n15}")
            g(f"v_lshrrev_b32 {t0}, 1, {rho}\nv_cmp_eq_u32 vcc, 1, {rho}\nv_cndmask_b32_e64 {t0}, {t0}, 40, vcc")
            g(f"v_cvt_f32_u32 {sl}, {t0}\nv_mul_f32 {sl}, {lit(1/80)}, {sl}")
            g(f"v_and_b32 {t1}, 1, {rho}\nv_cndmask_b32_e64 {t1}, {t1}, 0, vcc\nv_cvt_f32_u32 {K2}, {t1}\nv_mul_f32 {K2}, 0.25, {K2}")
            g(f"s_lshl_b32 {a[7]}, {a[6]}, 2\nv_cvt_f32_u32 {ang}, {a[7]}\nv_add_f32 {ang}, {d2b}, {ang}\nv_fma_f32 {ang}, {ang}, {sl}, {K2}")
            g(f"s_cmp_eq_u32 {a[6]}, 2\ns_cselect_b32 {a[7]}, 0, 1.0")
            for u in range(8):
                c = 2 * (u >> 2) + 10 * (u & 3)
                if c: g(f"v_fmamk_f32 {val[u]}, {sl}, {lit(float(c))}, {ang}")
                else: g(f"v_mov_b32 {val[u]}, {ang}")
                g(f"v_cos_f32 {val[u]}, {val[u]}")
                if u >= 4: g(f"v_mul_f32 {val[u]}, {a[7]}, {val[u]}")
            for q in range(4): g(f"v_cvt_pk_bf16_f32 {tmp[q]}, {val[2*q]}, {val[2*q+1]}")
            g(f"s_lshl_b32 {a[7]}, {a[4]}, 10\ns_add_u32 {a[7]}, {a[7]}, {L_H1}\nv_lshlrev_b32 {adr}, 4, {g.v_lane}\nv_add_u32 {adr}, {a[7]}, {adr}")
            g.lines.append(f"ds_write_b128 {adr}, {tmp}")
            g(f"{sk}:")
        V.free(d2b, K2, rho, val, adr)
    V.free(n15, gq, cs, sn, tmp, ang, sl, f1, f2)

def wo_frag_a(g):
    a = g.s_a; V = g.V; t0, t1 = g.v_t0, g.v_t1
    sk = g.label("wog")
    g(f"s_cmp_ge_u32 {g.s_wost}, 80\ns_cbranch_scc1 {sk}")
    ad = g.vv("ad"); raw = g.vv("raw", 8); fr = g.v_big[64:104]; dst = g.vv("dst")
    g(f"v_lshrrev_b32 {t0}, 4, {g.v_lane}\nv_lshlrev_b32 {ad}, 2, {t0}")
    g(f"v_mul_u32_u24 {dst}, {2*5*20*1024}, {t0}\nv_and_b32 {t1}, 15, {g.v_lane}\nv_lshl_add_u32 {dst}, {t1}, 4, {dst}")
    g(f"v_bfe_u32 {t0}, {g.v_lane}, 3, 1\nv_lshl_add_u32 {ad}, {t0}, 4, {ad}")
    g(f"v_and_b32 {t0}, 7, {g.v_lane}\nv_mul_u32_u24 {t0}, 160, {t0}\nv_add_u32 {ad}, {ad}, {t0}\nv_add_u32 {ad}, {L_SCR}, {ad}")
    g(f"s_mov_b32 {a[3]}, 0x05040100\ns_mov_b32 {a[4]}, 0x07060302")
    g.lines.append("s_waitcnt vmcnt(1)")
    for i in range(5):
        for ii in range(8):
            g.lines.append(f"ds_read_b32 {raw[ii]}, {ad} offset:{ii*WO_STRIDE + 32*i}")
        g.lines.append("s_waitcnt lgkmcnt(0)")
        for q in range(4):
            g(f"v_perm_b32 {fr[8*i+q]}, {raw[2*q+1]}, {raw[2*q]}, {a[3]}\nv_perm_b32 {fr[8*i+4+q]}, {raw[2*q+1]}, {raw[2*q]}, {a[4]}")
    g(f"{sk}:")
    V.free(ad, raw)
    return fr, dst

def wo_frag_b(g, wf):
    a = g.s_a; fr, dst = wf
    sk = g.label("wog")
    g(f"s_cmp_ge_u32 {g.s_wost}, 80\ns_cbranch_scc1 {sk}")
    g(f"s_lshr_b32 {a[0]}, {g.s_wost}, 2\ns_lshl_b32 {a[0]}, {a[0]}, 10\ns_and_b32 {a[1]}, {g.s_wost}, 3\ns_lshl_b32 {a[1]}, {a[1]}, 8")
    g(f"s_add_u32 {a[0]}, {a[0]}, {a[1]}\ns_add_u32 {a[0]}, {a[0]}, {WOF}")
    for i in range(5):
        g(f"s_add_u32 {a[1]}, {a[0]}, {i*20*1024}\ns_add_u32 {a[2]}, {a[1]}, {5*20*1024}")
        g.lines.append(f"buffer_store_dwordx4 {fr[8*i:8*i+4]}, {dst}, {g.q_ws}, {a[1]} offen sc1")
        g.lines.append(f"buffer_store_dwordx4 {fr[8*i+4:8*i+8]}, {dst}, {g.q_ws}, {a[2]} offen sc1")
    g(f"{sk}:")
    g.V.free(dst)

def after_s0(g):
    V = g.V
    sk = g.label("xr")
    g(f"s_cmp_lg_u32 {g.s_w}, 0\ns_cbranch_scc1 {sk}")
    x_store(g, raw=True, sc=g.sc)
    g(f"{sk}:")
    g.a_wo = g.A.alloc("wo", 200, at=0)
    g.a_s2 = g.A.alloc("st2", 32, at=200)
    g.a_h2 = g.A.alloc("h2", 8, at=232)
    g.a_s1 = g.A.alloc("st1", 8, at=240)
    g.a_b2 = g.A.alloc("b2", 8, at=248)
    V.free(g.v_big, g.v_l31)
    g.stamp(7)

def wo_loader(g):
    a = g.s_a
    sb = g.S.alloc("wob", 3)
    def setup():
        g(f"s_lshr_b32 {sb[1]}, {g.s_j}, 2\ns_mul_i32 {sb[1]}, {sb[1]}, {5*20*1024}\ns_add_u32 {sb[1]}, {sb[1]}, {WOF}")
        g(f"s_lshr_b32 {sb[2]}, {g.s_w}, 1\ns_lshl_b32 {sb[0]}, {sb[2]}, 13\ns_add_u32 {sb[0]}, {sb[1]}, {sb[0]}")
        g(f"s_lshl_b32 {sb[2]}, {sb[2]}, 11\ns_add_u32 {sb[1]}, {sb[1]}, {sb[2]}\ns_add_u32 {sb[1]}, {sb[1]}, {16*1024}")
    def wo():
        for u in range(10):
            for i in range(5):
                r = (u * 5 + i) * 4
                if u < 8: g(f"s_add_u32 {sb[2]}, {sb[0]}, {(i*20 + u)*1024}")
                else: g(f"s_add_u32 {sb[2]}, {sb[1]}, {(i*20 + u - 8)*1024}")
                g.lines.append(f"buffer_load_dwordx4 {g.a_wo[r:r+4]}, {g.v_x16}, {g.q_ws}, {sb[2]} offen")
                yield
    def tab():
        T = g.toff; base = "fnet_tab-Lpc+"
        def ld(dst):
            g.lines.append(f"buffer_load_dwordx4 {dst}, {g.v_x16}, {g.q_tab}, {sb[2]} offen")
        for h in range(2):
            g(f"s_mov_b32 {sb[2]}, {base}{T['S1'] + 1024*h}"); ld(g.a_s1[4*h:4*h+4]); yield
        for h in range(2):
            g(f"s_min_u32 {sb[2]}, {g.s_j}, 20\ns_lshl_b32 {sb[2]}, {sb[2]}, 11\ns_add_u32 {sb[2]}, {sb[2]}, {base}{T['H2'] + 1024*h}"); ld(g.a_h2[4*h:4*h+4]); yield
        g(f"s_mov_b32 {sb[2]}, {base}{T['B2']}"); ld(g.a_b2[0:4]); yield
        g(f"s_or_b32 {sb[2]}, {g.s_tb}, {g.s_j}\ns_cmp_eq_u32 {sb[2]}, 0\ns_cselect_b32 {sb[2]}, 2048, 1024\ns_add_u32 {sb[2]}, {sb[2]}, {base}{T['B2']}" if False else
          f"s_or_b32 {sb[2]}, {g.s_tb}, {g.s_j}\ns_min_u32 {sb[2]}, {sb[2]}, 1\ns_lshl_b32 {sb[2]}, {sb[2]}, 10\ns_sub_u32 {sb[2]}, {base}{T['B2'] + 2048}, {sb[2]}"); ld(g.a_b2[4:8]); yield
        for q in range(4):
            g(f"s_lshl_b32 {sb[2]}, {g.s_tb}, 2\ns_add_u32 {sb[2]}, {sb[2]}, {g.s_w}\ns_lshl_b32 {sb[2]}, {sb[2]}, 12\ns_add_u32 {sb[2]}, {sb[2]}, {base}{T['S2'] + 1024*q}")
            ld(g.a_s2[8*q:8*q+4]); yield
    return setup, wo(), tab(), sb

def s2_fix(g):
    t0, t1 = g.v_t0, g.v_t1
    for q in range(4):
        re, im = g.a_s2[8*q:8*q+4], g.a_s2[8*q+4:8*q+8]
        g(f"v_accvgpr_read_b32 {t0}, {re[2]}\nv_accvgpr_read_b32 {t1}, {re[3]}")
        g(f"v_accvgpr_mov_b32 {im[2]}, {re[0]}\nv_accvgpr_mov_b32 {im[3]}, {re[1]}")
        g(f"v_xor_b32 {t0}, 0x80008000, {t0}\nv_xor_b32 {t1}, 0x80008000, {t1}")
        g(f"v_accvgpr_write_b32 {im[0]}, {t0}\nv_accvgpr_write_b32 {im[1]}, {t1}")

def tab_touch(g, va):
    a = g.s_a; T = g.toff
    g(f"s_lshl_b32 {a[0]}, {g.s_j}, 13\ns_lshl_b32 {a[1]}, {g.s_tb}, 14\ns_add_u32 {a[1]}, {a[1]}, {T['S2'] - 8*8192}\ns_add_u32 {a[1]}, {a[1]}, {a[0]}")
    g(f"s_cmp_lt_u32 {g.s_j}, 8\ns_cselect_b32 {a[0]}, {a[0]}, {a[1]}\ns_add_u32 {a[0]}, {a[0]}, fnet_tab-Lpc")
    g(f"s_min_u32 {a[0]}, {a[0]}, fnet_tab_end-Lpc-8192")
    g(f"s_cmp_lt_u32 {g.s_j}, 10\ns_cselect_b32 {a[1]}, 1, 0\ns_cmp_eq_u32 {g.s_w}, 3\ns_cselect_b32 {a[1]}, {a[1]}, 0\ns_cmp_eq_u32 {a[1]}, 1\ns_cselect_b32 {a[1]}, 0, {BIG}")
    g(f"v_lshlrev_b32 {va}, 7, {g.v_lane}\nv_add_u32 {va}, {a[1]}, {va}")
    g.lines.append(f"buffer_load_dword {g.v_big[123]}, {va}, {g.q_tab}, {a[0]} offen")

def wo_flag(g):
    a = g.s_a; t0, t1 = g.v_t0, g.v_t1
    sk = g.label("wf")
    g(f"s_cmp_ge_u32 {g.s_wost}, 80\ns_cbranch_scc1 {sk}")
    g(f"s_lshl_b32 {a[0]}, {g.s_wost}, 6\ns_add_u32 {a[0]}, {a[0]}, {WOFL}\nv_mov_b32 {t0}, {a[0]}\nv_mov_b32 {t1}, 1")
    g.lines.append("s_waitcnt vmcnt(0)")
    g(f"s_mov_b64 {g.s_ex}, exec\ns_mov_b64 exec, 1")
    g.lines.append(f"buffer_store_dword {t1}, {t0}, {g.q_ws}, 0 offen sc1")
    g(f"s_mov_b64 exec, {g.s_ex}")
    g(f"{sk}:")
```

```python
import copy, math
from emit import *
from maps import *
from gen_main import lit, f2u, LOG2E

BIG = 0x7ff00000

def emit_all(g):
    prologue(g)
    s0_loads(g)
    snapV, snapA, snapS = copy.deepcopy(g.V), copy.deepcopy(g.A), copy.deepcopy(g.S)
    for fast in g.paths:
        g.V, g.A, g.S = copy.deepcopy(snapV), copy.deepcopy(snapA), copy.deepcopy(snapS)
        g.vm = []; g.lg = []
        body(g, fast)
        g("s_endpgm")
    g.lines.extend(g.subs)
    g("Lexit:")
    g("s_endpgm")
    g("Lcode_end:")

def goto_path(g, entry):
    if len(g.paths) == 1:
        g(f"s_branch L{entry}_{'fast' if g.paths[0] else 'slow'}")
    else:
        l = g.label("gp")
        g(f"s_cmp_eq_u32 {g.s_fast}, 0\ns_cbranch_scc1 {l}\ns_branch L{entry}_fast\n{l}:\ns_branch L{entry}_slow")

def prologue(g):
    g.paths = {"fast": [True], "slow": [False]}.get(g.force, [True, False])
    g("s_cmp_ge_u32 s2, 256\ns_cbranch_scc1 Lexit_near\ns_branch Lstart\nLexit_near:\ns_endpgm\nLstart:")
    g.p_in = g.S.alloc("ptrs", 14, at=16)
    g.q_ws = g.S.alloc("q_ws", 4, at=8)
    g.q_in = g.S.alloc("q_in", 4, at=12)
    g.q_tab = g.S.alloc("q_tab", 4, at=32); g.s_ret = g.S.alloc("ret", 2, at=36)
    p = g.p_in
    g(f"s_load_dwordx4 {p[0:4]}, s[0:1], 0\ns_load_dwordx4 {p[4:8]}, s[0:1], 16")
    g(f"s_load_dwordx4 {p[8:12]}, s[0:1], 72\ns_load_dwordx2 {p[12:14]}, s[0:1], 88")
    g.s_tb = g.sv("tb"); g.s_j = g.sv("j"); g.s_w = g.sv("w"); g.s_ex = g.sv("ex", 2); g.s_t = g.sv("t", 2)
    g.s_wost = g.sv("wost"); g.s_spin = g.sv("spin"); g.s_lep = g.sv("lep"); g.s_fast = g.sv("fast"); g.s_layer = g.sv("layer")
    g.s_a = g.sv("a", 8)
    if g.stamps:
        g.s_t2 = g.sv("t2", 2); g.v_st = g.vv("vst", 3)
        g(f"v_mov_b32 {g.v_st[0]}, 0\nv_mov_b32 {g.v_st[1]}, 0")
    g.v_lane = g.vv("lane"); g.v_t0 = g.vv("t0"); g.v_t1 = g.vv("t1"); g.v_lfown = g.vv("lfown"); g.v_lfall = g.vv("lfall")
    g(f"s_and_b32 {g.s_tb}, s2, 7\ns_lshr_b32 {g.s_j}, s2, 3")
    g(f"v_and_b32 {g.v_lane}, 63, v0\nv_lshrrev_b32 {g.v_t0}, 6, v0")
    g(f"v_readfirstlane_b32 {g.s_w}, {g.v_t0}")
    g(f"s_mov_b32 {g.s_lep}, 0\ns_mov_b32 {g.s_layer}, 0")
    g(f"s_lshl_b32 {g.s_a[0]}, {g.s_tb}, 7")
    g(f"s_lshl_b32 {g.s_a[1]}, {g.s_j}, 2\ns_add_u32 {g.s_a[1]}, {g.s_a[1]}, {g.s_a[0]}")
    g(f"v_mov_b32 {g.v_lfown}, {g.s_a[1]}")
    g(f"v_and_b32 {g.v_lfall}, 31, {g.v_lane}\nv_lshlrev_b32 {g.v_lfall}, 2, {g.v_lfall}\nv_add_u32 {g.v_lfall}, {g.s_a[0]}, {g.v_lfall}")
    g.lines.append("s_waitcnt lgkmcnt(0)")
    g.srd(g.q_ws, p[12], p[13], 256 << 20)
    import tables
    g.toff, _ = tables.build()
    q = g.q_tab
    g(f"s_getpc_b64 {q[0:2]}\nLpc:\ns_and_b32 {q[1]}, {q[1]}, 0xffff\ns_mov_b32 {q[2]}, fnet_tab_end-Lpc\ns_mov_b32 {q[3]}, 0x20000")
    g.stamp(0)

def s0_loads(g):
    p = g.p_in; a = g.s_a
    V = g.V
    t0, t1 = g.v_t0, g.v_t1
    import ph_s0, ph_p1
    g.v_l31 = g.vv("l31")
    g(f"v_and_b32 {g.v_l31}, 31, {g.v_lane}")
    g.v_big = g.vv("big", 128, 4)
    g.v_phi = g.vv("phiA", 8, 4)
    sk = g.label("ph")
    g(f"s_cmp_lg_u32 {g.s_w}, 0\ns_cbranch_scc1 {sk}")
    g.srd(g.q_in, p[4], p[5], 32 * 400 * 2)
    g(f"v_lshlrev_b32 {t0}, 4, {g.v_lane}\ns_mul_i32 {a[4]}, {g.s_j}, 800\ns_mov_b32 m0, {L_PHI}")
    g("s_nop 0")
    g.lines.append(f"buffer_load_dwordx4 {t0}, {g.q_in}, {a[4]} offen lds")
    g(f"{sk}:")
    g.srd(g.q_in, p[0], p[1], S * 1280)
    vp = g.vv("p"); vx = g.vv("vx")
    g(f"s_lshl_b32 {a[4]}, {g.s_j}, 3\ns_lshl_b32 {a[5]}, {g.s_w}, 1\ns_add_u32 {a[4]}, {a[4]}, {a[5]}")
    g(f"v_lshrrev_b32 {vp}, 5, {g.v_lane}\nv_add_u32 {vp}, {a[4]}, {vp}")
    g(f"v_lshrrev_b32 {t0}, 4, {vp}\nv_lshlrev_b32 {t0}, 3, {t0}\nv_and_b32 {t1}, 15, {vp}\nv_lshl_add_u32 {t0}, {t1}, 7, {t0}\nv_add_u32 {t0}, {g.s_tb}, {t0}")
    g(f"v_mul_u32_u24 {vx}, 1280, {t0}\nv_lshl_add_u32 {vx}, {g.v_l31}, 3, {vx}")
    g(f"v_cmp_gt_u32 vcc, 20, {g.v_l31}\nv_mov_b32 {t1}, {BIG}\nv_cndmask_b32 {vx}, {t1}, {vx}, vcc")
    src = g.vv("xsrc", 16, 4)
    for i in range(8):
        g.lines.append(f"buffer_load_dwordx2 {src[2*i:2*i+2]}, {vx}, {g.q_in}, 0 offen offset:{160*i}")
    V.free(vx, vp)
    PM = sum(1 << j for j in (13, 14, 15, 16, 17, 18, 20, 21, 23, 24))
    g(f"s_lshl_b32 {a[4]}, 1, {g.s_j}\ns_sub_u32 {a[5]}, {a[4]}, 1\ns_and_b32 {a[5]}, {a[5]}, {PM}\ns_bcnt1_i32_b32 {a[5]}, {a[5]}")
    g(f"s_lshl_b32 {a[5]}, {a[5]}, 3\ns_add_u32 {a[5]}, {a[5]}, {g.s_tb}\ns_and_b32 {a[4]}, {a[4]}, {PM}\ns_cselect_b32 {g.s_wost}, {a[5]}, 99")
    lw0 = g.label("w0"); lx = g.label("lx")
    ph_p1.p1_alloc(g)
    pb = g.vv("pub", 4); q_dbg = g.S.alloc("q_dbg", 4)
    gs = ph_s0.gather_alloc(g)
    pf = (g.sv("wpf"), g.vv("wpfa"))
    g.srd(gs["q_w"], p[2], p[3], 640 * 3840)
    g.srd(q_dbg, p[10], p[11], 256)
    g(f"s_mov_b32 {g.s_fast}, 0")
    g(f"s_cmp_eq_u32 {g.s_w}, 0\ns_cbranch_scc1 {lw0}")
    g(f"s_mul_i32 {a[0]}, {g.s_j}, 3\ns_add_u32 {a[0]}, {a[0]}, {g.s_w}\ns_sub_u32 {a[0]}, {a[0]}, 1\ns_lshl_b32 {a[0]}, {a[0]}, 10")
    g(f"v_lshlrev_b32 {t0}, 4, {g.v_lane}")
    g.lines.append(f"buffer_load_dwordx4 {g.v_big[124:128]}, {t0}, {g.q_tab}, {a[0]} offen")
    g(f"s_mul_i32 {a[0]}, {g.s_w}, 5120\ns_add_u32 {a[1]}, {a[0]}, {L_H1 - 5120}\ns_add_u32 {a[0]}, {a[0]}, fnet_tab-Lpc+{g.toff['H1'] - 5120}")
    for n in range(5):
        g(f"s_add_u32 m0, {a[1]}, {1024*n}")
        g(f"s_add_u32 {a[2]}, {a[0]}, {1024*n}")
        g.lines.append(f"buffer_load_dwordx4 {t0}, {g.q_tab}, {a[2]} offen lds")
    ph_s0.tab_touch(g, t0)
    g(f"s_branch {lx}")
    g(f"{lw0}:")
    g(f"s_mov_b32 {g.s_fast}, 1")
    sk = g.label("wz")
    g(f"s_cmp_ge_u32 {g.s_wost}, 80\ns_cbranch_scc1 {sk}")
    ph_s0.wo_touch(g)
    g(f"s_mov_b32 {g.s_fast}, 2")
    g(f"{sk}:")
    kp = g.v_big[0:4]
    for q_ in range(4): g(f"v_mov_b32 {kp[q_]}, -1")
    g(f"s_lshl_b32 {a[4]}, {g.s_j}, 14\ns_lshl_b32 {a[5]}, {g.s_tb}, 11\ns_add_u32 {a[4]}, {a[4]}, {a[5]}\nv_lshlrev_b32 {t0}, 4, {g.v_lane}")
    for l in range(2):
        g(f"s_add_u32 {a[5]}, {a[4]}, {KVB[l]}")
        g.lines.append(f"buffer_store_dwordx4 {kp}, {t0}, {g.q_ws}, {a[5]} offen sc1")
        g.lines.append(f"buffer_store_dwordx4 {kp}, {t0}, {g.q_ws}, {a[5]} offen offset:1024 sc1")
    g(f"{lx}:")
    NPF0, NPF1 = 10, 8
    rest = ph_s0.w_prefetch(g, NPF0, gs["q_w"], pf)
    ph_s0.gather_setup(g, gs)
    ph_p1.p1_setup(g)
    publish_setup(g, pb, q_dbg)
    st = ln_addr(g)
    call_phi = g.make_sub("phi", lambda: ph_s0.phi_build(g, wait=False))
    call_raw = g.make_sub("raw", lambda: raw_stage(g, src, st))
    xa = g.label("xa"); xb = g.label("xb"); xc = g.label("xc")
    g(f"s_cmp_eq_u32 {g.s_fast}, 0\ns_cbranch_scc1 {xa}\ns_cmp_eq_u32 {g.s_fast}, 1\ns_cbranch_scc1 {xb}")
    g.lines.append(f"s_waitcnt vmcnt({NPF0 + 6})")
    g(f"s_branch {xc}\n{xb}:")
    g.lines.append(f"s_waitcnt vmcnt({NPF0 + 4})")
    g(f"s_branch {xc}\n{xa}:")
    g.lines.append(f"s_waitcnt vmcnt({NPF0 + 7})")
    g(f"{xc}:")
    g.stamp(3)
    emit_ln(g, src, st, rest, NPF1)
    lw0 = g.label("w0b")
    g(f"s_cmp_eq_u32 {g.s_w}, 0\ns_cbranch_scc1 {lw0}")
    g("s_barrier")
    g.stamp(4)
    for _ in rest: pass
    call_raw()
    call_phi()
    g.lines.append("s_waitcnt vmcnt(0)")
    g.stamp(6)
    g("s_barrier")
    ph_s0.w_gather(g, gs)
    g.lines.append("s_waitcnt vmcnt(0) lgkmcnt(0)")
    g.stamp(1)
    g("s_barrier")
    g(f"v_mov_b32 {t1}, {L_MISC}")
    g.lines.append(f"ds_read_b32 {t0}, {t1}")
    g.lines.append("s_waitcnt lgkmcnt(0)")
    g(f"v_readfirstlane_b32 {g.s_fast}, {t0}")
    goto_path(g, "entry")
    g(f"{lw0}:")
    g("s_barrier")
    g.stamp(4)
    sk = g.label("z0"); sk2 = g.label("z1")
    g(f"v_mov_b32 {t0}, 0\ns_cmp_lg_u32 {g.s_j}, 0\ns_cbranch_scc1 {sk}")
    g.lines.append(f"buffer_store_dword {t0}, {g.v_lfall}, {g.q_ws}, 0 offen sc1")
    g(f"{sk}:\ns_cmp_ge_u32 {g.s_wost}, 80\ns_cbranch_scc1 {sk2}")
    g(f"s_lshl_b32 {a[4]}, {g.s_wost}, 6\ns_add_u32 {a[4]}, {a[4]}, {WOFL}\nv_mov_b32 {t1}, {a[4]}\ns_mov_b64 {g.s_ex}, exec\ns_mov_b64 exec, 1")
    g.lines.append(f"buffer_store_dword {t0}, {t1}, {g.q_ws}, 0 offen sc1")
    g(f"s_mov_b64 exec, {g.s_ex}")
    g(f"{sk2}:")
    ph_s0.x_store(g, raw=False, sc=" sc1")
    np_ = g.label("np"); nk = g.label("nk")
    g(f"s_cmp_ge_u32 {g.s_wost}, 80\ns_cbranch_scc1 {np_}")
    ph_s0.wo_stage(g)
    g.lines.append("s_waitcnt vmcnt(16)")
    g(f"s_branch {nk}\n{np_}:")
    g.lines.append("s_waitcnt vmcnt(0)")
    g(f"{nk}:")
    if g.stop_after == "s0b": g.stamp(10)
    publish_purity(g, pb, q_dbg)
    import os
    if os.environ.get("PUBW") == "1":
        g.lines.append("s_waitcnt vmcnt(0)")
        g.stamp(15)
    g("s_barrier")
    g.stamp(5)
    call_raw()
    call_phi()
    if g.stop_after == "s0b": g.stamp(11)
    wf = ph_s0.wo_frag_a(g)
    ph_s0.wo_frag_b(g, wf)
    if g.stop_after == "s0b": g.stamp(12)
    g("s_barrier")
    if g.stop_after == "s0b": g.stamp(13)
    ph_s0.wo_flag(g)
    if g.stop_after == "s0b": g.stamp(14)
    purity(g, pb, q_dbg)
    g.stamp(2)
    g.lines.append("s_waitcnt lgkmcnt(0)")
    g("s_barrier")
    V.free(src, st)
    V.free(pb); g.S.free(q_dbg)
    ph_s0.gather_free(g, gs)
    g.S.free(pf[0]); V.free(pf[1])
    goto_path(g, "entry")

def ln_addr(g):
    a = g.s_a; V = g.V; t0, t1 = g.v_t0, g.v_t1
    st = g.vv("xst", 4); e2 = g.vv("e2"); rb = g.vv("rb")
    g(f"s_lshl_b32 {a[4]}, {g.s_w}, 5\ns_add_u32 {a[4]}, {a[4]}, {L_XST}\nv_lshrrev_b32 {rb}, 5, {g.v_lane}\nv_lshlrev_b32 {rb}, 4, {rb}\nv_add_u32 {rb}, {a[4]}, {rb}")
    for c in range(4):
        g(f"v_lshl_add_u32 {e2}, {g.v_l31}, 2, {c}")
        g.code_of_e2(st[c], e2, t0)
        g(f"v_lshl_add_u32 {st[c]}, {st[c]}, 7, {rb}")
    g(f"v_cmp_gt_u32 vcc, 20, {g.v_l31}\nv_mov_b32 {t0}, {L_XST + 20480}")
    for c in range(4): g(f"v_cndmask_b32 {st[c]}, {t0}, {st[c]}, vcc")
    V.free(e2, rb)
    return st

def sprinkle(g, body, filler, every):
    k = 0
    for l in body:
        g.lines.append(l); k += 1
        if filler is not None and k % every == 0 and not l.startswith("v_cmp") and not l.endswith(":"):
            try: next(filler)
            except StopIteration: filler = None

def emit_ln(g, src, st, filler, nfill=0):
    a = g.s_a; V = g.V; t0, t1 = g.v_t0, g.v_t1
    real = g.lines
    g.lines = []
    xf = g.vv("xf", 32, 4); sm, sq = g.vv("sm", 2, 2), g.vv("sq", 2, 2)
    pk = g.vv("pk", 16, 4)
    for i in range(8):
        g(f"v_lshlrev_b32 {xf[0*8+i]}, 16, {src[2*i]}\nv_and_b32 {xf[1*8+i]}, 0xffff0000, {src[2*i]}")
        g(f"v_lshlrev_b32 {xf[2*8+i]}, 16, {src[2*i+1]}\nv_and_b32 {xf[3*8+i]}, 0xffff0000, {src[2*i+1]}")
    g(f"v_pk_add_f32 {sm}, {xf[0:2]}, {xf[2:4]}\nv_pk_mul_f32 {sq}, {xf[0:2]}, {xf[0:2]}\nv_pk_fma_f32 {sq}, {xf[2:4]}, {xf[2:4]}, {sq}")
    for i in range(2, 16):
        g(f"v_pk_add_f32 {sm}, {sm}, {xf[2*i:2*i+2]}\nv_pk_fma_f32 {sq}, {xf[2*i:2*i+2]}, {xf[2*i:2*i+2]}, {sq}")
    g(f"v_add_f32 {sm[0]}, {sm[0]}, {sm[1]}\nv_add_f32 {sq[0]}, {sq[0]}, {sq[1]}")
    g.red32(sm[0], t0); g.red32(sq[0], t1)
    g(f"v_mul_f32 {sm[0]}, {lit(1/640)}, {sm[0]}\nv_mul_f32 {sq[0]}, {lit(1/640)}, {sq[0]}")
    g(f"v_fma_f32 {sq[0]}, -{sm[0]}, {sm[0]}, {sq[0]}\nv_add_f32 {sq[0]}, {lit(1e-5)}, {sq[0]}\nv_rsq_f32 {sq[0]}, {sq[0]}")
    g(f"v_mul_f32_e64 {sm[0]}, -{sm[0]}, {sq[0]}")
    for i in range(16):
        g(f"v_pk_fma_f32 {xf[2*i:2*i+2]}, {xf[2*i:2*i+2]}, {sq}, {sm} op_sel_hi:[1,0,0]")
    for c in range(4):
        for i2 in range(4):
            g(f"v_cvt_pk_bf16_f32 {pk[c*4+i2]}, {xf[c*8+2*i2]}, {xf[c*8+2*i2+1]}")
        g.lines.append(f"ds_write_b128 {st[c]}, {pk[4*c:4*c+4]}")
    g.lines.append("s_waitcnt lgkmcnt(0)")
    V.free(xf, sm, sq, pk)
    body = g.lines; g.lines = real
    if nfill:
        import itertools
        sprinkle(g, body, itertools.islice(filler, nfill), len(body) // (nfill + 1))
    else: g.lines.extend(body)

def raw_stage(g, src, st):
    a = g.s_a
    pk = g.vv("pkr", 8, 4)
    g(f"s_mov_b32 {a[3]}, 0x05040100\ns_mov_b32 {a[4]}, 0x07060302")
    for c in range(4):
        r = pk[4*(c & 1):4*(c & 1) + 4]
        for i2 in range(4):
            g(f"v_perm_b32 {r[i2]}, {src[2*(2*i2+1) + (c >> 1)]}, {src[2*(2*i2) + (c >> 1)]}, {a[3 + (c & 1)]}")
        g.lines.append(f"ds_write_b128 {st[c]}, {r} offset:10240")
    g.V.free(pk)

def publish_setup(g, pb, q):
    p = g.p_in; a = g.s_a
    g(f"s_getreg_b32 {a[4]}, hwreg(HW_REG_XCC_ID, 0, 4)\ns_add_u32 {a[4]}, {a[4]}, 1")
    g(f"s_lshl_b32 {a[5]}, {g.s_tb}, 5\ns_add_u32 {a[6]}, {a[5]}, {g.s_j}")
    g(f"v_mov_b32 {pb[0]}, {a[4]}\nv_mov_b32 {pb[1]}, {a[6]}")
    g(f"v_and_b32 {pb[2]}, 7, {g.v_lane}\nv_lshlrev_b32 {pb[2]}, 2, {pb[2]}\nv_add_u32 {pb[2]}, {a[5]}, {pb[2]}")
    g(f"v_mov_b32 {pb[3]}, {L_MISC}")

def publish_purity(g, pb, q):
    g(f"s_mov_b64 {g.s_ex}, exec\ns_mov_b64 exec, 1")
    g.lines.append(f"buffer_store_byte {pb[0]}, {pb[1]}, {q}, 0 offen sc1")
    g(f"s_mov_b64 exec, {g.s_ex}")

def purity(g, pb, q):
    a = g.s_a; t0, t1 = g.v_t0, g.v_t1
    pv = pb[0]
    lp = g.label("pp"); dn = g.label("ppd")
    g(f"s_mov_b32 {g.s_spin}, {1 << 20}")
    g(f"{lp}:")
    g.lines.append(f"buffer_load_dword {pv}, {pb[2]}, {q}, 0 offen sc1")
    g.lines.append("s_waitcnt vmcnt(0)")
    g(f"v_subrev_u32 {t0}, 0x01010101, {pv}\nv_bfi_b32 {t0}, {pv}, 0, {t0}\nv_and_b32 {t0}, 0x80808080, {t0}")
    g(f"v_cmp_ne_u32 vcc, 0, {t0}\ns_cbranch_vccz {dn}")
    g(f"s_sub_u32 {g.s_spin}, {g.s_spin}, 1\ns_cmp_lg_u32 {g.s_spin}, 0\ns_cbranch_scc1 {lp}")
    g(f"{dn}:")
    g(f"v_readfirstlane_b32 {a[5]}, {pv}\ns_and_b32 {a[5]}, {a[5]}, 0xff\ns_mul_i32 {a[5]}, {a[5]}, 0x01010101")
    g(f"v_cmp_ne_u32 vcc, {a[5]}, {pv}\ns_cmp_eq_u64 vcc, 0\ns_cselect_b32 {g.s_fast}, 1, 0\nv_mov_b32 {t0}, {g.s_fast}")
    g.lines.append(f"ds_write_b32 {pb[3]}, {t0}")

def finish(g, fast):
    g.stamp(31)
    g.wait0()
    g.flush_stamps()

def body(g, fast):
    import ph_s0, ph_p1, ph_p2, ph_b
    sc = "" if fast else " sc1"
    g.sc = sc; g.fast = fast
    tag = "fast" if fast else "slow"
    for nm in ("s_xn", "s_xr", "s_kvb", "s_ob", "s_x1", "s_gb", "s_stb", "s_zb"): setattr(g, nm, None)
    g(f"Lentry_{tag}:")
    g.vm = []; g.lg = []
    ph_s0.after_s0(g)
    if g.stop_after in ("s0", "s0b"): return finish(g, fast)
    lay = g.label("layer")
    g(f"s_mov_b32 {g.s_layer}, 0")
    g(f"{lay}:")
    g.vm = []; g.lg = []
    ph_p1.set_layer(g)
    ph_p1.p1(g)
    if g.stop_after == "p1": return finish(g, fast)
    ph_p2.p2(g)
    if g.stop_after == "p2": return finish(g, fast)
    ph_b.b1(g)
    if g.stop_after == "b1": return finish(g, fast)
    ph_b.b2(g, lay)
    finish(g, fast)
```

```python
from emit import *
from maps import *
from gen_main import lit
from ph_p2 import swap_quad, first_layer
import ph_s0, os
BIG = 0x7ff00000
L_EX = L_SCR
L_R = L_SCR + 16384
L_ST2 = L_SCR + 20480
L_OUT = L_SCR

def b1(g):
    a = g.s_a; t0, t1 = g.v_t0, g.v_t1; L = g.v_lane; V = g.V
    g.c("==== B1 ====")
    n15, gq = g.vv("n15"), g.vv("gq")
    va, vs = g.vv("va"), g.vv("vs")
    sg, ss = g.sv("sg"), g.sv("ss")
    def setup():
        first_layer(g, lambda: ph_s0.s2_fix(g))
        g(f"v_and_b32 {n15}, 15, {L}\nv_lshrrev_b32 {gq}, 4, {L}")
        g(f"s_sub_u32 {a[0]}, {g.s_j}, 1\ns_cmp_eq_u32 {g.s_j}, 0\ns_cselect_b32 {a[0]}, 0, {a[0]}")
        g(f"s_cmp_ge_u32 {g.s_j}, 2\ns_cselect_b32 {a[1]}, 1, 0\ns_cmp_eq_u32 {g.s_j}, 1\ns_cselect_b32 {a[3]}, 1, 0")
        g(f"v_lshrrev_b32 {t0}, 1, {gq}\nv_mul_u32_u24 {t0}, {a[1]}, {t0}\nv_add_u32 {t0}, {a[3]}, {t0}\nv_lshlrev_b32 {va}, 2, {t0}")
        g(f"v_and_b32 {t0}, 1, {gq}\nv_lshl_add_u32 {va}, {t0}, 13, {va}")
        g(f"s_lshl_b32 {a[0]}, {a[0]}, 14\ns_lshl_b32 {a[2]}, {g.s_w}, 9\ns_add_u32 {a[0]}, {a[0]}, {a[2]}\nv_lshl_add_u32 {va}, {n15}, 3, {va}\nv_add_u32 {va}, {a[0]}, {va}")
        g(f"s_lshl_b32 {a[2]}, {g.s_w}, 9\nv_lshlrev_b32 {vs}, 3, {L}\nv_add_u32 {vs}, {a[2]}, {vs}")
        g(f"s_mul_i32 {sg}, {g.s_tb}, {XSZ}\ns_add_u32 {sg}, {sg}, {g.s_gb}\ns_mul_i32 {ss}, {g.s_tb}, {LOCSZ}\ns_add_u32 {ss}, {ss}, {g.s_stb}")
    g.local_barrier(g.fast, work=setup)
    g.stamp(23)
    if g.fast and os.environ.get("WB") == "lbg":
        sk = g.label("wb")
        g(f"s_cmp_lg_u32 {g.s_j}, 31\ns_cbranch_scc1 {sk}\ns_cmp_lg_u32 {g.s_layer}, 1\ns_cbranch_scc1 {sk}\ns_cmp_lg_u32 {g.s_w}, 3\ns_cbranch_scc1 {sk}")
        g.lines.append("buffer_wbl2 sc1")
        g(f"{sk}:")
    done = g.label("b1d")
    g(f"s_cmp_gt_u32 {g.s_j}, 20\ns_cbranch_scc1 {done}")
    g.vm = []; g.lg = []
    st = g.vv("st", 16, 4); ga = g.vv("ga", 16, 4)
    for q in range(8):
        if q == 2 or q == 4 or q == 6: g(f"s_add_u32 {ss}, {ss}, 4096")
        g(f"buffer_load_dwordx2 {st[2*q:2*q+2]}, {vs}, {g.q_ws}, {ss} offen offset:{2048*(q%2)} sc1")
    ms = g.vm_mark()
    gm = []
    sgd = g.S.alloc("sgd", 4)
    for dd in range(4): g(f"s_add_u32 {sgd[dd]}, {sg}, {2048*dd}")
    for aa in range(4):
        for dd in range(4):
            g(f"buffer_load_dword {ga[4*aa+dd]}, {va}, {g.q_ws}, {sgd[dd]} offen offset:{128*aa} sc1")
        gm.append(g.vm_mark())
    g.S.free(sgd)
    g.wait(vm=ms)
    g.stamp(6) if g.fine else None
    for q in range(1, 8):
        g(f"v_pk_add_f32 {st[0:2]}, {st[0:2]}, {st[2*q:2*q+2]}")
    g(f"v_mul_f32 {st[0]}, {lit(1/640)}, {st[0]}\nv_mul_f32 {st[1]}, {lit(1/640)}, {st[1]}")
    g(f"v_fma_f32 {st[1]}, -{st[0]}, {st[0]}, {st[1]}\nv_add_f32 {st[1]}, {lit(1e-5)}, {st[1]}\nv_rsq_f32 {st[1]}, {st[1]}")
    g(f"s_lshl_b32 {a[2]}, {g.s_w}, 8\ns_add_u32 {a[2]}, {a[2]}, {L_R}\nv_lshlrev_b32 {t0}, 2, {L}\nv_add_u32 {t0}, {a[2]}, {t0}")
    g(f"ds_write_b32 {t0}, {st[1]}")
    g(f"v_lshlrev_b32 {t1}, 4, {gq}\nv_add_u32 {t1}, {a[2]}, {t1}")
    g.wait0(vm=False)
    rr = st
    for aa in range(4): g(f"ds_read_b128 {rr[4*aa:4*aa+4]}, {t1} offset:{64*aa}")
    mr = g.lg_mark()
    dre, dim = g.vv("dre", 16, 4), g.vv("dim", 16, 4)
    for aa in range(4):
        g.wait(vm=gm[aa])
        g(f"v_mfma_f32_16x16x32_bf16 {dre[4*aa:4*aa+4]}, {ga[4*aa:4*aa+4]}, {g.a_h2[0:4]}, 0")
        g(f"v_mfma_f32_16x16x32_bf16 {dim[4*aa:4*aa+4]}, {ga[4*aa:4*aa+4]}, {g.a_h2[4:8]}, 0")
    g.wait(lg=mr)
    ub = ga
    for aa in range(4):
        for h in range(2):
            g(f"v_pk_mul_f32 {dre[4*aa+2*h:4*aa+2*h+2]}, {dre[4*aa+2*h:4*aa+2*h+2]}, {rr[4*aa+2*h:4*aa+2*h+2]}")
            g(f"v_pk_mul_f32 {dim[4*aa+2*h:4*aa+2*h+2]}, {dim[4*aa+2*h:4*aa+2*h+2]}, {rr[4*aa+2*h:4*aa+2*h+2]}")
        g(f"v_cvt_pk_bf16_f32 {ub[4*aa]}, {dre[4*aa]}, {dre[4*aa+1]}\nv_cvt_pk_bf16_f32 {ub[4*aa+1]}, {dre[4*aa+2]}, {dre[4*aa+3]}")
        g(f"v_cvt_pk_bf16_f32 {ub[4*aa+2]}, {dim[4*aa]}, {dim[4*aa+1]}\nv_cvt_pk_bf16_f32 {ub[4*aa+3]}, {dim[4*aa+2]}, {dim[4*aa+3]}")
    g.stamp(7) if g.fine else None
    for aa in range(4):
        g(f"v_mfma_f32_16x16x32_bf16 {dre[4*aa:4*aa+4]}, {g.a_s1[0:4]}, {ub[4*aa:4*aa+4]}, 0")
        g(f"v_mfma_f32_16x16x32_bf16 {dim[4*aa:4*aa+4]}, {g.a_s1[4:8]}, {ub[4*aa:4*aa+4]}, 0")
    g(f"v_lshlrev_b32 {t0}, 12, {gq}\nv_lshl_add_u32 {t0}, {n15}, 6, {t0}\ns_lshl_b32 {a[2]}, {g.s_w}, 4\ns_add_u32 {a[2]}, {a[2]}, {L_EX}\nv_add_u32 {t0}, {a[2]}, {t0}")
    for r in range(4):
        p = st[4*r:4*r+4]
        g(f"v_cvt_pk_bf16_f32 {p[0]}, {dre[r]}, {dre[4+r]}\nv_cvt_pk_bf16_f32 {p[1]}, {dre[8+r]}, {dre[12+r]}")
        g(f"v_cvt_pk_bf16_f32 {p[2]}, {dim[r]}, {dim[4+r]}\nv_cvt_pk_bf16_f32 {p[3]}, {dim[8+r]}, {dim[12+r]}")
        g(f"ds_write_b128 {t0}, {p} offset:{1024*r}")
    g.wait0(vm=False)
    g("s_barrier")
    g(f"s_lshl_b32 {a[2]}, {g.s_w}, 12\ns_add_u32 {a[2]}, {a[2]}, {L_EX}\nv_lshlrev_b32 {t0}, 6, {n15}\nv_lshl_add_u32 {t0}, {gq}, 4, {t0}\nv_add_u32 {t0}, {a[2]}, {t0}")
    for q in range(4): g(f"ds_read_b128 {ub[4*q:4*q+4]}, {t0} offset:{1024*q}")
    g.wait0(vm=False)
    for q in range(4):
        g(f"v_mfma_f32_16x16x32_bf16 {dre[4*q:4*q+4]}, {g.a_s2[8*q:8*q+4]}, {ub[4*q:4*q+4]}, 0")
        g(f"v_mfma_f32_16x16x32_bf16 {dim[4*q:4*q+4]}, {g.a_s2[8*q+4:8*q+8]}, {ub[4*q:4*q+4]}, 0")
    g.stamp(14) if g.fine else None
    g(f"s_mul_i32 {a[2]}, {g.s_tb}, {ZSZ}\ns_add_u32 {a[2]}, {a[2]}, {g.s_zb}\ns_lshl_b32 {a[3]}, {g.s_j}, 14\ns_add_u32 {a[2]}, {a[2]}, {a[3]}")
    g(f"s_lshl_b32 {a[3]}, {g.s_w}, 12\ns_add_u32 {a[2]}, {a[2]}, {a[3]}")
    g(f"v_and_b32 {t0}, 1, {gq}\nv_lshlrev_b32 {t1}, 7, {t0}\nv_lshrrev_b32 {t0}, 1, {gq}\nv_lshl_add_u32 {t1}, {t0}, 6, {t1}\nv_lshl_add_u32 {t1}, {n15}, 2, {t1}")
    for q in range(4):
        for r in range(4):
            g(f"v_cvt_pk_bf16_f32 {st[4*q+r]}, {dre[4*q+r]}, {dim[4*q+r]}")
            g(f"buffer_store_dword {st[4*q+r]}, {t1}, {g.q_ws}, {a[2]} offen offset:{(q*4+r)*256} sc1")
    V.free(st, ga, dre, dim)
    g(f"{done}:")
    V.free(n15, gq, va, vs); g.S.free(sg, ss)
    g.stamp(24)

def b2(g, lay):
    a = g.s_a; t0, t1 = g.v_t0, g.v_t1; L = g.v_lane; V = g.V; sc = g.sc
    g.c("==== B2 ====")
    n15, gq = g.vv("n15"), g.vv("gq")
    g(f"v_and_b32 {n15}, 15, {L}\nv_lshrrev_b32 {gq}, 4, {L}")
    vd, vm_ = g.vv("vd"), g.vv("vmir"); tau = g.vv("tau")
    g(f"s_lshl_b32 {a[0]}, {g.s_j}, 3\ns_add_u32 {a[0]}, {a[0]}, {g.s_tb}")
    for mir, dst in ((0, vd), (1, vm_)):
        g(f"v_lshrrev_b32 {tau}, 1, {gq}\nv_lshlrev_b32 {tau}, 7, {tau}\nv_add_u32 {tau}, {a[0]}, {tau}")
        if mir: g(f"v_sub_u32 {tau}, 256, {tau}\nv_and_b32 {tau}, 255, {tau}")
        g(f"v_and_b32 {t0}, 15, {tau}\nv_lshlrev_b32 {dst}, 10, {t0}")
        g(f"v_bfe_u32 {t0}, {tau}, 4, 2\nv_lshl_add_u32 {dst}, {t0}, 8, {dst}")
        g(f"v_bfe_u32 {t0}, {tau}, 6, 1\nv_lshl_add_u32 {dst}, {t0}, 7, {dst}\nv_lshrrev_b32 {t0}, 7, {tau}\nv_lshl_add_u32 {dst}, {t0}, 6, {dst}")
        if mir: g(f"v_and_b32 {t0}, 8, {n15}\nv_and_b32 {t1}, 7, {n15}\nv_sub_u32 {t1}, 7, {t1}\nv_add_u32 {t0}, {t0}, {t1}\nv_lshl_add_u32 {dst}, {t0}, 2, {dst}")
        else: g(f"v_lshl_add_u32 {dst}, {n15}, 2, {dst}")
        g(f"v_and_b32 {t0}, 1, {gq}\ns_mov_b32 {a[1]}, {4*ZSZ}\nv_mul_lo_u32 {t0}, {t0}, {a[1]}\nv_add_u32 {dst}, {dst}, {t0}")
    V.free(tau)
    vx = g.vv("vx")
    g(f"s_lshr_b32 {a[1]}, {g.s_j}, 1\ns_mul_i32 {a[1]}, {a[1]}, 40960\ns_and_b32 {a[2]}, {g.s_j}, 1\ns_lshl_b32 {a[2]}, {a[2]}, 8\ns_add_u32 {a[1]}, {a[1]}, {a[2]}")
    g(f"s_mul_i32 {a[2]}, {g.s_w}, 10240\ns_add_u32 {a[1]}, {a[1]}, {a[2]}\ns_mul_i32 {a[2]}, {g.s_tb}, {XSZ}\ns_add_u32 {a[1]}, {a[1]}, {a[2]}")
    g(f"v_lshlrev_b32 {vx}, 4, {n15}\nv_lshrrev_b32 {t0}, 1, {gq}\nv_lshl_add_u32 {vx}, {t0}, 9, {vx}\nv_and_b32 {t0}, 1, {gq}\nv_lshl_add_u32 {vx}, {t0}, 10, {vx}\nv_add_u32 {vx}, {a[1]}, {vx}")
    done = g.label("b2d")
    act = g.sv("act")
    g(f"s_cmp_lt_u32 {g.s_j}, 16\ns_cselect_b32 {act}, 1, 0")
    xr = g.vv("xr", 20, 4)
    sk = g.label("b2p")
    g(f"s_cmp_eq_u32 {act}, 0\ns_cbranch_scc1 {sk}")
    for q in range(5):
        g(f"s_add_u32 {a[2]}, {g.s_x1}, {2048*q}")
        g.lines.append(f"buffer_load_dwordx4 {xr[4*q:4*q+4]}, {vx}, {g.q_ws}, {a[2]} offen sc1")
    g.lines.append("s_waitcnt vmcnt(0)")
    for q in range(5): swap_quad(g, xr[4*q:4*q+4])
    g(f"{sk}:")
    g.stamp(26)
    g(f"s_cmp_eq_u32 {act}, 0\ns_cbranch_scc1 {done}")
    za = g.vv("za", 48, 4); y = g.vv("y", 40, 4)
    sb, su = g.sv("sb"), g.sv("su")
    pa = y[0:2]; pv = y[2:4]; pb = y[4]; pu = y[5]; pm = y[6]
    for q in range(2):
        g(f"v_lshrrev_b32 {pb}, 3, {L}")
        if q: g(f"v_add_u32 {pb}, 8, {pb}\nv_min_u32 {pb}, 9, {pb}")
        g(f"s_mul_i32 {sb}, {g.s_w}, 10\nv_add_u32 {pb}, {sb}, {pb}")
        g(f"v_subrev_u32 {pu}, 19, {pb}\nv_cmp_lt_u32 vcc, 20, {pb}\nv_cndmask_b32 {pu}, {pb}, {pu}, vcc")
        g(f"v_readlane_b32 {a[2]}, {vd}, 0\nv_readlane_b32 {a[3]}, {vm_}, 0")
        g(f"v_mov_b32 {pm}, {a[2]}\nv_mov_b32 {t0}, {a[3]}\nv_cndmask_b32 {pm}, {pm}, {t0}, vcc")
        g(f"v_lshl_add_u32 {pa[q]}, {pu}, 14, {pm}\nv_and_b32 {t0}, 7, {L}\ns_mov_b32 {a[2]}, {ZSZ}\nv_mul_lo_u32 {t0}, {t0}, {a[2]}\nv_add_u32 {pa[q]}, {pa[q]}, {t0}")
    oad = g.vv("oad", 10)
    skl = g.label("oa")
    g(f"s_cmp_eq_u32 {g.s_layer}, 0\ns_cbranch_scc1 {skl}")
    cod, up, dn_, bs = y[8], y[9], y[10], y[11]
    g(f"s_mul_i32 {sb}, {g.s_w}, 20\nv_lshrrev_b32 {cod}, 1, {gq}\nv_add_u32 {cod}, {sb}, {cod}")
    g(f"v_and_b32 {t0}, 1, {gq}\nv_mul_u32_u24 {bs}, 640, {t0}\nv_mul_u32_u24 {t0}, 1296, {n15}\nv_add_u32 {bs}, {bs}, {t0}\nv_add_u32 {bs}, {L_OUT}, {bs}")
    g(f"v_lshl_add_u32 {up}, {cod}, 1, {bs}\nv_subrev_u32 {up}, 4, {up}")
    g(f"v_lshlrev_b32 {t0}, 1, {cod}\nv_sub_u32 {dn_}, {bs}, {t0}\nv_add_u32 {dn_}, 240, {dn_}")
    for bl in range(10):
        if bl: g(f"v_add_u32 {up}, 4, {up}\nv_subrev_u32 {dn_}, 4, {dn_}")
        g(f"v_cmp_lt_u32 vcc, {41 - 2*bl}, {cod}\nv_cndmask_b32 {oad[bl]}, {up}, {dn_}, vcc")
    g(f"v_lshrrev_b32 {t0}, 1, {gq}\nv_mul_u32_u24 {t1}, 80, {t0}\nv_add_u32 {t1}, {t1}, {bs}\ns_cmp_eq_u32 {g.s_w}, 0\ns_cselect_b64 vcc, -1, 0\nv_cndmask_b32 {oad[0]}, {oad[0]}, {t1}, vcc")
    g(f"v_mul_u32_u24 {t1}, 156, {t0}\nv_add_u32 {t1}, {t1}, {bs}\nv_add_u32 {t1}, 2, {t1}\nv_cndmask_b32 {oad[1]}, {oad[1]}, {t1}, vcc")
    g(f"{skl}:")
    g("s_barrier")
    lq = g.label("zq"); dq = g.label("zqd")
    g(f"s_mov_b32 {g.s_spin}, {1 << 18}")
    g(f"{lq}:")
    for q in range(2): g.lines.append(f"buffer_load_dword {pv[q]}, {pa[q]}, {g.q_ws}, {g.s_zb} offen sc1")
    g.lines.append("s_waitcnt vmcnt(0)")
    g(f"v_max_u32 {t1}, {pv[0]}, {pv[1]}\nv_cmp_eq_u32 vcc, -1, {t1}\ns_cbranch_vccz {dq}")
    g(f"s_sub_u32 {g.s_spin}, {g.s_spin}, 1\ns_cmp_lg_u32 {g.s_spin}, 0\ns_cbranch_scc1 {lq}")
    g(f"{dq}:")
    g.stamp(25)
    lp = g.label("zp"); dn = g.label("zd")
    g(f"s_mov_b32 {g.s_spin}, {1 << 16}")
    g(f"{lp}:")
    for bl in range(10):
        g(f"s_mul_i32 {sb}, {g.s_w}, 10\ns_add_u32 {sb}, {sb}, {bl}")
        g(f"s_sub_u32 {su}, {sb}, 19\ns_cmp_gt_u32 {sb}, 20\ns_cselect_b32 {su}, {su}, {sb}")
        g(f"s_lshl_b32 {su}, {su}, 14\ns_add_u32 {su}, {su}, {g.s_zb}")
        g(f"s_cmp_gt_u32 {sb}, 20\ns_cselect_b64 vcc, -1, 0\nv_cndmask_b32 {t0}, {vd}, {vm_}, vcc")
        for dd in range(4):
            g.lines.append(f"buffer_load_dword {za[4*bl+dd]}, {t0}, {g.q_ws}, {su} offen sc1")
            if dd < 3: g(f"s_add_u32 {su}, {su}, {ZSZ}")
    g.stamp(15) if g.fine else None
    g.lines.append("s_waitcnt vmcnt(0)")
    g(f"v_max3_u32 {t1}, {za[0]}, {za[1]}, {za[2]}")
    for q in range(3, 39, 2): g(f"v_max3_u32 {t1}, {t1}, {za[q]}, {za[q+1]}")
    g(f"v_max_u32 {t1}, {t1}, {za[39]}\nv_cmp_eq_u32 vcc, -1, {t1}\ns_cbranch_vccz {dn}")
    g(f"s_sub_u32 {g.s_spin}, {g.s_spin}, 1\ns_cmp_lg_u32 {g.s_spin}, 0\ns_cbranch_scc1 {lp}")
    g(f"{dn}:")
    if g.fast and os.environ.get("WB", "b2") == "b2":
        sk = g.label("wb")
        g(f"s_cmp_lg_u32 {g.s_j}, 15\ns_cbranch_scc1 {sk}\ns_cmp_lg_u32 {g.s_layer}, 1\ns_cbranch_scc1 {sk}\ns_cmp_lg_u32 {g.s_w}, 3\ns_cbranch_scc1 {sk}")
        g.lines.append("buffer_wbl2 sc1")
        g(f"{sk}:")
    bc = g.vv("bc", 8, 4)
    for q in range(8): g(f"v_accvgpr_read_b32 {bc[q]}, {g.a_b2[q]}")
    cur = g.vv("cur", 4, 4)
    for bl in range(10):
        g(f"s_mul_i32 {sb}, {g.s_w}, 10\ns_add_u32 {sb}, {sb}, {bl}\ns_cmp_gt_u32 {sb}, 20\ns_cselect_b64 vcc, -1, 0")
        for q in range(4): g(f"v_cndmask_b32 {cur[q]}, {bc[q]}, {bc[4+q]}, vcc")
        g(f"v_mfma_f32_16x16x32_bf16 {y[4*bl:4*bl+4]}, {za[4*bl:4*bl+4]}, {cur}, 0")
    V.free(bc, cur)
    g.stamp(28) if g.fine else None
    xf = g.vv("xf", 4); sm, sq = g.vv("sm", 2, 2), g.vv("sq", 2, 2)
    for bl in range(10):
        g(f"v_lshlrev_b32 {xf[0]}, 16, {xr[2*bl]}\nv_and_b32 {xf[1]}, 0xffff0000, {xr[2*bl]}\nv_lshlrev_b32 {xf[2]}, 16, {xr[2*bl+1]}\nv_and_b32 {xf[3]}, 0xffff0000, {xr[2*bl+1]}")
        g(f"v_pk_add_f32 {y[4*bl:4*bl+2]}, {y[4*bl:4*bl+2]}, {xf[0:2]}\nv_pk_add_f32 {y[4*bl+2:4*bl+4]}, {y[4*bl+2:4*bl+4]}, {xf[2:4]}")
    x2p = za[0:20]
    for q in range(20): g(f"v_cvt_pk_bf16_f32 {x2p[q]}, {y[2*q]}, {y[2*q+1]}")
    last = g.label("b2last"); join = g.label("b2join")
    g(f"s_cmp_lg_u32 {g.s_layer}, 0\ns_cbranch_scc1 {last}")
    g(f"s_mov_b32 {a[2]}, {X_IN[1]}")
    for q in range(5):
        swap_quad(g, x2p[4*q:4*q+4])
        g.lines.append(f"buffer_store_dwordx4 {x2p[4*q:4*q+4]}, {vx}, {g.q_ws}, {a[2]} offen{sc}")
        g(f"s_add_u32 {a[2]}, {a[2]}, 2048")
    g(f"v_pk_add_f32 {sm}, {y[0:2]}, {y[2:4]}\nv_pk_mul_f32 {sq}, {y[0:2]}, {y[0:2]}\nv_pk_fma_f32 {sq}, {y[2:4]}, {y[2:4]}, {sq}")
    for q in range(2, 20):
        g(f"v_pk_add_f32 {sm}, {sm}, {y[2*q:2*q+2]}\nv_pk_fma_f32 {sq}, {y[2*q:2*q+2]}, {y[2*q:2*q+2]}, {sq}")
    g(f"v_add_f32 {sm[0]}, {sm[0]}, {sm[1]}\nv_add_f32 {sm[1]}, {sq[0]}, {sq[1]}")
    for x in (sm[0], sm[1]):
        g.xq16(x, t0, "v_add_f32"); g.xhalf(x, t0, "v_add_f32")
    g(f"s_lshl_b32 {a[2]}, {g.s_w}, 7\ns_add_u32 {a[2]}, {a[2]}, {L_ST2}\nv_lshlrev_b32 {t1}, 3, {n15}\nv_add_u32 {t0}, {a[2]}, {t1}")
    g.lines.append(f"ds_write_b64 {t0}, {sm}")
    g.lines.append("s_waitcnt lgkmcnt(0)")
    g("s_barrier")
    g(f"v_add_u32 {t1}, {L_ST2}, {t1}")
    pr = za[20:28]
    for w in range(4): g.lines.append(f"ds_read_b64 {pr[2*w:2*w+2]}, {t1} offset:{128*w}")
    g.lines.append("s_waitcnt lgkmcnt(0)")
    g(f"v_pk_add_f32 {pr[0:2]}, {pr[0:2]}, {pr[2:4]}\nv_pk_add_f32 {pr[4:6]}, {pr[4:6]}, {pr[6:8]}\nv_pk_add_f32 {sm}, {pr[0:2]}, {pr[4:6]}")
    g(f"v_mul_f32 {sm[0]}, {lit(1/640)}, {sm[0]}\nv_mul_f32 {sm[1]}, {lit(1/640)}, {sm[1]}")
    g(f"v_fma_f32 {sq[0]}, -{sm[0]}, {sm[0]}, {sm[1]}\nv_add_f32 {sq[0]}, {lit(1e-5)}, {sq[0]}\nv_rsq_f32 {sq[0]}, {sq[0]}")
    g(f"v_mul_f32_e64 {sm[0]}, -{sm[0]}, {sq[0]}")
    for q in range(20):
        g(f"v_pk_fma_f32 {y[2*q:2*q+2]}, {y[2*q:2*q+2]}, {sq}, {sm} op_sel_hi:[1,0,0]")
    xn = za[28:48]
    for q in range(20): g(f"v_cvt_pk_bf16_f32 {xn[q]}, {y[2*q]}, {y[2*q+1]}")
    g(f"s_mov_b32 {a[2]}, {XN_IN[1]}")
    for q in range(5):
        swap_quad(g, xn[4*q:4*q+4])
        g.lines.append(f"buffer_store_dwordx4 {xn[4*q:4*q+4]}, {vx}, {g.q_ws}, {a[2]} offen{sc}")
        g(f"s_add_u32 {a[2]}, {a[2]}, 2048")
    g(f"s_branch {join}")
    g(f"{last}:")
    for bl in range(10):
        ad = oad[bl]
        g.lines.append(f"ds_write_b16 {ad}, {x2p[2*bl]}")
        g.lines.append(f"ds_write_b16_d16_hi {ad}, {x2p[2*bl]} offset:160")
        g.lines.append(f"ds_write_b16 {ad}, {x2p[2*bl+1]} offset:320")
        g.lines.append(f"ds_write_b16_d16_hi {ad}, {x2p[2*bl+1]} offset:480")
    g.lines.append("s_waitcnt lgkmcnt(0)")
    g("s_barrier")
    q_out = g.q_in
    g.srd(q_out, g.p_in[8], g.p_in[9], S * 1280)
    ro = y[4:24]; oa = y[24]; la = y[25]
    g(f"v_lshrrev_b32 {t0}, 4, v0\nv_and_b32 {t1}, 15, v0\nv_mul_u32_u24 {la}, 1296, {t0}\nv_lshl_add_u32 {la}, {t1}, 4, {la}\nv_add_u32 {la}, {L_OUT}, {la}")
    g(f"s_lshl_b32 {a[2]}, {g.s_j}, 3\ns_add_u32 {a[2]}, {a[2]}, {g.s_tb}\nv_lshlrev_b32 {t0}, 7, {t0}\nv_add_u32 {t0}, {a[2]}, {t0}\nv_mul_u32_u24 {oa}, 1280, {t0}\nv_lshl_add_u32 {oa}, {t1}, 4, {oa}")
    for c in range(5): g.lines.append(f"ds_read_b128 {ro[4*c:4*c+4]}, {la} offset:{256*c}")
    g.lines.append("s_waitcnt lgkmcnt(0)")
    for c in range(5): g.lines.append(f"buffer_store_dwordx4 {ro[4*c:4*c+4]}, {oa}, {q_out}, 0 offen offset:{256*c}" + os.environ.get("OUTF", " sc1"))
    g(f"{join}:")
    V.free(za, y, xf, sm, sq, oad); g.S.free(sb, su)
    g(f"{done}:")
    V.free(n15, gq, vd, vm_, vx, xr); g.S.free(act)
    g.stamp(27)
    fin = g.label("fin")
    g(f"s_cmp_lg_u32 {g.s_layer}, 0\ns_cbranch_scc1 {fin}")
    g.local_barrier(g.fast)
    g.stamp(28)
    g(f"s_mov_b32 {g.s_layer}, 1")
    g(f"s_branch {lay}")
    g(f"{fin}:")
```

```python
from emit import *
from maps import *
from gen_main import lit, f2u, LOG2E
BIG = 0x7ff00000
NR = 10
DUMMY = L_MISC + 512

def drain(gen):
    for _ in gen: pass

def p1_alloc(g):
    g.v_Aq = g.vv("Aq", 2); g.v_Ak = g.vv("Ak", 2)
    g.v_x16 = g.vv("x16")
    g.v_img = g.vv("img"); g.v_vA = g.vv("vA"); g.v_vC = g.vv("vC"); g.v_T = g.vv("vT"); g.v_K = g.vv("vK")
    g.s_l2e2 = g.sv("l2e", 2); g.s_l2e = g.s_l2e2[0]; g.s_hi = g.sv("hi", 2); g.v_one = g.vv("one")

def p1_setup(g):
    t0, t1 = g.v_t0, g.v_t1; V = g.V; a = g.s_a; L = g.v_lane
    r, c, khh, ch = g.vv("r"), g.vv("c"), g.vv("khh"), g.vv("ch")
    g(f"v_bfe_u32 {r}, {L}, 2, 2\nv_and_b32 {c}, 3, {L}\nv_lshrrev_b32 {khh}, 5, {L}\nv_bfe_u32 {ch}, {L}, 4, 1")
    g(f"v_lshl_add_u32 {t0}, {khh}, 3, {r}")
    g(f"v_lshlrev_b32 {t1}, 5, {ch}\nv_lshl_add_u32 {t1}, {c}, 3, {t1}")
    g(f"v_lshl_add_u32 {g.v_Aq[0]}, {t0}, 7, {t1}")
    g(f"v_mul_u32_u24 {g.v_T}, {RS}, {t0}\nv_add_u32 {g.v_T}, {g.v_T}, {t1}")
    g(f"v_bfe_u32 {t0}, {L}, 3, 1\nv_lshl_add_u32 {g.v_Aq[0]}, {t0}, 6, {g.v_Aq[0]}")
    g(f"v_xor_b32 {g.v_Ak[0]}, 64, {g.v_Aq[0]}")
    g(f"v_add_u32 {g.v_Aq[1]}, 0x10000, {g.v_Aq[0]}\nv_add_u32 {g.v_Ak[1]}, 0x10000, {g.v_Ak[0]}")
    g(f"s_mul_i32 {a[0]}, {g.s_w}, {IMG}\ns_add_u32 {a[0]}, {a[0]}, {L_SCR}")
    g(f"v_add_u32 {g.v_T}, {a[0]}, {g.v_T}")
    g(f"v_lshlrev_b32 {g.v_x16}, 4, {L}")
    g(f"v_and_b32 {t0}, 31, {L}\nv_mul_u32_u24 {t1}, {RS}, {t0}\nv_add_u32 {t1}, {a[0]}, {t1}")
    g(f"v_lshl_add_u32 {g.v_img}, {khh}, 5, {t1}")
    g(f"v_lshl_add_u32 {g.v_vA}, {khh}, 3, {t1}\nv_add_u32 {g.v_vA}, 136, {g.v_vA}")
    g(f"v_cmp_eq_u32 vcc, 0, {khh}\nv_cndmask_b32_e64 {g.v_vC}, 0, 40, vcc\nv_add_u32 {g.v_vC}, {g.v_vC}, {t1}\nv_add_u32 {g.v_vC}, 128, {g.v_vC}")
    g(f"s_mul_i32 {a[1]}, {g.s_w}, {IMG}\ns_add_u32 {a[1]}, {a[1]}, {L_KVS}")
    g(f"v_mul_u32_u24 {g.v_K}, 384, {khh}\nv_lshl_add_u32 {g.v_K}, {t0}, 2, {g.v_K}\nv_add_u32 {g.v_K}, {a[1]}, {g.v_K}")
    V.free(r, c, khh, ch)
    z = g.vv("z", 4)
    for i in range(4): g(f"v_mov_b32 {z[i]}, 0")
    g(f"v_lshlrev_b32 {t0}, 4, v0\nv_add_u32 {t0}, {L_KVA}, {t0}")
    g(f"v_cmp_gt_u32 vcc, 192, v0\nv_mov_b32 {t1}, {DUMMY}\nv_cndmask_b32 {t0}, {t1}, {t0}, vcc")
    g.lines.append(f"ds_write_b128 {t0}, {z}")
    V.free(z)
    g(f"s_mov_b32 {g.s_l2e}, {lit(LOG2E)}\ns_mov_b32 {g.s_l2e2[1]}, {lit(LOG2E)}\ns_mov_b32 {g.s_hi[0]}, 0\ns_mov_b32 {g.s_hi[1]}, -1\nv_mov_b32 {g.v_one}, 0x3f80")

def ga_setup(g):
    t0, t1 = g.v_t0, g.v_t1; V = g.V
    g.v_ga = g.vv("ga", 4); g.v_ga3 = g.vv("gaz")
    row, q, kh, slot, c, m = g.vv("row"), g.vv("q"), g.vv("kh"), g.vv("slot"), g.vv("c"), g.vv("m")
    g(f"v_mul_u32_u24 {row}, 10923, v0\nv_lshrrev_b32 {row}, 16, {row}")
    g(f"v_mul_u32_u24 {t0}, 6, {row}\nv_sub_u32 {q}, v0, {t0}")
    g(f"v_cmp_lt_u32 vcc, 19, {row}\nv_cndmask_b32_e64 {kh}, 0, 1, vcc\nv_mul_u32_u24 {t0}, 20, {kh}\nv_sub_u32 {slot}, {row}, {t0}")
    g(f"v_mul_u32_u24 {kh}, 48, {kh}\nv_lshl_add_u32 {kh}, {slot}, 1, {kh}\nv_add_u32 {kh}, {L_KVA}, {kh}")
    for e in range(4):
        g(f"v_lshl_add_u32 {c}, {q}, 2, {e}")
        g(f"v_cmp_lt_u32 vcc, 9, {c}\nv_cndmask_b32_e64 {t0}, 0, 1, vcc\nv_mul_u32_u24 {t1}, 10, {t0}\nv_sub_u32 {t1}, {c}, {t1}")
        g(f"v_lshrrev_b32 {m}, 2, {t1}\nv_lshlrev_b32 {m}, 3, {m}\nv_lshl_add_u32 {m}, {t0}, 2, {m}\nv_and_b32 {t1}, 3, {t1}\nv_add_u32 {m}, {m}, {t1}")
        g(f"v_cmp_eq_u32 vcc, 20, {c}\nv_cndmask_b32_e64 {m}, {m}, 18, vcc")
        g(f"v_mul_u32_u24 {g.v_ga[e]}, 96, {m}\nv_add_u32 {g.v_ga[e]}, {g.v_ga[e]}, {kh}")
        g(f"v_mov_b32 {t1}, {DUMMY}\nv_cmp_lt_u32 vcc, 20, {c}\nv_cndmask_b32 {g.v_ga[e]}, {g.v_ga[e]}, {t1}, vcc")
        g(f"v_cmp_lt_u32 vcc, 239, v0\nv_cndmask_b32 {g.v_ga[e]}, {g.v_ga[e]}, {t1}, vcc")
    g(f"v_add_u32 {g.v_ga3}, 384, {g.v_ga[0]}\nv_mov_b32 {t1}, {DUMMY}\nv_cmp_ne_u32 vcc, 5, {q}\nv_cndmask_b32 {g.v_ga3}, {g.v_ga3}, {t1}, vcc")
    g(f"v_cmp_lt_u32 vcc, 239, v0\nv_cndmask_b32 {g.v_ga3}, {g.v_ga3}, {t1}, vcc")
    V.free(row, q, kh, slot, c, m)

def set_layer(g):
    for nm, arr in (("s_xn", XN_IN), ("s_xr", X_IN), ("s_kvb", KVB), ("s_ob", OB), ("s_x1", X1), ("s_gb", GB), ("s_stb", STB), ("s_zb", ZB)):
        if not hasattr(g, nm) or getattr(g, nm) is None: setattr(g, nm, g.sv(nm))
        r = getattr(g, nm)
        g(f"s_cmp_eq_u32 {g.s_layer}, 0\ns_cselect_b32 {r}, {arr[0]}, {arr[1]}") if False else None
        g(f"s_mul_i32 {r}, {g.s_layer}, {arr[1] - arr[0]}\ns_add_u32 {r}, {r}, {arr[0]}")
        if nm == "s_x1": g(f"s_mul_i32 {g.s_a[0]}, {g.s_tb}, {LOCSZ - XSZ}\ns_add_u32 {r}, {r}, {g.s_a[0]}")

def softmax_gen(g, acc, pk, outp, outm, T, packed, skip_pack=False):
    d2, ep, em = T["d2"], T["ep"], T["em"]
    mx, mn, t2, sp, sm_ = T["mx"], T["mn"], T["t2"], T["sp"], T["sm"]
    if not skip_pack:
        for q in range(8):
            g(f"v_cvt_pk_bf16_f32 {pk[q]}, {acc[2*q]}, {acc[2*q+1]}"); yield 1
    g(f"v_mfma_f32_32x32x16_bf16 {d2}, {g.v_phi[0:4]}, {pk[0:4]}, 0"); yield "mfma"
    g(f"v_mfma_f32_32x32x16_bf16 {d2}, {g.v_phi[4:8]}, {pk[4:8]}, {d2}"); yield "mfma"
    yield "gap"
    g(f"v_max3_f32 {mx}, {d2[0]}, {d2[1]}, {d2[2]}"); yield 1
    g(f"v_min3_f32 {mn}, {d2[0]}, {d2[1]}, {d2[2]}"); yield 1
    for i in (3, 5, 7):
        g(f"v_max3_f32 {mx}, {mx}, {d2[i]}, {d2[i+1]}"); yield 1
        g(f"v_min3_f32 {mn}, {mn}, {d2[i]}, {d2[i+1]}"); yield 1
    g(f"v_max_f32 {mx}, {mx}, {d2[9]}"); yield 1
    g(f"v_min_f32 {mn}, {mn}, {d2[9]}"); yield 1
    g(f"v_mov_b32 {t2}, {mx}"); yield 1
    g(f"v_mov_b32 {sp}, {mn}"); yield 1
    g("s_nop 0"); yield 1
    g(f"v_permlane32_swap_b32 {t2}, {mx}"); yield 1
    g(f"v_permlane32_swap_b32 {sp}, {mn}"); yield 1
    g(f"v_max_f32 {mx}, {mx}, {t2}"); yield 1
    g(f"v_min_f32 {mn}, {mn}, {sp}"); yield 1
    g(f"v_mul_f32 {mx}, {lit(-LOG2E)}, {mx}"); yield 1
    g(f"v_mul_f32 {mn}, {lit(LOG2E)}, {mn}"); yield 1
    if packed:
        for i in range(5):
            g(f"v_pk_fma_f32 {ep[2*i:2*i+2]}, {d2[2*i:2*i+2]}, {g.s_l2e2}, {T['cc']} op_sel_hi:[1,1,0]"); yield 1
            g(f"v_pk_fma_f32 {em[2*i:2*i+2]}, {d2[2*i:2*i+2]}, {g.s_l2e2}, {T['cc']} op_sel:[0,0,1] op_sel_hi:[1,1,1] neg_lo:[1,0,0] neg_hi:[1,0,0]"); yield 1
    else:
        for i in range(10):
            g(f"v_fma_f32 {ep[i]}, {d2[i]}, {g.s_l2e}, {mx}"); yield 1
            g(f"v_fma_f32 {em[i]}, {d2[i]}, -{g.s_l2e}, {mn}"); yield 1
    for i in range(10):
        g(f"v_exp_f32 {ep[i]}, {ep[i]}"); yield 2
        g(f"v_exp_f32 {em[i]}, {em[i]}"); yield 2
    if packed:
        for e, k in ((ep, 0), (em, 4)):
            g(f"v_pk_add_f32 {d2[k:k+2]}, {e[0:2]}, {e[2:4]}"); yield 1
            g(f"v_pk_add_f32 {d2[k+2:k+4]}, {e[4:6]}, {e[6:8]}"); yield 1
        for e, k in ((ep, 0), (em, 4)):
            g(f"v_pk_add_f32 {d2[k:k+2]}, {d2[k:k+2]}, {e[8:10]}"); yield 1
        for e, k in ((ep, 0), (em, 4)):
            g(f"v_pk_add_f32 {d2[k:k+2]}, {d2[k:k+2]}, {d2[k+2:k+4]}"); yield 1
        g(f"v_add_f32 {sp}, {d2[0]}, {d2[1]}"); yield 1
        g(f"v_add_f32 {sm_}, {d2[4]}, {d2[5]}"); yield 1
    else:
        g(f"v_add_f32 {sp}, {ep[0]}, {ep[1]}"); yield 1
        g(f"v_add_f32 {sm_}, {em[0]}, {em[1]}"); yield 1
        for i in range(2, 10):
            g(f"v_add_f32 {sp}, {sp}, {ep[i]}"); yield 1
            g(f"v_add_f32 {sm_}, {sm_}, {em[i]}"); yield 1
    g(f"v_mov_b32 {t2}, {sp}"); yield 1
    g(f"v_mov_b32 {mx}, {sm_}"); yield 1
    g("s_nop 0"); yield 1
    g(f"v_permlane32_swap_b32 {t2}, {sp}"); yield 1
    g(f"v_permlane32_swap_b32 {mx}, {sm_}"); yield 1
    g(f"v_add_f32 {sp}, {sp}, {t2}"); yield 1
    g(f"v_add_f32 {sm_}, {sm_}, {mx}"); yield 1
    g(f"v_rcp_f32 {d2[0]}, {sp}"); yield 2
    g(f"v_rcp_f32 {d2[2]}, {sm_}"); yield 2
    if packed:
        for i in range(5):
            g(f"v_pk_mul_f32 {ep[2*i:2*i+2]}, {ep[2*i:2*i+2]}, {d2[0:2]} op_sel_hi:[1,0]"); yield 1
            g(f"v_pk_mul_f32 {em[2*i:2*i+2]}, {em[2*i:2*i+2]}, {d2[2:4]} op_sel_hi:[1,0]"); yield 1
    else:
        for i in range(10):
            g(f"v_mul_f32 {ep[i]}, {ep[i]}, {d2[0]}"); yield 1
            g(f"v_mul_f32 {em[i]}, {em[i]}, {d2[2]}"); yield 1
    for i in range(5):
        g(f"v_cvt_pk_bf16_f32 {outp[i]}, {ep[2*i]}, {ep[2*i+1]}"); yield 1
        g(f"v_cvt_pk_bf16_f32 {outm[i]}, {em[2*i]}, {em[2*i+1]}"); yield 1

def k_epilogue_gen(g, pi, Aq, Ak, pq, T, KV, packed):
    pk, fo = T["pk"], T["fo"]
    ro = pi * 32 * RS
    for q in range(8):
        g(f"v_cvt_pk_bf16_f32 {pk[q]}, {Ak[2*q]}, {Ak[2*q+1]}"); yield 1
    sgen = softmax_gen(g, None, pk, fo[0:5], fo[6:11], T, packed, skip_pack=True)
    yield next(sgen); yield next(sgen)
    next(sgen)
    for q in range(8):
        g(f"v_cvt_pk_bf16_f32 {pq[q]}, {Aq[2*q]}, {Aq[2*q+1]}"); yield 1
    vc = T["fa"][0:2]
    g(f"v_cndmask_b32_e64 {vc[0]}, {g.v_one}, {pq[4]}, {g.s_hi}"); yield 1
    g(f"v_cndmask_b32_e64 {vc[1]}, 0, {pq[5]}, {g.s_hi}"); yield 1
    g(f"ds_write_b64 {g.v_vA}, {pq[6:8]} offset:{ro}"); yield 1
    g(f"ds_write_b64 {g.v_vA}, {pk[6:8]} offset:{ro + 16}"); yield 1
    g(f"ds_write_b64 {g.v_vC}, {vc} offset:{ro}"); yield 1
    yield from sgen
    g(f"ds_write_b128 {g.v_img}, {fo[0:4]} offset:{ro}"); yield 1
    g(f"ds_write_b32 {g.v_img}, {fo[4]} offset:{ro + 16}"); yield 1
    g(f"ds_write_b128 {g.v_img}, {fo[6:10]} offset:{ro + 64}"); yield 1
    g(f"ds_write_b32 {g.v_img}, {fo[10]} offset:{ro + 80}"); yield 1
    mk = g.lg_mark()
    yield "gap"
    fa = T["fa"]; fb = T["fb"]
    g.wait(lg=mk); yield 1
    ms = []
    for ks, f in ((0, fa), (1, fb)):
        rb = (32 * pi + 16 * ks) * RS
        for tile in range(3):
            for t in range(2):
                g(f"ds_read_b64_tr_b16 {f[4*tile+2*t:4*tile+2*t+2]}, {g.v_T} offset:{rb + 4*t*RS + 64*tile}"); yield 1
        ms.append(g.lg_mark())
    for ks, f in ((0, fa), (1, fb)):
        g.wait(lg=ms[ks]); yield 1
        first = (pi == 0 and ks == 0)
        g(f"v_mfma_f32_32x32x16_bf16 {KV[0]}, {f[0:4]}, {f[8:12]}, {0 if first else KV[0]}"); yield "mfma"
        g(f"v_mfma_f32_32x32x16_bf16 {KV[1]}, {f[4:8]}, {f[8:12]}, {0 if first else KV[1]}"); yield "mfma"

def p1(g):
    V = g.V; a = g.s_a; t0, t1 = g.v_t0, g.v_t1; sc = g.sc
    import ph_s0
    g.c("==== P1 ====")
    g.stamp(8)
    ring = g.vv("ring", 4 * NR, 4)
    acc = [[g.vv("aq0", 16, 4), g.vv("ak0", 16, 4)], [g.vv("aq1", 16, 4), g.vv("ak1", 16, 4)]]
    fr = [g.vv("fr0", 8, 4), g.vv("fr1", 8, 4), g.vv("fr2", 8, 4)]
    pq = [g.vv("pq0", 8, 4), g.vv("pq1", 8, 4)]
    T = dict(d2=g.vv("d2", 16, 4), ep=g.vv("ep", 10, 2), em=g.vv("em", 10, 2), pk=g.vv("pk", 8, 4), fo=g.vv("fo", 12, 4),
             fa=g.vv("fa", 12, 4), cc=g.vv("cc", 2, 2), sp=g.vv("sp"), sm=g.vv("sm"), t2=g.vv("t2"))
    T["fb"] = T["d2"][0:12]
    T["mx"], T["mn"] = T["cc"][0], T["cc"][1]
    KV = [acc[0][0], acc[0][1]]
    pre = g.vv("pre", 3, 1); q_dbg = g.S.alloc("q_dbg", 4)
    g.srd(q_dbg, g.p_in[10], g.p_in[11], 256)
    sx = g.sv("sx")
    g(f"s_mul_i32 {sx}, {g.s_tb}, {XSZ}\ns_mul_i32 {a[0]}, {g.s_w}, 81920\ns_add_u32 {sx}, {sx}, {a[0]}\ns_add_u32 {sx}, {sx}, {g.s_xn}")
    marks = {}
    def xload(s):
        if s % 4 == 0 and s > 0: g(f"s_add_u32 {sx}, {sx}, 4096")
        r = ring[4 * (s % NR):4 * (s % NR) + 4]
        g(f"buffer_load_dwordx4 {r}, {g.v_x16}, {g.q_ws}, {sx} offen offset:{1024 * (s % 4)} sc1")
        marks[s] = g.vm_mark()
    def aload(s, tile):
        b = s % 40; f = fr[s % 3]; hi = 1 if b >= 32 else 0; off = (b - 32 * hi) * 2048
        ad = (g.v_Aq, g.v_Ak)[tile]
        for t in range(2):
            g(f"ds_read_b64_tr_b16 {f[4*tile+2*t:4*tile+2*t+2]}, {ad[hi]} offset:{off + 512*t}")
    if g.fast:
        sk = g.label("pt")
        g(f"s_cmp_lg_u32 {g.s_layer}, 0\ns_cbranch_scc1 {sk}")
        g(f"s_lshl_b32 {a[0]}, {g.s_j}, 2\ns_add_u32 {a[0]}, {a[0]}, {g.s_w}\ns_mul_i32 {a[0]}, {a[0]}, {61*128}\ns_mul_i32 {a[1]}, {g.s_tb}, {LOCSZ}\ns_add_u32 {a[0]}, {a[0]}, {a[1]}\ns_add_u32 {a[0]}, {a[0]}, {LOC}")
        g(f"v_lshlrev_b32 {t0}, 7, {g.v_lane}\nv_cmp_gt_u32 vcc, 61, {g.v_lane}\nv_mov_b32 {t1}, {BIG}\nv_cndmask_b32 {t0}, {t1}, {t0}, vcc")
        g.lines.append(f"buffer_store_dword {t1}, {t0}, {g.q_ws}, {a[0]} offen")
        g(f"{sk}:")
    for s in range(NR): xload(s)
    g("s_barrier")
    g.stamp(19)
    am = {}
    for s in (0, 1):
        aload(s, 0); aload(s, 1); am[s] = g.lg_mark()
    filler = None; hold = 0
    def fill(budget):
        nonlocal filler, hold
        if filler is None: return
        if hold > 0:
            hold -= 1; return
        while budget > 0:
            try: r = next(filler)
            except StopIteration:
                filler = None; return
            if r == "gap": hold = 2; return
            if r == "mfma": budget -= 3
            else: budget -= r
    mpre_ = {}
    def step(s, hooks=None):
        nonlocal filler
        pi = s // 40
        if s == 40:
            g.stamp(18)
        if s == 41: filler = k_epilogue_gen(g, 0, acc[0][0], acc[0][1], pq[0], T, KV, packed=False)
        if s == 55:
            g(f"v_lshlrev_b32 {t0}, 2, {g.v_lane}")
            g(f"buffer_load_dword {pre[0]}, {t0}, {q_dbg}, 0 offen sc1")
        if s == 72:
            g(f"v_lshlrev_b32 {t0}, 6, {g.v_lane}\nv_add_u32 {t0}, {WOFL}, {t0}")
            g(f"buffer_load_dword {pre[1]}, {t0}, {g.q_ws}, 0 offen sc1")
            g(f"v_min_u32 {t0}, 15, {g.v_lane}\nv_lshlrev_b32 {t0}, 6, {t0}\nv_add_u32 {t0}, {WOFL + 4096}, {t0}")
            g(f"buffer_load_dword {pre[2]}, {t0}, {g.q_ws}, 0 offen sc1")
            mpre_[0] = g.vm_mark()
        if hooks: hooks[0](s)
        g.wait(vm=marks[s], lg=am[s])
        b = ring[4 * (s % NR):4 * (s % NR) + 4]; f = fr[s % 3]
        c0 = (s % 40 == 0)
        g(f"v_mfma_f32_32x32x16_bf16 {acc[pi][0]}, {f[0:4]}, {b}, {0 if c0 else acc[pi][0]}")
        nA = 6
        if s + 2 < 80: aload(s + 2, 0); nA -= 2
        if s >= 1 and s - 1 + NR < 80: xload(s - 1 + NR); nA -= 1
        if hooks: hooks[1](s)
        fill(nA)
        g(f"v_mfma_f32_32x32x16_bf16 {acc[pi][1]}, {f[4:8]}, {b}, {0 if c0 else acc[pi][1]}")
        nB = 5
        if s + 2 < 80:
            aload(s + 2, 1); nB -= 2; am[s + 2] = g.lg_mark()
        if hooks: hooks[2](s)
        fill(nB)
    Q0, LAGS = 9, 8
    def stream_setup():
        L = g.v_lane; e = T["ep"]
        R = dict(up=e[0], dn=e[1], src=e[2], wd0=e[3], wd1=e[4], cc=e[5], q_w=g.S.alloc("q_ws2", 4), si=g.S.alloc("si2", 2))
        tl, p8, pc = e[6], e[7], e[8]
        g.srd(R["q_w"], g.p_in[2], g.p_in[3], 640 * 3840)
        g(f"v_bfe_u32 {tl}, {L}, 3, 1\nv_and_b32 {p8}, 7, {L}\nv_lshrrev_b32 {R['cc']}, 4, {L}")
        g(f"v_mul_u32_u24 {pc}, 1280, {tl}\nv_lshl_add_u32 {pc}, {p8}, 3, {pc}")
        g(f"v_lshlrev_b32 {t1}, 4, {tl}\nv_lshl_add_u32 {t1}, {p8}, 3, {t1}\nv_add_u32 {t1}, 2520, {t1}")
        g(f"v_cmp_lt_u32 vcc, 4, {p8}\nv_cndmask_b32 {pc}, {pc}, {t1}, vcc")
        g(f"s_mul_i32 {a[0]}, {g.s_j}, 40\nv_add_u32 {pc}, {a[0]}, {pc}")
        g(f"v_mul_u32_u24 {t0}, 3840, {R['cc']}\nv_add_u32 {R['up']}, {t0}, {pc}\nv_add_u32 {R['up']}, {(4*Q0 - 2)*3840}, {R['up']}")
        g(f"v_sub_u32 {R['dn']}, {pc}, {t0}\nv_add_u32 {R['dn']}, {(120 - 4*(Q0 + 1))*3840}, {R['dn']}")
        g(f"s_and_b32 {a[0]}, {g.s_w}, 1\nv_xor_b32 {tl}, {a[0]}, {tl}\nv_lshlrev_b32 {t0}, 10, {R['cc']}\nv_lshl_add_u32 {t0}, {p8}, 3, {t0}\nv_lshl_add_u32 {t0}, {tl}, 6, {t0}")
        g(f"s_lshl_b32 {a[0]}, {g.s_w}, 8\nv_add_u32 {R['wd0']}, {a[0]}, {t0}\nv_add_u32 {R['wd1']}, 0x10000, {R['wd0']}")
        g(f"s_mul_i32 {R['si'][0]}, {g.s_w}, {2*80*3840}\ns_add_u32 {R['si'][1]}, {R['si'][0]}, {80*3840}")
        return R
    def stream_hooks(R):
        slots = [T["fo"][2*k:2*k+2] for k in range(6)] + [T["fa"][2*k:2*k+2] for k in range(4)]
        gm = {}; wm = {}
        NL = 2 * (20 - Q0)
        def h0(s):
            if s in (16, 24, 32):
                g.wait(lg=wm[min(s - 1, NL - 1 + LAGS)])
                g("s_barrier")
        def h1(s):
            if s < NL:
                q, t = Q0 + (s >> 1), s & 1
                if t == 0 and q == 10:
                    g(f"v_add_u32 {R['up']}, {4*3840}, {R['up']}\nv_cmp_gt_u32 vcc, 2, {R['cc']}\nv_cndmask_b32 {R['src']}, {R['dn']}, {R['up']}, vcc")
                if t == 0 and q > 10: g(f"v_subrev_u32 {R['dn']}, {4*3840}, {R['dn']}")
                ad = R["up"] if q < 10 else (R["src"] if q == 10 else R["dn"])
                g(f"buffer_load_dwordx2 {slots[s % 10]}, {ad}, {R['q_w']}, {R['si'][t]} offen")
                gm[s] = g.vm_mark()
        def h2(s):
            n = s - LAGS
            if 0 <= n < NL:
                q, t = Q0 + (n >> 1), n & 1
                g.wait(vm=gm[n])
                g(f"ds_write_b64 {R['wd1'] if q >= 16 else R['wd0']}, {slots[n % 10]} offset:{(q % 16) * 4096 + 128 * t}")
                wm[s] = g.lg_mark()
        return (h0, h1, h2)
    if ph_s0.STREAM:
        l1 = g.label("p0n"); l2 = g.label("p0j")
        vm0, lg0, marks0, am0 = list(g.vm), list(g.lg), dict(marks), dict(am)
        g(f"s_cmp_lg_u32 {g.s_layer}, 0\ns_cbranch_scc1 {l1}")
        R = stream_setup()
        hk = stream_hooks(R)
        for s in range(40): step(s, hk)
        g.S.free(R["q_w"], R["si"])
        g(f"s_branch {l2}\n{l1}:")
        g.vm, g.lg = vm0, lg0; marks.clear(); marks.update(marks0); am.clear(); am.update(am0)
        for s in range(40): step(s)
        g(f"{l2}:")
    else:
        for s in range(40): step(s)
    for s in range(40, 80): step(s)
    mpre = mpre_[0]
    if filler is not None: drain(filler)
    g.stamp(9)
    wsetup, wo_gen, tab_gen, g.wo_sb = ph_s0.wo_loader(g)
    g.wo_gen = wo_gen
    sk = g.label("wo")
    g(f"s_cmp_lg_u32 {g.s_layer}, 0\ns_cbranch_scc1 {sk}")
    vm0 = list(g.vm)
    wo_ready(g, pre, mpre)
    g.vm = vm0
    g.stamp(14)
    wsetup()
    g(f"{sk}:")
    z_poison(g)
    def dual(make, extra, n, tail0=None, tail1=None, head0=None):
        l1 = g.label("d1"); l2 = g.label("d2")
        lg0 = list(g.lg); vm0 = list(g.vm)
        g(f"s_cmp_lg_u32 {g.s_layer}, 0\ns_cbranch_scc1 {l1}")
        if head0: head0()
        real = g.lines; g.lines = []
        drain(make()); body = g.lines; g.lines = real
        step = len(body) / (n + 1); k = 0
        for i, l in enumerate(body):
            g.lines.append(l)
            if k < n and i + 1 >= (k + 1) * step and not l.startswith(("v_cmp", "s_cmp")):
                next(extra); k += 1
        while k < n: next(extra); k += 1
        if tail0: tail0()
        g(f"s_branch {l2}\n{l1}:")
        g.lg = lg0; g.vm = vm0
        drain(make())
        if tail1: tail1()
        g(f"{l2}:")
    def kepi1():
        yield from k_epilogue_gen(g, 1, acc[1][0], acc[1][1], pq[1], T, KV, packed=True)
    def slabs():
        g(f"s_mov_b64 {g.s_ex}, exec\ns_mov_b32 exec_lo, 0x00ffffff\ns_mov_b32 exec_hi, 0x00ffffff")
        for sg in range(2):
            for i in (0, 2):
                for jj in range(4):
                    g(f"ds_write_b32 {g.v_K}, {KV[sg][4*i+jj]} offset:{(((i>>1)*2 + sg)*10 + jj)*96}")
        g(f"s_mov_b32 exec_hi, 0")
        for sg in range(2):
            for i in (1, 3):
                for jj in range(2):
                    g(f"ds_write_b32 {g.v_K}, {KV[sg][4*i+jj]} offset:{(((i>>1)*2 + sg)*10 + 8 + jj)*96}")
        g(f"s_mov_b64 exec, {g.s_ex}")
    NW1, NW2, NW3 = 26, 6, 18
    dual(kepi1, wo_gen, NW1)
    g.stamp(16)
    slabs()
    g.wait0(vm=False)
    g("s_barrier")
    g.stamp(17)
    pub = T["d2"]
    g(f"v_lshlrev_b32 {t0}, 4, v0\nv_add_u32 {t1}, {L_KVS}, {t0}")
    for w in range(4): g(f"ds_read_b128 {pub[4*w:4*w+4]}, {t1} offset:{IMG*w}")
    skv = g.sv("skv")
    g(f"s_lshl_b32 {skv}, {g.s_j}, 14\ns_add_u32 {skv}, {skv}, {g.s_kvb}")
    g(f"s_lshl_b32 {a[0]}, {g.s_tb}, 11\ns_add_u32 {a[0]}, {a[0]}, {skv}")
    vkv = g.vv("vkv")
    g(f"v_lshrrev_b32 {vkv}, 1, {t0}")
    g(f"v_cmp_gt_u32 vcc, 240, v0\nv_mov_b32 {t1}, {BIG}\nv_cndmask_b32 {vkv}, {t1}, {vkv}, vcc")
    g.wait0(vm=False)
    for w in range(1, 4):
        g(f"v_pk_add_f32 {pub[0:2]}, {pub[0:2]}, {pub[4*w:4*w+2]}\nv_pk_add_f32 {pub[2:4]}, {pub[2:4]}, {pub[4*w+2:4*w+4]}")
    g(f"v_cvt_pk_bf16_f32 {pub[4]}, {pub[0]}, {pub[1]}\nv_cvt_pk_bf16_f32 {pub[5]}, {pub[2]}, {pub[3]}")
    l1 = g.label("zw"); l2 = g.label("zw")
    g(f"s_cmp_lg_u32 {g.s_layer}, 0\ns_cbranch_scc1 {l1}")
    g.lines.append(f"s_waitcnt vmcnt({NW1})")
    g(f"s_branch {l2}\n{l1}:")
    g.lines.append("s_waitcnt vmcnt(0)")
    g(f"{l2}:")
    g.lines.append(f"buffer_store_dwordx2 {pub[4:6]}, {vkv}, {g.q_ws}, {a[0]} offen sc1")
    g.stamp(10)
    fq = [acc[1][0][0:12], acc[1][1][0:12]]
    gd = ring[0:16]
    g.vm = []
    def gather():
        g(f"s_mov_b32 {a[4]}, {skv}")
        for tb in range(8):
            g.lines.append(f"buffer_load_dwordx2 {gd[2*tb:2*tb+2]}, {vkv}, {g.q_ws}, {a[4]} offen sc1")
            if tb < 7: g(f"s_add_u32 {a[4]}, {a[4]}, 2048")
    import itertools
    def qs(pi):
        def mk():
            g(f"v_mov_b32 {fq[pi][10]}, 0\nv_mov_b32 {fq[pi][11]}, 0")
            yield from q_softmax(g, pq[pi], fq[pi], T)
        return mk
    dual(qs(0), itertools.chain(tab_gen, wo_gen), 10 + NW2)
    gather()
    dual(qs(1), wo_gen, NW3)
    V.free(T["d2"], T["ep"], T["em"], T["pk"], T["fo"], *fr, *pq)
    ga_setup(g)
    g.stamp(11)
    lp = g.label("kvp"); dn = g.label("kvd"); ck = g.label("kvc")
    g(f"s_mov_b32 {g.s_spin}, {1 << 18}")
    g(f"s_cmp_lg_u32 {g.s_layer}, 0\ns_cbranch_scc1 {lp}")
    g.lines.append(f"s_waitcnt vmcnt({NW3})")
    g(f"s_branch {ck}")
    g(f"{lp}:")
    g.lines.append("s_waitcnt vmcnt(0)")
    g(f"{ck}:")
    mxr = ring[16]
    g(f"v_max3_u32 {mxr}, {gd[0]}, {gd[1]}, {gd[2]}")
    for q in range(3, 15, 2): g(f"v_max3_u32 {mxr}, {mxr}, {gd[q]}, {gd[q+1]}")
    g(f"v_max_u32 {mxr}, {mxr}, {gd[15]}\nv_cmp_eq_u32 vcc, -1, {mxr}\ns_cbranch_vccz {dn}")
    gather()
    g(f"s_sub_u32 {g.s_spin}, {g.s_spin}, 1\ns_cmp_lg_u32 {g.s_spin}, 0\ns_cbranch_scc1 {lp}")
    g.lines.append("s_waitcnt vmcnt(0)")
    g(f"{dn}:")
    g.stamp(12)
    sv = ring[20:28]; uv = ring[28:32]
    g(f"v_lshlrev_b32 {sv[0]}, 16, {gd[0]}\nv_and_b32 {sv[1]}, 0xffff0000, {gd[0]}\nv_lshlrev_b32 {sv[2]}, 16, {gd[1]}\nv_and_b32 {sv[3]}, 0xffff0000, {gd[1]}")
    for tb in range(1, 8):
        g(f"v_lshlrev_b32 {uv[0]}, 16, {gd[2*tb]}\nv_and_b32 {uv[1]}, 0xffff0000, {gd[2*tb]}\nv_lshlrev_b32 {uv[2]}, 16, {gd[2*tb+1]}\nv_and_b32 {uv[3]}, 0xffff0000, {gd[2*tb+1]}")
        g(f"v_pk_add_f32 {sv[0:2]}, {sv[0:2]}, {uv[0:2]}\nv_pk_add_f32 {sv[2:4]}, {sv[2:4]}, {uv[2:4]}")
    gd = ring[32:40]
    g(f"v_cvt_pk_bf16_f32 {gd[4]}, {sv[0]}, {sv[1]}\nv_cvt_pk_bf16_f32 {gd[5]}, {sv[2]}, {sv[3]}")
    g(f"ds_write_b16 {g.v_ga[0]}, {gd[4]}\nds_write_b16_d16_hi {g.v_ga[1]}, {gd[4]}\nds_write_b16 {g.v_ga[2]}, {gd[5]}\nds_write_b16_d16_hi {g.v_ga[3]}, {gd[5]}")
    g(f"ds_write_b16 {g.v_ga3}, {gd[4]}")
    V.free(vkv)
    V.free(g.v_ga, g.v_ga3)
    g.wait0(vm=False)
    g("s_barrier")
    g.stamp(30) if g.fine else None
    ka = T["fa"]
    g(f"v_and_b32 {t0}, 31, {g.v_lane}\nv_mul_u32_u24 {t0}, 96, {t0}\nv_lshrrev_b32 {t1}, 5, {g.v_lane}\nv_mul_u32_u24 {t1}, 48, {t1}\nv_add_u32 {t0}, {t0}, {t1}\nv_add_u32 {t0}, {L_KVA}, {t0}")
    for st in range(3): g(f"ds_read_b128 {ka[4*st:4*st+4]}, {t0} offset:{16*st}")
    vo = T["t2"]; vt = T["sm"]
    g(f"v_bfe_u32 {t0}, {g.v_lane}, 4, 1\nv_mul_u32_u24 {vo}, 20480, {t0}\nv_and_b32 {t0}, 15, {g.v_lane}")
    g(f"v_lshl_add_u32 {vt}, {t0}, 3, {vo}\nv_lshl_add_u32 {vo}, {t0}, 4, {vo}\nv_lshrrev_b32 {t1}, 5, {g.v_lane}\nv_lshl_add_u32 {vo}, {t1}, 8, {vo}")
    g(f"s_mul_i32 {a[0]}, {g.s_tb}, {LOCSZ}\ns_add_u32 {a[0]}, {a[0]}, {g.s_ob}\ns_mul_i32 {a[1]}, {g.s_w}, {4*20480}\ns_add_u32 {a[0]}, {a[0]}, {a[1]}")
    g(f"s_lshl_b32 {a[1]}, {g.s_j}, 7\ns_add_u32 {a[1]}, {a[1]}, {a[0]}\ns_add_u32 {a[1]}, {a[1]}, 16384")
    g(f"s_lshr_b32 {a[2]}, {g.s_j}, 1\ns_lshl_b32 {a[2]}, {a[2]}, 10\ns_add_u32 {a[0]}, {a[0]}, {a[2]}\ns_and_b32 {a[2]}, {g.s_j}, 1\ns_lshl_b32 {a[2]}, {a[2]}, 9\ns_add_u32 {a[0]}, {a[0]}, {a[2]}")
    g.wait0(vm=False)
    D3 = [acc[0][0], acc[0][1]]
    for pi in range(2):
        for st in range(3):
            g(f"v_mfma_f32_32x32x16_bf16 {D3[pi]}, {ka[4*st:4*st+4]}, {fq[pi][4*st:4*st+4]}, {0 if st == 0 else D3[pi]}")
    for pi in range(2):
        d = D3[pi]
        g(f"v_add_f32 {T['cc'][0]}, {lit(1e-6)}, {d[10]}\nv_rcp_f32 {T['cc'][0]}, {T['cc'][0]}")
        for i in range(5):
            g(f"v_pk_mul_f32 {d[2*i:2*i+2]}, {d[2*i:2*i+2]}, {T['cc']} op_sel_hi:[1,0]")
        op = fq[pi]
        for i in range(5): g(f"v_cvt_pk_bf16_f32 {op[i]}, {d[2*i]}, {d[2*i+1]}")
        if pi == 1: g(f"s_add_u32 {a[0]}, {a[0]}, {2*20480}\ns_add_u32 {a[1]}, {a[1]}, {2*20480}")
        g(f"buffer_store_dwordx4 {op[0:4]}, {vo}, {g.q_ws}, {a[0]} offen{sc}")
        g(f"v_mov_b32 {op[6]}, {op[4]}\nv_mov_b32 {op[7]}, {op[4]}\nv_permlane32_swap_b32 {op[6]}, {op[7]}")
        g(f"s_mov_b64 {g.s_ex}, exec\ns_mov_b32 exec_hi, 0")
        g(f"buffer_store_dwordx2 {op[6:8]}, {vt}, {g.q_ws}, {a[1]} offen{sc}")
        g(f"s_mov_b64 exec, {g.s_ex}")
    g.stamp(13)
    V.free(ring, *acc[0], *acc[1], T["fa"], T["cc"], T["sp"], T["sm"], T["t2"])
    g.S.free(sx, skv, q_dbg); V.free(pre)

def q_softmax(g, pq, out, T):
    yield from softmax_gen(g, None, pq, out[0:5], out[5:10], T, packed=True, skip_pack=True)

def init_wait(g, cond=True):
    sk = g.label("iw"); t0 = g.v_t0
    if cond: g(f"s_cmp_lg_u32 {g.s_layer}, 0\ns_cbranch_scc1 {sk}")
    q = g.S.alloc("q_dbg", 4); pv = g.vv("pv"); pa = g.vv("pa")
    g.srd(q, g.p_in[10], g.p_in[11], 256)
    g(f"v_lshlrev_b32 {pa}, 2, {g.v_lane}")
    lp = g.label("iwp"); dn = g.label("iwd")
    g(f"s_mov_b32 {g.s_spin}, {1 << 20}")
    g(f"{lp}:")
    g.lines.append(f"buffer_load_dword {pv}, {pa}, {q}, 0 offen sc1")
    g.lines.append("s_waitcnt vmcnt(0)")
    g(f"v_subrev_u32 {t0}, 0x01010101, {pv}\nv_bfi_b32 {t0}, {pv}, 0, {t0}\nv_and_b32 {t0}, 0x80808080, {t0}")
    g(f"v_cmp_ne_u32 vcc, 0, {t0}\ns_cbranch_vccz {dn}")
    g(f"s_sub_u32 {g.s_spin}, {g.s_spin}, 1\ns_cmp_lg_u32 {g.s_spin}, 0\ns_cbranch_scc1 {lp}")
    g(f"{dn}:")
    g.S.free(q); g.V.free(pv, pa)
    g(f"{sk}:")

def wo_ready(g, pre, mpre):
    t0 = g.v_t0
    ok = g.label("wok"); slow = g.label("wsl")
    g.wait(vm=mpre)
    pv = pre[0]
    g(f"v_subrev_u32 {t0}, 0x01010101, {pv}\nv_bfi_b32 {t0}, {pv}, 0, {t0}\nv_and_b32 {t0}, 0x80808080, {t0}")
    g(f"v_cmp_ne_u32 vcc, 0, {t0}\ns_cbranch_vccnz {slow}")
    g(f"v_and_b32 {t0}, {pre[1]}, {pre[2]}\nv_cmp_ne_u32 vcc, 1, {t0}\ns_cbranch_vccz {ok}")
    g(f"{slow}:")
    init_wait(g, cond=False)
    pa = g.vv("pa", 2, 1); pv = pre[1:3]
    g(f"v_lshlrev_b32 {pa[0]}, 6, {g.v_lane}\nv_add_u32 {pa[0]}, {WOFL}, {pa[0]}")
    g(f"v_min_u32 {pa[1]}, 15, {g.v_lane}\nv_lshlrev_b32 {pa[1]}, 6, {pa[1]}\nv_add_u32 {pa[1]}, {WOFL + 4096}, {pa[1]}")
    lp = g.label("wrp"); dn = g.label("wrd")
    g(f"s_mov_b32 {g.s_spin}, {1 << 20}")
    g(f"{lp}:")
    for q in range(2): g.lines.append(f"buffer_load_dword {pv[q]}, {pa[q]}, {g.q_ws}, 0 offen sc1")
    g.lines.append("s_waitcnt vmcnt(0)")
    g(f"v_and_b32 {t0}, {pv[0]}, {pv[1]}\nv_cmp_ne_u32 vcc, 1, {t0}\ns_cbranch_vccz {dn}")
    g(f"s_sub_u32 {g.s_spin}, {g.s_spin}, 1\ns_cmp_lg_u32 {g.s_spin}, 0\ns_cbranch_scc1 {lp}")
    g(f"{dn}:")
    g.V.free(pa)
    g(f"{ok}:")

def z_poison(g):
    a = g.s_a; t0 = g.v_t0
    sk = g.label("zp")
    pz = g.vv("pz", 4, 4)
    g(f"s_cmp_gt_u32 {g.s_j}, 20\ns_cbranch_scc1 {sk}")
    for q in range(4): g(f"v_mov_b32 {pz[q]}, -1")
    g(f"s_mul_i32 {a[0]}, {g.s_tb}, {ZSZ}\ns_add_u32 {a[0]}, {a[0]}, {g.s_zb}\ns_lshl_b32 {a[1]}, {g.s_j}, 14\ns_add_u32 {a[0]}, {a[0]}, {a[1]}\ns_lshl_b32 {a[1]}, {g.s_w}, 12\ns_add_u32 {a[0]}, {a[0]}, {a[1]}")
    for q in range(4):
        g.lines.append(f"buffer_store_dwordx4 {pz}, {g.v_x16}, {g.q_ws}, {a[0]} offen offset:{1024*q} sc1")
    g(f"{sk}:")
    g.V.free(pz)
```

```python
from emit import *
from maps import *
from gen_main import lit
BIG = 0x7ff00000

def p2_setup(g):
    a = g.s_a; t0, t1 = g.v_t0, g.v_t1; L = g.v_lane; V = g.V
    e2, base, gq = g.vv("e2"), g.vv("base"), g.vv("gq")
    g(f"s_and_b32 {a[0]}, {g.s_j}, 3\ns_lshl_b32 {a[0]}, {a[0]}, 6\ns_and_b32 {a[1]}, {g.s_w}, 1\ns_lshl_b32 {a[1]}, {a[1]}, 5\ns_add_u32 {a[0]}, {a[0]}, {a[1]}")
    g(f"s_lshr_b32 {a[1]}, {g.s_w}, 1\ns_lshl_b32 {a[1]}, {a[1]}, 4\ns_add_u32 {a[0]}, {a[0]}, {a[1]}")
    g(f"v_and_b32 {t0}, 15, {L}\nv_add_u32 {g.v_p2p}, {a[0]}, {t0}")
    g(f"v_lshrrev_b32 {t0}, 5, {g.v_p2p}\nv_mul_u32_u24 {base}, 40960, {t0}\nv_and_b32 {t0}, 31, {g.v_p2p}\nv_lshl_add_u32 {base}, {t0}, 4, {base}")
    g(f"v_lshrrev_b32 {gq}, 4, {L}")
    g(f"s_lshr_b32 {a[1]}, {g.s_j}, 2")
    for q in range(3):
        g(f"v_lshrrev_b32 {t0}, 1, {gq}\nv_lshlrev_b32 {e2}, 3, {t0}\nv_add_u32 {e2}, {a[1]}, {e2}")
        if q < 2: g(f"v_and_b32 {t0}, 1, {gq}\nv_lshl_add_u32 {e2}, {t0}, 4, {e2}")
        if q: g(f"v_add_u32 {e2}, {32*q}, {e2}")
        g.code_of_e2(g.v_xp[q], e2, t0)
        g(f"v_lshl_add_u32 {g.v_xp[q]}, {g.v_xp[q]}, 9, {base}")
    V.free(e2, base, gq)

def first_layer(g, fn):
    sk = g.label("cst")
    g(f"s_cmp_lg_u32 {g.s_layer}, 0\ns_cbranch_scc1 {sk}")
    fn()
    g(f"{sk}:")
def drain_n(gen, n):
    for _ in range(n):
        try: next(gen)
        except StopIteration: return

def swap_quad(g, r):
    g(f"v_permlane16_swap_b32 {r[0]}, {r[2]}\nv_permlane16_swap_b32 {r[1]}, {r[3]}")

def p2(g):
    a = g.s_a; t0, t1 = g.v_t0, g.v_t1; L = g.v_lane; V = g.V; sc = g.sc
    g.c("==== P2 ====")
    g.v_xp = g.vv("xp", 3); g.v_p2p = g.vv("p2p")
    xr = g.vv("xr", 12, 4)
    sxr = g.sv("sxr")
    vo = g.vv("vo"); vt = g.vv("vt")
    so = g.S.alloc("so", 4)
    def setup():
        first_layer(g, lambda: drain_n(g.wo_gen, 99))
        p2_setup(g)
        g(f"s_mul_i32 {sxr}, {g.s_tb}, {XSZ}")
        g(f"v_lshlrev_b32 {vo}, 4, {L}")
        g(f"v_lshrrev_b32 {t0}, 4, {L}\nv_lshlrev_b32 {vt}, 8, {t0}\nv_and_b32 {t0}, 15, {L}\nv_lshl_add_u32 {vt}, {t0}, 3, {vt}")
        g(f"s_and_b32 {a[2]}, {g.s_j}, 3\ns_lshl_b32 {a[2]}, {a[2]}, 2\ns_and_b32 {a[3]}, {g.s_w}, 1\ns_lshl_b32 {a[3]}, {a[3]}, 1\ns_add_u32 {a[2]}, {a[2]}, {a[3]}\ns_mul_i32 {a[2]}, {a[2]}, 20480")
        g(f"s_mul_i32 {a[3]}, {g.s_tb}, {LOCSZ}\ns_add_u32 {a[2]}, {a[2]}, {a[3]}\ns_add_u32 {a[2]}, {a[2]}, {g.s_ob}")
        g(f"s_lshr_b32 {a[3]}, {g.s_w}, 1\ns_lshl_b32 {so[0]}, {a[3]}, 13\ns_add_u32 {so[0]}, {so[0]}, {a[2]}\ns_add_u32 {so[1]}, {so[0]}, 20480")
        g(f"s_lshl_b32 {so[2]}, {a[3]}, 11\ns_add_u32 {so[2]}, {so[2]}, {a[2]}\ns_add_u32 {so[2]}, {so[2]}, 16384\ns_add_u32 {so[3]}, {so[2]}, 20480")
    g.local_barrier(g.fast, work=setup)
    g.S.free(g.wo_sb)
    g.stamp(20)
    ob = g.vv("ob", 80, 4)
    marks = {}
    def oload(u):
        for tt in range(2):
            r = ob[(u*2+tt)*4:(u*2+tt)*4+4]
            if u < 8:
                if u == 4: g(f"s_add_u32 {so[tt]}, {so[tt]}, 4096")
                g(f"buffer_load_dwordx4 {r}, {vo}, {g.q_ws}, {so[tt]} offen offset:{1024*(u%4)} sc1")
            else:
                v = u - 8
                g(f"buffer_load_dwordx2 {r[0:2]}, {vt}, {g.q_ws}, {so[2+tt]} offen offset:{1024*v} sc1")
                g(f"buffer_load_dwordx2 {r[2:4]}, {vt}, {g.q_ws}, {so[2+tt]} offen offset:{1024*v + 128} sc1")
        marks[u] = g.vm_mark()
    import os
    AHEAD = int(os.environ.get("AHEAD", "4"))
    for u in range(AHEAD): oload(u)
    acc = g.vv("acc", 40, 4)
    g.stamp(1) if g.fine else None
    for u in range(10):
        g.wait(vm=marks[u])
        if u == 1 and g.fine: g.stamp(2)
        if u == 5 and g.fine: g.stamp(3)
        n = 0
        for tt in range(2):
            b = ob[(u*2+tt)*4:(u*2+tt)*4+4]
            for i in range(5):
                c = acc[(tt*5+i)*4:(tt*5+i)*4+4]
                g(f"v_mfma_f32_16x16x32_bf16 {c}, {g.a_wo[(u*5+i)*4:(u*5+i)*4+4]}, {b}, {0 if u == 0 else c}")
                n += 1
                if n == 2 and u + AHEAD < 10: oload(u + AHEAD)
                if n == 2 and u == int(os.environ.get("XRU", "5")):
                    g(f"s_add_u32 {a[1]}, {sxr}, {g.s_xr}")
                    for q in range(3):
                        g(f"buffer_load_dwordx4 {xr[4*q:4*q+4]}, {g.v_xp[q]}, {g.q_ws}, {a[1]} offen sc1")
                    mx = g.vm_mark()
    V.free(ob, vo, vt)
    g.stamp(21)
    ex = g.vv("ex"); h1 = g.vv("h1", 60, 4); hadr = g.vv("hadr")
    g(f"s_mul_i32 {a[2]}, {g.s_w}, 5120\ns_add_u32 {a[2]}, {a[2]}, {L_SCR}\nv_lshlrev_b32 {ex}, 4, {L}\nv_add_u32 {t1}, {a[2]}, {ex}")
    lk = g.label("k1"); lk2 = g.label("k2")
    g(f"s_cmp_ge_u32 {g.s_w}, 2\ns_cbranch_scc1 {lk}")
    for i in range(5): g.lines.append(f"ds_write_b128 {t1}, {acc[(5+i)*4:(5+i)*4+4]} offset:{1024*i}")
    g(f"s_branch {lk2}\n{lk}:")
    for i in range(5): g.lines.append(f"ds_write_b128 {t1}, {acc[i*4:i*4+4]} offset:{1024*i}")
    for q in range(20): g(f"v_mov_b32 {acc[q]}, {acc[20+q]}")
    g(f"{lk2}:")
    g(f"v_add_u32 {hadr}, {L_H1}, {ex}")
    g.lines.append("s_waitcnt lgkmcnt(0)")
    g("s_barrier")
    g(f"s_xor_b32 {a[2]}, {g.s_w}, 2\ns_mul_i32 {a[2]}, {a[2]}, 5120\ns_add_u32 {a[2]}, {a[2]}, {L_SCR}\nv_add_u32 {t1}, {a[2]}, {ex}")
    g.lg = []
    oth = acc[20:40]
    for i in range(5): g(f"ds_read_b128 {oth[4*i:4*i+4]}, {t1} offset:{1024*i}")
    mo = g.lg_mark()
    g.stamp(4) if g.fine else None
    hm = []
    for f in range(15):
        g(f"ds_read_b128 {h1[4*f:4*f+4]}, {hadr} offset:{1024*f}")
    mh = g.lg_mark()
    g.wait(vm=mx, lg=mo)
    x1 = acc[0:20]
    xf = g.vv("xf", 4)
    for q in range(3): swap_quad(g, xr[4*q:4*q+4])
    for i in range(5):
        g(f"v_pk_add_f32 {x1[4*i:4*i+2]}, {x1[4*i:4*i+2]}, {oth[4*i:4*i+2]}\nv_pk_add_f32 {x1[4*i+2:4*i+4]}, {x1[4*i+2:4*i+4]}, {oth[4*i+2:4*i+4]}")
        g(f"v_lshlrev_b32 {xf[0]}, 16, {xr[2*i]}\nv_and_b32 {xf[1]}, 0xffff0000, {xr[2*i]}\nv_lshlrev_b32 {xf[2]}, 16, {xr[2*i+1]}\nv_and_b32 {xf[3]}, 0xffff0000, {xr[2*i+1]}")
        g(f"v_pk_add_f32 {x1[4*i:4*i+2]}, {x1[4*i:4*i+2]}, {xf[0:2]}\nv_pk_add_f32 {x1[4*i+2:4*i+4]}, {x1[4*i+2:4*i+4]}, {xf[2:4]}")
    V.free(xf)
    xp = g.vv("xp1", 12, 4)
    for q in range(10): g(f"v_cvt_pk_bf16_f32 {xp[q]}, {x1[2*q]}, {x1[2*q+1]}")
    g(f"v_mov_b32 {xp[10]}, 0\nv_mov_b32 {xp[11]}, 0")
    for q in range(8): g(f"v_mov_b32 {xr[q]}, {xp[q]}")
    g(f"v_mov_b32 {xr[8]}, {xp[8]}\nv_mov_b32 {xr[9]}, {xp[9]}\nv_mov_b32 {xr[10]}, {xp[8]}\nv_mov_b32 {xr[11]}, {xp[9]}")
    for q in range(3): swap_quad(g, xr[4*q:4*q+4])
    G = oth
    g.wait(lg=mh)
    for ip in range(5):
        for u in range(3):
            c = G[4*ip:4*ip+4]
            g(f"v_mfma_f32_16x16x32_bf16 {c}, {h1[4*(ip*3+u):4*(ip*3+u)+4]}, {xp[4*u:4*u+4]}, {0 if u == 0 else c}")
    g.stamp(5) if g.fine else None
    g(f"s_add_u32 {a[1]}, {sxr}, {g.s_x1}")
    for q in range(3):
        g(f"buffer_store_dwordx4 {xr[4*q:4*q+4]}, {g.v_xp[q]}, {g.q_ws}, {a[1]} offen{sc}")
    sm, sq = g.vv("sm", 2, 2), g.vv("sq", 2, 2)
    g(f"v_pk_add_f32 {sm}, {x1[0:2]}, {x1[2:4]}\nv_pk_mul_f32 {sq}, {x1[0:2]}, {x1[0:2]}\nv_pk_fma_f32 {sq}, {x1[2:4]}, {x1[2:4]}, {sq}")
    for q in range(2, 10):
        g(f"v_pk_add_f32 {sm}, {sm}, {x1[2*q:2*q+2]}\nv_pk_fma_f32 {sq}, {x1[2*q:2*q+2]}, {x1[2*q:2*q+2]}, {sq}")
    g(f"v_add_f32 {sm[0]}, {sm[0]}, {sm[1]}\nv_add_f32 {sm[1]}, {sq[0]}, {sq[1]}")
    for x in (sm[0], sm[1]):
        g.xq16(x, t0, "v_add_f32"); g.xhalf(x, t0, "v_add_f32")
    g(f"s_lshr_b32 {a[2]}, {g.s_j}, 2\ns_lshl_b32 {a[2]}, {a[2]}, 11\nv_lshlrev_b32 {t1}, 3, {g.v_p2p}")
    g(f"v_cmp_gt_u32 vcc, 16, {L}\nv_mov_b32 {t0}, {BIG}\nv_cndmask_b32 {t1}, {t0}, {t1}, vcc")
    g(f"s_mul_i32 {a[3]}, {g.s_tb}, {LOCSZ}\ns_add_u32 {a[2]}, {a[2]}, {a[3]}\ns_add_u32 {a[2]}, {a[2]}, {g.s_stb}")
    g(f"buffer_store_dwordx2 {sm}, {t1}, {g.q_ws}, {a[2]} offen{sc}")
    gq = g.vv("gpk", 10, 2)
    for ip in range(5):
        g(f"v_cvt_pk_bf16_f32 {gq[2*ip]}, {G[4*ip]}, {G[4*ip+1]}\nv_cvt_pk_bf16_f32 {gq[2*ip+1]}, {G[4*ip+2]}, {G[4*ip+3]}")
    g(f"v_lshrrev_b32 {t0}, 4, {L}\nv_lshlrev_b32 {t1}, 14, {t0}\nv_lshl_add_u32 {t1}, {g.v_p2p}, 3, {t1}")
    g(f"s_lshr_b32 {a[2]}, {g.s_j}, 2\ns_lshl_b32 {a[2]}, {a[2]}, 11\ns_mul_i32 {a[3]}, {g.s_tb}, {XSZ}\ns_add_u32 {a[2]}, {a[2]}, {a[3]}\ns_add_u32 {a[2]}, {a[2]}, {g.s_gb}")
    for ip in range(5):
        g(f"buffer_store_dwordx2 {gq[2*ip:2*ip+2]}, {t1}, {g.q_ws}, {a[2]} offen{sc}")
        if ip < 4: g(f"s_add_u32 {a[2]}, {a[2]}, {4*16384}")
    g.stamp(22)
    V.free(acc, ex, h1, hadr, xp, sm, sq, gq, g.v_xp, g.v_p2p, xr)
    g.S.free(sxr, so)
```

```python
import copy, math, os
from emit import *
from maps import *
from gen_main import lit, f2u, LOG2E

BIG = 0x7ff00000

def emit_all(g):
    prologue(g)
    s0_loads(g)
    snapV, snapA, snapS = copy.deepcopy(g.V), copy.deepcopy(g.A), copy.deepcopy(g.S)
    for fast in g.paths:
        g.V, g.A, g.S = copy.deepcopy(snapV), copy.deepcopy(snapA), copy.deepcopy(snapS)
        g.vm = []; g.lg = []
        body(g, fast)
        g("s_endpgm")
    g.lines.extend(g.subs)
    g("Lexit:")
    g("s_endpgm")
    g("Lcode_end:")

def goto_path(g, entry):
    if len(g.paths) == 1:
        g(f"s_branch L{entry}_{'fast' if g.paths[0] else 'slow'}")
    else:
        l = g.label("gp")
        g(f"s_cmp_eq_u32 {g.s_fast}, 0\ns_cbranch_scc1 {l}\ns_branch L{entry}_fast\n{l}:\ns_branch L{entry}_slow")

def prologue(g):
    g.paths = {"fast": [True], "slow": [False]}.get(g.force, [True, False])
    g("s_cmp_ge_u32 s2, 256\ns_cbranch_scc1 Lexit_near\ns_branch Lstart\nLexit_near:\ns_endpgm\nLstart:")
    g.p_in = g.S.alloc("ptrs", 14, at=16)
    g.q_ws = g.S.alloc("q_ws", 4, at=8)
    g.q_in = g.S.alloc("q_in", 4, at=12)
    g.q_tab = g.S.alloc("q_tab", 4, at=32); g.s_ret = g.S.alloc("ret", 2, at=36)
    p = g.p_in
    g(f"s_load_dwordx4 {p[0:4]}, s[0:1], 0\ns_load_dwordx4 {p[4:8]}, s[0:1], 16")
    g(f"s_load_dwordx4 {p[8:12]}, s[0:1], 72\ns_load_dwordx2 {p[12:14]}, s[0:1], 88")
    g.s_tb = g.sv("tb"); g.s_j = g.sv("j"); g.s_w = g.sv("w"); g.s_ex = g.sv("ex", 2); g.s_t = g.sv("t", 2)
    g.s_wost = g.sv("wost"); g.s_spin = g.sv("spin"); g.s_lep = g.sv("lep"); g.s_fast = g.sv("fast"); g.s_layer = g.sv("layer")
    g.s_a = g.sv("a", 8)
    if g.stamps:
        g.s_t2 = g.sv("t2", 2); g.v_st = g.vv("vst", 3)
        g(f"v_mov_b32 {g.v_st[0]}, 0\nv_mov_b32 {g.v_st[1]}, 0")
    g.v_lane = g.vv("lane"); g.v_t0 = g.vv("t0"); g.v_t1 = g.vv("t1"); g.v_lfown = g.vv("lfown"); g.v_lfall = g.vv("lfall")
    g(f"s_and_b32 {g.s_tb}, s2, 7\ns_lshr_b32 {g.s_j}, s2, 3")
    g(f"v_and_b32 {g.v_lane}, 63, v0\nv_lshrrev_b32 {g.v_t0}, 6, v0")
    g(f"v_readfirstlane_b32 {g.s_w}, {g.v_t0}")
    g(f"s_mov_b32 {g.s_lep}, 0\ns_mov_b32 {g.s_layer}, 0")
    g(f"s_lshl_b32 {g.s_a[0]}, {g.s_tb}, 7")
    g(f"s_lshl_b32 {g.s_a[1]}, {g.s_j}, 2\ns_add_u32 {g.s_a[1]}, {g.s_a[1]}, {g.s_a[0]}")
    g(f"v_mov_b32 {g.v_lfown}, {g.s_a[1]}")
    g(f"v_and_b32 {g.v_lfall}, 31, {g.v_lane}\nv_lshlrev_b32 {g.v_lfall}, 2, {g.v_lfall}\nv_add_u32 {g.v_lfall}, {g.s_a[0]}, {g.v_lfall}")
    g.lines.append("s_waitcnt lgkmcnt(0)")
    g.srd(g.q_ws, p[12], p[13], 256 << 20)
    import tables
    g.toff, _ = tables.build()
    q = g.q_tab
    g(f"s_getpc_b64 {q[0:2]}\nLpc:\ns_and_b32 {q[1]}, {q[1]}, 0xffff\ns_mov_b32 {q[2]}, fnet_tab_end-Lpc\ns_mov_b32 {q[3]}, 0x20000")
    g.stamp(0)

def s0_loads(g):
    p = g.p_in; a = g.s_a
    V = g.V
    t0, t1 = g.v_t0, g.v_t1
    import ph_s0, ph_p1
    g.v_l31 = g.vv("l31")
    g(f"v_and_b32 {g.v_l31}, 31, {g.v_lane}")
    g.v_big = g.vv("big", 128, 4)
    g.v_phi = g.vv("phiA", 8, 4)
    sk = g.label("ph")
    g(f"s_cmp_lg_u32 {g.s_w}, 0\ns_cbranch_scc1 {sk}")
    g.srd(g.q_in, p[4], p[5], 32 * 400 * 2)
    g(f"v_lshlrev_b32 {t0}, 4, {g.v_lane}\ns_mul_i32 {a[4]}, {g.s_j}, 800\ns_mov_b32 m0, {L_PHI}")
    g("s_nop 0")
    g.lines.append(f"buffer_load_dwordx4 {t0}, {g.q_in}, {a[4]} offen lds")
    g(f"{sk}:")
    g.srd(g.q_in, p[0], p[1], S * 1280)
    vp = g.vv("p"); vx = g.vv("vx")
    g(f"s_lshl_b32 {a[4]}, {g.s_j}, 3\ns_lshl_b32 {a[5]}, {g.s_w}, 1\ns_add_u32 {a[4]}, {a[4]}, {a[5]}")
    g(f"v_lshrrev_b32 {vp}, 5, {g.v_lane}\nv_add_u32 {vp}, {a[4]}, {vp}")
    g(f"v_lshrrev_b32 {t0}, 4, {vp}\nv_lshlrev_b32 {t0}, 3, {t0}\nv_and_b32 {t1}, 15, {vp}\nv_lshl_add_u32 {t0}, {t1}, 7, {t0}\nv_add_u32 {t0}, {g.s_tb}, {t0}")
    g(f"v_mul_u32_u24 {vx}, 1280, {t0}\nv_lshl_add_u32 {vx}, {g.v_l31}, 3, {vx}")
    g(f"v_cmp_gt_u32 vcc, 20, {g.v_l31}\nv_mov_b32 {t1}, {BIG}\nv_cndmask_b32 {vx}, {t1}, {vx}, vcc")
    src = g.vv("xsrc", 16, 4)
    for i in range(8):
        g.lines.append(f"buffer_load_dwordx2 {src[2*i:2*i+2]}, {vx}, {g.q_in}, 0 offen offset:{160*i}")
    V.free(vx, vp)
    PM = sum(1 << j for j in (13, 14, 15, 16, 17, 18, 20, 21, 23, 24))
    g(f"s_lshl_b32 {a[4]}, 1, {g.s_j}\ns_sub_u32 {a[5]}, {a[4]}, 1\ns_and_b32 {a[5]}, {a[5]}, {PM}\ns_bcnt1_i32_b32 {a[5]}, {a[5]}")
    g(f"s_lshl_b32 {a[5]}, {a[5]}, 3\ns_add_u32 {a[5]}, {a[5]}, {g.s_tb}\ns_and_b32 {a[4]}, {a[4]}, {PM}\ns_cselect_b32 {g.s_wost}, {a[5]}, 99")
    lw0 = g.label("w0"); lx = g.label("lx")
    ph_p1.p1_alloc(g)
    pb = g.vv("pub", 4); q_dbg = g.S.alloc("q_dbg", 4)
    gs = ph_s0.gather_alloc(g)
    pf = (g.sv("wpf"), g.vv("wpfa"))
    g.srd(gs["q_w"], p[2], p[3], 640 * 3840)
    g.srd(q_dbg, p[10], p[11], 256)
    g(f"s_mov_b32 {g.s_fast}, 0")
    g(f"s_cmp_eq_u32 {g.s_w}, 0\ns_cbranch_scc1 {lw0}")
    g(f"s_mul_i32 {a[0]}, {g.s_j}, 3\ns_add_u32 {a[0]}, {a[0]}, {g.s_w}\ns_sub_u32 {a[0]}, {a[0]}, 1\ns_lshl_b32 {a[0]}, {a[0]}, 10")
    g(f"v_lshlrev_b32 {t0}, 4, {g.v_lane}")
    g.lines.append(f"buffer_load_dwordx4 {g.v_big[124:128]}, {t0}, {g.q_tab}, {a[0]} offen")
    g(f"s_mul_i32 {a[0]}, {g.s_w}, 5120\ns_add_u32 {a[1]}, {a[0]}, {L_H1 - 5120}\ns_add_u32 {a[0]}, {a[0]}, fnet_tab-Lpc+{g.toff['H1'] - 5120}")
    for n in range(5):
        g(f"s_add_u32 m0, {a[1]}, {1024*n}")
        g(f"s_add_u32 {a[2]}, {a[0]}, {1024*n}")
        g.lines.append(f"buffer_load_dwordx4 {t0}, {g.q_tab}, {a[2]} offen lds")
    ph_s0.tab_touch(g, t0)
    NROLE = 7
    if os.environ.get("TLB") == "1":
        g(f"s_cmp_eq_u32 {g.s_w}, 3\ns_cselect_b32 {a[1]}, 0, {BIG}")
        g(f"v_lshlrev_b32 {t0}, 20, {g.v_lane}\nv_cmp_gt_u32 vcc, {(WS_USED >> 20) + 1}, {g.v_lane}\nv_mov_b32 {t1}, {BIG}\nv_cndmask_b32 {t0}, {t1}, {t0}, vcc\nv_add_u32 {t0}, {a[1]}, {t0}")
        g.lines.append(f"buffer_load_dword {g.v_big[122]}, {t0}, {g.q_ws}, 0 offen")
        q = g.S.alloc("q_o", 4)
        g.srd(q, p[8], p[9], S * 1280)
        g(f"v_min_u32 {t0}, 63, {g.v_lane}\nv_lshlrev_b32 {t0}, 19, {t0}\nv_cmp_gt_u32 vcc, 6, {g.v_lane}\nv_cndmask_b32 {t0}, {t1}, {t0}, vcc\nv_add_u32 {t0}, {a[1]}, {t0}")
        g.lines.append(f"buffer_load_dword {g.v_big[121]}, {t0}, {q}, 0 offen")
        g.S.free(q)
        NROLE = 9
    g(f"s_branch {lx}")
    g(f"{lw0}:")
    g(f"s_mov_b32 {g.s_fast}, 1")
    sk = g.label("wz")
    g(f"s_cmp_ge_u32 {g.s_wost}, 80\ns_cbranch_scc1 {sk}")
    ph_s0.wo_touch(g)
    g(f"s_mov_b32 {g.s_fast}, 2")
    g(f"{sk}:")
    kp = g.v_big[0:4]
    for q_ in range(4): g(f"v_mov_b32 {kp[q_]}, -1")
    g(f"s_lshl_b32 {a[4]}, {g.s_j}, 14\ns_lshl_b32 {a[5]}, {g.s_tb}, 11\ns_add_u32 {a[4]}, {a[4]}, {a[5]}\nv_lshlrev_b32 {t0}, 4, {g.v_lane}")
    for l in range(2):
        g(f"s_add_u32 {a[5]}, {a[4]}, {KVB[l]}")
        g.lines.append(f"buffer_store_dwordx4 {kp}, {t0}, {g.q_ws}, {a[5]} offen sc1")
        g.lines.append(f"buffer_store_dwordx4 {kp}, {t0}, {g.q_ws}, {a[5]} offen offset:1024 sc1")
    g(f"{lx}:")
    NPF0, NPF1 = 10, 8
    rest = ph_s0.w_prefetch(g, NPF0, gs["q_w"], pf)
    ph_s0.gather_setup(g, gs)
    ph_p1.p1_setup(g)
    publish_setup(g, pb, q_dbg)
    st = ln_addr(g)
    call_phi = g.make_sub("phi", lambda: ph_s0.phi_build(g, wait=False))
    call_raw = g.make_sub("raw", lambda: raw_stage(g, src, st))
    xa = g.label("xa"); xb = g.label("xb"); xc = g.label("xc")
    g(f"s_cmp_eq_u32 {g.s_fast}, 0\ns_cbranch_scc1 {xa}\ns_cmp_eq_u32 {g.s_fast}, 1\ns_cbranch_scc1 {xb}")
    g.lines.append(f"s_waitcnt vmcnt({NPF0 + 6})")
    g(f"s_branch {xc}\n{xb}:")
    g.lines.append(f"s_waitcnt vmcnt({NPF0 + 4})")
    g(f"s_branch {xc}\n{xa}:")
    g.lines.append(f"s_waitcnt vmcnt({NPF0 + NROLE})")
    g(f"{xc}:")
    g.stamp(3)
    emit_ln(g, src, st, rest, NPF1)
    lw0 = g.label("w0b")
    g(f"s_cmp_eq_u32 {g.s_w}, 0\ns_cbranch_scc1 {lw0}")
    g("s_barrier")
    g.stamp(4)
    for _ in rest: pass
    call_raw()
    call_phi()
    g.lines.append("s_waitcnt vmcnt(0)")
    g.stamp(6)
    g("s_barrier")
    ph_s0.w_gather(g, gs)
    g.lines.append("s_waitcnt vmcnt(0) lgkmcnt(0)")
    g.stamp(1)
    g("s_barrier")
    g(f"v_mov_b32 {t1}, {L_MISC}")
    g.lines.append(f"ds_read_b32 {t0}, {t1}")
    g.lines.append("s_waitcnt lgkmcnt(0)")
    g(f"v_readfirstlane_b32 {g.s_fast}, {t0}")
    goto_path(g, "entry")
    g(f"{lw0}:")
    g("s_barrier")
    g.stamp(4)
    sk = g.label("z0"); sk2 = g.label("z1")
    g(f"v_mov_b32 {t0}, 0\ns_cmp_lg_u32 {g.s_j}, 0\ns_cbranch_scc1 {sk}")
    g.lines.append(f"buffer_store_dword {t0}, {g.v_lfall}, {g.q_ws}, 0 offen sc1")
    g(f"{sk}:\ns_cmp_ge_u32 {g.s_wost}, 80\ns_cbranch_scc1 {sk2}")
    g(f"s_lshl_b32 {a[4]}, {g.s_wost}, 6\ns_add_u32 {a[4]}, {a[4]}, {WOFL}\nv_mov_b32 {t1}, {a[4]}\ns_mov_b64 {g.s_ex}, exec\ns_mov_b64 exec, 1")
    g.lines.append(f"buffer_store_dword {t0}, {t1}, {g.q_ws}, 0 offen sc1")
    g(f"s_mov_b64 exec, {g.s_ex}")
    g(f"{sk2}:")
    ph_s0.x_store(g, raw=False, sc=" sc1")
    np_ = g.label("np"); nk = g.label("nk")
    g(f"s_cmp_ge_u32 {g.s_wost}, 80\ns_cbranch_scc1 {np_}")
    ph_s0.wo_stage(g)
    g.lines.append("s_waitcnt vmcnt(16)")
    g(f"s_branch {nk}\n{np_}:")
    g.lines.append("s_waitcnt vmcnt(0)")
    g(f"{nk}:")
    if g.stop_after == "s0b": g.stamp(10)
    publish_purity(g, pb, q_dbg)
    if os.environ.get("PUBW") == "1":
        g.lines.append("s_waitcnt vmcnt(0)")
        g.stamp(15)
    g("s_barrier")
    g.stamp(5)
    call_raw()
    call_phi()
    if g.stop_after == "s0b": g.stamp(11)
    wf = ph_s0.wo_frag_a(g)
    ph_s0.wo_frag_b(g, wf)
    if g.stop_after == "s0b": g.stamp(12)
    g("s_barrier")
    if g.stop_after == "s0b": g.stamp(13)
    ph_s0.wo_flag(g)
    if g.stop_after == "s0b": g.stamp(14)
    purity(g, pb, q_dbg)
    g.stamp(2)
    g.lines.append("s_waitcnt lgkmcnt(0)")
    g("s_barrier")
    V.free(src, st)
    V.free(pb); g.S.free(q_dbg)
    ph_s0.gather_free(g, gs)
    g.S.free(pf[0]); V.free(pf[1])
    goto_path(g, "entry")

def ln_addr(g):
    a = g.s_a; V = g.V; t0, t1 = g.v_t0, g.v_t1
    st = g.vv("xst", 4); e2 = g.vv("e2"); rb = g.vv("rb")
    g(f"s_lshl_b32 {a[4]}, {g.s_w}, 5\ns_add_u32 {a[4]}, {a[4]}, {L_XST}\nv_lshrrev_b32 {rb}, 5, {g.v_lane}\nv_lshlrev_b32 {rb}, 4, {rb}\nv_add_u32 {rb}, {a[4]}, {rb}")
    for c in range(4):
        g(f"v_lshl_add_u32 {e2}, {g.v_l31}, 2, {c}")
        g.code_of_e2(st[c], e2, t0)
        g(f"v_lshl_add_u32 {st[c]}, {st[c]}, 7, {rb}")
    g(f"v_cmp_gt_u32 vcc, 20, {g.v_l31}\nv_mov_b32 {t0}, {L_XST + 20480}")
    for c in range(4): g(f"v_cndmask_b32 {st[c]}, {t0}, {st[c]}, vcc")
    V.free(e2, rb)
    return st

def sprinkle(g, body, filler, every):
    k = 0
    for l in body:
        g.lines.append(l); k += 1
        if filler is not None and k % every == 0 and not l.startswith("v_cmp") and not l.endswith(":"):
            try: next(filler)
            except StopIteration: filler = None

def emit_ln(g, src, st, filler, nfill=0):
    a = g.s_a; V = g.V; t0, t1 = g.v_t0, g.v_t1
    real = g.lines
    g.lines = []
    xf = g.vv("xf", 32, 4); sm, sq = g.vv("sm", 2, 2), g.vv("sq", 2, 2)
    pk = g.vv("pk", 16, 4)
    for i in range(8):
        g(f"v_lshlrev_b32 {xf[0*8+i]}, 16, {src[2*i]}\nv_and_b32 {xf[1*8+i]}, 0xffff0000, {src[2*i]}")
        g(f"v_lshlrev_b32 {xf[2*8+i]}, 16, {src[2*i+1]}\nv_and_b32 {xf[3*8+i]}, 0xffff0000, {src[2*i+1]}")
    g(f"v_pk_add_f32 {sm}, {xf[0:2]}, {xf[2:4]}\nv_pk_mul_f32 {sq}, {xf[0:2]}, {xf[0:2]}\nv_pk_fma_f32 {sq}, {xf[2:4]}, {xf[2:4]}, {sq}")
    for i in range(2, 16):
        g(f"v_pk_add_f32 {sm}, {sm}, {xf[2*i:2*i+2]}\nv_pk_fma_f32 {sq}, {xf[2*i:2*i+2]}, {xf[2*i:2*i+2]}, {sq}")
    g(f"v_add_f32 {sm[0]}, {sm[0]}, {sm[1]}\nv_add_f32 {sq[0]}, {sq[0]}, {sq[1]}")
    g.red32(sm[0], t0); g.red32(sq[0], t1)
    g(f"v_mul_f32 {sm[0]}, {lit(1/640)}, {sm[0]}\nv_mul_f32 {sq[0]}, {lit(1/640)}, {sq[0]}")
    g(f"v_fma_f32 {sq[0]}, -{sm[0]}, {sm[0]}, {sq[0]}\nv_add_f32 {sq[0]}, {lit(1e-5)}, {sq[0]}\nv_rsq_f32 {sq[0]}, {sq[0]}")
    g(f"v_mul_f32_e64 {sm[0]}, -{sm[0]}, {sq[0]}")
    for i in range(16):
        g(f"v_pk_fma_f32 {xf[2*i:2*i+2]}, {xf[2*i:2*i+2]}, {sq}, {sm} op_sel_hi:[1,0,0]")
    for c in range(4):
        for i2 in range(4):
            g(f"v_cvt_pk_bf16_f32 {pk[c*4+i2]}, {xf[c*8+2*i2]}, {xf[c*8+2*i2+1]}")
        g.lines.append(f"ds_write_b128 {st[c]}, {pk[4*c:4*c+4]}")
    g.lines.append("s_waitcnt lgkmcnt(0)")
    V.free(xf, sm, sq, pk)
    body = g.lines; g.lines = real
    if nfill:
        import itertools
        sprinkle(g, body, itertools.islice(filler, nfill), len(body) // (nfill + 1))
    else: g.lines.extend(body)

def raw_stage(g, src, st):
    a = g.s_a
    pk = g.vv("pkr", 8, 4)
    g(f"s_mov_b32 {a[3]}, 0x05040100\ns_mov_b32 {a[4]}, 0x07060302")
    for c in range(4):
        r = pk[4*(c & 1):4*(c & 1) + 4]
        for i2 in range(4):
            g(f"v_perm_b32 {r[i2]}, {src[2*(2*i2+1) + (c >> 1)]}, {src[2*(2*i2) + (c >> 1)]}, {a[3 + (c & 1)]}")
        g.lines.append(f"ds_write_b128 {st[c]}, {r} offset:10240")
    g.V.free(pk)

def publish_setup(g, pb, q):
    p = g.p_in; a = g.s_a
    g(f"s_getreg_b32 {a[4]}, hwreg(HW_REG_XCC_ID, 0, 4)\ns_add_u32 {a[4]}, {a[4]}, 1")
    g(f"s_lshl_b32 {a[5]}, {g.s_tb}, 5\ns_add_u32 {a[6]}, {a[5]}, {g.s_j}")
    g(f"v_mov_b32 {pb[0]}, {a[4]}\nv_mov_b32 {pb[1]}, {a[6]}")
    g(f"v_and_b32 {pb[2]}, 7, {g.v_lane}\nv_lshlrev_b32 {pb[2]}, 2, {pb[2]}\nv_add_u32 {pb[2]}, {a[5]}, {pb[2]}")
    g(f"v_mov_b32 {pb[3]}, {L_MISC}")

def publish_purity(g, pb, q):
    g(f"s_mov_b64 {g.s_ex}, exec\ns_mov_b64 exec, 1")
    g.lines.append(f"buffer_store_byte {pb[0]}, {pb[1]}, {q}, 0 offen sc1")
    g(f"s_mov_b64 exec, {g.s_ex}")

def purity(g, pb, q):
    a = g.s_a; t0, t1 = g.v_t0, g.v_t1
    pv = pb[0]
    lp = g.label("pp"); dn = g.label("ppd")
    g(f"s_mov_b32 {g.s_spin}, {1 << 20}")
    g(f"{lp}:")
    g.lines.append(f"buffer_load_dword {pv}, {pb[2]}, {q}, 0 offen sc1")
    g.lines.append("s_waitcnt vmcnt(0)")
    g(f"v_subrev_u32 {t0}, 0x01010101, {pv}\nv_bfi_b32 {t0}, {pv}, 0, {t0}\nv_and_b32 {t0}, 0x80808080, {t0}")
    g(f"v_cmp_ne_u32 vcc, 0, {t0}\ns_cbranch_vccz {dn}")
    g(f"s_sub_u32 {g.s_spin}, {g.s_spin}, 1\ns_cmp_lg_u32 {g.s_spin}, 0\ns_cbranch_scc1 {lp}")
    g(f"{dn}:")
    g(f"v_readfirstlane_b32 {a[5]}, {pv}\ns_and_b32 {a[5]}, {a[5]}, 0xff\ns_mul_i32 {a[5]}, {a[5]}, 0x01010101")
    g(f"v_cmp_ne_u32 vcc, {a[5]}, {pv}\ns_cmp_eq_u64 vcc, 0\ns_cselect_b32 {g.s_fast}, 1, 0\nv_mov_b32 {t0}, {g.s_fast}")
    g.lines.append(f"ds_write_b32 {pb[3]}, {t0}")

def finish(g, fast):
    g.stamp(31)
    g.wait0()
    g.flush_stamps()

def body(g, fast):
    import ph_s0, ph_p1, ph_p2, ph_b
    sc = "" if fast else " sc1"
    g.sc = sc; g.fast = fast
    tag = "fast" if fast else "slow"
    for nm in ("s_xn", "s_xr", "s_kvb", "s_ob", "s_x1", "s_gb", "s_stb", "s_zb"): setattr(g, nm, None)
    g(f"Lentry_{tag}:")
    g.vm = []; g.lg = []
    ph_s0.after_s0(g)
    if g.stop_after in ("s0", "s0b"): return finish(g, fast)
    lay = g.label("layer")
    g(f"s_mov_b32 {g.s_layer}, 0")
    g(f"{lay}:")
    g.vm = []; g.lg = []
    ph_p1.set_layer(g)
    ph_p1.p1(g)
    if g.stop_after == "p1": return finish(g, fast)
    ph_p2.p2(g)
    if g.stop_after == "p2": return finish(g, fast)
    ph_b.b1(g)
    if g.stop_after == "b1": return finish(g, fast)
    ph_b.b2(g, lay)
    finish(g, fast)
```

```python
import sys, copy, math, os
sys.path.insert(0, "gen")
from emit import *
from maps import *

KN = "interleave_layers__linear_kernel_hedgehog__spectral_fnet__prompt_kernel"
LOG2E = 1.4426950408889634
def f2u(x):
    import struct
    return struct.unpack('<I', struct.pack('<f', x))[0]
def lit(x): return f"0x{f2u(x):08x}"

class G(Emit):
    def __init__(self, stop_after=None, stamps=False, force=None):
        super().__init__()
        self.stop_after = stop_after; self.stamps = stamps; self.force = force
        self.subs = []
        self.nstamp = 0; self.stamp_wave = 0; self.fine = False
    def sv(self, name, n=1): return self.S.alloc(name, n)
    def vv(self, name, n=1, align=None): return self.V.alloc(name, n, align)
    def srd(self, q, lo, hi, nbytes):
        self(f"s_mov_b32 {q[0]}, {lo}\ns_and_b32 {q[1]}, {hi}, 0xffff\ns_mov_b32 {q[2]}, {nbytes}\ns_mov_b32 {q[3]}, 0x20000")
    def stamp(self, idx):
        if not self.stamps: return
        self(f"s_memrealtime {self.s_t}\ns_memtime {self.s_t2}")
        self.lines.append("s_waitcnt lgkmcnt(0)")
        self(f"s_lshl_b32 {self.s_t[1]}, {self.s_layer}, 5\ns_add_u32 m0, {self.s_t[1]}, {idx}")
        self(f"v_writelane_b32 {self.v_st[0]}, {self.s_t[0]}, m0\nv_writelane_b32 {self.v_st[1]}, {self.s_t2[0]}, m0")
    def flush_stamps(self):
        if not self.stamps: return
        sk = self.label("fs")
        self(f"s_cmp_lg_u32 {self.s_w}, {self.stamp_wave}\ns_cbranch_scc1 {sk}")
        self(f"s_lshl_b32 {self.s_t[1]}, s2, 8\nv_lshlrev_b32 {self.v_st[2]}, 2, {self.v_lane}\nv_add_u32 {self.v_st[2]}, {self.s_t[1]}, {self.v_st[2]}")
        self.lines.append(f"buffer_store_dword {self.v_st[0]}, {self.v_st[2]}, {self.q_ws}, 0 offen offset:0 sc1".replace("offset:0 ", ""))
        self.lines[-1] = f"v_add_u32 {self.v_st[2]}, {STAMP}, {self.v_st[2]}"
        self.lines.append(f"buffer_store_dword {self.v_st[0]}, {self.v_st[2]}, {self.q_ws}, 0 offen sc1")
        self(f"v_add_u32 {self.v_st[2]}, {STAMP2 - STAMP}, {self.v_st[2]}")
        self.lines.append(f"buffer_store_dword {self.v_st[1]}, {self.v_st[2]}, {self.q_ws}, 0 offen sc1")
        self.lines.append("s_waitcnt vmcnt(0)")
        self(f"s_mov_b64 exec, -1")
        self(f"{sk}:")
    def code_of_e2(self, dst, e2, t):
        self(f"v_add_u32 {dst}, 2, {e2}")
        self(f"v_sub_u32 {t}, 120, {e2}")
        self(f"v_cmp_lt_u32 vcc, 39, {e2}\nv_cndmask_b32 {dst}, {dst}, {t}, vcc")
        for k, c in ((0, 0), (40, 1), (1, 2), (79, 3)):
            self(f"v_cmp_eq_u32 vcc, {k}, {e2}\nv_cndmask_b32_e64 {dst}, {dst}, {c}, vcc")
    def e2_of_code(self, dst, code, t):
        self(f"v_subrev_u32 {dst}, 2, {code}")
        self(f"v_sub_u32 {t}, 120, {code}")
        self(f"v_cmp_lt_u32 vcc, 41, {code}\nv_cndmask_b32 {dst}, {dst}, {t}, vcc")
        one = {0: "0", 40: "40", 1: "1"}
        for c, k in ((0, 0), (1, 40), (2, 1)):
            self(f"v_cmp_eq_u32 vcc, {c}, {code}\nv_cndmask_b32_e64 {dst}, {dst}, {k}, vcc")
        self(f"v_mov_b32 {t}, 79\nv_cmp_eq_u32 vcc, 3, {code}\nv_cndmask_b32 {dst}, {dst}, {t}, vcc")
    def s_e2_of_code(self, dst, code, t):
        self(f"s_sub_u32 {dst}, {code}, 2")
        self(f"s_sub_u32 {t}, 120, {code}")
        self(f"s_cmp_ge_u32 {code}, 42\ns_cselect_b32 {dst}, {t}, {dst}")
        for c, k in ((0, 0), (1, 40), (2, 1), (3, 79)):
            self(f"s_cmp_eq_u32 {code}, {c}\ns_cselect_b32 {dst}, {k}, {dst}")
    def red32(self, x, t, op="v_add_f32"):
        for r in (8, 4, 2, 1):
            self(f"{op}_dpp {x}, {x}, {x} row_ror:{r} row_mask:0xf bank_mask:0xf")
        self(f"v_mov_b32 {t}, {x}\nv_permlane16_swap_b32 {t}, {x}\n{op} {x}, {x}, {t}")
    def xhalf(self, x, t, op):
        self(f"v_mov_b32 {t}, {x}\nv_permlane32_swap_b32 {t}, {x}\n{op} {x}, {x}, {t}")
    def xq16(self, x, t, op):
        self(f"v_mov_b32 {t}, {x}\nv_permlane16_swap_b32 {t}, {x}\n{op} {x}, {x}, {t}")

    def make_sub(self, name, fn):
        real = self.lines; self.lines = []
        ret = self.S.alloc("ret_" + name, 2, align=2) if False else self.s_ret
        self(f"Lsub_{name}:")
        self("s_nop 1")
        fn()
        self("s_nop 1")
        self(f"s_setpc_b64 {ret}")
        self.subs.extend(self.lines); self.lines = real
        return lambda: self(f"s_call_b64 {ret}, Lsub_{name}")
    def poll_ge(self, voff, target, flags):
        lp = self.label("poll"); dn = self.label("pdone")
        self(f"s_mov_b32 {self.s_spin}, {1 << 22}")
        self(f"{lp}:")
        self.lines.append(f"buffer_load_dword {self.v_t0}, {voff}, {self.q_ws}, 0 offen {flags}")
        self.lines.append("s_waitcnt vmcnt(0)")
        self(f"v_cmp_gt_u32 vcc, {target}, {self.v_t0}")
        self(f"s_cbranch_vccz {dn}")
        self(f"s_sub_u32 {self.s_spin}, {self.s_spin}, 1\ns_cmp_lg_u32 {self.s_spin}, 0\ns_cbranch_scc1 {lp}")
        self(f"{dn}:")
    def local_barrier(self, fast, work=None, keep=0):
        if keep: self.lines.append(f"s_waitcnt vmcnt({keep}) lgkmcnt(0)")
        else: self.wait0()
        self("s_barrier")
        sk = self.label("lb")
        self(f"s_add_u32 {self.s_lep}, {self.s_lep}, 1")
        self(f"s_cmp_lg_u32 {self.s_w}, 0\ns_cbranch_scc1 {sk}")
        self(f"v_mov_b32 {self.v_t1}, {self.s_lep}")
        self(f"s_mov_b64 {self.s_ex}, exec\ns_mov_b64 exec, 1")
        self.lines.append(f"buffer_store_dword {self.v_t1}, {self.v_lfown}, {self.q_ws}, 0 offen" + ("" if fast else " sc1"))
        self(f"s_mov_b64 exec, {self.s_ex}")
        if work is not None:
            self(f"{sk}:")
            work()
            sk = self.label("lb")
            self(f"s_cmp_lg_u32 {self.s_w}, 0\ns_cbranch_scc1 {sk}")
        self.poll_ge(self.v_lfall, self.s_lep, "sc1")
        self(f"{sk}:")
        self("s_barrier")
        self.vm = []; self.lg = []

def build_kernel(stop_after=None, stamps=False, force=None, sw=0, fine=False):
    g = G(stop_after, stamps, force); g.stamp_wave = sw; g.fine = fine
    import phases
    phases.emit_all(g)
    lines, nn = fix_hazards(g.lines)
    return render(lines), nn, g, lines

def render(lines):
    body = "\n".join((" " + l if not l.endswith(":") else l) for l in lines)
    import tables
    toff, tdata = tables.build()
    body += "\n.p2align 8\n.type fnet_tab,@object\nfnet_tab:\n" + tables.text(tdata) + f"\nfnet_tab_end:\n.size fnet_tab, {tdata.nbytes}\n"
    hdr = open("interleave_layers__linear_kernel_hedgehog__spectral_fnet__prompt.s.ref").read().split("; Override launch")[0]
    txt = hdr + f"; @launch grid=(256,1,1) block=(256,1,1) lds={LDS_BYTES}\n"
    txt += f""".amdgcn_target "amdgcn-amd-amdhsa--gfx950"
.text
.globl {KN}
.p2align 8
.type {KN},@function
{KN}:
{body}
.section .rodata,"a"
.p2align 6
.amdhsa_kernel {KN}
  .amdhsa_next_free_vgpr 512
  .amdhsa_next_free_sgpr 102
  .amdhsa_accum_offset 256
  .amdhsa_group_segment_fixed_size 0
  .amdhsa_kernarg_size 96
  .amdhsa_user_sgpr_count 2
  .amdhsa_user_sgpr_kernarg_segment_ptr 1
  .amdhsa_system_sgpr_workgroup_id_x 1
.end_amdhsa_kernel
"""
    return txt

if __name__ == "__main__":
    import argparse
    ap = argparse.ArgumentParser()
    ap.add_argument("-o", default="main.s")
    ap.add_argument("--stop", default=None)
    ap.add_argument("--stamps", action="store_true")
    ap.add_argument("--force", default=None)
    ap.add_argument("--sw", type=int, default=0)
    ap.add_argument("--fine", action="store_true")
    a = ap.parse_args()
    ap_noalign = os.environ.get("NOALIGN") == "1"
    txt, nn, g, lines = build_kernel(a.stop, a.stamps, a.force, a.sw, a.fine)
    open(a.o, "w").write(txt)
    if not ap_noalign:
        sys.path.insert(0, "tools")
        from build import build
        import align
        co = build(a.o, check=False)
        new, before, after, n = align.plan(lines, align.sizes(co, KN))
        chk, extra = fix_hazards(new)
        assert extra == 0, extra
        txt = render(new)
        open(a.o, "w").write(txt)
        print(f"alignment: misaligned 8-byte instructions {before} -> {after}, {n} promoted")
    print(f"wrote {a.o}: {len(txt)} bytes, {txt.count(chr(10))} lines, hazard nops {nn}, vgpr hi {g.V.hi}, agpr hi {g.A.hi}, sgpr hi {g.S.hi}")
    sys.path.insert(0, "tools")
    from build import build
    print(build(a.o))
```

```python
S, D, H, DH = 2048, 640, 32, 20

def tok(tb, p):
    return tb + 8 * (p >> 4) + 128 * (p & 15)

def e2_of(b, kh):
    code = 2 * b + kh
    if code < 4: return (0, 40, 1, 79)[code]
    return code - 2 if code <= 41 else 120 - code

def blk_of(e2):
    for b in range(40):
        for kh in range(2):
            if e2_of(b, kh) == e2: return b, kh
    raise ValueError
assert sorted(e2_of(b, kh) for b in range(40) for kh in range(2)) == list(range(80))

def col_of_k(k):
    b, kh, i = k >> 4, (k >> 3) & 1, k & 7
    return e2_of(b, kh) + 80 * i

LF = 0x0000
KVF = 0x1000
GL = 0x2000
WOFL = 0x3000
STAMP = 0x10000
STAMP2 = 0x20000
XSZ = 8 * 40 * 1024
OSZ = 256 * 1280
GSZ = 40 * 8 * 256 * 4
STSZ = 256 * 8 * 8
ZSZ = 21 * 16384
KVSZ = 2048
WHSZ = 32 * 81920
WOSZ = 8 * 5 * 20 * 1024
_off = 1 << 20
def _take(n):
    global _off
    o = _off; _off += (n + 4095) // 4096 * 4096; return o
X_IN = [_take(8 * XSZ)] * 2
XN_IN = [_take(8 * XSZ)] * 2
LOCSZ = OSZ + STSZ
LOC = _take(8 * LOCSZ)
OB = [LOC] * 2; STB = [LOC + OSZ] * 2
GB = XN_IN; X1 = X_IN
assert GSZ == XSZ
ZB = [_take(8 * ZSZ) for _ in range(2)]
KVB = [_take(32 * 8 * KVSZ) for _ in range(2)]
WOF = _take(WOSZ)
WS_USED = _off
LAYER_STRIDE = None

L_W = 0
L_H1 = 81920
L_SCR = L_H1 + 15 * 1024
L_KVS = L_SCR
RS = 208
IMG = 64 * RS
L_KVA = L_SCR + 4 * IMG + 256
L_MISC = L_KVA + 3072
L_PHI = L_MISC + 1024
LDS_BYTES = L_PHI + 1024
L_XST = L_SCR + 12288
assert LDS_BYTES <= 163840

def unit_eps(u, g):
    if u == 0: return (0, 0 if g == 0 else 40, False)
    if u == 1: return (1, 1, False) if g == 0 else (1, 79, True)
    return (2 * u - 2 + g, 2 * u - 2 + g, False)
def wo_row(sidx, g, ii):
    U = 4 * sidx + g
    if U < 64: return 10 * U + ii
    return 40 * (U - 64) + (8, 9, 18, 19, 28, 29, 38, 39)[ii]
if __name__ == "__main__":
    print(hex(WS_USED), LDS_BYTES)
```

```python
from emit import *
from maps import *
from gen_main import lit, f2u, LOG2E
BIG = 0x7ff00000
NR = 10
DUMMY = L_MISC + 512

def drain(gen):
    for _ in gen: pass

def p1_alloc(g):
    g.v_Aq = g.vv("Aq", 2); g.v_Ak = g.vv("Ak", 2)
    g.v_x16 = g.vv("x16")
    g.v_img = g.vv("img"); g.v_vA = g.vv("vA"); g.v_vC = g.vv("vC"); g.v_T = g.vv("vT"); g.v_K = g.vv("vK")
    g.s_l2e2 = g.sv("l2e", 2); g.s_l2e = g.s_l2e2[0]; g.s_hi = g.sv("hi", 2); g.v_one = g.vv("one")

def p1_setup(g):
    t0, t1 = g.v_t0, g.v_t1; V = g.V; a = g.s_a; L = g.v_lane
    r, c, khh, ch = g.vv("r"), g.vv("c"), g.vv("khh"), g.vv("ch")
    g(f"v_bfe_u32 {r}, {L}, 2, 2\nv_and_b32 {c}, 3, {L}\nv_lshrrev_b32 {khh}, 5, {L}\nv_bfe_u32 {ch}, {L}, 4, 1")
    g(f"v_lshl_add_u32 {t0}, {khh}, 3, {r}")
    g(f"v_lshlrev_b32 {t1}, 5, {ch}\nv_lshl_add_u32 {t1}, {c}, 3, {t1}")
    g(f"v_lshl_add_u32 {g.v_Aq[0]}, {t0}, 7, {t1}")
    g(f"v_mul_u32_u24 {g.v_T}, {RS}, {t0}\nv_add_u32 {g.v_T}, {g.v_T}, {t1}")
    g(f"v_bfe_u32 {t0}, {L}, 3, 1\nv_lshl_add_u32 {g.v_Aq[0]}, {t0}, 6, {g.v_Aq[0]}")
    g(f"v_xor_b32 {g.v_Ak[0]}, 64, {g.v_Aq[0]}")
    g(f"v_add_u32 {g.v_Aq[1]}, 0x10000, {g.v_Aq[0]}\nv_add_u32 {g.v_Ak[1]}, 0x10000, {g.v_Ak[0]}")
    g(f"s_mul_i32 {a[0]}, {g.s_w}, {IMG}\ns_add_u32 {a[0]}, {a[0]}, {L_SCR}")
    g(f"v_add_u32 {g.v_T}, {a[0]}, {g.v_T}")
    g(f"v_lshlrev_b32 {g.v_x16}, 4, {L}")
    g(f"v_and_b32 {t0}, 31, {L}\nv_mul_u32_u24 {t1}, {RS}, {t0}\nv_add_u32 {t1}, {a[0]}, {t1}")
    g(f"v_lshl_add_u32 {g.v_img}, {khh}, 5, {t1}")
    g(f"v_lshl_add_u32 {g.v_vA}, {khh}, 3, {t1}\nv_add_u32 {g.v_vA}, 136, {g.v_vA}")
    g(f"v_cmp_eq_u32 vcc, 0, {khh}\nv_cndmask_b32_e64 {g.v_vC}, 0, 40, vcc\nv_add_u32 {g.v_vC}, {g.v_vC}, {t1}\nv_add_u32 {g.v_vC}, 128, {g.v_vC}")
    g(f"s_mul_i32 {a[1]}, {g.s_w}, {IMG}\ns_add_u32 {a[1]}, {a[1]}, {L_KVS}")
    g(f"v_mul_u32_u24 {g.v_K}, 384, {khh}\nv_lshl_add_u32 {g.v_K}, {t0}, 2, {g.v_K}\nv_add_u32 {g.v_K}, {a[1]}, {g.v_K}")
    V.free(r, c, khh, ch)
    z = g.vv("z", 4)
    for i in range(4): g(f"v_mov_b32 {z[i]}, 0")
    g(f"v_lshlrev_b32 {t0}, 4, v0\nv_add_u32 {t0}, {L_KVA}, {t0}")
    g(f"v_cmp_gt_u32 vcc, 192, v0\nv_mov_b32 {t1}, {DUMMY}\nv_cndmask_b32 {t0}, {t1}, {t0}, vcc")
    g.lines.append(f"ds_write_b128 {t0}, {z}")
    V.free(z)
    g(f"s_mov_b32 {g.s_l2e}, {lit(LOG2E)}\ns_mov_b32 {g.s_l2e2[1]}, {lit(LOG2E)}\ns_mov_b32 {g.s_hi[0]}, 0\ns_mov_b32 {g.s_hi[1]}, -1\nv_mov_b32 {g.v_one}, 0x3f80")

def ga_setup(g):
    t0, t1 = g.v_t0, g.v_t1; V = g.V
    g.v_ga = g.vv("ga", 4); g.v_ga3 = g.vv("gaz")
    row, q, kh, slot, c, m = g.vv("row"), g.vv("q"), g.vv("kh"), g.vv("slot"), g.vv("c"), g.vv("m")
    g(f"v_mul_u32_u24 {row}, 10923, v0\nv_lshrrev_b32 {row}, 16, {row}")
    g(f"v_mul_u32_u24 {t0}, 6, {row}\nv_sub_u32 {q}, v0, {t0}")
    g(f"v_cmp_lt_u32 vcc, 19, {row}\nv_cndmask_b32_e64 {kh}, 0, 1, vcc\nv_mul_u32_u24 {t0}, 20, {kh}\nv_sub_u32 {slot}, {row}, {t0}")
    g(f"v_mul_u32_u24 {kh}, 48, {kh}\nv_lshl_add_u32 {kh}, {slot}, 1, {kh}\nv_add_u32 {kh}, {L_KVA}, {kh}")
    for e in range(4):
        g(f"v_lshl_add_u32 {c}, {q}, 2, {e}")
        g(f"v_cmp_lt_u32 vcc, 9, {c}\nv_cndmask_b32_e64 {t0}, 0, 1, vcc\nv_mul_u32_u24 {t1}, 10, {t0}\nv_sub_u32 {t1}, {c}, {t1}")
        g(f"v_lshrrev_b32 {m}, 2, {t1}\nv_lshlrev_b32 {m}, 3, {m}\nv_lshl_add_u32 {m}, {t0}, 2, {m}\nv_and_b32 {t1}, 3, {t1}\nv_add_u32 {m}, {m}, {t1}")
        g(f"v_cmp_eq_u32 vcc, 20, {c}\nv_cndmask_b32_e64 {m}, {m}, 18, vcc")
        g(f"v_mul_u32_u24 {g.v_ga[e]}, 96, {m}\nv_add_u32 {g.v_ga[e]}, {g.v_ga[e]}, {kh}")
        g(f"v_mov_b32 {t1}, {DUMMY}\nv_cmp_lt_u32 vcc, 20, {c}\nv_cndmask_b32 {g.v_ga[e]}, {g.v_ga[e]}, {t1}, vcc")
        g(f"v_cmp_lt_u32 vcc, 239, v0\nv_cndmask_b32 {g.v_ga[e]}, {g.v_ga[e]}, {t1}, vcc")
    g(f"v_add_u32 {g.v_ga3}, 384, {g.v_ga[0]}\nv_mov_b32 {t1}, {DUMMY}\nv_cmp_ne_u32 vcc, 5, {q}\nv_cndmask_b32 {g.v_ga3}, {g.v_ga3}, {t1}, vcc")
    g(f"v_cmp_lt_u32 vcc, 239, v0\nv_cndmask_b32 {g.v_ga3}, {g.v_ga3}, {t1}, vcc")
    V.free(row, q, kh, slot, c, m)

def set_layer(g):
    for nm, arr in (("s_xn", XN_IN), ("s_xr", X_IN), ("s_kvb", KVB), ("s_ob", OB), ("s_x1", X1), ("s_gb", GB), ("s_stb", STB), ("s_zb", ZB)):
        if not hasattr(g, nm) or getattr(g, nm) is None: setattr(g, nm, g.sv(nm))
        r = getattr(g, nm)
        g(f"s_cmp_eq_u32 {g.s_layer}, 0\ns_cselect_b32 {r}, {arr[0]}, {arr[1]}") if False else None
        g(f"s_mul_i32 {r}, {g.s_layer}, {arr[1] - arr[0]}\ns_add_u32 {r}, {r}, {arr[0]}")

def softmax_gen(g, acc, pk, outp, outm, T, packed, skip_pack=False):
    d2, ep, em = T["d2"], T["ep"], T["em"]
    mx, mn, t2, sp, sm_ = T["mx"], T["mn"], T["t2"], T["sp"], T["sm"]
    if not skip_pack:
        for q in range(8):
            g(f"v_cvt_pk_bf16_f32 {pk[q]}, {acc[2*q]}, {acc[2*q+1]}"); yield 1
    g(f"v_mfma_f32_32x32x16_bf16 {d2}, {g.v_phi[0:4]}, {pk[0:4]}, 0"); yield "mfma"
    g(f"v_mfma_f32_32x32x16_bf16 {d2}, {g.v_phi[4:8]}, {pk[4:8]}, {d2}"); yield "mfma"
    yield "gap"
    g(f"v_max3_f32 {mx}, {d2[0]}, {d2[1]}, {d2[2]}"); yield 1
    g(f"v_min3_f32 {mn}, {d2[0]}, {d2[1]}, {d2[2]}"); yield 1
    for i in (3, 5, 7):
        g(f"v_max3_f32 {mx}, {mx}, {d2[i]}, {d2[i+1]}"); yield 1
        g(f"v_min3_f32 {mn}, {mn}, {d2[i]}, {d2[i+1]}"); yield 1
    g(f"v_max_f32 {mx}, {mx}, {d2[9]}"); yield 1
    g(f"v_min_f32 {mn}, {mn}, {d2[9]}"); yield 1
    g(f"v_mov_b32 {t2}, {mx}"); yield 1
    g(f"v_mov_b32 {sp}, {mn}"); yield 1
    g("s_nop 0"); yield 1
    g(f"v_permlane32_swap_b32 {t2}, {mx}"); yield 1
    g(f"v_permlane32_swap_b32 {sp}, {mn}"); yield 1
    g(f"v_max_f32 {mx}, {mx}, {t2}"); yield 1
    g(f"v_min_f32 {mn}, {mn}, {sp}"); yield 1
    g(f"v_mul_f32 {mx}, {lit(-LOG2E)}, {mx}"); yield 1
    g(f"v_mul_f32 {mn}, {lit(LOG2E)}, {mn}"); yield 1
    if packed:
        for i in range(5):
            g(f"v_pk_fma_f32 {ep[2*i:2*i+2]}, {d2[2*i:2*i+2]}, {g.s_l2e2}, {T['cc']} op_sel_hi:[1,1,0]"); yield 1
            g(f"v_pk_fma_f32 {em[2*i:2*i+2]}, {d2[2*i:2*i+2]}, {g.s_l2e2}, {T['cc']} op_sel:[0,0,1] op_sel_hi:[1,1,1] neg_lo:[1,0,0] neg_hi:[1,0,0]"); yield 1
    else:
        for i in range(10):
            g(f"v_fma_f32 {ep[i]}, {d2[i]}, {g.s_l2e}, {mx}"); yield 1
            g(f"v_fma_f32 {em[i]}, {d2[i]}, -{g.s_l2e}, {mn}"); yield 1
    for i in range(10):
        g(f"v_exp_f32 {ep[i]}, {ep[i]}"); yield 2
        g(f"v_exp_f32 {em[i]}, {em[i]}"); yield 2
    if packed:
        for e, k in ((ep, 0), (em, 4)):
            g(f"v_pk_add_f32 {d2[k:k+2]}, {e[0:2]}, {e[2:4]}"); yield 1
            g(f"v_pk_add_f32 {d2[k+2:k+4]}, {e[4:6]}, {e[6:8]}"); yield 1
        for e, k in ((ep, 0), (em, 4)):
            g(f"v_pk_add_f32 {d2[k:k+2]}, {d2[k:k+2]}, {e[8:10]}"); yield 1
        for e, k in ((ep, 0), (em, 4)):
            g(f"v_pk_add_f32 {d2[k:k+2]}, {d2[k:k+2]}, {d2[k+2:k+4]}"); yield 1
        g(f"v_add_f32 {sp}, {d2[0]}, {d2[1]}"); yield 1
        g(f"v_add_f32 {sm_}, {d2[4]}, {d2[5]}"); yield 1
    else:
        g(f"v_add_f32 {sp}, {ep[0]}, {ep[1]}"); yield 1
        g(f"v_add_f32 {sm_}, {em[0]}, {em[1]}"); yield 1
        for i in range(2, 10):
            g(f"v_add_f32 {sp}, {sp}, {ep[i]}"); yield 1
            g(f"v_add_f32 {sm_}, {sm_}, {em[i]}"); yield 1
    g(f"v_mov_b32 {t2}, {sp}"); yield 1
    g(f"v_mov_b32 {mx}, {sm_}"); yield 1
    g("s_nop 0"); yield 1
    g(f"v_permlane32_swap_b32 {t2}, {sp}"); yield 1
    g(f"v_permlane32_swap_b32 {mx}, {sm_}"); yield 1
    g(f"v_add_f32 {sp}, {sp}, {t2}"); yield 1
    g(f"v_add_f32 {sm_}, {sm_}, {mx}"); yield 1
    g(f"v_rcp_f32 {d2[0]}, {sp}"); yield 2
    g(f"v_rcp_f32 {d2[2]}, {sm_}"); yield 2
    if packed:
        for i in range(5):
            g(f"v_pk_mul_f32 {ep[2*i:2*i+2]}, {ep[2*i:2*i+2]}, {d2[0:2]} op_sel_hi:[1,0]"); yield 1
            g(f"v_pk_mul_f32 {em[2*i:2*i+2]}, {em[2*i:2*i+2]}, {d2[2:4]} op_sel_hi:[1,0]"); yield 1
    else:
        for i in range(10):
            g(f"v_mul_f32 {ep[i]}, {ep[i]}, {d2[0]}"); yield 1
            g(f"v_mul_f32 {em[i]}, {em[i]}, {d2[2]}"); yield 1
    for i in range(5):
        g(f"v_cvt_pk_bf16_f32 {outp[i]}, {ep[2*i]}, {ep[2*i+1]}"); yield 1
        g(f"v_cvt_pk_bf16_f32 {outm[i]}, {em[2*i]}, {em[2*i+1]}"); yield 1

def k_epilogue_gen(g, pi, Aq, Ak, pq, T, KV, packed):
    pk, fo = T["pk"], T["fo"]
    ro = pi * 32 * RS
    for q in range(8):
        g(f"v_cvt_pk_bf16_f32 {pk[q]}, {Ak[2*q]}, {Ak[2*q+1]}"); yield 1
    sgen = softmax_gen(g, None, pk, fo[0:5], fo[6:11], T, packed, skip_pack=True)
    yield next(sgen); yield next(sgen)
    next(sgen)
    for q in range(8):
        g(f"v_cvt_pk_bf16_f32 {pq[q]}, {Aq[2*q]}, {Aq[2*q+1]}"); yield 1
    vc = T["fa"][0:2]
    g(f"v_cndmask_b32_e64 {vc[0]}, {g.v_one}, {pq[4]}, {g.s_hi}"); yield 1
    g(f"v_cndmask_b32_e64 {vc[1]}, 0, {pq[5]}, {g.s_hi}"); yield 1
    g(f"ds_write_b64 {g.v_vA}, {pq[6:8]} offset:{ro}"); yield 1
    g(f"ds_write_b64 {g.v_vA}, {pk[6:8]} offset:{ro + 16}"); yield 1
    g(f"ds_write_b64 {g.v_vC}, {vc} offset:{ro}"); yield 1
    yield from sgen
    g(f"ds_write_b128 {g.v_img}, {fo[0:4]} offset:{ro}"); yield 1
    g(f"ds_write_b32 {g.v_img}, {fo[4]} offset:{ro + 16}"); yield 1
    g(f"ds_write_b128 {g.v_img}, {fo[6:10]} offset:{ro + 64}"); yield 1
    g(f"ds_write_b32 {g.v_img}, {fo[10]} offset:{ro + 80}"); yield 1
    mk = g.lg_mark()
    yield "gap"
    fa = T["fa"]; fb = T["fb"]
    g.wait(lg=mk); yield 1
    ms = []
    for ks, f in ((0, fa), (1, fb)):
        rb = (32 * pi + 16 * ks) * RS
        for tile in range(3):
            for t in range(2):
                g(f"ds_read_b64_tr_b16 {f[4*tile+2*t:4*tile+2*t+2]}, {g.v_T} offset:{rb + 4*t*RS + 64*tile}"); yield 1
        ms.append(g.lg_mark())
    for ks, f in ((0, fa), (1, fb)):
        g.wait(lg=ms[ks]); yield 1
        first = (pi == 0 and ks == 0)
        g(f"v_mfma_f32_32x32x16_bf16 {KV[0]}, {f[0:4]}, {f[8:12]}, {0 if first else KV[0]}"); yield "mfma"
        g(f"v_mfma_f32_32x32x16_bf16 {KV[1]}, {f[4:8]}, {f[8:12]}, {0 if first else KV[1]}"); yield "mfma"

def p1(g):
    V = g.V; a = g.s_a; t0, t1 = g.v_t0, g.v_t1; sc = g.sc
    import ph_s0
    g.c("==== P1 ====")
    g.stamp(8)
    ring = g.vv("ring", 4 * NR, 4)
    acc = [[g.vv("aq0", 16, 4), g.vv("ak0", 16, 4)], [g.vv("aq1", 16, 4), g.vv("ak1", 16, 4)]]
    fr = [g.vv("fr0", 8, 4), g.vv("fr1", 8, 4), g.vv("fr2", 8, 4)]
    pq = [g.vv("pq0", 8, 4), g.vv("pq1", 8, 4)]
    T = dict(d2=g.vv("d2", 16, 4), ep=g.vv("ep", 10, 2), em=g.vv("em", 10, 2), pk=g.vv("pk", 8, 4), fo=g.vv("fo", 12, 4),
             fa=g.vv("fa", 12, 4), cc=g.vv("cc", 2, 2), sp=g.vv("sp"), sm=g.vv("sm"), t2=g.vv("t2"))
    T["fb"] = T["d2"][0:12]
    T["mx"], T["mn"] = T["cc"][0], T["cc"][1]
    KV = [acc[0][0], acc[0][1]]
    pre = g.vv("pre", 3, 1); q_dbg = g.S.alloc("q_dbg", 4)
    g.srd(q_dbg, g.p_in[10], g.p_in[11], 256)
    sx = g.sv("sx")
    g(f"s_mul_i32 {sx}, {g.s_tb}, {XSZ}\ns_mul_i32 {a[0]}, {g.s_w}, 81920\ns_add_u32 {sx}, {sx}, {a[0]}\ns_add_u32 {sx}, {sx}, {g.s_xn}")
    marks = {}
    def xload(s):
        if s % 4 == 0 and s > 0: g(f"s_add_u32 {sx}, {sx}, 4096")
        r = ring[4 * (s % NR):4 * (s % NR) + 4]
        g(f"buffer_load_dwordx4 {r}, {g.v_x16}, {g.q_ws}, {sx} offen offset:{1024 * (s % 4)} sc1")
        marks[s] = g.vm_mark()
    def aload(s, tile):
        b = s % 40; f = fr[s % 3]; hi = 1 if b >= 32 else 0; off = (b - 32 * hi) * 2048
        ad = (g.v_Aq, g.v_Ak)[tile]
        for t in range(2):
            g(f"ds_read_b64_tr_b16 {f[4*tile+2*t:4*tile+2*t+2]}, {ad[hi]} offset:{off + 512*t}")
    import os
    PT = os.environ.get("PT", "kvld")
    def pretouch(cond=True):
        sk = g.label("pt")
        if cond: g(f"s_cmp_lg_u32 {g.s_layer}, 0\ns_cbranch_scc1 {sk}")
        g(f"s_lshl_b32 {a[0]}, {g.s_j}, 2\ns_add_u32 {a[0]}, {a[0]}, {g.s_w}\ns_mul_i32 {a[0]}, {a[0]}, {21*128}\ns_mul_i32 {a[1]}, {g.s_tb}, {LOCSZ}\ns_add_u32 {a[0]}, {a[0]}, {a[1]}\ns_add_u32 {a[0]}, {a[0]}, {LOC}")
        g(f"v_lshlrev_b32 {t0}, 7, {g.v_lane}\nv_cmp_gt_u32 vcc, 21, {g.v_lane}\nv_mov_b32 {t1}, {BIG}\nv_cndmask_b32 {t0}, {t1}, {t0}, vcc")
        if PT.endswith("ld"): g.lines.append(f"buffer_load_dword {pre[0]}, {t0}, {g.q_ws}, {a[0]} offen")
        else: g.lines.append(f"buffer_store_dword {t1}, {t0}, {g.q_ws}, {a[0]} offen")
        g(f"{sk}:")
    if g.fast and PT.startswith("start"): pretouch()
    for s in range(NR): xload(s)
    g("s_barrier")
    g.stamp(19)
    am = {}
    for s in (0, 1):
        aload(s, 0); aload(s, 1); am[s] = g.lg_mark()
    filler = None; hold = 0
    def fill(budget):
        nonlocal filler, hold
        if filler is None: return
        if hold > 0:
            hold -= 1; return
        while budget > 0:
            try: r = next(filler)
            except StopIteration:
                filler = None; return
            if r == "gap": hold = 2; return
            if r == "mfma": budget -= 3
            else: budget -= r
    mpre_ = {}
    def step(s, hooks=None):
        nonlocal filler
        pi = s // 40
        if s == 40:
            g.stamp(18)
        if s == 41: filler = k_epilogue_gen(g, 0, acc[0][0], acc[0][1], pq[0], T, KV, packed=False)
        if s == 55:
            g(f"v_lshlrev_b32 {t0}, 2, {g.v_lane}")
            g(f"buffer_load_dword {pre[0]}, {t0}, {q_dbg}, 0 offen sc1")
        if s == 72:
            g(f"v_lshlrev_b32 {t0}, 6, {g.v_lane}\nv_add_u32 {t0}, {WOFL}, {t0}")
            g(f"buffer_load_dword {pre[1]}, {t0}, {g.q_ws}, 0 offen sc1")
            g(f"v_min_u32 {t0}, 15, {g.v_lane}\nv_lshlrev_b32 {t0}, 6, {t0}\nv_add_u32 {t0}, {WOFL + 4096}, {t0}")
            g(f"buffer_load_dword {pre[2]}, {t0}, {g.q_ws}, 0 offen sc1")
            mpre_[0] = g.vm_mark()
        if hooks: hooks[0](s)
        g.wait(vm=marks[s], lg=am[s])
        b = ring[4 * (s % NR):4 * (s % NR) + 4]; f = fr[s % 3]
        c0 = (s % 40 == 0)
        g(f"v_mfma_f32_32x32x16_bf16 {acc[pi][0]}, {f[0:4]}, {b}, {0 if c0 else acc[pi][0]}")
        nA = 6
        if s + 2 < 80: aload(s + 2, 0); nA -= 2
        if s >= 1 and s - 1 + NR < 80: xload(s - 1 + NR); nA -= 1
        if hooks: hooks[1](s)
        fill(nA)
        g(f"v_mfma_f32_32x32x16_bf16 {acc[pi][1]}, {f[4:8]}, {b}, {0 if c0 else acc[pi][1]}")
        nB = 5
        if s + 2 < 80:
            aload(s + 2, 1); nB -= 2; am[s + 2] = g.lg_mark()
        if hooks: hooks[2](s)
        fill(nB)
    Q0, LAGS = 9, 8
    def stream_setup():
        L = g.v_lane; e = T["ep"]
        R = dict(up=e[0], dn=e[1], src=e[2], wd0=e[3], wd1=e[4], cc=e[5], q_w=g.S.alloc("q_ws2", 4), si=g.S.alloc("si2", 2))
        tl, p8, pc = e[6], e[7], e[8]
        g.srd(R["q_w"], g.p_in[2], g.p_in[3], 640 * 3840)
        g(f"v_bfe_u32 {tl}, {L}, 3, 1\nv_and_b32 {p8}, 7, {L}\nv_lshrrev_b32 {R['cc']}, 4, {L}")
        g(f"v_mul_u32_u24 {pc}, 1280, {tl}\nv_lshl_add_u32 {pc}, {p8}, 3, {pc}")
        g(f"v_lshlrev_b32 {t1}, 4, {tl}\nv_lshl_add_u32 {t1}, {p8}, 3, {t1}\nv_add_u32 {t1}, 2520, {t1}")
        g(f"v_cmp_lt_u32 vcc, 4, {p8}\nv_cndmask_b32 {pc}, {pc}, {t1}, vcc")
        g(f"s_mul_i32 {a[0]}, {g.s_j}, 40\nv_add_u32 {pc}, {a[0]}, {pc}")
        g(f"v_mul_u32_u24 {t0}, 3840, {R['cc']}\nv_add_u32 {R['up']}, {t0}, {pc}\nv_add_u32 {R['up']}, {(4*Q0 - 2)*3840}, {R['up']}")
        g(f"v_sub_u32 {R['dn']}, {pc}, {t0}\nv_add_u32 {R['dn']}, {(120 - 4*(Q0 + 1))*3840}, {R['dn']}")
        g(f"s_and_b32 {a[0]}, {g.s_w}, 1\nv_xor_b32 {tl}, {a[0]}, {tl}\nv_lshlrev_b32 {t0}, 10, {R['cc']}\nv_lshl_add_u32 {t0}, {p8}, 3, {t0}\nv_lshl_add_u32 {t0}, {tl}, 6, {t0}")
        g(f"s_lshl_b32 {a[0]}, {g.s_w}, 8\nv_add_u32 {R['wd0']}, {a[0]}, {t0}\nv_add_u32 {R['wd1']}, 0x10000, {R['wd0']}")
        g(f"s_mul_i32 {R['si'][0]}, {g.s_w}, {2*80*3840}\ns_add_u32 {R['si'][1]}, {R['si'][0]}, {80*3840}")
        return R
    def stream_hooks(R):
        slots = [T["fo"][2*k:2*k+2] for k in range(6)] + [T["fa"][2*k:2*k+2] for k in range(4)]
        gm = {}; wm = {}
        NL = 2 * (20 - Q0)
        def h0(s):
            if s in (16, 24, 32):
                g.wait(lg=wm[min(s - 1, NL - 1 + LAGS)])
                g("s_barrier")
        def h1(s):
            if s < NL:
                q, t = Q0 + (s >> 1), s & 1
                if t == 0 and q == 10:
                    g(f"v_add_u32 {R['up']}, {4*3840}, {R['up']}\nv_cmp_gt_u32 vcc, 2, {R['cc']}\nv_cndmask_b32 {R['src']}, {R['dn']}, {R['up']}, vcc")
                if t == 0 and q > 10: g(f"v_subrev_u32 {R['dn']}, {4*3840}, {R['dn']}")
                ad = R["up"] if q < 10 else (R["src"] if q == 10 else R["dn"])
                g(f"buffer_load_dwordx2 {slots[s % 10]}, {ad}, {R['q_w']}, {R['si'][t]} offen")
                gm[s] = g.vm_mark()
        def h2(s):
            n = s - LAGS
            if 0 <= n < NL:
                q, t = Q0 + (n >> 1), n & 1
                g.wait(vm=gm[n])
                g(f"ds_write_b64 {R['wd1'] if q >= 16 else R['wd0']}, {slots[n % 10]} offset:{(q % 16) * 4096 + 128 * t}")
                wm[s] = g.lg_mark()
        return (h0, h1, h2)
    if ph_s0.STREAM:
        l1 = g.label("p0n"); l2 = g.label("p0j")
        vm0, lg0, marks0, am0 = list(g.vm), list(g.lg), dict(marks), dict(am)
        g(f"s_cmp_lg_u32 {g.s_layer}, 0\ns_cbranch_scc1 {l1}")
        R = stream_setup()
        hk = stream_hooks(R)
        for s in range(40): step(s, hk)
        g.S.free(R["q_w"], R["si"])
        g(f"s_branch {l2}\n{l1}:")
        g.vm, g.lg = vm0, lg0; marks.clear(); marks.update(marks0); am.clear(); am.update(am0)
        for s in range(40): step(s)
        g(f"{l2}:")
    else:
        for s in range(40): step(s)
    for s in range(40, 80): step(s)
    mpre = mpre_[0]
    if filler is not None: drain(filler)
    g.stamp(9)
    wsetup, wo_gen, tab_gen, g.wo_sb = ph_s0.wo_loader(g)
    g.wo_gen = wo_gen
    sk = g.label("wo")
    g(f"s_cmp_lg_u32 {g.s_layer}, 0\ns_cbranch_scc1 {sk}")
    vm0 = list(g.vm)
    wo_ready(g, pre, mpre)
    g.vm = vm0
    g.stamp(14)
    wsetup()
    g(f"{sk}:")
    if g.fast and PT.startswith("p1end"): pretouch()
    z_poison(g)
    def dual(make, extra, n, tail0=None, tail1=None, head0=None):
        l1 = g.label("d1"); l2 = g.label("d2")
        lg0 = list(g.lg); vm0 = list(g.vm)
        g(f"s_cmp_lg_u32 {g.s_layer}, 0\ns_cbranch_scc1 {l1}")
        if head0: head0()
        real = g.lines; g.lines = []
        drain(make()); body = g.lines; g.lines = real
        step = len(body) / (n + 1); k = 0
        for i, l in enumerate(body):
            g.lines.append(l)
            if k < n and i + 1 >= (k + 1) * step and not l.startswith(("v_cmp", "s_cmp")):
                next(extra); k += 1
        while k < n: next(extra); k += 1
        if tail0: tail0()
        g(f"s_branch {l2}\n{l1}:")
        g.lg = lg0; g.vm = vm0
        drain(make())
        if tail1: tail1()
        g(f"{l2}:")
    def kepi1():
        yield from k_epilogue_gen(g, 1, acc[1][0], acc[1][1], pq[1], T, KV, packed=True)
    def slabs():
        g(f"s_mov_b64 {g.s_ex}, exec\ns_mov_b32 exec_lo, 0x00ffffff\ns_mov_b32 exec_hi, 0x00ffffff")
        for sg in range(2):
            for i in (0, 2):
                for jj in range(4):
                    g(f"ds_write_b32 {g.v_K}, {KV[sg][4*i+jj]} offset:{(((i>>1)*2 + sg)*10 + jj)*96}")
        g(f"s_mov_b32 exec_hi, 0")
        for sg in range(2):
            for i in (1, 3):
                for jj in range(2):
                    g(f"ds_write_b32 {g.v_K}, {KV[sg][4*i+jj]} offset:{(((i>>1)*2 + sg)*10 + 8 + jj)*96}")
        g(f"s_mov_b64 exec, {g.s_ex}")
    NW1, NW2, NW3 = [int(x) for x in os.environ.get('NW', '24,5,11').split(',')]
    dual(kepi1, wo_gen, NW1)
    g.stamp(16)
    slabs()
    g.wait0(vm=False)
    g("s_barrier")
    g.stamp(17)
    pub = T["d2"]
    g(f"v_lshlrev_b32 {t0}, 4, v0\nv_add_u32 {t1}, {L_KVS}, {t0}")
    for w in range(4): g(f"ds_read_b128 {pub[4*w:4*w+4]}, {t1} offset:{IMG*w}")
    skv = g.sv("skv")
    g(f"s_lshl_b32 {skv}, {g.s_j}, 14\ns_add_u32 {skv}, {skv}, {g.s_kvb}")
    g(f"s_lshl_b32 {a[0]}, {g.s_tb}, 11\ns_add_u32 {a[0]}, {a[0]}, {skv}")
    vkv = g.vv("vkv")
    g(f"v_lshrrev_b32 {vkv}, 1, {t0}")
    g(f"v_cmp_gt_u32 vcc, 240, v0\nv_mov_b32 {t1}, {BIG}\nv_cndmask_b32 {vkv}, {t1}, {vkv}, vcc")
    g.wait0(vm=False)
    for w in range(1, 4):
        g(f"v_pk_add_f32 {pub[0:2]}, {pub[0:2]}, {pub[4*w:4*w+2]}\nv_pk_add_f32 {pub[2:4]}, {pub[2:4]}, {pub[4*w+2:4*w+4]}")
    g(f"v_cvt_pk_bf16_f32 {pub[4]}, {pub[0]}, {pub[1]}\nv_cvt_pk_bf16_f32 {pub[5]}, {pub[2]}, {pub[3]}")
    l1 = g.label("zw"); l2 = g.label("zw")
    g(f"s_cmp_lg_u32 {g.s_layer}, 0\ns_cbranch_scc1 {l1}")
    g.lines.append(f"s_waitcnt vmcnt({NW1})")
    g(f"s_branch {l2}\n{l1}:")
    g.lines.append("s_waitcnt vmcnt(0)")
    g(f"{l2}:")
    g.lines.append(f"buffer_store_dwordx2 {pub[4:6]}, {vkv}, {g.q_ws}, {a[0]} offen sc1")
    g.stamp(10)
    if g.fast and PT.startswith("pub"): pretouch()
    fq = [acc[1][0][0:12], acc[1][1][0:12]]
    gd = ring[0:16]
    g.vm = []
    def gather():
        g(f"s_mov_b32 {a[4]}, {skv}")
        for tb in range(8):
            g.lines.append(f"buffer_load_dwordx2 {gd[2*tb:2*tb+2]}, {vkv}, {g.q_ws}, {a[4]} offen sc1")
            if tb < 7: g(f"s_add_u32 {a[4]}, {a[4]}, 2048")
    import itertools
    def qs(pi):
        def mk():
            g(f"v_mov_b32 {fq[pi][10]}, 0\nv_mov_b32 {fq[pi][11]}, 0")
            yield from q_softmax(g, pq[pi], fq[pi], T)
        return mk
    dual(qs(0), itertools.chain(tab_gen, wo_gen), 10 + NW2)
    gather()
    dual(qs(1), wo_gen, NW3)
    V.free(T["d2"], T["ep"], T["em"], T["pk"], T["fo"], *fr, *pq)
    ga_setup(g)
    g.stamp(11)
    lp = g.label("kvp"); dn = g.label("kvd"); ck = g.label("kvc")
    g(f"s_mov_b32 {g.s_spin}, {1 << 18}")
    g(f"s_cmp_lg_u32 {g.s_layer}, 0\ns_cbranch_scc1 {lp}")
    late = g.fast and PT.startswith("kv")
    if late: pretouch(cond=False)
    g.lines.append(f"s_waitcnt vmcnt({NW3 + (1 if late else 0)})")
    g(f"s_branch {ck}")
    g(f"{lp}:")
    g.lines.append("s_waitcnt vmcnt(0)")
    g(f"{ck}:")
    mxr = ring[16]
    g(f"v_max3_u32 {mxr}, {gd[0]}, {gd[1]}, {gd[2]}")
    for q in range(3, 15, 2): g(f"v_max3_u32 {mxr}, {mxr}, {gd[q]}, {gd[q+1]}")
    g(f"v_max_u32 {mxr}, {mxr}, {gd[15]}\nv_cmp_eq_u32 vcc, -1, {mxr}\ns_cbranch_vccz {dn}")
    gather()
    g(f"s_sub_u32 {g.s_spin}, {g.s_spin}, 1\ns_cmp_lg_u32 {g.s_spin}, 0\ns_cbranch_scc1 {lp}")
    g.lines.append("s_waitcnt vmcnt(0)")
    g(f"{dn}:")
    g.stamp(12)
    sv = ring[20:28]; uv = ring[28:32]
    g(f"v_lshlrev_b32 {sv[0]}, 16, {gd[0]}\nv_and_b32 {sv[1]}, 0xffff0000, {gd[0]}\nv_lshlrev_b32 {sv[2]}, 16, {gd[1]}\nv_and_b32 {sv[3]}, 0xffff0000, {gd[1]}")
    for tb in range(1, 8):
        g(f"v_lshlrev_b32 {uv[0]}, 16, {gd[2*tb]}\nv_and_b32 {uv[1]}, 0xffff0000, {gd[2*tb]}\nv_lshlrev_b32 {uv[2]}, 16, {gd[2*tb+1]}\nv_and_b32 {uv[3]}, 0xffff0000, {gd[2*tb+1]}")
        g(f"v_pk_add_f32 {sv[0:2]}, {sv[0:2]}, {uv[0:2]}\nv_pk_add_f32 {sv[2:4]}, {sv[2:4]}, {uv[2:4]}")
    gd = ring[32:40]
    g(f"v_cvt_pk_bf16_f32 {gd[4]}, {sv[0]}, {sv[1]}\nv_cvt_pk_bf16_f32 {gd[5]}, {sv[2]}, {sv[3]}")
    g(f"ds_write_b16 {g.v_ga[0]}, {gd[4]}\nds_write_b16_d16_hi {g.v_ga[1]}, {gd[4]}\nds_write_b16 {g.v_ga[2]}, {gd[5]}\nds_write_b16_d16_hi {g.v_ga[3]}, {gd[5]}")
    g(f"ds_write_b16 {g.v_ga3}, {gd[4]}")
    V.free(vkv)
    V.free(g.v_ga, g.v_ga3)
    g.wait0(vm=False)
    g("s_barrier")
    g.stamp(30) if g.fine else None
    ka = T["fa"]
    g(f"v_and_b32 {t0}, 31, {g.v_lane}\nv_mul_u32_u24 {t0}, 96, {t0}\nv_lshrrev_b32 {t1}, 5, {g.v_lane}\nv_mul_u32_u24 {t1}, 48, {t1}\nv_add_u32 {t0}, {t0}, {t1}\nv_add_u32 {t0}, {L_KVA}, {t0}")
    for st in range(3): g(f"ds_read_b128 {ka[4*st:4*st+4]}, {t0} offset:{16*st}")
    vo = T["t2"]; vt = T["sm"]
    g(f"v_bfe_u32 {t0}, {g.v_lane}, 4, 1\nv_mul_u32_u24 {vo}, 20480, {t0}\nv_and_b32 {t0}, 15, {g.v_lane}")
    g(f"v_lshl_add_u32 {vt}, {t0}, 3, {vo}\nv_lshl_add_u32 {vo}, {t0}, 4, {vo}\nv_lshrrev_b32 {t1}, 5, {g.v_lane}\nv_lshl_add_u32 {vo}, {t1}, 8, {vo}")
    g(f"s_mul_i32 {a[0]}, {g.s_tb}, {LOCSZ}\ns_add_u32 {a[0]}, {a[0]}, {g.s_ob}\ns_mul_i32 {a[1]}, {g.s_w}, {4*20480}\ns_add_u32 {a[0]}, {a[0]}, {a[1]}")
    g(f"s_lshl_b32 {a[1]}, {g.s_j}, 7\ns_add_u32 {a[1]}, {a[1]}, {a[0]}\ns_add_u32 {a[1]}, {a[1]}, 16384")
    g(f"s_lshr_b32 {a[2]}, {g.s_j}, 1\ns_lshl_b32 {a[2]}, {a[2]}, 10\ns_add_u32 {a[0]}, {a[0]}, {a[2]}\ns_and_b32 {a[2]}, {g.s_j}, 1\ns_lshl_b32 {a[2]}, {a[2]}, 9\ns_add_u32 {a[0]}, {a[0]}, {a[2]}")
    g.wait0(vm=False)
    D3 = [acc[0][0], acc[0][1]]
    for pi in range(2):
        for st in range(3):
            g(f"v_mfma_f32_32x32x16_bf16 {D3[pi]}, {ka[4*st:4*st+4]}, {fq[pi][4*st:4*st+4]}, {0 if st == 0 else D3[pi]}")
    for pi in range(2):
        d = D3[pi]
        g(f"v_add_f32 {T['cc'][0]}, {lit(1e-6)}, {d[10]}\nv_rcp_f32 {T['cc'][0]}, {T['cc'][0]}")
        for i in range(5):
            g(f"v_pk_mul_f32 {d[2*i:2*i+2]}, {d[2*i:2*i+2]}, {T['cc']} op_sel_hi:[1,0]")
        op = fq[pi]
        for i in range(5): g(f"v_cvt_pk_bf16_f32 {op[i]}, {d[2*i]}, {d[2*i+1]}")
        if pi == 1: g(f"s_add_u32 {a[0]}, {a[0]}, {2*20480}\ns_add_u32 {a[1]}, {a[1]}, {2*20480}")
        g(f"buffer_store_dwordx4 {op[0:4]}, {vo}, {g.q_ws}, {a[0]} offen{sc}")
        g(f"v_mov_b32 {op[6]}, {op[4]}\nv_mov_b32 {op[7]}, {op[4]}\nv_permlane32_swap_b32 {op[6]}, {op[7]}")
        g(f"s_mov_b64 {g.s_ex}, exec\ns_mov_b32 exec_hi, 0")
        g(f"buffer_store_dwordx2 {op[6:8]}, {vt}, {g.q_ws}, {a[1]} offen{sc}")
        g(f"s_mov_b64 exec, {g.s_ex}")
    g.stamp(13)
    V.free(ring, *acc[0], *acc[1], T["fa"], T["cc"], T["sp"], T["sm"], T["t2"])
    g.S.free(sx, skv, q_dbg); V.free(pre)

def q_softmax(g, pq, out, T):
    yield from softmax_gen(g, None, pq, out[0:5], out[5:10], T, packed=True, skip_pack=True)

def init_wait(g, cond=True):
    sk = g.label("iw"); t0 = g.v_t0
    if cond: g(f"s_cmp_lg_u32 {g.s_layer}, 0\ns_cbranch_scc1 {sk}")
    q = g.S.alloc("q_dbg", 4); pv = g.vv("pv"); pa = g.vv("pa")
    g.srd(q, g.p_in[10], g.p_in[11], 256)
    g(f"v_lshlrev_b32 {pa}, 2, {g.v_lane}")
    lp = g.label("iwp"); dn = g.label("iwd")
    g(f"s_mov_b32 {g.s_spin}, {1 << 20}")
    g(f"{lp}:")
    g.lines.append(f"buffer_load_dword {pv}, {pa}, {q}, 0 offen sc1")
    g.lines.append("s_waitcnt vmcnt(0)")
    g(f"v_subrev_u32 {t0}, 0x01010101, {pv}\nv_bfi_b32 {t0}, {pv}, 0, {t0}\nv_and_b32 {t0}, 0x80808080, {t0}")
    g(f"v_cmp_ne_u32 vcc, 0, {t0}\ns_cbranch_vccz {dn}")
    g(f"s_sub_u32 {g.s_spin}, {g.s_spin}, 1\ns_cmp_lg_u32 {g.s_spin}, 0\ns_cbranch_scc1 {lp}")
    g(f"{dn}:")
    g.S.free(q); g.V.free(pv, pa)
    g(f"{sk}:")

def wo_ready(g, pre, mpre):
    t0 = g.v_t0
    ok = g.label("wok"); slow = g.label("wsl")
    g.wait(vm=mpre)
    pv = pre[0]
    g(f"v_subrev_u32 {t0}, 0x01010101, {pv}\nv_bfi_b32 {t0}, {pv}, 0, {t0}\nv_and_b32 {t0}, 0x80808080, {t0}")
    g(f"v_cmp_ne_u32 vcc, 0, {t0}\ns_cbranch_vccnz {slow}")
    g(f"v_and_b32 {t0}, {pre[1]}, {pre[2]}\nv_cmp_ne_u32 vcc, 1, {t0}\ns_cbranch_vccz {ok}")
    g(f"{slow}:")
    init_wait(g, cond=False)
    pa = g.vv("pa", 2, 1); pv = pre[1:3]
    g(f"v_lshlrev_b32 {pa[0]}, 6, {g.v_lane}\nv_add_u32 {pa[0]}, {WOFL}, {pa[0]}")
    g(f"v_min_u32 {pa[1]}, 15, {g.v_lane}\nv_lshlrev_b32 {pa[1]}, 6, {pa[1]}\nv_add_u32 {pa[1]}, {WOFL + 4096}, {pa[1]}")
    lp = g.label("wrp"); dn = g.label("wrd")
    g(f"s_mov_b32 {g.s_spin}, {1 << 20}")
    g(f"{lp}:")
    for q in range(2): g.lines.append(f"buffer_load_dword {pv[q]}, {pa[q]}, {g.q_ws}, 0 offen sc1")
    g.lines.append("s_waitcnt vmcnt(0)")
    g(f"v_and_b32 {t0}, {pv[0]}, {pv[1]}\nv_cmp_ne_u32 vcc, 1, {t0}\ns_cbranch_vccz {dn}")
    g(f"s_sub_u32 {g.s_spin}, {g.s_spin}, 1\ns_cmp_lg_u32 {g.s_spin}, 0\ns_cbranch_scc1 {lp}")
    g(f"{dn}:")
    g.V.free(pa)
    g(f"{ok}:")

def z_poison(g):
    a = g.s_a; t0 = g.v_t0
    sk = g.label("zp")
    pz = g.vv("pz", 4, 4)
    g(f"s_cmp_gt_u32 {g.s_j}, 20\ns_cbranch_scc1 {sk}")
    for q in range(4): g(f"v_mov_b32 {pz[q]}, -1")
    g(f"s_mul_i32 {a[0]}, {g.s_tb}, {ZSZ}\ns_add_u32 {a[0]}, {a[0]}, {g.s_zb}\ns_lshl_b32 {a[1]}, {g.s_j}, 14\ns_add_u32 {a[0]}, {a[0]}, {a[1]}\ns_lshl_b32 {a[1]}, {g.s_w}, 12\ns_add_u32 {a[0]}, {a[0]}, {a[1]}")
    for q in range(4):
        g.lines.append(f"buffer_store_dwordx4 {pz}, {g.v_x16}, {g.q_ws}, {a[0]} offen offset:{1024*q} sc1")
    g(f"{sk}:")
    g.V.free(pz)
```

```python
from emit import *
from maps import *
from gen_main import lit
from ph_p2 import swap_quad, first_layer
import ph_s0, os
BIG = 0x7ff00000
L_EX = L_SCR
L_R = L_SCR + 16384
L_ST2 = L_SCR + 20480
L_OUT = L_SCR

def b1(g):
    a = g.s_a; t0, t1 = g.v_t0, g.v_t1; L = g.v_lane; V = g.V
    g.c("==== B1 ====")
    n15, gq = g.vv("n15"), g.vv("gq")
    va, vs = g.vv("va"), g.vv("vs")
    sg, ss = g.sv("sg"), g.sv("ss")
    def setup():
        first_layer(g, lambda: ph_s0.s2_fix(g))
        g(f"v_and_b32 {n15}, 15, {L}\nv_lshrrev_b32 {gq}, 4, {L}")
        g(f"s_sub_u32 {a[0]}, {g.s_j}, 1\ns_cmp_eq_u32 {g.s_j}, 0\ns_cselect_b32 {a[0]}, 0, {a[0]}")
        g(f"s_cmp_ge_u32 {g.s_j}, 2\ns_cselect_b32 {a[1]}, 1, 0\ns_cmp_eq_u32 {g.s_j}, 1\ns_cselect_b32 {a[3]}, 1, 0")
        g(f"v_lshrrev_b32 {t0}, 1, {gq}\nv_mul_u32_u24 {t0}, {a[1]}, {t0}\nv_add_u32 {t0}, {a[3]}, {t0}\nv_lshlrev_b32 {va}, 2, {t0}")
        g(f"v_and_b32 {t0}, 1, {gq}\nv_lshl_add_u32 {va}, {t0}, 13, {va}")
        g(f"s_lshl_b32 {a[0]}, {a[0]}, 14\ns_lshl_b32 {a[2]}, {g.s_w}, 9\ns_add_u32 {a[0]}, {a[0]}, {a[2]}\nv_lshl_add_u32 {va}, {n15}, 3, {va}\nv_add_u32 {va}, {a[0]}, {va}")
        g(f"s_lshl_b32 {a[2]}, {g.s_w}, 9\nv_lshlrev_b32 {vs}, 3, {L}\nv_add_u32 {vs}, {a[2]}, {vs}")
        g(f"s_mul_i32 {sg}, {g.s_tb}, {XSZ}\ns_add_u32 {sg}, {sg}, {g.s_gb}\ns_mul_i32 {ss}, {g.s_tb}, {LOCSZ}\ns_add_u32 {ss}, {ss}, {g.s_stb}")
    g.local_barrier(g.fast, work=setup)
    g.stamp(23)
    if g.fast and os.environ.get("WB") == "lbg":
        sk = g.label("wb")
        g(f"s_cmp_lg_u32 {g.s_j}, 31\ns_cbranch_scc1 {sk}\ns_cmp_lg_u32 {g.s_layer}, 1\ns_cbranch_scc1 {sk}\ns_cmp_lg_u32 {g.s_w}, 3\ns_cbranch_scc1 {sk}")
        g.lines.append("buffer_wbl2 sc1")
        g(f"{sk}:")
    done = g.label("b1d")
    g(f"s_cmp_gt_u32 {g.s_j}, 20\ns_cbranch_scc1 {done}")
    g.vm = []; g.lg = []
    st = g.vv("st", 16, 4); ga = g.vv("ga", 16, 4)
    for q in range(8):
        if q == 2 or q == 4 or q == 6: g(f"s_add_u32 {ss}, {ss}, 4096")
        g(f"buffer_load_dwordx2 {st[2*q:2*q+2]}, {vs}, {g.q_ws}, {ss} offen offset:{2048*(q%2)} sc1")
    ms = g.vm_mark()
    gm = []
    sgd = g.S.alloc("sgd", 4)
    for dd in range(4): g(f"s_add_u32 {sgd[dd]}, {sg}, {2048*dd}")
    for aa in range(4):
        for dd in range(4):
            g(f"buffer_load_dword {ga[4*aa+dd]}, {va}, {g.q_ws}, {sgd[dd]} offen offset:{128*aa} sc1")
        gm.append(g.vm_mark())
    g.S.free(sgd)
    g.wait(vm=ms)
    g.stamp(6) if g.fine else None
    for q in range(1, 8):
        g(f"v_pk_add_f32 {st[0:2]}, {st[0:2]}, {st[2*q:2*q+2]}")
    g(f"v_mul_f32 {st[0]}, {lit(1/640)}, {st[0]}\nv_mul_f32 {st[1]}, {lit(1/640)}, {st[1]}")
    g(f"v_fma_f32 {st[1]}, -{st[0]}, {st[0]}, {st[1]}\nv_add_f32 {st[1]}, {lit(1e-5)}, {st[1]}\nv_rsq_f32 {st[1]}, {st[1]}")
    g(f"s_lshl_b32 {a[2]}, {g.s_w}, 8\ns_add_u32 {a[2]}, {a[2]}, {L_R}\nv_lshlrev_b32 {t0}, 2, {L}\nv_add_u32 {t0}, {a[2]}, {t0}")
    g(f"ds_write_b32 {t0}, {st[1]}")
    g(f"v_lshlrev_b32 {t1}, 4, {gq}\nv_add_u32 {t1}, {a[2]}, {t1}")
    g.wait0(vm=False)
    rr = st
    for aa in range(4): g(f"ds_read_b128 {rr[4*aa:4*aa+4]}, {t1} offset:{64*aa}")
    mr = g.lg_mark()
    dre, dim = g.vv("dre", 16, 4), g.vv("dim", 16, 4)
    for aa in range(4):
        g.wait(vm=gm[aa])
        g(f"v_mfma_f32_16x16x32_bf16 {dre[4*aa:4*aa+4]}, {ga[4*aa:4*aa+4]}, {g.a_h2[0:4]}, 0")
        g(f"v_mfma_f32_16x16x32_bf16 {dim[4*aa:4*aa+4]}, {ga[4*aa:4*aa+4]}, {g.a_h2[4:8]}, 0")
    g.wait(lg=mr)
    ub = ga
    for aa in range(4):
        for h in range(2):
            g(f"v_pk_mul_f32 {dre[4*aa+2*h:4*aa+2*h+2]}, {dre[4*aa+2*h:4*aa+2*h+2]}, {rr[4*aa+2*h:4*aa+2*h+2]}")
            g(f"v_pk_mul_f32 {dim[4*aa+2*h:4*aa+2*h+2]}, {dim[4*aa+2*h:4*aa+2*h+2]}, {rr[4*aa+2*h:4*aa+2*h+2]}")
        g(f"v_cvt_pk_bf16_f32 {ub[4*aa]}, {dre[4*aa]}, {dre[4*aa+1]}\nv_cvt_pk_bf16_f32 {ub[4*aa+1]}, {dre[4*aa+2]}, {dre[4*aa+3]}")
        g(f"v_cvt_pk_bf16_f32 {ub[4*aa+2]}, {dim[4*aa]}, {dim[4*aa+1]}\nv_cvt_pk_bf16_f32 {ub[4*aa+3]}, {dim[4*aa+2]}, {dim[4*aa+3]}")
    g.stamp(7) if g.fine else None
    for aa in range(4):
        g(f"v_mfma_f32_16x16x32_bf16 {dre[4*aa:4*aa+4]}, {g.a_s1[0:4]}, {ub[4*aa:4*aa+4]}, 0")
        g(f"v_mfma_f32_16x16x32_bf16 {dim[4*aa:4*aa+4]}, {g.a_s1[4:8]}, {ub[4*aa:4*aa+4]}, 0")
    g(f"v_lshlrev_b32 {t0}, 12, {gq}\nv_lshl_add_u32 {t0}, {n15}, 6, {t0}\ns_lshl_b32 {a[2]}, {g.s_w}, 4\ns_add_u32 {a[2]}, {a[2]}, {L_EX}\nv_add_u32 {t0}, {a[2]}, {t0}")
    for r in range(4):
        p = st[4*r:4*r+4]
        g(f"v_cvt_pk_bf16_f32 {p[0]}, {dre[r]}, {dre[4+r]}\nv_cvt_pk_bf16_f32 {p[1]}, {dre[8+r]}, {dre[12+r]}")
        g(f"v_cvt_pk_bf16_f32 {p[2]}, {dim[r]}, {dim[4+r]}\nv_cvt_pk_bf16_f32 {p[3]}, {dim[8+r]}, {dim[12+r]}")
        g(f"ds_write_b128 {t0}, {p} offset:{1024*r}")
    g.wait0(vm=False)
    g("s_barrier")
    g(f"s_lshl_b32 {a[2]}, {g.s_w}, 12\ns_add_u32 {a[2]}, {a[2]}, {L_EX}\nv_lshlrev_b32 {t0}, 6, {n15}\nv_lshl_add_u32 {t0}, {gq}, 4, {t0}\nv_add_u32 {t0}, {a[2]}, {t0}")
    for q in range(4): g(f"ds_read_b128 {ub[4*q:4*q+4]}, {t0} offset:{1024*q}")
    g.wait0(vm=False)
    for q in range(4):
        g(f"v_mfma_f32_16x16x32_bf16 {dre[4*q:4*q+4]}, {g.a_s2[8*q:8*q+4]}, {ub[4*q:4*q+4]}, 0")
        g(f"v_mfma_f32_16x16x32_bf16 {dim[4*q:4*q+4]}, {g.a_s2[8*q+4:8*q+8]}, {ub[4*q:4*q+4]}, 0")
    g.stamp(14) if g.fine else None
    g(f"s_mul_i32 {a[2]}, {g.s_tb}, {ZSZ}\ns_add_u32 {a[2]}, {a[2]}, {g.s_zb}\ns_lshl_b32 {a[3]}, {g.s_j}, 14\ns_add_u32 {a[2]}, {a[2]}, {a[3]}")
    g(f"s_lshl_b32 {a[3]}, {g.s_w}, 12\ns_add_u32 {a[2]}, {a[2]}, {a[3]}")
    g(f"v_and_b32 {t0}, 1, {gq}\nv_lshlrev_b32 {t1}, 7, {t0}\nv_lshrrev_b32 {t0}, 1, {gq}\nv_lshl_add_u32 {t1}, {t0}, 6, {t1}\nv_lshl_add_u32 {t1}, {n15}, 2, {t1}")
    for q in range(4):
        for r in range(4):
            g(f"v_cvt_pk_bf16_f32 {st[4*q+r]}, {dre[4*q+r]}, {dim[4*q+r]}")
            g(f"buffer_store_dword {st[4*q+r]}, {t1}, {g.q_ws}, {a[2]} offen offset:{(q*4+r)*256} sc1")
    V.free(st, ga, dre, dim)
    if g.fast and os.environ.get("WB") == "b1end":
        sk = g.label("wb")
        g(f"s_cmp_lg_u32 {g.s_j}, 20\ns_cbranch_scc1 {sk}\ns_cmp_lg_u32 {g.s_layer}, 1\ns_cbranch_scc1 {sk}\ns_cmp_lg_u32 {g.s_w}, 3\ns_cbranch_scc1 {sk}")
        g.lines.append("buffer_wbl2 sc1")
        g(f"{sk}:")
    g(f"{done}:")
    V.free(n15, gq, va, vs); g.S.free(sg, ss)
    g.stamp(24)

def b2(g, lay):
    a = g.s_a; t0, t1 = g.v_t0, g.v_t1; L = g.v_lane; V = g.V; sc = g.sc
    g.c("==== B2 ====")
    n15, gq = g.vv("n15"), g.vv("gq")
    g(f"v_and_b32 {n15}, 15, {L}\nv_lshrrev_b32 {gq}, 4, {L}")
    vd, vm_ = g.vv("vd"), g.vv("vmir"); tau = g.vv("tau")
    g(f"s_lshl_b32 {a[0]}, {g.s_j}, 3\ns_add_u32 {a[0]}, {a[0]}, {g.s_tb}")
    for mir, dst in ((0, vd), (1, vm_)):
        g(f"v_lshrrev_b32 {tau}, 1, {gq}\nv_lshlrev_b32 {tau}, 7, {tau}\nv_add_u32 {tau}, {a[0]}, {tau}")
        if mir: g(f"v_sub_u32 {tau}, 256, {tau}\nv_and_b32 {tau}, 255, {tau}")
        g(f"v_and_b32 {t0}, 15, {tau}\nv_lshlrev_b32 {dst}, 10, {t0}")
        g(f"v_bfe_u32 {t0}, {tau}, 4, 2\nv_lshl_add_u32 {dst}, {t0}, 8, {dst}")
        g(f"v_bfe_u32 {t0}, {tau}, 6, 1\nv_lshl_add_u32 {dst}, {t0}, 7, {dst}\nv_lshrrev_b32 {t0}, 7, {tau}\nv_lshl_add_u32 {dst}, {t0}, 6, {dst}")
        if mir: g(f"v_and_b32 {t0}, 8, {n15}\nv_and_b32 {t1}, 7, {n15}\nv_sub_u32 {t1}, 7, {t1}\nv_add_u32 {t0}, {t0}, {t1}\nv_lshl_add_u32 {dst}, {t0}, 2, {dst}")
        else: g(f"v_lshl_add_u32 {dst}, {n15}, 2, {dst}")
        g(f"v_and_b32 {t0}, 1, {gq}\ns_mov_b32 {a[1]}, {4*ZSZ}\nv_mul_lo_u32 {t0}, {t0}, {a[1]}\nv_add_u32 {dst}, {dst}, {t0}")
    V.free(tau)
    vx = g.vv("vx")
    g(f"s_lshr_b32 {a[1]}, {g.s_j}, 1\ns_mul_i32 {a[1]}, {a[1]}, 40960\ns_and_b32 {a[2]}, {g.s_j}, 1\ns_lshl_b32 {a[2]}, {a[2]}, 8\ns_add_u32 {a[1]}, {a[1]}, {a[2]}")
    g(f"s_mul_i32 {a[2]}, {g.s_w}, 10240\ns_add_u32 {a[1]}, {a[1]}, {a[2]}\ns_mul_i32 {a[2]}, {g.s_tb}, {XSZ}\ns_add_u32 {a[1]}, {a[1]}, {a[2]}")
    g(f"v_lshlrev_b32 {vx}, 4, {n15}\nv_lshrrev_b32 {t0}, 1, {gq}\nv_lshl_add_u32 {vx}, {t0}, 9, {vx}\nv_and_b32 {t0}, 1, {gq}\nv_lshl_add_u32 {vx}, {t0}, 10, {vx}\nv_add_u32 {vx}, {a[1]}, {vx}")
    done = g.label("b2d")
    act = g.sv("act")
    g(f"s_cmp_lt_u32 {g.s_j}, 16\ns_cselect_b32 {act}, 1, 0")
    xr = g.vv("xr", 20, 4)
    sk = g.label("b2p")
    g(f"s_cmp_eq_u32 {act}, 0\ns_cbranch_scc1 {sk}")
    for q in range(5):
        g(f"s_add_u32 {a[2]}, {g.s_x1}, {2048*q}")
        g.lines.append(f"buffer_load_dwordx4 {xr[4*q:4*q+4]}, {vx}, {g.q_ws}, {a[2]} offen sc1")
    g.lines.append("s_waitcnt vmcnt(0)")
    for q in range(5): swap_quad(g, xr[4*q:4*q+4])
    g(f"{sk}:")
    g.stamp(26)
    g(f"s_cmp_eq_u32 {act}, 0\ns_cbranch_scc1 {done}")
    za = g.vv("za", 48, 4); y = g.vv("y", 40, 4)
    sb, su = g.sv("sb"), g.sv("su")
    pa = y[0:2]; pv = y[2:4]; pb = y[4]; pu = y[5]; pm = y[6]
    for q in range(2):
        g(f"v_lshrrev_b32 {pb}, 3, {L}")
        if q: g(f"v_add_u32 {pb}, 8, {pb}\nv_min_u32 {pb}, 9, {pb}")
        g(f"s_mul_i32 {sb}, {g.s_w}, 10\nv_add_u32 {pb}, {sb}, {pb}")
        g(f"v_subrev_u32 {pu}, 19, {pb}\nv_cmp_lt_u32 vcc, 20, {pb}\nv_cndmask_b32 {pu}, {pb}, {pu}, vcc")
        g(f"v_readlane_b32 {a[2]}, {vd}, 0\nv_readlane_b32 {a[3]}, {vm_}, 0")
        g(f"v_mov_b32 {pm}, {a[2]}\nv_mov_b32 {t0}, {a[3]}\nv_cndmask_b32 {pm}, {pm}, {t0}, vcc")
        g(f"v_lshl_add_u32 {pa[q]}, {pu}, 14, {pm}\nv_and_b32 {t0}, 7, {L}\ns_mov_b32 {a[2]}, {ZSZ}\nv_mul_lo_u32 {t0}, {t0}, {a[2]}\nv_add_u32 {pa[q]}, {pa[q]}, {t0}")
    oad = g.vv("oad", 10)
    skl = g.label("oa")
    g(f"s_cmp_eq_u32 {g.s_layer}, 0\ns_cbranch_scc1 {skl}")
    cod, up, dn_, bs = y[8], y[9], y[10], y[11]
    g(f"s_mul_i32 {sb}, {g.s_w}, 20\nv_lshrrev_b32 {cod}, 1, {gq}\nv_add_u32 {cod}, {sb}, {cod}")
    g(f"v_and_b32 {t0}, 1, {gq}\nv_mul_u32_u24 {bs}, 640, {t0}\nv_mul_u32_u24 {t0}, 1296, {n15}\nv_add_u32 {bs}, {bs}, {t0}\nv_add_u32 {bs}, {L_OUT}, {bs}")
    g(f"v_lshl_add_u32 {up}, {cod}, 1, {bs}\nv_subrev_u32 {up}, 4, {up}")
    g(f"v_lshlrev_b32 {t0}, 1, {cod}\nv_sub_u32 {dn_}, {bs}, {t0}\nv_add_u32 {dn_}, 240, {dn_}")
    for bl in range(10):
        if bl: g(f"v_add_u32 {up}, 4, {up}\nv_subrev_u32 {dn_}, 4, {dn_}")
        g(f"v_cmp_lt_u32 vcc, {41 - 2*bl}, {cod}\nv_cndmask_b32 {oad[bl]}, {up}, {dn_}, vcc")
    g(f"v_lshrrev_b32 {t0}, 1, {gq}\nv_mul_u32_u24 {t1}, 80, {t0}\nv_add_u32 {t1}, {t1}, {bs}\ns_cmp_eq_u32 {g.s_w}, 0\ns_cselect_b64 vcc, -1, 0\nv_cndmask_b32 {oad[0]}, {oad[0]}, {t1}, vcc")
    g(f"v_mul_u32_u24 {t1}, 156, {t0}\nv_add_u32 {t1}, {t1}, {bs}\nv_add_u32 {t1}, 2, {t1}\nv_cndmask_b32 {oad[1]}, {oad[1]}, {t1}, vcc")
    g(f"{skl}:")
    g("s_barrier")
    lq = g.label("zq"); dq = g.label("zqd")
    g(f"s_mov_b32 {g.s_spin}, {1 << 18}")
    g(f"{lq}:")
    for q in range(2): g.lines.append(f"buffer_load_dword {pv[q]}, {pa[q]}, {g.q_ws}, {g.s_zb} offen sc1")
    g.lines.append("s_waitcnt vmcnt(0)")
    g(f"v_max_u32 {t1}, {pv[0]}, {pv[1]}\nv_cmp_eq_u32 vcc, -1, {t1}\ns_cbranch_vccz {dq}")
    g(f"s_sub_u32 {g.s_spin}, {g.s_spin}, 1\ns_cmp_lg_u32 {g.s_spin}, 0\ns_cbranch_scc1 {lq}")
    g(f"{dq}:")
    g.stamp(25)
    lp = g.label("zp"); dn = g.label("zd")
    g(f"s_mov_b32 {g.s_spin}, {1 << 16}")
    g(f"{lp}:")
    for bl in range(10):
        g(f"s_mul_i32 {sb}, {g.s_w}, 10\ns_add_u32 {sb}, {sb}, {bl}")
        g(f"s_sub_u32 {su}, {sb}, 19\ns_cmp_gt_u32 {sb}, 20\ns_cselect_b32 {su}, {su}, {sb}")
        g(f"s_lshl_b32 {su}, {su}, 14\ns_add_u32 {su}, {su}, {g.s_zb}")
        g(f"s_cmp_gt_u32 {sb}, 20\ns_cselect_b64 vcc, -1, 0\nv_cndmask_b32 {t0}, {vd}, {vm_}, vcc")
        for dd in range(4):
            g.lines.append(f"buffer_load_dword {za[4*bl+dd]}, {t0}, {g.q_ws}, {su} offen sc1")
            if dd < 3: g(f"s_add_u32 {su}, {su}, {ZSZ}")
    g.stamp(15) if g.fine else None
    g.lines.append("s_waitcnt vmcnt(0)")
    g(f"v_max3_u32 {t1}, {za[0]}, {za[1]}, {za[2]}")
    for q in range(3, 39, 2): g(f"v_max3_u32 {t1}, {t1}, {za[q]}, {za[q+1]}")
    g(f"v_max_u32 {t1}, {t1}, {za[39]}\nv_cmp_eq_u32 vcc, -1, {t1}\ns_cbranch_vccz {dn}")
    g(f"s_sub_u32 {g.s_spin}, {g.s_spin}, 1\ns_cmp_lg_u32 {g.s_spin}, 0\ns_cbranch_scc1 {lp}")
    g(f"{dn}:")
    if g.fast and os.environ.get("WB", "b2") == "b2":
        sk = g.label("wb")
        g(f"s_cmp_lg_u32 {g.s_j}, 15\ns_cbranch_scc1 {sk}\ns_cmp_lg_u32 {g.s_layer}, 1\ns_cbranch_scc1 {sk}\ns_cmp_lg_u32 {g.s_w}, 3\ns_cbranch_scc1 {sk}")
        g.lines.append("buffer_wbl2 sc1")
        g(f"{sk}:")
    bc = g.vv("bc", 8, 4)
    for q in range(8): g(f"v_accvgpr_read_b32 {bc[q]}, {g.a_b2[q]}")
    cur = g.vv("cur", 4, 4)
    for bl in range(10):
        g(f"s_mul_i32 {sb}, {g.s_w}, 10\ns_add_u32 {sb}, {sb}, {bl}\ns_cmp_gt_u32 {sb}, 20\ns_cselect_b64 vcc, -1, 0")
        for q in range(4): g(f"v_cndmask_b32 {cur[q]}, {bc[q]}, {bc[4+q]}, vcc")
        g(f"v_mfma_f32_16x16x32_bf16 {y[4*bl:4*bl+4]}, {za[4*bl:4*bl+4]}, {cur}, 0")
    V.free(bc, cur)
    g.stamp(28) if g.fine else None
    xf = g.vv("xf", 4); sm, sq = g.vv("sm", 2, 2), g.vv("sq", 2, 2)
    for bl in range(10):
        g(f"v_lshlrev_b32 {xf[0]}, 16, {xr[2*bl]}\nv_and_b32 {xf[1]}, 0xffff0000, {xr[2*bl]}\nv_lshlrev_b32 {xf[2]}, 16, {xr[2*bl+1]}\nv_and_b32 {xf[3]}, 0xffff0000, {xr[2*bl+1]}")
        g(f"v_pk_add_f32 {y[4*bl:4*bl+2]}, {y[4*bl:4*bl+2]}, {xf[0:2]}\nv_pk_add_f32 {y[4*bl+2:4*bl+4]}, {y[4*bl+2:4*bl+4]}, {xf[2:4]}")
    x2p = za[0:20]
    for q in range(20): g(f"v_cvt_pk_bf16_f32 {x2p[q]}, {y[2*q]}, {y[2*q+1]}")
    last = g.label("b2last"); join = g.label("b2join")
    g(f"s_cmp_lg_u32 {g.s_layer}, 0\ns_cbranch_scc1 {last}")
    g(f"s_mov_b32 {a[2]}, {X_IN[1]}")
    for q in range(5):
        swap_quad(g, x2p[4*q:4*q+4])
        g.lines.append(f"buffer_store_dwordx4 {x2p[4*q:4*q+4]}, {vx}, {g.q_ws}, {a[2]} offen{sc}")
        g(f"s_add_u32 {a[2]}, {a[2]}, 2048")
    g(f"v_pk_add_f32 {sm}, {y[0:2]}, {y[2:4]}\nv_pk_mul_f32 {sq}, {y[0:2]}, {y[0:2]}\nv_pk_fma_f32 {sq}, {y[2:4]}, {y[2:4]}, {sq}")
    for q in range(2, 20):
        g(f"v_pk_add_f32 {sm}, {sm}, {y[2*q:2*q+2]}\nv_pk_fma_f32 {sq}, {y[2*q:2*q+2]}, {y[2*q:2*q+2]}, {sq}")
    g(f"v_add_f32 {sm[0]}, {sm[0]}, {sm[1]}\nv_add_f32 {sm[1]}, {sq[0]}, {sq[1]}")
    for x in (sm[0], sm[1]):
        g.xq16(x, t0, "v_add_f32"); g.xhalf(x, t0, "v_add_f32")
    g(f"s_lshl_b32 {a[2]}, {g.s_w}, 7\ns_add_u32 {a[2]}, {a[2]}, {L_ST2}\nv_lshlrev_b32 {t1}, 3, {n15}\nv_add_u32 {t0}, {a[2]}, {t1}")
    g.lines.append(f"ds_write_b64 {t0}, {sm}")
    g.lines.append("s_waitcnt lgkmcnt(0)")
    g("s_barrier")
    g(f"v_add_u32 {t1}, {L_ST2}, {t1}")
    pr = za[20:28]
    for w in range(4): g.lines.append(f"ds_read_b64 {pr[2*w:2*w+2]}, {t1} offset:{128*w}")
    g.lines.append("s_waitcnt lgkmcnt(0)")
    g(f"v_pk_add_f32 {pr[0:2]}, {pr[0:2]}, {pr[2:4]}\nv_pk_add_f32 {pr[4:6]}, {pr[4:6]}, {pr[6:8]}\nv_pk_add_f32 {sm}, {pr[0:2]}, {pr[4:6]}")
    g(f"v_mul_f32 {sm[0]}, {lit(1/640)}, {sm[0]}\nv_mul_f32 {sm[1]}, {lit(1/640)}, {sm[1]}")
    g(f"v_fma_f32 {sq[0]}, -{sm[0]}, {sm[0]}, {sm[1]}\nv_add_f32 {sq[0]}, {lit(1e-5)}, {sq[0]}\nv_rsq_f32 {sq[0]}, {sq[0]}")
    g(f"v_mul_f32_e64 {sm[0]}, -{sm[0]}, {sq[0]}")
    for q in range(20):
        g(f"v_pk_fma_f32 {y[2*q:2*q+2]}, {y[2*q:2*q+2]}, {sq}, {sm} op_sel_hi:[1,0,0]")
    xn = za[28:48]
    for q in range(20): g(f"v_cvt_pk_bf16_f32 {xn[q]}, {y[2*q]}, {y[2*q+1]}")
    g(f"s_mov_b32 {a[2]}, {XN_IN[1]}")
    for q in range(5):
        swap_quad(g, xn[4*q:4*q+4])
        g.lines.append(f"buffer_store_dwordx4 {xn[4*q:4*q+4]}, {vx}, {g.q_ws}, {a[2]} offen{sc}")
        g(f"s_add_u32 {a[2]}, {a[2]}, 2048")
    g(f"s_branch {join}")
    g(f"{last}:")
    g.stamp(29) if g.fine else None
    for bl in range(10):
        ad = oad[bl]
        g.lines.append(f"ds_write_b16 {ad}, {x2p[2*bl]}")
        g.lines.append(f"ds_write_b16_d16_hi {ad}, {x2p[2*bl]} offset:160")
        g.lines.append(f"ds_write_b16 {ad}, {x2p[2*bl+1]} offset:320")
        g.lines.append(f"ds_write_b16_d16_hi {ad}, {x2p[2*bl+1]} offset:480")
    g.lines.append("s_waitcnt lgkmcnt(0)")
    g("s_barrier")
    g.stamp(30) if g.fine else None
    q_out = g.q_in
    g.srd(q_out, g.p_in[8], g.p_in[9], S * 1280)
    ro = y[4:24]; oa = y[24]; la = y[25]
    g(f"v_lshrrev_b32 {t0}, 4, v0\nv_and_b32 {t1}, 15, v0\nv_mul_u32_u24 {la}, 1296, {t0}\nv_lshl_add_u32 {la}, {t1}, 4, {la}\nv_add_u32 {la}, {L_OUT}, {la}")
    g(f"s_lshl_b32 {a[2]}, {g.s_j}, 3\ns_add_u32 {a[2]}, {a[2]}, {g.s_tb}\nv_lshlrev_b32 {t0}, 7, {t0}\nv_add_u32 {t0}, {a[2]}, {t0}\nv_mul_u32_u24 {oa}, 1280, {t0}\nv_lshl_add_u32 {oa}, {t1}, 4, {oa}")
    for c in range(5): g.lines.append(f"ds_read_b128 {ro[4*c:4*c+4]}, {la} offset:{256*c}")
    g.lines.append("s_waitcnt lgkmcnt(0)")
    for c in range(5): g.lines.append(f"buffer_store_dwordx4 {ro[4*c:4*c+4]}, {oa}, {q_out}, 0 offen offset:{256*c}" + os.environ.get("OUTF", " sc1"))
    g(f"{join}:")
    V.free(za, y, xf, sm, sq, oad); g.S.free(sb, su)
    g(f"{done}:")
    V.free(n15, gq, vd, vm_, vx, xr); g.S.free(act)
    g.stamp(27)
    fin = g.label("fin")
    g(f"s_cmp_lg_u32 {g.s_layer}, 0\ns_cbranch_scc1 {fin}")
    g.local_barrier(g.fast)
    g.stamp(28)
    g(f"s_mov_b32 {g.s_layer}, 1")
    g(f"s_branch {lay}")
    g(f"{fin}:")
```

```python
from emit import *
from maps import *
from gen_main import lit, f2u, LOG2E
BIG = 0x7ff00000
WO_STRIDE = 1296

def wo_stage(g):
    p = g.p_in; a = g.s_a
    va = g.vv("wova")
    g.srd(g.q_in, p[6], p[7], 640 * 1280)
    g(f"v_lshlrev_b32 {va}, 4, {g.v_lane}")
    g(f"s_mul_i32 {a[4]}, {g.s_wost}, 10\ns_sub_u32 {a[5]}, {g.s_wost}, 64\ns_mul_i32 {a[5]}, {a[5]}, 40")
    g(f"s_cmp_lt_u32 {g.s_wost}, 64\ns_cselect_b32 {a[4]}, {a[4]}, {a[5]}\ns_cselect_b32 {a[5]}, 1, 0")
    tail = (8, 9, 18, 19, 28, 29, 38, 39)
    rows = g.S.alloc("worows", 8)
    for r in range(8):
        g(f"s_cmp_eq_u32 {a[5]}, 1\ns_cselect_b32 {rows[r]}, {r}, {tail[r]}\ns_add_u32 {rows[r]}, {rows[r]}, {a[4]}\ns_mul_i32 {rows[r]}, {rows[r]}, 1280")
    for r in range(8):
        g(f"s_mov_b32 m0, {L_SCR + r*WO_STRIDE}")
        g("s_nop 0")
        g.lines.append(f"buffer_load_dwordx4 {va}, {g.q_in}, {rows[r]} offen lds")
    g(f"s_mov_b64 {g.s_ex}, exec\ns_mov_b64 exec, 0xffff")
    for r in range(8):
        g(f"s_mov_b32 m0, {L_SCR + r*WO_STRIDE + 1024}\ns_add_u32 {rows[r]}, {rows[r]}, 1024")
        g.lines.append(f"buffer_load_dwordx4 {va}, {g.q_in}, {rows[r]} offen lds")
    g(f"s_mov_b64 exec, {g.s_ex}")
    g.S.free(rows)
    g.V.free(va)

def wo_touch(g):
    p = g.p_in; a = g.s_a; t0, t1 = g.v_t0, g.v_t1; L = g.v_lane
    va = g.vv("wta")
    g.srd(g.q_in, p[6], p[7], 640 * 1280)
    g(f"s_mul_i32 {a[4]}, {g.s_wost}, 12800\ns_sub_u32 {a[5]}, {g.s_wost}, 64\ns_mul_i32 {a[5]}, {a[5]}, 51200\ns_add_u32 {a[5]}, {a[5]}, 10240")
    g(f"s_cmp_lt_u32 {g.s_wost}, 64\ns_cselect_b32 {a[4]}, {a[4]}, {a[5]}\ns_mov_b32 {a[6]}, 12800\ns_cselect_b32 {a[5]}, 2560, {a[6]}")
    g(f"v_cmp_lt_u32 vcc, 19, {L}\nv_cndmask_b32_e64 {t0}, 0, 1, vcc\nv_mul_u32_u24 {t1}, 20, {t0}\nv_sub_u32 {t1}, {L}, {t1}\nv_lshlrev_b32 {t1}, 7, {t1}")
    g(f"v_mul_u32_u24 {va}, {a[5]}, {t0}\nv_add_u32 {va}, {va}, {t1}\nv_cmp_gt_u32 vcc, 40, {L}\nv_mov_b32 {t1}, {BIG}\nv_cndmask_b32 {va}, {t1}, {va}, vcc")
    g.lines.append(f"buffer_load_dword {g.v_big[120]}, {va}, {g.q_in}, {a[4]} offen")
    g(f"s_lshl_b32 {a[5]}, {a[5]}, 1\ns_add_u32 {a[4]}, {a[4]}, {a[5]}")
    g.lines.append(f"buffer_load_dword {g.v_big[121]}, {va}, {g.q_in}, {a[4]} offen")
    g.V.free(va)

def w_prefetch(g, first, q_w, pf):
    a = g.s_a; L = g.v_lane
    so, va = pf
    g(f"s_mul_i32 {so}, {g.s_j}, 76800\ns_mul_i32 {a[1]}, {g.s_w}, 20480\ns_sub_u32 {a[1]}, {a[1]}, 4096\ns_max_i32 {a[1]}, {a[1]}, 0\ns_add_u32 {so}, {so}, {a[1]}")
    g(f"v_lshlrev_b32 {va}, 4, {L}")
    def gen():
        for n in range(20):
            g.lines.append(f"buffer_load_dwordx4 {g.v_big[124:128]}, {va}, {q_w}, {so} offen offset:{1024*(n%4)}")
            if n % 4 == 3: g(f"s_add_u32 {so}, {so}, 4096")
            yield
    it = gen()
    for _ in range(first): next(it)
    return it

import os
STREAM = os.environ.get("STREAM", "0") == "1"
NQW = 3 if STREAM else 7
def gather_alloc(g):
    return dict(q_w=g.S.alloc("q_wg", 4), si=g.S.alloc("si", 8), wd=g.vv("wdst", 2), src=g.vv("wsrc", NQW))
def gather_free(g, gs):
    g.S.free(gs["q_w"], gs["si"]); g.V.free(gs["wd"], gs["src"])

def gather_setup(g, gs):
    p = g.p_in; a = g.s_a; t0, t1 = g.v_t0, g.v_t1; L = g.v_lane
    q_w, si, wd, src = gs["q_w"], gs["si"], gs["wd"], gs["src"]
    pc, tl, p8, cc = g.vv("wpc"), g.vv("tl"), g.vv("p8"), g.vv("cc")
    cod = g.vv("cod"); e2 = g.vv("e2"); up, dn = g.vv("up"), g.vv("dn")
    g(f"v_bfe_u32 {tl}, {L}, 3, 1\nv_and_b32 {p8}, 7, {L}\nv_lshrrev_b32 {cc}, 4, {L}")
    g(f"v_mul_u32_u24 {pc}, 1280, {tl}\nv_lshl_add_u32 {pc}, {p8}, 3, {pc}")
    g(f"v_lshlrev_b32 {t1}, 4, {tl}\nv_lshl_add_u32 {t1}, {p8}, 3, {t1}\nv_add_u32 {t1}, 2520, {t1}")
    g(f"v_cmp_lt_u32 vcc, 4, {p8}\nv_cndmask_b32 {pc}, {pc}, {t1}, vcc")
    g(f"s_mul_i32 {a[0]}, {g.s_j}, 40\nv_add_u32 {pc}, {a[0]}, {pc}")
    g(f"s_sub_u32 {a[2]}, {g.s_w}, 1\ns_mul_i32 {a[2]}, {a[2]}, {4*NQW}")
    g(f"v_add_u32 {cod}, {a[2]}, {cc}")
    g.e2_of_code(e2, cod, t0)
    g(f"v_mul_u32_u24 {src[0]}, 3840, {e2}\nv_add_u32 {src[0]}, {src[0]}, {pc}")
    g(f"v_mul_u32_u24 {t0}, 3840, {cod}\nv_add_u32 {up}, {t0}, {pc}\nv_sub_u32 {dn}, {pc}, {t0}")
    g(f"v_add_u32 {up}, {-2*3840 & 0xffffffff}, {up}\nv_add_u32 {dn}, {120*3840}, {dn}")
    for q in range(1, NQW):
        g(f"v_add_u32 {up}, {4*3840}, {up}\nv_subrev_u32 {dn}, {4*3840}, {dn}")
        g(f"v_cmp_lt_u32 vcc, {41 - 4*q}, {cod}\nv_cndmask_b32 {src[q]}, {up}, {dn}, vcc")
    g(f"v_lshlrev_b32 {t0}, 10, {cod}\nv_lshl_add_u32 {t0}, {p8}, 3, {t0}")
    g(f"v_lshl_add_u32 {wd[0]}, {tl}, 6, {t0}\nv_xor_b32 {wd[1]}, 64, {wd[0]}")
    for i in range(8): g(f"s_mov_b32 {si[i]}, {80*3840*i}")
    g.V.free(pc, tl, p8, cc, cod, e2, up, dn)

def w_gather(g, gs):
    q_w, si, wd, src = gs["q_w"], gs["si"], gs["wd"], gs["src"]
    dbg = g.stop_after == "s0b"
    LAG = 24
    def load(n):
        g.lines.append(f"buffer_load_dwordx2 {g.v_big[2*n:2*n+2]}, {src[n // 8]}, {q_w}, {si[n % 8]} offen")
    def write(n, cnt):
        if cnt is not None: g.lines.append(f"s_waitcnt vmcnt({cnt})")
        g.lines.append(f"ds_write_b64 {wd[((n % 8) >> 1) & 1]}, {g.v_big[2*n:2*n+2]} offset:{4096*(n // 8) + 128*(n % 8)}")
    if dbg: g.stamp(9)
    if STREAM:
        N = 8 * NQW
        for n in range(N): load(n)
        if dbg: g.stamp(12)
        g("s_barrier")
        for n in range(N): write(n, (N - 4 - n) if n % 4 == 0 else None)
        return
    for n in range(48):
        load(n)
        if n >= LAG: write(n - LAG, LAG)
    w3 = g.label("wg3"); wj = g.label("wgj")
    g(f"s_cmp_eq_u32 {g.s_w}, 3\ns_cbranch_scc1 {w3}")
    for n in range(48, 56):
        load(n); write(n - LAG, LAG)
    if dbg: g.stamp(12)
    g("s_barrier")
    for n in range(56 - LAG, 56): write(n, (52 - n) if n % 4 == 0 else None)
    g(f"s_branch {wj}\n{w3}:")
    g("s_barrier")
    for n in range(48 - LAG, 48): write(n, (44 - n) if n % 4 == 0 else None)
    g(f"{wj}:")

def phi_build(g, wait):
    t0, t1 = g.v_t0, g.v_t1; V = g.V
    l31, va, vb, f = g.vv("l31b"), g.vv("va"), g.vv("vb"), g.vv("f"); ph = g.vv("phraw", 12)
    if wait: g.lines.append("s_waitcnt vmcnt(0)")
    g(f"v_and_b32 {l31}, 31, {g.v_lane}")
    g(f"v_lshrrev_b32 {t0}, 3, {l31}\nv_lshlrev_b32 {t0}, 2, {t0}\nv_and_b32 {t1}, 3, {l31}\nv_add_u32 {t0}, {t0}, {t1}")
    g(f"v_bfe_u32 {t1}, {l31}, 2, 1\nv_mul_u32_u24 {f}, 10, {t1}\nv_add_u32 {f}, {f}, {t0}")
    g(f"v_lshrrev_b32 {t1}, 5, {g.v_lane}\nv_mul_u32_u24 {va}, 80, {t1}\nv_add_u32 {va}, {va}, {f}\nv_lshlrev_b32 {va}, 1, {va}\nv_add_u32 {va}, {L_PHI}, {va}")
    for u in range(8):
        g.lines.append(f"ds_read_u16 {ph[u]}, {va} offset:{(8*(u>>2) + (u&3))*40}")
    for u in range(4):
        g.lines.append(f"ds_read_u16 {ph[8+u]}, {va} offset:{(16+u)*40}")
    g.lines.append("s_waitcnt lgkmcnt(0)")
    for q in range(6):
        g(f"v_lshl_or_b32 {g.v_phi[q]}, {ph[2*q+1]}, 16, {ph[2*q]}")
    g(f"v_cmp_gt_u32 vcc, 10, {t0}")
    for q in range(6): g(f"v_cndmask_b32 {g.v_phi[q]}, 0, {g.v_phi[q]}, vcc")
    g(f"v_cmp_gt_u32 vcc, 32, {g.v_lane}")
    for q in (4, 5): g(f"v_cndmask_b32 {g.v_phi[q]}, 0, {g.v_phi[q]}, vcc")
    g(f"v_mov_b32 {g.v_phi[6]}, 0\nv_mov_b32 {g.v_phi[7]}, 0")
    V.free(l31, va, vb, f, ph)

def x_store(g, raw, sc):
    a = g.s_a; t0, t1 = g.v_t0, g.v_t1; V = g.V
    ad, ds = g.vv("ad"), g.vv("ds"); d = g.v_big
    g(f"v_lshlrev_b32 {ad}, 4, {g.v_lane}\nv_add_u32 {ad}, {L_XST + (10240 if raw else 0)}, {ad}")
    g(f"v_lshrrev_b32 {ds}, 3, {g.v_lane}\nv_lshlrev_b32 {ds}, 9, {ds}\nv_and_b32 {t0}, 7, {g.v_lane}\nv_lshl_add_u32 {ds}, {t0}, 4, {ds}")
    g(f"s_mul_i32 {a[0]}, {g.s_tb}, {XSZ}\ns_lshr_b32 {a[1]}, {g.s_j}, 2\ns_mul_i32 {a[1]}, {a[1]}, 40960\ns_add_u32 {a[0]}, {a[0]}, {a[1]}")
    g(f"s_and_b32 {a[1]}, {g.s_j}, 3\ns_lshl_b32 {a[1]}, {a[1]}, 7\ns_add_u32 {a[0]}, {a[0]}, {a[1]}")
    g.lines.append("s_waitcnt lgkmcnt(0)")
    for n in range(10):
        g.lines.append(f"ds_read_b128 {d[4*n:4*n+4]}, {ad} offset:{n*1024}")
    for n in range(10):
        g.lines.append(f"s_waitcnt lgkmcnt({9 - n})")
        g(f"s_add_u32 {a[1]}, {a[0]}, {(X_IN[0] if raw else XN_IN[0]) + n * 4096}")
        g.lines.append(f"buffer_store_dwordx4 {d[4*n:4*n+4]}, {ds}, {g.q_ws}, {a[1]} offen{sc}")
    V.free(ad, ds)

def trig4(g, ang0, slope, csts, cs, sn):
    for r in range(4):
        if csts[r] == 0: g(f"v_mov_b32 {sn[r]}, {ang0}")
        else: g(f"v_fmamk_f32 {sn[r]}, {slope}, {lit(float(csts[r]))}, {ang0}")
        g(f"v_cos_f32 {cs[r]}, {sn[r]}\nv_sin_f32 {sn[r]}, {sn[r]}")

def reim_frags(g, cs, sn, tmp, dre, dim):
    g(f"v_cvt_pk_bf16_f32 {tmp[0]}, {cs[0]}, {cs[1]}\nv_cvt_pk_bf16_f32 {tmp[1]}, {cs[2]}, {cs[3]}")
    g(f"v_cvt_pk_bf16_f32 {tmp[2]}, {sn[0]}, {sn[1]}\nv_cvt_pk_bf16_f32 {tmp[3]}, {sn[2]}, {sn[3]}")
    for q in range(4): g(f"v_accvgpr_write_b32 {dre[q]}, {tmp[q]}")
    g(f"v_accvgpr_write_b32 {dim[2]}, {tmp[0]}\nv_accvgpr_write_b32 {dim[3]}, {tmp[1]}")
    g(f"v_xor_b32 {tmp[2]}, 0x80008000, {tmp[2]}\nv_xor_b32 {tmp[3]}, 0x80008000, {tmp[3]}")
    g(f"v_accvgpr_write_b32 {dim[0]}, {tmp[2]}\nv_accvgpr_write_b32 {dim[1]}, {tmp[3]}")

def constants(g, parts):
    a = g.s_a; t0, t1 = g.v_t0, g.v_t1; V = g.V
    n15, gq = g.vv("n15"), g.vv("gq")
    g(f"v_and_b32 {n15}, 15, {g.v_lane}\nv_lshrrev_b32 {gq}, 4, {g.v_lane}")
    cs, sn, tmp = g.vv("cs", 4), g.vv("sn", 4), g.vv("tmp", 4)
    ang, sl, f1, f2 = g.vv("ang"), g.vv("sl"), g.vv("f1"), g.vv("f2")
    if 's1' in parts:
        g(f"v_cvt_f32_u32 {sl}, {n15}\nv_mul_f32 {sl}, {lit(1/16)}, {sl}")
        g(f"v_lshlrev_b32 {t0}, 2, {gq}\nv_cvt_f32_u32 {ang}, {t0}\nv_mul_f32 {ang}, {ang}, {sl}")
        trig4(g, ang, sl, [0, 1, 2, 3], cs, sn)
        reim_frags(g, cs, sn, tmp, g.a_s1[0:4], g.a_s1[4:8])
    if 's2' in parts:
        g(f"v_lshlrev_b32 {t0}, 5, {gq}\nv_add_u32 {t0}, {g.s_tb}, {t0}\nv_cvt_f32_u32 {f1}, {t0}")
        g(f"s_lshl_b32 {a[4]}, {g.s_w}, 2")
        for q in range(4):
            g(f"v_lshlrev_b32 {t0}, 4, {n15}\nv_add_u32 {t0}, {a[4]}, {t0}")
            if q: g(f"v_add_u32 {t0}, {q}, {t0}")
            g(f"v_cvt_f32_u32 {sl}, {t0}\nv_mul_f32 {sl}, {lit(1/2048)}, {sl}\nv_mul_f32 {ang}, {f1}, {sl}")
            trig4(g, ang, sl, [0, 8, 16, 24], cs, sn)
            reim_frags(g, cs, sn, tmp, g.a_s2[8*q:8*q+4], g.a_s2[8*q+4:8*q+8])
    if 'h2' in parts:
        e2, P0, P1, Q1, R1, T1 = g.vv("e2"), g.vv("P0"), g.vv("P1"), g.vv("Q1"), g.vv("R1"), g.vv("T1")
        g(f"v_lshrrev_b32 {t0}, 1, {gq}")
        g(f"s_lshl_b32 {a[4]}, {g.s_j}, 1\ns_sub_u32 {a[4]}, {a[4]}, 2\ns_mov_b32 {a[5]}, 1")
        g(f"s_cmp_eq_u32 {g.s_j}, 0\ns_cselect_b32 {a[4]}, 0, {a[4]}\ns_cselect_b32 {a[5]}, 40, {a[5]}")
        g(f"s_cmp_eq_u32 {g.s_j}, 1\ns_cselect_b32 {a[4]}, 1, {a[4]}\ns_mov_b32 {a[6]}, 78\ns_cselect_b32 {a[5]}, {a[6]}, {a[5]}")
        g(f"v_mul_u32_u24 {e2}, {a[5]}, {t0}\nv_add_u32 {e2}, {a[4]}, {e2}")
        g(f"v_and_b32 {t1}, 7, {n15}\nv_mul_u32_u24 {t1}, 80, {t1}\nv_add_u32 {e2}, {e2}, {t1}")
        g(f"v_cvt_f32_u32 {sl}, {e2}\nv_mul_f32 {sl}, {lit(1/640)}, {sl}")
        g(f"v_lshrrev_b32 {t1}, 3, {n15}\nv_cmp_eq_u32 vcc, {t0}, {t1}\nv_cndmask_b32_e64 {f2}, 0, 1.0, vcc")
        g(f"v_cmp_eq_u32 vcc, 0, {e2}\nv_cndmask_b32_e64 {f2}, {f2}, 0, vcc")
        g(f"v_cvt_f32_u32 {f1}, {t0}")
        g(f"s_cmp_eq_u32 {g.s_j}, 0\ns_cselect_b32 {a[4]}, 1.0, 0\ns_cselect_b32 {a[6]}, 0, 1.0")
        g(f"s_cmp_eq_u32 {g.s_j}, 1\ns_cselect_b32 {a[5]}, -2.0, 0")
        g(f"v_mul_f32 {P1}, {a[4]}, {f1}")
        g(f"v_sub_f32 {P0}, 1.0, {P1}")
        g(f"v_mul_f32 {Q1}, {a[5]}, {f1}\nv_add_f32 {Q1}, 1.0, {Q1}\nv_mul_f32 {Q1}, {a[6]}, {Q1}")
        g(f"v_mov_b32 {R1}, {Q1}\nv_sub_f32 {T1}, 0, {P1}")
        for x in (P0, P1, Q1, R1, T1): g(f"v_mul_f32 {x}, {x}, {f2}")
        g(f"v_and_b32 {t0}, 1, {gq}\nv_lshlrev_b32 {t0}, 2, {t0}\nv_cvt_f32_u32 {ang}, {t0}\nv_mul_f32 {ang}, {ang}, {sl}")
        trig4(g, ang, sl, [0, 1, 2, 3], cs, sn)
        for dd in range(4):
            g(f"v_mul_f32 {t0}, {P0}, {cs[dd]}\nv_mul_f32 {t1}, {P1}, {cs[dd]}\nv_fmac_f32 {t1}, {Q1}, {sn[dd]}")
            g(f"v_cvt_pk_bf16_f32 {tmp[0]}, {t0}, {t1}\nv_accvgpr_write_b32 {g.a_h2[dd]}, {tmp[0]}")
            g(f"v_mul_f32_e64 {t0}, -{P0}, {sn[dd]}\nv_mul_f32 {t1}, {R1}, {cs[dd]}\nv_fmac_f32 {t1}, {T1}, {sn[dd]}")
            g(f"v_cvt_pk_bf16_f32 {tmp[1]}, {t0}, {t1}\nv_accvgpr_write_b32 {g.a_h2[4+dd]}, {tmp[1]}")
        V.free(e2, P0, P1, Q1, R1, T1)
    if 'b2' in parts:
        tt, msk = g.vv("tt"), g.vv("msk")
        g(f"v_and_b32 {t0}, 1, {n15}\nv_lshrrev_b32 {t1}, 1, {gq}\nv_cmp_eq_u32 vcc, {t0}, {t1}\nv_cndmask_b32_e64 {msk}, 0, 1.0, vcc")
        for mir in range(2):
            g(f"v_lshrrev_b32 {tt}, 1, {n15}")
            if mir:
                g(f"s_or_b32 {a[4]}, {g.s_tb}, {g.s_j}\ns_cmp_eq_u32 {a[4]}, 0\ns_cselect_b32 {a[4]}, 1, 0")
                g(f"v_lshrrev_b32 {t0}, 1, {gq}\nv_sub_u32 {t0}, 1, {t0}\nv_mul_u32_u24 {t0}, {a[4]}, {t0}")
                g(f"v_sub_u32 {tt}, 7, {tt}\nv_add_u32 {tt}, {tt}, {t0}\nv_and_b32 {tt}, 7, {tt}")
            g(f"v_cvt_f32_u32 {sl}, {tt}\nv_mul_f32 {sl}, {lit(1/8)}, {sl}")
            g(f"v_and_b32 {t0}, 1, {gq}\nv_lshlrev_b32 {t0}, 2, {t0}\nv_cvt_f32_u32 {ang}, {t0}\nv_mul_f32 {ang}, {ang}, {sl}")
            trig4(g, ang, sl, [0, 1, 2, 3], cs, sn)
            for dd in range(4):
                g(f"v_mul_f32 {t0}, {msk}, {cs[dd]}\nv_mul_f32 {t1}, {msk}, {sn[dd]}\nv_cvt_pk_bf16_f32 {tmp[0]}, {t0}, {t1}")
                g(f"v_accvgpr_write_b32 {g.a_b2[4*mir+dd]}, {tmp[0]}")
        V.free(tt, msk)
    if 'h1' in parts:
        d2b, K2, rho = g.vv("d2b"), g.vv("K2"), g.vv("rho")
        val = g.vv("val", 8); adr = g.vv("adr")
        g(f"v_lshrrev_b32 {t0}, 1, {gq}\nv_and_b32 {t1}, 1, {gq}\nv_mul_u32_u24 {t1}, 40, {t1}\nv_add_u32 {t0}, {t0}, {t1}\nv_cvt_f32_u32 {d2b}, {t0}")
        for n in range(5):
            sk = g.label("h1")
            g(f"s_add_u32 {a[4]}, {g.s_w}, {3*n - 1}")
            g(f"s_mul_i32 {a[5]}, {a[4]}, 43\ns_lshr_b32 {a[5]}, {a[5]}, 7")
            g(f"s_mul_i32 {a[6]}, {a[5]}, 3\ns_sub_u32 {a[6]}, {a[4]}, {a[6]}")
            g(f"s_lshl_b32 {a[7]}, {a[5]}, 4\nv_add_u32 {rho}, {a[7]}, {n15}")
            g(f"v_lshrrev_b32 {t0}, 1, {rho}\nv_cmp_eq_u32 vcc, 1, {rho}\nv_cndmask_b32_e64 {t0}, {t0}, 40, vcc")
            g(f"v_cvt_f32_u32 {sl}, {t0}\nv_mul_f32 {sl}, {lit(1/80)}, {sl}")
            g(f"v_and_b32 {t1}, 1, {rho}\nv_cndmask_b32_e64 {t1}, {t1}, 0, vcc\nv_cvt_f32_u32 {K2}, {t1}\nv_mul_f32 {K2}, 0.25, {K2}")
            g(f"s_lshl_b32 {a[7]}, {a[6]}, 2\nv_cvt_f32_u32 {ang}, {a[7]}\nv_add_f32 {ang}, {d2b}, {ang}\nv_fma_f32 {ang}, {ang}, {sl}, {K2}")
            g(f"s_cmp_eq_u32 {a[6]}, 2\ns_cselect_b32 {a[7]}, 0, 1.0")
            for u in range(8):
                c = 2 * (u >> 2) + 10 * (u & 3)
                if c: g(f"v_fmamk_f32 {val[u]}, {sl}, {lit(float(c))}, {ang}")
                else: g(f"v_mov_b32 {val[u]}, {ang}")
                g(f"v_cos_f32 {val[u]}, {val[u]}")
                if u >= 4: g(f"v_mul_f32 {val[u]}, {a[7]}, {val[u]}")
            for q in range(4): g(f"v_cvt_pk_bf16_f32 {tmp[q]}, {val[2*q]}, {val[2*q+1]}")
            g(f"s_lshl_b32 {a[7]}, {a[4]}, 10\ns_add_u32 {a[7]}, {a[7]}, {L_H1}\nv_lshlrev_b32 {adr}, 4, {g.v_lane}\nv_add_u32 {adr}, {a[7]}, {adr}")
            g.lines.append(f"ds_write_b128 {adr}, {tmp}")
            g(f"{sk}:")
        V.free(d2b, K2, rho, val, adr)
    V.free(n15, gq, cs, sn, tmp, ang, sl, f1, f2)

def wo_frag_a(g, guard=True):
    a = g.s_a; V = g.V; t0, t1 = g.v_t0, g.v_t1
    sk = g.label("wog")
    if guard: g(f"s_cmp_ge_u32 {g.s_wost}, 80\ns_cbranch_scc1 {sk}")
    ad = g.vv("ad"); raw = g.vv("raw", 8); fr = g.v_big[64:104]; dst = g.vv("dst")
    g(f"v_lshrrev_b32 {t0}, 4, {g.v_lane}\nv_lshlrev_b32 {ad}, 2, {t0}")
    g(f"v_mul_u32_u24 {dst}, {2*5*20*1024}, {t0}\nv_and_b32 {t1}, 15, {g.v_lane}\nv_lshl_add_u32 {dst}, {t1}, 4, {dst}")
    g(f"v_bfe_u32 {t0}, {g.v_lane}, 3, 1\nv_lshl_add_u32 {ad}, {t0}, 4, {ad}")
    g(f"v_and_b32 {t0}, 7, {g.v_lane}\nv_mul_u32_u24 {t0}, 160, {t0}\nv_add_u32 {ad}, {ad}, {t0}\nv_add_u32 {ad}, {L_SCR}, {ad}")
    g(f"s_mov_b32 {a[3]}, 0x05040100\ns_mov_b32 {a[4]}, 0x07060302")
    for i in range(5):
        for ii in range(8):
            g.lines.append(f"ds_read_b32 {raw[ii]}, {ad} offset:{ii*WO_STRIDE + 32*i}")
        g.lines.append("s_waitcnt lgkmcnt(0)")
        for q in range(4):
            g(f"v_perm_b32 {fr[8*i+q]}, {raw[2*q+1]}, {raw[2*q]}, {a[3]}\nv_perm_b32 {fr[8*i+4+q]}, {raw[2*q+1]}, {raw[2*q]}, {a[4]}")
    g(f"{sk}:")
    V.free(ad, raw)
    return fr, dst

def wo_frag_b(g, wf, guard=True):
    a = g.s_a; fr, dst = wf
    sk = g.label("wog")
    if guard: g(f"s_cmp_ge_u32 {g.s_wost}, 80\ns_cbranch_scc1 {sk}")
    g(f"s_lshr_b32 {a[0]}, {g.s_wost}, 2\ns_lshl_b32 {a[0]}, {a[0]}, 10\ns_and_b32 {a[1]}, {g.s_wost}, 3\ns_lshl_b32 {a[1]}, {a[1]}, 8")
    g(f"s_add_u32 {a[0]}, {a[0]}, {a[1]}\ns_add_u32 {a[0]}, {a[0]}, {WOF}")
    for i in range(5):
        g(f"s_add_u32 {a[1]}, {a[0]}, {i*20*1024}\ns_add_u32 {a[2]}, {a[1]}, {5*20*1024}")
        g.lines.append(f"buffer_store_dwordx4 {fr[8*i:8*i+4]}, {dst}, {g.q_ws}, {a[1]} offen sc1")
        g.lines.append(f"buffer_store_dwordx4 {fr[8*i+4:8*i+8]}, {dst}, {g.q_ws}, {a[2]} offen sc1")
    g(f"{sk}:")
    g.V.free(dst)

def after_s0(g):
    V = g.V
    sk = g.label("xr")
    g(f"s_cmp_lg_u32 {g.s_w}, 0\ns_cbranch_scc1 {sk}")
    x_store(g, raw=True, sc=g.sc)
    g(f"{sk}:")
    g.a_wo = g.A.alloc("wo", 200, at=0)
    g.a_s2 = g.A.alloc("st2", 32, at=200)
    g.a_h2 = g.A.alloc("h2", 8, at=232)
    g.a_s1 = g.A.alloc("st1", 8, at=240)
    g.a_b2 = g.A.alloc("b2", 8, at=248)
    V.free(g.v_big, g.v_l31)
    g.stamp(7)

def wo_loader(g):
    a = g.s_a
    sb = g.S.alloc("wob", 3)
    def setup():
        g(f"s_lshr_b32 {sb[1]}, {g.s_j}, 2\ns_mul_i32 {sb[1]}, {sb[1]}, {5*20*1024}\ns_add_u32 {sb[1]}, {sb[1]}, {WOF}")
        g(f"s_lshr_b32 {sb[2]}, {g.s_w}, 1\ns_lshl_b32 {sb[0]}, {sb[2]}, 13\ns_add_u32 {sb[0]}, {sb[1]}, {sb[0]}")
        g(f"s_lshl_b32 {sb[2]}, {sb[2]}, 11\ns_add_u32 {sb[1]}, {sb[1]}, {sb[2]}\ns_add_u32 {sb[1]}, {sb[1]}, {16*1024}")
    def wo():
        for u in range(10):
            for i in range(5):
                r = (u * 5 + i) * 4
                if u < 8: g(f"s_add_u32 {sb[2]}, {sb[0]}, {(i*20 + u)*1024}")
                else: g(f"s_add_u32 {sb[2]}, {sb[1]}, {(i*20 + u - 8)*1024}")
                g.lines.append(f"buffer_load_dwordx4 {g.a_wo[r:r+4]}, {g.v_x16}, {g.q_ws}, {sb[2]} offen")
                yield
    def tab():
        T = g.toff; base = "fnet_tab-Lpc+"
        def ld(dst):
            g.lines.append(f"buffer_load_dwordx4 {dst}, {g.v_x16}, {g.q_tab}, {sb[2]} offen")
        for h in range(2):
            g(f"s_mov_b32 {sb[2]}, {base}{T['S1'] + 1024*h}"); ld(g.a_s1[4*h:4*h+4]); yield
        for h in range(2):
            g(f"s_min_u32 {sb[2]}, {g.s_j}, 20\ns_lshl_b32 {sb[2]}, {sb[2]}, 11\ns_add_u32 {sb[2]}, {sb[2]}, {base}{T['H2'] + 1024*h}"); ld(g.a_h2[4*h:4*h+4]); yield
        g(f"s_mov_b32 {sb[2]}, {base}{T['B2']}"); ld(g.a_b2[0:4]); yield
        g(f"s_or_b32 {sb[2]}, {g.s_tb}, {g.s_j}\ns_cmp_eq_u32 {sb[2]}, 0\ns_cselect_b32 {sb[2]}, 2048, 1024\ns_add_u32 {sb[2]}, {sb[2]}, {base}{T['B2']}" if False else
          f"s_or_b32 {sb[2]}, {g.s_tb}, {g.s_j}\ns_min_u32 {sb[2]}, {sb[2]}, 1\ns_lshl_b32 {sb[2]}, {sb[2]}, 10\ns_sub_u32 {sb[2]}, {base}{T['B2'] + 2048}, {sb[2]}"); ld(g.a_b2[4:8]); yield
        for q in range(4):
            g(f"s_lshl_b32 {sb[2]}, {g.s_tb}, 2\ns_add_u32 {sb[2]}, {sb[2]}, {g.s_w}\ns_lshl_b32 {sb[2]}, {sb[2]}, 12\ns_add_u32 {sb[2]}, {sb[2]}, {base}{T['S2'] + 1024*q}")
            ld(g.a_s2[8*q:8*q+4]); yield
    return setup, wo(), tab(), sb

def s2_fix(g):
    t0, t1 = g.v_t0, g.v_t1
    for q in range(4):
        re, im = g.a_s2[8*q:8*q+4], g.a_s2[8*q+4:8*q+8]
        g(f"v_accvgpr_read_b32 {t0}, {re[2]}\nv_accvgpr_read_b32 {t1}, {re[3]}")
        g(f"v_accvgpr_mov_b32 {im[2]}, {re[0]}\nv_accvgpr_mov_b32 {im[3]}, {re[1]}")
        g(f"v_xor_b32 {t0}, 0x80008000, {t0}\nv_xor_b32 {t1}, 0x80008000, {t1}")
        g(f"v_accvgpr_write_b32 {im[0]}, {t0}\nv_accvgpr_write_b32 {im[1]}, {t1}")

def tab_touch(g, va):
    a = g.s_a; T = g.toff
    TM = sum(1 << j for j in (0, 1, 4, 10, 11, 26, 27, 29, 30, 31))
    g(f"s_lshl_b32 {a[2]}, 1, {g.s_j}\ns_sub_u32 {a[3]}, {a[2]}, 1\ns_and_b32 {a[3]}, {a[3]}, {TM}\ns_bcnt1_i32_b32 {a[3]}, {a[3]}")
    g(f"s_lshl_b32 {a[0]}, {a[3]}, 13\ns_lshl_b32 {a[1]}, {g.s_tb}, 14\ns_add_u32 {a[1]}, {a[1]}, {T['S2'] - 8*8192}\ns_add_u32 {a[1]}, {a[1]}, {a[0]}")
    g(f"s_cmp_lt_u32 {a[3]}, 8\ns_cselect_b32 {a[0]}, {a[0]}, {a[1]}\ns_add_u32 {a[0]}, {a[0]}, fnet_tab-Lpc")
    g(f"s_min_u32 {a[0]}, {a[0]}, fnet_tab_end-Lpc-8192")
    g(f"s_and_b32 {a[2]}, {a[2]}, {TM}\ns_cselect_b32 {a[1]}, 1, 0\ns_cmp_eq_u32 {g.s_w}, 3\ns_cselect_b32 {a[1]}, {a[1]}, 0\ns_cmp_eq_u32 {a[1]}, 1\ns_cselect_b32 {a[1]}, 0, {BIG}")
    g(f"v_lshlrev_b32 {va}, 7, {g.v_lane}\nv_add_u32 {va}, {a[1]}, {va}")
    g.lines.append(f"buffer_load_dword {g.v_big[123]}, {va}, {g.q_tab}, {a[0]} offen")

def wo_flag(g):
    a = g.s_a; t0, t1 = g.v_t0, g.v_t1
    sk = g.label("wf")
    g(f"s_cmp_ge_u32 {g.s_wost}, 80\ns_cbranch_scc1 {sk}")
    g(f"s_lshl_b32 {a[0]}, {g.s_wost}, 6\ns_add_u32 {a[0]}, {a[0]}, {WOFL}\nv_mov_b32 {t0}, {a[0]}\nv_mov_b32 {t1}, 1")
    g.lines.append("s_waitcnt vmcnt(0)")
    g(f"s_mov_b64 {g.s_ex}, exec\ns_mov_b64 exec, 1")
    g.lines.append(f"buffer_store_dword {t1}, {t0}, {g.q_ws}, 0 offen sc1")
    g(f"s_mov_b64 exec, {g.s_ex}")
    g(f"{sk}:")
```

```python
import copy, math, os
from emit import *
from maps import *
from gen_main import lit, f2u, LOG2E

BIG = 0x7ff00000

def emit_all(g):
    prologue(g)
    s0_loads(g)
    snapV, snapA, snapS = copy.deepcopy(g.V), copy.deepcopy(g.A), copy.deepcopy(g.S)
    for fast in g.paths:
        g.V, g.A, g.S = copy.deepcopy(snapV), copy.deepcopy(snapA), copy.deepcopy(snapS)
        g.vm = []; g.lg = []
        body(g, fast)
        g("s_endpgm")
    g.lines.extend(g.subs)
    g("Lexit:")
    g("s_endpgm")
    g("Lcode_end:")

def goto_path(g, entry):
    if len(g.paths) == 1:
        g(f"s_branch L{entry}_{'fast' if g.paths[0] else 'slow'}")
    else:
        l = g.label("gp")
        g(f"s_cmp_eq_u32 {g.s_fast}, 0\ns_cbranch_scc1 {l}\ns_branch L{entry}_fast\n{l}:\ns_branch L{entry}_slow")

def prologue(g):
    g.paths = {"fast": [True], "slow": [False]}.get(g.force, [True, False])
    g("s_cmp_ge_u32 s2, 256\ns_cbranch_scc1 Lexit_near\ns_branch Lstart\nLexit_near:\ns_endpgm\nLstart:")
    g.p_in = g.S.alloc("ptrs", 14, at=16)
    g.q_ws = g.S.alloc("q_ws", 4, at=8)
    g.q_in = g.S.alloc("q_in", 4, at=12)
    g.q_tab = g.S.alloc("q_tab", 4, at=32); g.s_ret = g.S.alloc("ret", 2, at=36)
    p = g.p_in
    g(f"s_load_dwordx4 {p[0:4]}, s[0:1], 0\ns_load_dwordx4 {p[4:8]}, s[0:1], 16")
    g(f"s_load_dwordx4 {p[8:12]}, s[0:1], 72\ns_load_dwordx2 {p[12:14]}, s[0:1], 88")
    g.s_tb = g.sv("tb"); g.s_j = g.sv("j"); g.s_w = g.sv("w"); g.s_ex = g.sv("ex", 2); g.s_t = g.sv("t", 2)
    g.s_wost = g.sv("wost"); g.s_spin = g.sv("spin"); g.s_lep = g.sv("lep"); g.s_fast = g.sv("fast"); g.s_layer = g.sv("layer")
    g.s_a = g.sv("a", 8)
    if g.stamps:
        g.s_t2 = g.sv("t2", 2); g.v_st = g.vv("vst", 3)
        g(f"v_mov_b32 {g.v_st[0]}, 0\nv_mov_b32 {g.v_st[1]}, 0")
    g.v_lane = g.vv("lane"); g.v_t0 = g.vv("t0"); g.v_t1 = g.vv("t1"); g.v_lfown = g.vv("lfown"); g.v_lfall = g.vv("lfall")
    g(f"s_and_b32 {g.s_tb}, s2, 7\ns_lshr_b32 {g.s_j}, s2, 3")
    g(f"v_and_b32 {g.v_lane}, 63, v0\nv_lshrrev_b32 {g.v_t0}, 6, v0")
    g(f"v_readfirstlane_b32 {g.s_w}, {g.v_t0}")
    g(f"s_mov_b32 {g.s_lep}, 0\ns_mov_b32 {g.s_layer}, 0")
    g(f"s_lshl_b32 {g.s_a[0]}, {g.s_tb}, 7")
    g(f"s_lshl_b32 {g.s_a[1]}, {g.s_j}, 2\ns_add_u32 {g.s_a[1]}, {g.s_a[1]}, {g.s_a[0]}")
    g(f"v_mov_b32 {g.v_lfown}, {g.s_a[1]}")
    g(f"v_and_b32 {g.v_lfall}, 31, {g.v_lane}\nv_lshlrev_b32 {g.v_lfall}, 2, {g.v_lfall}\nv_add_u32 {g.v_lfall}, {g.s_a[0]}, {g.v_lfall}")
    g.lines.append("s_waitcnt lgkmcnt(0)")
    g.srd(g.q_ws, p[12], p[13], 256 << 20)
    import tables
    g.toff, _ = tables.build()
    q = g.q_tab
    g(f"s_getpc_b64 {q[0:2]}\nLpc:\ns_and_b32 {q[1]}, {q[1]}, 0xffff\ns_mov_b32 {q[2]}, fnet_tab_end-Lpc\ns_mov_b32 {q[3]}, 0x20000")
    g.stamp(0)

def s0_loads(g):
    p = g.p_in; a = g.s_a
    V = g.V
    t0, t1 = g.v_t0, g.v_t1
    import ph_s0, ph_p1
    g.v_l31 = g.vv("l31")
    g(f"v_and_b32 {g.v_l31}, 31, {g.v_lane}")
    g.v_big = g.vv("big", 128, 4)
    g.v_phi = g.vv("phiA", 8, 4)
    sk = g.label("ph")
    g(f"s_cmp_lg_u32 {g.s_w}, 0\ns_cbranch_scc1 {sk}")
    g.srd(g.q_in, p[4], p[5], 32 * 400 * 2)
    g(f"v_lshlrev_b32 {t0}, 4, {g.v_lane}\ns_mul_i32 {a[4]}, {g.s_j}, 800\ns_mov_b32 m0, {L_PHI}")
    g("s_nop 0")
    g.lines.append(f"buffer_load_dwordx4 {t0}, {g.q_in}, {a[4]} offen lds")
    g(f"{sk}:")
    g.srd(g.q_in, p[0], p[1], S * 1280)
    vp = g.vv("p"); vx = g.vv("vx")
    g(f"s_lshl_b32 {a[4]}, {g.s_j}, 3\ns_lshl_b32 {a[5]}, {g.s_w}, 1\ns_add_u32 {a[4]}, {a[4]}, {a[5]}")
    g(f"v_lshrrev_b32 {vp}, 5, {g.v_lane}\nv_add_u32 {vp}, {a[4]}, {vp}")
    g(f"v_lshrrev_b32 {t0}, 4, {vp}\nv_lshlrev_b32 {t0}, 3, {t0}\nv_and_b32 {t1}, 15, {vp}\nv_lshl_add_u32 {t0}, {t1}, 7, {t0}\nv_add_u32 {t0}, {g.s_tb}, {t0}")
    g(f"v_mul_u32_u24 {vx}, 1280, {t0}\nv_lshl_add_u32 {vx}, {g.v_l31}, 3, {vx}")
    g(f"v_cmp_gt_u32 vcc, 20, {g.v_l31}\nv_mov_b32 {t1}, {BIG}\nv_cndmask_b32 {vx}, {t1}, {vx}, vcc")
    src = g.vv("xsrc", 16, 4)
    for i in range(8):
        g.lines.append(f"buffer_load_dwordx2 {src[2*i:2*i+2]}, {vx}, {g.q_in}, 0 offen offset:{160*i}")
    V.free(vx, vp)
    PM = sum(1 << j for j in (13, 14, 15, 16, 17, 18, 20, 21, 23, 24))
    g(f"s_lshl_b32 {a[4]}, 1, {g.s_j}\ns_sub_u32 {a[5]}, {a[4]}, 1\ns_and_b32 {a[5]}, {a[5]}, {PM}\ns_bcnt1_i32_b32 {a[5]}, {a[5]}")
    g(f"s_lshl_b32 {a[5]}, {a[5]}, 3\ns_add_u32 {a[5]}, {a[5]}, {g.s_tb}\ns_and_b32 {a[4]}, {a[4]}, {PM}\ns_cselect_b32 {g.s_wost}, {a[5]}, 99")
    lw0 = g.label("w0"); lx = g.label("lx")
    ph_p1.p1_alloc(g)
    pb = g.vv("pub", 4); q_dbg = g.S.alloc("q_dbg", 4)
    gs = ph_s0.gather_alloc(g)
    pf = (g.sv("wpf"), g.vv("wpfa"))
    g.srd(gs["q_w"], p[2], p[3], 640 * 3840)
    g.srd(q_dbg, p[10], p[11], 256)
    g(f"s_mov_b32 {g.s_fast}, 0")
    g(f"s_cmp_eq_u32 {g.s_w}, 0\ns_cbranch_scc1 {lw0}")
    g(f"s_mul_i32 {a[0]}, {g.s_j}, 3\ns_add_u32 {a[0]}, {a[0]}, {g.s_w}\ns_sub_u32 {a[0]}, {a[0]}, 1\ns_lshl_b32 {a[0]}, {a[0]}, 10")
    g(f"v_lshlrev_b32 {t0}, 4, {g.v_lane}")
    g.lines.append(f"buffer_load_dwordx4 {g.v_big[124:128]}, {t0}, {g.q_tab}, {a[0]} offen")
    g(f"s_mul_i32 {a[0]}, {g.s_w}, 5120\ns_add_u32 {a[1]}, {a[0]}, {L_H1 - 5120}\ns_add_u32 {a[0]}, {a[0]}, fnet_tab-Lpc+{g.toff['H1'] - 5120}")
    for n in range(5):
        g(f"s_add_u32 m0, {a[1]}, {1024*n}")
        g(f"s_add_u32 {a[2]}, {a[0]}, {1024*n}")
        g.lines.append(f"buffer_load_dwordx4 {t0}, {g.q_tab}, {a[2]} offen lds")
    ph_s0.tab_touch(g, t0)
    NROLE = 7
    if os.environ.get("TLB") == "1":
        g(f"s_cmp_eq_u32 {g.s_w}, 3\ns_cselect_b32 {a[1]}, 0, {BIG}")
        g(f"v_lshlrev_b32 {t0}, 20, {g.v_lane}\nv_cmp_gt_u32 vcc, {(WS_USED >> 20) + 1}, {g.v_lane}\nv_mov_b32 {t1}, {BIG}\nv_cndmask_b32 {t0}, {t1}, {t0}, vcc\nv_add_u32 {t0}, {a[1]}, {t0}")
        g.lines.append(f"buffer_load_dword {g.v_big[122]}, {t0}, {g.q_ws}, 0 offen")
        q = g.S.alloc("q_o", 4)
        g.srd(q, p[8], p[9], S * 1280)
        g(f"v_min_u32 {t0}, 63, {g.v_lane}\nv_lshlrev_b32 {t0}, 19, {t0}\nv_cmp_gt_u32 vcc, 6, {g.v_lane}\nv_cndmask_b32 {t0}, {t1}, {t0}, vcc\nv_add_u32 {t0}, {a[1]}, {t0}")
        g.lines.append(f"buffer_load_dword {g.v_big[121]}, {t0}, {q}, 0 offen")
        g.S.free(q)
        NROLE = 9
    g(f"s_branch {lx}")
    g(f"{lw0}:")
    g(f"s_mov_b32 {g.s_fast}, 1")
    sk = g.label("wz")
    g(f"s_cmp_ge_u32 {g.s_wost}, 80\ns_cbranch_scc1 {sk}")
    ph_s0.wo_touch(g)
    g(f"s_mov_b32 {g.s_fast}, 2")
    g(f"{sk}:")
    kp = g.v_big[0:4]
    for q_ in range(4): g(f"v_mov_b32 {kp[q_]}, -1")
    g(f"s_lshl_b32 {a[4]}, {g.s_j}, 14\ns_lshl_b32 {a[5]}, {g.s_tb}, 11\ns_add_u32 {a[4]}, {a[4]}, {a[5]}\nv_lshlrev_b32 {t0}, 4, {g.v_lane}")
    for l in range(2):
        g(f"s_add_u32 {a[5]}, {a[4]}, {KVB[l]}")
        g.lines.append(f"buffer_store_dwordx4 {kp}, {t0}, {g.q_ws}, {a[5]} offen sc1")
        g.lines.append(f"buffer_store_dwordx4 {kp}, {t0}, {g.q_ws}, {a[5]} offen offset:1024 sc1")
    g(f"{lx}:")
    NPF0, NPF1 = 10, 8
    rest = ph_s0.w_prefetch(g, NPF0, gs["q_w"], pf)
    ph_s0.gather_setup(g, gs)
    ph_p1.p1_setup(g)
    publish_setup(g, pb, q_dbg)
    st = ln_addr(g)
    call_phi = g.make_sub("phi", lambda: ph_s0.phi_build(g, wait=False))
    call_raw = g.make_sub("raw", lambda: raw_stage(g, src, st))
    xa = g.label("xa"); xb = g.label("xb"); xc = g.label("xc")
    g(f"s_cmp_eq_u32 {g.s_fast}, 0\ns_cbranch_scc1 {xa}\ns_cmp_eq_u32 {g.s_fast}, 1\ns_cbranch_scc1 {xb}")
    g.lines.append(f"s_waitcnt vmcnt({NPF0 + 6})")
    g(f"s_branch {xc}\n{xb}:")
    g.lines.append(f"s_waitcnt vmcnt({NPF0 + 4})")
    g(f"s_branch {xc}\n{xa}:")
    g.lines.append(f"s_waitcnt vmcnt({NPF0 + NROLE})")
    g(f"{xc}:")
    g.stamp(3)
    emit_ln(g, src, st, rest, NPF1)
    lw0 = g.label("w0b")
    g(f"s_cmp_eq_u32 {g.s_w}, 0\ns_cbranch_scc1 {lw0}")
    g("s_barrier")
    g.stamp(4)
    for _ in rest: pass
    call_raw()
    call_phi()
    g.lines.append("s_waitcnt vmcnt(0)")
    g.stamp(6)
    g("s_barrier")
    ph_s0.w_gather(g, gs)
    g.lines.append("s_waitcnt vmcnt(0) lgkmcnt(0)")
    g.stamp(1)
    g("s_barrier")
    g(f"v_mov_b32 {t1}, {L_MISC}")
    g.lines.append(f"ds_read_b32 {t0}, {t1}")
    g.lines.append("s_waitcnt lgkmcnt(0)")
    g(f"v_readfirstlane_b32 {g.s_fast}, {t0}")
    goto_path(g, "entry")
    g(f"{lw0}:")
    g("s_barrier")
    g.stamp(4)
    sk = g.label("z0"); sk2 = g.label("z1")
    g(f"v_mov_b32 {t0}, 0\ns_cmp_lg_u32 {g.s_j}, 0\ns_cbranch_scc1 {sk}")
    g.lines.append(f"buffer_store_dword {t0}, {g.v_lfall}, {g.q_ws}, 0 offen sc1")
    g(f"{sk}:")
    np_ = g.label("np"); nk = g.label("nk"); n2 = g.label("n2")
    g(f"s_cmp_ge_u32 {g.s_wost}, 80\ns_cbranch_scc1 {np_}")
    ph_s0.wo_stage(g)
    g(f"v_mov_b32 {t0}, 0\ns_lshl_b32 {a[4]}, {g.s_wost}, 6\ns_add_u32 {a[4]}, {a[4]}, {WOFL}\nv_mov_b32 {t1}, {a[4]}\ns_mov_b64 {g.s_ex}, exec\ns_mov_b64 exec, 1")
    g.lines.append(f"buffer_store_dword {t0}, {t1}, {g.q_ws}, 0 offen sc1")
    g(f"s_mov_b64 exec, {g.s_ex}")
    g(f"{np_}:")
    ph_s0.x_store(g, raw=False, sc=" sc1")
    g(f"s_cmp_ge_u32 {g.s_wost}, 80\ns_cbranch_scc1 {n2}")
    g.lines.append("s_waitcnt vmcnt(11)")
    wf = ph_s0.wo_frag_a(g, guard=False)
    ph_s0.wo_frag_b(g, wf, guard=False)
    g.lines.append("s_waitcnt vmcnt(10)")
    g(f"s_branch {nk}\n{n2}:")
    g.lines.append("s_waitcnt vmcnt(0)")
    g(f"{nk}:")
    if g.stop_after == "s0b": g.stamp(10)
    publish_purity(g, pb, q_dbg)
    if os.environ.get("PUBW") == "1":
        g.lines.append("s_waitcnt vmcnt(0)")
        g.stamp(15)
    g("s_barrier")
    g.stamp(5)
    call_raw()
    call_phi()
    if g.stop_after == "s0b": g.stamp(11)
    if g.stop_after == "s0b": g.stamp(12)
    g("s_barrier")
    if g.stop_after == "s0b": g.stamp(13)
    ph_s0.wo_flag(g)
    if g.stop_after == "s0b": g.stamp(14)
    purity(g, pb, q_dbg)
    g.stamp(2)
    g.lines.append("s_waitcnt lgkmcnt(0)")
    g("s_barrier")
    V.free(src, st)
    V.free(pb); g.S.free(q_dbg)
    ph_s0.gather_free(g, gs)
    g.S.free(pf[0]); V.free(pf[1])
    goto_path(g, "entry")

def ln_addr(g):
    a = g.s_a; V = g.V; t0, t1 = g.v_t0, g.v_t1
    st = g.vv("xst", 4); e2 = g.vv("e2"); rb = g.vv("rb")
    g(f"s_lshl_b32 {a[4]}, {g.s_w}, 5\ns_add_u32 {a[4]}, {a[4]}, {L_XST}\nv_lshrrev_b32 {rb}, 5, {g.v_lane}\nv_lshlrev_b32 {rb}, 4, {rb}\nv_add_u32 {rb}, {a[4]}, {rb}")
    for c in range(4):
        g(f"v_lshl_add_u32 {e2}, {g.v_l31}, 2, {c}")
        g.code_of_e2(st[c], e2, t0)
        g(f"v_lshl_add_u32 {st[c]}, {st[c]}, 7, {rb}")
    g(f"v_cmp_gt_u32 vcc, 20, {g.v_l31}\nv_mov_b32 {t0}, {L_XST + 20480}")
    for c in range(4): g(f"v_cndmask_b32 {st[c]}, {t0}, {st[c]}, vcc")
    V.free(e2, rb)
    return st

def sprinkle(g, body, filler, every):
    k = 0
    for l in body:
        g.lines.append(l); k += 1
        if filler is not None and k % every == 0 and not l.startswith("v_cmp") and not l.endswith(":"):
            try: next(filler)
            except StopIteration: filler = None

def emit_ln(g, src, st, filler, nfill=0):
    a = g.s_a; V = g.V; t0, t1 = g.v_t0, g.v_t1
    real = g.lines
    g.lines = []
    xf = g.vv("xf", 32, 4); sm, sq = g.vv("sm", 2, 2), g.vv("sq", 2, 2)
    pk = g.vv("pk", 16, 4)
    for i in range(8):
        g(f"v_lshlrev_b32 {xf[0*8+i]}, 16, {src[2*i]}\nv_and_b32 {xf[1*8+i]}, 0xffff0000, {src[2*i]}")
        g(f"v_lshlrev_b32 {xf[2*8+i]}, 16, {src[2*i+1]}\nv_and_b32 {xf[3*8+i]}, 0xffff0000, {src[2*i+1]}")
    g(f"v_pk_add_f32 {sm}, {xf[0:2]}, {xf[2:4]}\nv_pk_mul_f32 {sq}, {xf[0:2]}, {xf[0:2]}\nv_pk_fma_f32 {sq}, {xf[2:4]}, {xf[2:4]}, {sq}")
    for i in range(2, 16):
        g(f"v_pk_add_f32 {sm}, {sm}, {xf[2*i:2*i+2]}\nv_pk_fma_f32 {sq}, {xf[2*i:2*i+2]}, {xf[2*i:2*i+2]}, {sq}")
    g(f"v_add_f32 {sm[0]}, {sm[0]}, {sm[1]}\nv_add_f32 {sq[0]}, {sq[0]}, {sq[1]}")
    g.red32(sm[0], t0); g.red32(sq[0], t1)
    g(f"v_mul_f32 {sm[0]}, {lit(1/640)}, {sm[0]}\nv_mul_f32 {sq[0]}, {lit(1/640)}, {sq[0]}")
    g(f"v_fma_f32 {sq[0]}, -{sm[0]}, {sm[0]}, {sq[0]}\nv_add_f32 {sq[0]}, {lit(1e-5)}, {sq[0]}\nv_rsq_f32 {sq[0]}, {sq[0]}")
    g(f"v_mul_f32_e64 {sm[0]}, -{sm[0]}, {sq[0]}")
    for i in range(16):
        g(f"v_pk_fma_f32 {xf[2*i:2*i+2]}, {xf[2*i:2*i+2]}, {sq}, {sm} op_sel_hi:[1,0,0]")
    for c in range(4):
        for i2 in range(4):
            g(f"v_cvt_pk_bf16_f32 {pk[c*4+i2]}, {xf[c*8+2*i2]}, {xf[c*8+2*i2+1]}")
        g.lines.append(f"ds_write_b128 {st[c]}, {pk[4*c:4*c+4]}")
    g.lines.append("s_waitcnt lgkmcnt(0)")
    V.free(xf, sm, sq, pk)
    body = g.lines; g.lines = real
    if nfill:
        import itertools
        sprinkle(g, body, itertools.islice(filler, nfill), len(body) // (nfill + 1))
    else: g.lines.extend(body)

def raw_stage(g, src, st):
    a = g.s_a
    pk = g.vv("pkr", 8, 4)
    g(f"s_mov_b32 {a[3]}, 0x05040100\ns_mov_b32 {a[4]}, 0x07060302")
    for c in range(4):
        r = pk[4*(c & 1):4*(c & 1) + 4]
        for i2 in range(4):
            g(f"v_perm_b32 {r[i2]}, {src[2*(2*i2+1) + (c >> 1)]}, {src[2*(2*i2) + (c >> 1)]}, {a[3 + (c & 1)]}")
        g.lines.append(f"ds_write_b128 {st[c]}, {r} offset:10240")
    g.V.free(pk)

def publish_setup(g, pb, q):
    p = g.p_in; a = g.s_a
    g(f"s_getreg_b32 {a[4]}, hwreg(HW_REG_XCC_ID, 0, 4)\ns_add_u32 {a[4]}, {a[4]}, 1")
    g(f"s_lshl_b32 {a[5]}, {g.s_tb}, 5\ns_add_u32 {a[6]}, {a[5]}, {g.s_j}")
    g(f"v_mov_b32 {pb[0]}, {a[4]}\nv_mov_b32 {pb[1]}, {a[6]}")
    g(f"v_and_b32 {pb[2]}, 7, {g.v_lane}\nv_lshlrev_b32 {pb[2]}, 2, {pb[2]}\nv_add_u32 {pb[2]}, {a[5]}, {pb[2]}")
    g(f"v_mov_b32 {pb[3]}, {L_MISC}")

def publish_purity(g, pb, q):
    g(f"s_mov_b64 {g.s_ex}, exec\ns_mov_b64 exec, 1")
    g.lines.append(f"buffer_store_byte {pb[0]}, {pb[1]}, {q}, 0 offen sc1")
    g(f"s_mov_b64 exec, {g.s_ex}")

def purity(g, pb, q):
    a = g.s_a; t0, t1 = g.v_t0, g.v_t1
    pv = pb[0]
    lp = g.label("pp"); dn = g.label("ppd")
    g(f"s_mov_b32 {g.s_spin}, {1 << 20}")
    g(f"{lp}:")
    g.lines.append(f"buffer_load_dword {pv}, {pb[2]}, {q}, 0 offen sc1")
    g.lines.append("s_waitcnt vmcnt(0)")
    g(f"v_subrev_u32 {t0}, 0x01010101, {pv}\nv_bfi_b32 {t0}, {pv}, 0, {t0}\nv_and_b32 {t0}, 0x80808080, {t0}")
    g(f"v_cmp_ne_u32 vcc, 0, {t0}\ns_cbranch_vccz {dn}")
    g(f"s_sub_u32 {g.s_spin}, {g.s_spin}, 1\ns_cmp_lg_u32 {g.s_spin}, 0\ns_cbranch_scc1 {lp}")
    g(f"{dn}:")
    g(f"v_readfirstlane_b32 {a[5]}, {pv}\ns_and_b32 {a[5]}, {a[5]}, 0xff\ns_mul_i32 {a[5]}, {a[5]}, 0x01010101")
    g(f"v_cmp_ne_u32 vcc, {a[5]}, {pv}\ns_cmp_eq_u64 vcc, 0\ns_cselect_b32 {g.s_fast}, 1, 0\nv_mov_b32 {t0}, {g.s_fast}")
    g.lines.append(f"ds_write_b32 {pb[3]}, {t0}")

def finish(g, fast):
    g.stamp(31)
    g.wait0()
    g.flush_stamps()

def body(g, fast):
    import ph_s0, ph_p1, ph_p2, ph_b
    sc = "" if fast else " sc1"
    g.sc = sc; g.fast = fast
    tag = "fast" if fast else "slow"
    for nm in ("s_xn", "s_xr", "s_kvb", "s_ob", "s_x1", "s_gb", "s_stb", "s_zb"): setattr(g, nm, None)
    g(f"Lentry_{tag}:")
    g.vm = []; g.lg = []
    ph_s0.after_s0(g)
    if g.stop_after in ("s0", "s0b"): return finish(g, fast)
    lay = g.label("layer")
    g(f"s_mov_b32 {g.s_layer}, 0")
    g(f"{lay}:")
    g.vm = []; g.lg = []
    ph_p1.set_layer(g)
    ph_p1.p1(g)
    if g.stop_after == "p1": return finish(g, fast)
    ph_p2.p2(g)
    if g.stop_after == "p2": return finish(g, fast)
    ph_b.b1(g)
    if g.stop_after == "b1": return finish(g, fast)
    ph_b.b2(g, lay)
    finish(g, fast)
```

```python
from emit import *
from maps import *
from gen_main import lit
from ph_p2 import swap_quad, first_layer
import ph_s0, os
BIG = 0x7ff00000
L_EX = L_SCR
L_R = L_SCR + 16384
L_ST2 = L_SCR + 20480
L_OUT = L_SCR

def b1(g):
    a = g.s_a; t0, t1 = g.v_t0, g.v_t1; L = g.v_lane; V = g.V
    g.c("==== B1 ====")
    n15, gq = g.vv("n15"), g.vv("gq")
    va, vs = g.vv("va"), g.vv("vs")
    sg, ss = g.sv("sg"), g.sv("ss")
    def setup():
        first_layer(g, lambda: ph_s0.s2_fix(g))
        g(f"v_and_b32 {n15}, 15, {L}\nv_lshrrev_b32 {gq}, 4, {L}")
        g(f"s_sub_u32 {a[0]}, {g.s_j}, 1\ns_cmp_eq_u32 {g.s_j}, 0\ns_cselect_b32 {a[0]}, 0, {a[0]}")
        g(f"s_cmp_ge_u32 {g.s_j}, 2\ns_cselect_b32 {a[1]}, 1, 0\ns_cmp_eq_u32 {g.s_j}, 1\ns_cselect_b32 {a[3]}, 1, 0")
        g(f"v_lshrrev_b32 {t0}, 1, {gq}\nv_mul_u32_u24 {t0}, {a[1]}, {t0}\nv_add_u32 {t0}, {a[3]}, {t0}\nv_lshlrev_b32 {va}, 2, {t0}")
        g(f"v_and_b32 {t0}, 1, {gq}\nv_lshl_add_u32 {va}, {t0}, 13, {va}")
        g(f"s_lshl_b32 {a[0]}, {a[0]}, 14\ns_lshl_b32 {a[2]}, {g.s_w}, 9\ns_add_u32 {a[0]}, {a[0]}, {a[2]}\nv_lshl_add_u32 {va}, {n15}, 3, {va}\nv_add_u32 {va}, {a[0]}, {va}")
        g(f"s_lshl_b32 {a[2]}, {g.s_w}, 9\nv_lshlrev_b32 {vs}, 3, {L}\nv_add_u32 {vs}, {a[2]}, {vs}")
        g(f"s_mul_i32 {sg}, {g.s_tb}, {XSZ}\ns_add_u32 {sg}, {sg}, {g.s_gb}\ns_mul_i32 {ss}, {g.s_tb}, {LOCSZ}\ns_add_u32 {ss}, {ss}, {g.s_stb}")
    g.local_barrier(g.fast, work=setup)
    g.stamp(23)
    if g.fast and os.environ.get("WB") == "lbg":
        sk = g.label("wb")
        g(f"s_cmp_lg_u32 {g.s_j}, 31\ns_cbranch_scc1 {sk}\ns_cmp_lg_u32 {g.s_layer}, 1\ns_cbranch_scc1 {sk}\ns_cmp_lg_u32 {g.s_w}, 3\ns_cbranch_scc1 {sk}")
        g.lines.append("buffer_wbl2 sc1")
        g(f"{sk}:")
    done = g.label("b1d")
    g(f"s_cmp_gt_u32 {g.s_j}, 20\ns_cbranch_scc1 {done}")
    g.vm = []; g.lg = []
    st = g.vv("st", 16, 4); ga = g.vv("ga", 16, 4)
    for q in range(8):
        if q == 2 or q == 4 or q == 6: g(f"s_add_u32 {ss}, {ss}, 4096")
        g(f"buffer_load_dwordx2 {st[2*q:2*q+2]}, {vs}, {g.q_ws}, {ss} offen offset:{2048*(q%2)} sc1")
    ms = g.vm_mark()
    gm = []
    sgd = g.S.alloc("sgd", 4)
    for dd in range(4): g(f"s_add_u32 {sgd[dd]}, {sg}, {2048*dd}")
    for aa in range(4):
        for dd in range(4):
            g(f"buffer_load_dword {ga[4*aa+dd]}, {va}, {g.q_ws}, {sgd[dd]} offen offset:{128*aa} sc1")
        gm.append(g.vm_mark())
    g.S.free(sgd)
    g.wait(vm=ms)
    g.stamp(6) if g.fine else None
    for q in range(1, 8):
        g(f"v_pk_add_f32 {st[0:2]}, {st[0:2]}, {st[2*q:2*q+2]}")
    g(f"v_mul_f32 {st[0]}, {lit(1/640)}, {st[0]}\nv_mul_f32 {st[1]}, {lit(1/640)}, {st[1]}")
    g(f"v_fma_f32 {st[1]}, -{st[0]}, {st[0]}, {st[1]}\nv_add_f32 {st[1]}, {lit(1e-5)}, {st[1]}\nv_rsq_f32 {st[1]}, {st[1]}")
    g(f"s_lshl_b32 {a[2]}, {g.s_w}, 8\ns_add_u32 {a[2]}, {a[2]}, {L_R}\nv_lshlrev_b32 {t0}, 2, {L}\nv_add_u32 {t0}, {a[2]}, {t0}")
    g(f"ds_write_b32 {t0}, {st[1]}")
    g(f"v_lshlrev_b32 {t1}, 4, {gq}\nv_add_u32 {t1}, {a[2]}, {t1}")
    g.wait0(vm=False)
    rr = st
    for aa in range(4): g(f"ds_read_b128 {rr[4*aa:4*aa+4]}, {t1} offset:{64*aa}")
    mr = g.lg_mark()
    dre, dim = g.vv("dre", 16, 4), g.vv("dim", 16, 4)
    for aa in range(4):
        g.wait(vm=gm[aa])
        g(f"v_mfma_f32_16x16x32_bf16 {dre[4*aa:4*aa+4]}, {ga[4*aa:4*aa+4]}, {g.a_h2[0:4]}, 0")
        g(f"v_mfma_f32_16x16x32_bf16 {dim[4*aa:4*aa+4]}, {ga[4*aa:4*aa+4]}, {g.a_h2[4:8]}, 0")
    g.wait(lg=mr)
    ub = ga
    for aa in range(4):
        for h in range(2):
            g(f"v_pk_mul_f32 {dre[4*aa+2*h:4*aa+2*h+2]}, {dre[4*aa+2*h:4*aa+2*h+2]}, {rr[4*aa+2*h:4*aa+2*h+2]}")
            g(f"v_pk_mul_f32 {dim[4*aa+2*h:4*aa+2*h+2]}, {dim[4*aa+2*h:4*aa+2*h+2]}, {rr[4*aa+2*h:4*aa+2*h+2]}")
        g(f"v_cvt_pk_bf16_f32 {ub[4*aa]}, {dre[4*aa]}, {dre[4*aa+1]}\nv_cvt_pk_bf16_f32 {ub[4*aa+1]}, {dre[4*aa+2]}, {dre[4*aa+3]}")
        g(f"v_cvt_pk_bf16_f32 {ub[4*aa+2]}, {dim[4*aa]}, {dim[4*aa+1]}\nv_cvt_pk_bf16_f32 {ub[4*aa+3]}, {dim[4*aa+2]}, {dim[4*aa+3]}")
    g.stamp(7) if g.fine else None
    for aa in range(4):
        g(f"v_mfma_f32_16x16x32_bf16 {dre[4*aa:4*aa+4]}, {g.a_s1[0:4]}, {ub[4*aa:4*aa+4]}, 0")
        g(f"v_mfma_f32_16x16x32_bf16 {dim[4*aa:4*aa+4]}, {g.a_s1[4:8]}, {ub[4*aa:4*aa+4]}, 0")
    g(f"v_lshlrev_b32 {t0}, 12, {gq}\nv_lshl_add_u32 {t0}, {n15}, 6, {t0}\ns_lshl_b32 {a[2]}, {g.s_w}, 4\ns_add_u32 {a[2]}, {a[2]}, {L_EX}\nv_add_u32 {t0}, {a[2]}, {t0}")
    for r in range(4):
        p = st[4*r:4*r+4]
        g(f"v_cvt_pk_bf16_f32 {p[0]}, {dre[r]}, {dre[4+r]}\nv_cvt_pk_bf16_f32 {p[1]}, {dre[8+r]}, {dre[12+r]}")
        g(f"v_cvt_pk_bf16_f32 {p[2]}, {dim[r]}, {dim[4+r]}\nv_cvt_pk_bf16_f32 {p[3]}, {dim[8+r]}, {dim[12+r]}")
        g(f"ds_write_b128 {t0}, {p} offset:{1024*r}")
    g.wait0(vm=False)
    g("s_barrier")
    g(f"s_lshl_b32 {a[2]}, {g.s_w}, 12\ns_add_u32 {a[2]}, {a[2]}, {L_EX}\nv_lshlrev_b32 {t0}, 6, {n15}\nv_lshl_add_u32 {t0}, {gq}, 4, {t0}\nv_add_u32 {t0}, {a[2]}, {t0}")
    for q in range(4): g(f"ds_read_b128 {ub[4*q:4*q+4]}, {t0} offset:{1024*q}")
    g.wait0(vm=False)
    for q in range(4):
        g(f"v_mfma_f32_16x16x32_bf16 {dre[4*q:4*q+4]}, {g.a_s2[8*q:8*q+4]}, {ub[4*q:4*q+4]}, 0")
        g(f"v_mfma_f32_16x16x32_bf16 {dim[4*q:4*q+4]}, {g.a_s2[8*q+4:8*q+8]}, {ub[4*q:4*q+4]}, 0")
    g.stamp(14) if g.fine else None
    g(f"s_mul_i32 {a[2]}, {g.s_tb}, {ZSZ}\ns_add_u32 {a[2]}, {a[2]}, {g.s_zb}\ns_lshl_b32 {a[3]}, {g.s_j}, 14\ns_add_u32 {a[2]}, {a[2]}, {a[3]}")
    g(f"s_lshl_b32 {a[3]}, {g.s_w}, 12\ns_add_u32 {a[2]}, {a[2]}, {a[3]}")
    g(f"v_and_b32 {t0}, 1, {gq}\nv_lshlrev_b32 {t1}, 7, {t0}\nv_lshrrev_b32 {t0}, 1, {gq}\nv_lshl_add_u32 {t1}, {t0}, 6, {t1}\nv_lshl_add_u32 {t1}, {n15}, 2, {t1}")
    for q in range(4):
        for r in range(4):
            g(f"v_cvt_pk_bf16_f32 {st[4*q+r]}, {dre[4*q+r]}, {dim[4*q+r]}")
            g(f"buffer_store_dword {st[4*q+r]}, {t1}, {g.q_ws}, {a[2]} offen offset:{(q*4+r)*256} sc1")
    V.free(st, ga, dre, dim)
    if g.fast and os.environ.get("WB") == "b1end":
        sk = g.label("wb")
        g(f"s_cmp_lg_u32 {g.s_j}, 20\ns_cbranch_scc1 {sk}\ns_cmp_lg_u32 {g.s_layer}, 1\ns_cbranch_scc1 {sk}\ns_cmp_lg_u32 {g.s_w}, 3\ns_cbranch_scc1 {sk}")
        g.lines.append("buffer_wbl2 sc1")
        g(f"{sk}:")
    g(f"{done}:")
    V.free(n15, gq, va, vs); g.S.free(sg, ss)
    g.stamp(24)

def b2(g, lay):
    a = g.s_a; t0, t1 = g.v_t0, g.v_t1; L = g.v_lane; V = g.V; sc = g.sc
    g.c("==== B2 ====")
    n15, gq = g.vv("n15"), g.vv("gq")
    g(f"v_and_b32 {n15}, 15, {L}\nv_lshrrev_b32 {gq}, 4, {L}")
    vd, vm_ = g.vv("vd"), g.vv("vmir"); tau = g.vv("tau")
    g(f"s_lshl_b32 {a[0]}, {g.s_j}, 3\ns_add_u32 {a[0]}, {a[0]}, {g.s_tb}")
    for mir, dst in ((0, vd), (1, vm_)):
        g(f"v_lshrrev_b32 {tau}, 1, {gq}\nv_lshlrev_b32 {tau}, 7, {tau}\nv_add_u32 {tau}, {a[0]}, {tau}")
        if mir: g(f"v_sub_u32 {tau}, 256, {tau}\nv_and_b32 {tau}, 255, {tau}")
        g(f"v_and_b32 {t0}, 15, {tau}\nv_lshlrev_b32 {dst}, 10, {t0}")
        g(f"v_bfe_u32 {t0}, {tau}, 4, 2\nv_lshl_add_u32 {dst}, {t0}, 8, {dst}")
        g(f"v_bfe_u32 {t0}, {tau}, 6, 1\nv_lshl_add_u32 {dst}, {t0}, 7, {dst}\nv_lshrrev_b32 {t0}, 7, {tau}\nv_lshl_add_u32 {dst}, {t0}, 6, {dst}")
        if mir: g(f"v_and_b32 {t0}, 8, {n15}\nv_and_b32 {t1}, 7, {n15}\nv_sub_u32 {t1}, 7, {t1}\nv_add_u32 {t0}, {t0}, {t1}\nv_lshl_add_u32 {dst}, {t0}, 2, {dst}")
        else: g(f"v_lshl_add_u32 {dst}, {n15}, 2, {dst}")
        g(f"v_and_b32 {t0}, 1, {gq}\ns_mov_b32 {a[1]}, {4*ZSZ}\nv_mul_lo_u32 {t0}, {t0}, {a[1]}\nv_add_u32 {dst}, {dst}, {t0}")
    V.free(tau)
    vx = g.vv("vx")
    g(f"s_lshr_b32 {a[1]}, {g.s_j}, 1\ns_mul_i32 {a[1]}, {a[1]}, 40960\ns_and_b32 {a[2]}, {g.s_j}, 1\ns_lshl_b32 {a[2]}, {a[2]}, 8\ns_add_u32 {a[1]}, {a[1]}, {a[2]}")
    g(f"s_mul_i32 {a[2]}, {g.s_w}, 10240\ns_add_u32 {a[1]}, {a[1]}, {a[2]}\ns_mul_i32 {a[2]}, {g.s_tb}, {XSZ}\ns_add_u32 {a[1]}, {a[1]}, {a[2]}")
    g(f"v_lshlrev_b32 {vx}, 4, {n15}\nv_lshrrev_b32 {t0}, 1, {gq}\nv_lshl_add_u32 {vx}, {t0}, 9, {vx}\nv_and_b32 {t0}, 1, {gq}\nv_lshl_add_u32 {vx}, {t0}, 10, {vx}\nv_add_u32 {vx}, {a[1]}, {vx}")
    done = g.label("b2d")
    act = g.sv("act")
    g(f"s_cmp_lt_u32 {g.s_j}, 16\ns_cselect_b32 {act}, 1, 0")
    xr = g.vv("xr", 20, 4)
    sk = g.label("b2p")
    g(f"s_cmp_eq_u32 {act}, 0\ns_cbranch_scc1 {sk}")
    for q in range(5):
        g(f"s_add_u32 {a[2]}, {g.s_x1}, {2048*q}")
        g.lines.append(f"buffer_load_dwordx4 {xr[4*q:4*q+4]}, {vx}, {g.q_ws}, {a[2]} offen sc1")
    g.lines.append("s_waitcnt vmcnt(0)")
    for q in range(5): swap_quad(g, xr[4*q:4*q+4])
    g(f"{sk}:")
    g.stamp(26)
    g(f"s_cmp_eq_u32 {act}, 0\ns_cbranch_scc1 {done}")
    za = g.vv("za", 48, 4); y = g.vv("y", 40, 4)
    sb, su = g.sv("sb"), g.sv("su")
    pa = za[40:42]; pv = za[42:44]; pb = za[44]; pu = za[45]; pm = za[46]
    for q in range(2):
        g(f"v_lshrrev_b32 {pb}, 3, {L}")
        if q: g(f"v_add_u32 {pb}, 8, {pb}\nv_min_u32 {pb}, 9, {pb}")
        g(f"s_mul_i32 {sb}, {g.s_w}, 10\nv_add_u32 {pb}, {sb}, {pb}")
        g(f"v_subrev_u32 {pu}, 19, {pb}\nv_cmp_lt_u32 vcc, 20, {pb}\nv_cndmask_b32 {pu}, {pb}, {pu}, vcc")
        g(f"v_readlane_b32 {a[2]}, {vd}, 0\nv_readlane_b32 {a[3]}, {vm_}, 0")
        g(f"v_mov_b32 {pm}, {a[2]}\nv_mov_b32 {t0}, {a[3]}\nv_cndmask_b32 {pm}, {pm}, {t0}, vcc")
        g(f"v_lshl_add_u32 {pa[q]}, {pu}, 14, {pm}\nv_and_b32 {t0}, 7, {L}\ns_mov_b32 {a[2]}, {ZSZ}\nv_mul_lo_u32 {t0}, {t0}, {a[2]}\nv_add_u32 {pa[q]}, {pa[q]}, {t0}")
    oad = g.vv("oad", 10)
    skl = g.label("oa")
    g(f"s_cmp_eq_u32 {g.s_layer}, 0\ns_cbranch_scc1 {skl}")
    cod, up, dn_, bs = y[8], y[9], y[10], y[11]
    g(f"s_mul_i32 {sb}, {g.s_w}, 20\nv_lshrrev_b32 {cod}, 1, {gq}\nv_add_u32 {cod}, {sb}, {cod}")
    g(f"v_and_b32 {t0}, 1, {gq}\nv_mul_u32_u24 {bs}, 640, {t0}\nv_mul_u32_u24 {t0}, 1296, {n15}\nv_add_u32 {bs}, {bs}, {t0}\nv_add_u32 {bs}, {L_OUT}, {bs}")
    g(f"v_lshl_add_u32 {up}, {cod}, 1, {bs}\nv_subrev_u32 {up}, 4, {up}")
    g(f"v_lshlrev_b32 {t0}, 1, {cod}\nv_sub_u32 {dn_}, {bs}, {t0}\nv_add_u32 {dn_}, 240, {dn_}")
    for bl in range(10):
        if bl: g(f"v_add_u32 {up}, 4, {up}\nv_subrev_u32 {dn_}, 4, {dn_}")
        g(f"v_cmp_lt_u32 vcc, {41 - 2*bl}, {cod}\nv_cndmask_b32 {oad[bl]}, {up}, {dn_}, vcc")
    g(f"v_lshrrev_b32 {t0}, 1, {gq}\nv_mul_u32_u24 {t1}, 80, {t0}\nv_add_u32 {t1}, {t1}, {bs}\ns_cmp_eq_u32 {g.s_w}, 0\ns_cselect_b64 vcc, -1, 0\nv_cndmask_b32 {oad[0]}, {oad[0]}, {t1}, vcc")
    g(f"v_mul_u32_u24 {t1}, 156, {t0}\nv_add_u32 {t1}, {t1}, {bs}\nv_add_u32 {t1}, 2, {t1}\nv_cndmask_b32 {oad[1]}, {oad[1]}, {t1}, vcc")
    g(f"{skl}:")
    zad = g.vv("zad", 8); s0, s1 = g.sv("zs0"), g.sv("zs1")
    g(f"s_cmp_eq_u32 {g.s_w}, 3\ns_cselect_b64 vcc, -1, 0\nv_cndmask_b32 {zad[0]}, {vd}, {vm_}, vcc")
    g(f"s_cmp_ge_u32 {g.s_w}, 2\ns_cselect_b64 vcc, -1, 0\nv_cndmask_b32 {zad[4]}, {vd}, {vm_}, vcc")
    for dd in range(1, 4):
        g(f"v_add_u32 {zad[dd]}, {dd*ZSZ}, {zad[0]}\nv_add_u32 {zad[4+dd]}, {dd*ZSZ}, {zad[4]}")
    g(f"s_mul_i32 {s0}, {g.s_w}, 10\ns_add_u32 {s1}, {s0}, 1")
    for r in (s0, s1):
        g(f"s_sub_u32 {su}, {r}, 19\ns_cmp_gt_u32 {r}, 20\ns_cselect_b32 {r}, {su}, {r}\ns_lshl_b32 {r}, {r}, 14\ns_add_u32 {r}, {r}, {g.s_zb}")
    bc = g.vv("bc", 8, 4)
    for q in range(8): g(f"v_accvgpr_read_b32 {bc[q]}, {g.a_b2[q]}")
    cur = g.vv("cur", 8, 4)
    g(f"s_cmp_eq_u32 {g.s_w}, 3\ns_cselect_b64 vcc, -1, 0")
    for q in range(4): g(f"v_cndmask_b32 {cur[q]}, {bc[q]}, {bc[4+q]}, vcc")
    g(f"s_cmp_ge_u32 {g.s_w}, 2\ns_cselect_b64 vcc, -1, 0")
    for q in range(4): g(f"v_cndmask_b32 {cur[4+q]}, {bc[q]}, {bc[4+q]}, vcc")
    for bl in range(10):
        g(f"v_lshlrev_b32 {y[4*bl]}, 16, {xr[2*bl]}\nv_and_b32 {y[4*bl+1]}, 0xffff0000, {xr[2*bl]}\nv_lshlrev_b32 {y[4*bl+2]}, 16, {xr[2*bl+1]}\nv_and_b32 {y[4*bl+3]}, 0xffff0000, {xr[2*bl+1]}")
    g("s_barrier")
    lq = g.label("zq"); dq = g.label("zqd")
    g(f"s_mov_b32 {g.s_spin}, {1 << 18}")
    g(f"{lq}:")
    for q in range(2): g.lines.append(f"buffer_load_dword {pv[q]}, {pa[q]}, {g.q_ws}, {g.s_zb} offen sc1")
    g.lines.append("s_waitcnt vmcnt(0)")
    g(f"v_max_u32 {t1}, {pv[0]}, {pv[1]}\nv_cmp_eq_u32 vcc, -1, {t1}\ns_cbranch_vccz {dq}")
    g(f"s_sub_u32 {g.s_spin}, {g.s_spin}, 1\ns_cmp_lg_u32 {g.s_spin}, 0\ns_cbranch_scc1 {lq}")
    g(f"{dq}:")
    g.stamp(25)
    lp = g.label("zp"); dn = g.label("zd")
    g(f"s_mov_b32 {g.s_spin}, {1 << 16}")
    g(f"{lp}:")
    for bl in range(10):
        if bl == 1: g(f"s_mov_b32 {su}, {s1}")
        if bl > 1: g(f"s_add_u32 {su}, {su}, 16384")
        for dd in range(4):
            g.lines.append(f"buffer_load_dword {za[4*bl+dd]}, {zad[(4 if bl else 0) + dd]}, {g.q_ws}, {su if bl else s0} offen sc1")
    g.stamp(15) if g.fine else None
    g.lines.append("s_waitcnt vmcnt(0)")
    g(f"v_max3_u32 {t1}, {za[0]}, {za[1]}, {za[2]}")
    for q in range(3, 39, 2): g(f"v_max3_u32 {t1}, {t1}, {za[q]}, {za[q+1]}")
    g(f"v_max_u32 {t1}, {t1}, {za[39]}\nv_cmp_eq_u32 vcc, -1, {t1}\ns_cbranch_vccz {dn}")
    g(f"s_sub_u32 {g.s_spin}, {g.s_spin}, 1\ns_cmp_lg_u32 {g.s_spin}, 0\ns_cbranch_scc1 {lp}")
    g(f"{dn}:")
    if g.fast and os.environ.get("WB", "b2") == "b2":
        sk = g.label("wb")
        g(f"s_cmp_lg_u32 {g.s_j}, 15\ns_cbranch_scc1 {sk}\ns_cmp_lg_u32 {g.s_layer}, 1\ns_cbranch_scc1 {sk}\ns_cmp_lg_u32 {g.s_w}, 3\ns_cbranch_scc1 {sk}")
        g.lines.append("buffer_wbl2 sc1")
        g(f"{sk}:")
    for bl in range(10):
        g(f"v_mfma_f32_16x16x32_bf16 {y[4*bl:4*bl+4]}, {za[4*bl:4*bl+4]}, {cur[4:8] if bl else cur[0:4]}, {y[4*bl:4*bl+4]}")
    V.free(bc, cur)
    g.stamp(28) if g.fine else None
    xf = g.vv("xf", 4); sm, sq = g.vv("sm", 2, 2), g.vv("sq", 2, 2)
    x2p = za[0:20]
    for q in range(20): g(f"v_cvt_pk_bf16_f32 {x2p[q]}, {y[2*q]}, {y[2*q+1]}")
    last = g.label("b2last"); join = g.label("b2join")
    g(f"s_cmp_lg_u32 {g.s_layer}, 0\ns_cbranch_scc1 {last}")
    g(f"v_pk_add_f32 {sm}, {y[0:2]}, {y[2:4]}\nv_pk_mul_f32 {sq}, {y[0:2]}, {y[0:2]}\nv_pk_fma_f32 {sq}, {y[2:4]}, {y[2:4]}, {sq}")
    for q in range(2, 20):
        g(f"v_pk_add_f32 {sm}, {sm}, {y[2*q:2*q+2]}\nv_pk_fma_f32 {sq}, {y[2*q:2*q+2]}, {y[2*q:2*q+2]}, {sq}")
    g(f"v_add_f32 {sm[0]}, {sm[0]}, {sm[1]}\nv_add_f32 {sm[1]}, {sq[0]}, {sq[1]}")
    for x in (sm[0], sm[1]):
        g.xq16(x, t0, "v_add_f32"); g.xhalf(x, t0, "v_add_f32")
    g(f"s_lshl_b32 {a[2]}, {g.s_w}, 7\ns_add_u32 {a[2]}, {a[2]}, {L_ST2}\nv_lshlrev_b32 {t1}, 3, {n15}\nv_add_u32 {t0}, {a[2]}, {t1}")
    g.lines.append(f"ds_write_b64 {t0}, {sm}")
    g.lines.append("s_waitcnt lgkmcnt(0)")
    g("s_barrier")
    g(f"v_add_u32 {t1}, {L_ST2}, {t1}")
    pr = za[20:28]
    for w in range(4): g.lines.append(f"ds_read_b64 {pr[2*w:2*w+2]}, {t1} offset:{128*w}")
    g.lines.append("s_waitcnt lgkmcnt(0)")
    g(f"v_pk_add_f32 {pr[0:2]}, {pr[0:2]}, {pr[2:4]}\nv_pk_add_f32 {pr[4:6]}, {pr[4:6]}, {pr[6:8]}\nv_pk_add_f32 {sm}, {pr[0:2]}, {pr[4:6]}")
    g(f"v_mul_f32 {sm[0]}, {lit(1/640)}, {sm[0]}\nv_mul_f32 {sm[1]}, {lit(1/640)}, {sm[1]}")
    g(f"v_fma_f32 {sq[0]}, -{sm[0]}, {sm[0]}, {sm[1]}\nv_add_f32 {sq[0]}, {lit(1e-5)}, {sq[0]}\nv_rsq_f32 {sq[0]}, {sq[0]}")
    g(f"v_mul_f32_e64 {sm[0]}, -{sm[0]}, {sq[0]}")
    for q in range(20):
        g(f"v_pk_fma_f32 {y[2*q:2*q+2]}, {y[2*q:2*q+2]}, {sq}, {sm} op_sel_hi:[1,0,0]")
    xn = za[28:48]
    for q in range(20): g(f"v_cvt_pk_bf16_f32 {xn[q]}, {y[2*q]}, {y[2*q+1]}")
    g(f"s_mov_b32 {a[2]}, {XN_IN[1]}")
    for q in range(5):
        swap_quad(g, xn[4*q:4*q+4])
        g.lines.append(f"buffer_store_dwordx4 {xn[4*q:4*q+4]}, {vx}, {g.q_ws}, {a[2]} offen{sc}")
        g(f"s_add_u32 {a[2]}, {a[2]}, 2048")
    g(f"s_mov_b32 {a[2]}, {X_IN[1]}")
    for q in range(5):
        swap_quad(g, x2p[4*q:4*q+4])
        g.lines.append(f"buffer_store_dwordx4 {x2p[4*q:4*q+4]}, {vx}, {g.q_ws}, {a[2]} offen{sc}")
        g(f"s_add_u32 {a[2]}, {a[2]}, 2048")
    g(f"s_branch {join}")
    g(f"{last}:")
    g.stamp(29) if g.fine else None
    for bl in range(10):
        ad = oad[bl]
        g.lines.append(f"ds_write_b16 {ad}, {x2p[2*bl]}")
        g.lines.append(f"ds_write_b16_d16_hi {ad}, {x2p[2*bl]} offset:160")
        g.lines.append(f"ds_write_b16 {ad}, {x2p[2*bl+1]} offset:320")
        g.lines.append(f"ds_write_b16_d16_hi {ad}, {x2p[2*bl+1]} offset:480")
    g.lines.append("s_waitcnt lgkmcnt(0)")
    g("s_barrier")
    g.stamp(30) if g.fine else None
    q_out = g.q_in
    g.srd(q_out, g.p_in[8], g.p_in[9], S * 1280)
    ro = y[4:24]; oa = y[24]; la = y[25]
    g(f"v_lshrrev_b32 {t0}, 4, v0\nv_and_b32 {t1}, 15, v0\nv_mul_u32_u24 {la}, 1296, {t0}\nv_lshl_add_u32 {la}, {t1}, 4, {la}\nv_add_u32 {la}, {L_OUT}, {la}")
    g(f"s_lshl_b32 {a[2]}, {g.s_j}, 3\ns_add_u32 {a[2]}, {a[2]}, {g.s_tb}\nv_lshlrev_b32 {t0}, 7, {t0}\nv_add_u32 {t0}, {a[2]}, {t0}\nv_mul_u32_u24 {oa}, 1280, {t0}\nv_lshl_add_u32 {oa}, {t1}, 4, {oa}")
    for c in range(5): g.lines.append(f"ds_read_b128 {ro[4*c:4*c+4]}, {la} offset:{256*c}")
    g.lines.append("s_waitcnt lgkmcnt(0)")
    for c in range(5): g.lines.append(f"buffer_store_dwordx4 {ro[4*c:4*c+4]}, {oa}, {q_out}, 0 offen offset:{256*c}" + os.environ.get("OUTF", " sc1"))
    g(f"{join}:")
    V.free(za, y, xf, sm, sq, oad, zad); g.S.free(sb, su, s0, s1)
    g(f"{done}:")
    V.free(n15, gq, vd, vm_, vx, xr); g.S.free(act)
    g.stamp(27)
    fin = g.label("fin")
    g(f"s_cmp_lg_u32 {g.s_layer}, 0\ns_cbranch_scc1 {fin}")
    g.local_barrier(g.fast, keep=5)
    g.stamp(28)
    g(f"s_mov_b32 {g.s_layer}, 1")
    g(f"s_branch {lay}")
    g(f"{fin}:")
```

```python
import copy, math, os
from emit import *
from maps import *
from gen_main import lit, f2u, LOG2E

BIG = 0x7ff00000

def emit_all(g):
    prologue(g)
    s0_loads(g)
    snapV, snapA, snapS = copy.deepcopy(g.V), copy.deepcopy(g.A), copy.deepcopy(g.S)
    for fast in g.paths:
        g.V, g.A, g.S = copy.deepcopy(snapV), copy.deepcopy(snapA), copy.deepcopy(snapS)
        g.vm = []; g.lg = []
        body(g, fast)
        g("s_endpgm")
    g.lines.extend(g.subs)
    g("Lexit:")
    g("s_endpgm")
    g("Lcode_end:")

def goto_path(g, entry):
    if len(g.paths) == 1:
        g(f"s_branch L{entry}_{'fast' if g.paths[0] else 'slow'}")
    else:
        l = g.label("gp")
        g(f"s_cmp_eq_u32 {g.s_fast}, 0\ns_cbranch_scc1 {l}\ns_branch L{entry}_fast\n{l}:\ns_branch L{entry}_slow")

def prologue(g):
    g.paths = {"fast": [True], "slow": [False]}.get(g.force, [True, False])
    g("s_cmp_ge_u32 s2, 256\ns_cbranch_scc1 Lexit_near\ns_branch Lstart\nLexit_near:\ns_endpgm\nLstart:")
    g.p_in = g.S.alloc("ptrs", 14, at=16)
    g.q_ws = g.S.alloc("q_ws", 4, at=8)
    g.q_in = g.S.alloc("q_in", 4, at=12)
    g.q_tab = g.S.alloc("q_tab", 4, at=32); g.s_ret = g.S.alloc("ret", 2, at=36)
    p = g.p_in
    g(f"s_load_dwordx4 {p[0:4]}, s[0:1], 0\ns_load_dwordx4 {p[4:8]}, s[0:1], 16")
    g(f"s_load_dwordx4 {p[8:12]}, s[0:1], 72\ns_load_dwordx2 {p[12:14]}, s[0:1], 88")
    g.s_tb = g.sv("tb"); g.s_j = g.sv("j"); g.s_w = g.sv("w"); g.s_ex = g.sv("ex", 2); g.s_t = g.sv("t", 2)
    g.s_wost = g.sv("wost"); g.s_spin = g.sv("spin"); g.s_lep = g.sv("lep"); g.s_fast = g.sv("fast"); g.s_layer = g.sv("layer")
    g.s_a = g.sv("a", 8)
    if g.stamps:
        g.s_t2 = g.sv("t2", 2); g.v_st = g.vv("vst", 3)
        g(f"v_mov_b32 {g.v_st[0]}, 0\nv_mov_b32 {g.v_st[1]}, 0")
    g.v_lane = g.vv("lane"); g.v_t0 = g.vv("t0"); g.v_t1 = g.vv("t1"); g.v_lfown = g.vv("lfown"); g.v_lfall = g.vv("lfall")
    g(f"s_and_b32 {g.s_tb}, s2, 7\ns_lshr_b32 {g.s_j}, s2, 3")
    g(f"v_and_b32 {g.v_lane}, 63, v0\nv_lshrrev_b32 {g.v_t0}, 6, v0")
    g(f"v_readfirstlane_b32 {g.s_w}, {g.v_t0}")
    g(f"s_mov_b32 {g.s_lep}, 0\ns_mov_b32 {g.s_layer}, 0")
    g(f"s_lshl_b32 {g.s_a[0]}, {g.s_tb}, 7")
    g(f"s_lshl_b32 {g.s_a[1]}, {g.s_j}, 2\ns_add_u32 {g.s_a[1]}, {g.s_a[1]}, {g.s_a[0]}")
    g(f"v_mov_b32 {g.v_lfown}, {g.s_a[1]}")
    g(f"v_and_b32 {g.v_lfall}, 31, {g.v_lane}\nv_lshlrev_b32 {g.v_lfall}, 2, {g.v_lfall}\nv_add_u32 {g.v_lfall}, {g.s_a[0]}, {g.v_lfall}")
    g.lines.append("s_waitcnt lgkmcnt(0)")
    g.srd(g.q_ws, p[12], p[13], 256 << 20)
    import tables
    g.toff, _ = tables.build()
    q = g.q_tab
    g(f"s_getpc_b64 {q[0:2]}\nLpc:\ns_and_b32 {q[1]}, {q[1]}, 0xffff\ns_mov_b32 {q[2]}, fnet_tab_end-Lpc\ns_mov_b32 {q[3]}, 0x20000")
    g.stamp(0)

def s0_loads(g):
    p = g.p_in; a = g.s_a
    V = g.V
    t0, t1 = g.v_t0, g.v_t1
    import ph_s0, ph_p1
    g.v_l31 = g.vv("l31")
    g(f"v_and_b32 {g.v_l31}, 31, {g.v_lane}")
    g.v_big = g.vv("big", 128, 4)
    g.v_phi = g.vv("phiA", 8, 4)
    sk = g.label("ph")
    g(f"s_cmp_lg_u32 {g.s_w}, 0\ns_cbranch_scc1 {sk}")
    g.srd(g.q_in, p[4], p[5], 32 * 400 * 2)
    g(f"v_lshlrev_b32 {t0}, 4, {g.v_lane}\ns_mul_i32 {a[4]}, {g.s_j}, 800\ns_mov_b32 m0, {L_PHI}")
    g("s_nop 0")
    g.lines.append(f"buffer_load_dwordx4 {t0}, {g.q_in}, {a[4]} offen lds")
    g(f"{sk}:")
    g.srd(g.q_in, p[0], p[1], S * 1280)
    vp = g.vv("p"); vx = g.vv("vx")
    g(f"s_lshl_b32 {a[4]}, {g.s_j}, 3\ns_lshl_b32 {a[5]}, {g.s_w}, 1\ns_add_u32 {a[4]}, {a[4]}, {a[5]}")
    g(f"v_lshrrev_b32 {vp}, 5, {g.v_lane}\nv_add_u32 {vp}, {a[4]}, {vp}")
    g(f"v_lshrrev_b32 {t0}, 4, {vp}\nv_lshlrev_b32 {t0}, 3, {t0}\nv_and_b32 {t1}, 15, {vp}\nv_lshl_add_u32 {t0}, {t1}, 7, {t0}\nv_add_u32 {t0}, {g.s_tb}, {t0}")
    g(f"v_mul_u32_u24 {vx}, 1280, {t0}\nv_lshl_add_u32 {vx}, {g.v_l31}, 3, {vx}")
    g(f"v_cmp_gt_u32 vcc, 20, {g.v_l31}\nv_mov_b32 {t1}, {BIG}\nv_cndmask_b32 {vx}, {t1}, {vx}, vcc")
    src = g.vv("xsrc", 16, 4)
    for i in range(8):
        g.lines.append(f"buffer_load_dwordx2 {src[2*i:2*i+2]}, {vx}, {g.q_in}, 0 offen offset:{160*i}")
    V.free(vx, vp)
    PM = sum(1 << j for j in (13, 14, 15, 16, 17, 18, 20, 21, 23, 24))
    g(f"s_lshl_b32 {a[4]}, 1, {g.s_j}\ns_sub_u32 {a[5]}, {a[4]}, 1\ns_and_b32 {a[5]}, {a[5]}, {PM}\ns_bcnt1_i32_b32 {a[5]}, {a[5]}")
    g(f"s_lshl_b32 {a[5]}, {a[5]}, 3\ns_add_u32 {a[5]}, {a[5]}, {g.s_tb}\ns_and_b32 {a[4]}, {a[4]}, {PM}\ns_cselect_b32 {g.s_wost}, {a[5]}, 99")
    lw0 = g.label("w0"); lx = g.label("lx")
    ph_p1.p1_alloc(g)
    pb = g.vv("pub", 4); q_dbg = g.S.alloc("q_dbg", 4)
    g.wo_rows = g.S.alloc("worows", 8)
    gs = ph_s0.gather_alloc(g)
    pf = (g.sv("wpf"), g.vv("wpfa"))
    g.srd(gs["q_w"], p[2], p[3], 640 * 3840)
    g.srd(q_dbg, p[10], p[11], 256)
    g(f"s_mov_b32 {g.s_fast}, 0")
    g(f"s_cmp_eq_u32 {g.s_w}, 0\ns_cbranch_scc1 {lw0}")
    g(f"s_mul_i32 {a[0]}, {g.s_j}, 3\ns_add_u32 {a[0]}, {a[0]}, {g.s_w}\ns_sub_u32 {a[0]}, {a[0]}, 1\ns_lshl_b32 {a[0]}, {a[0]}, 10")
    g(f"v_lshlrev_b32 {t0}, 4, {g.v_lane}")
    g.lines.append(f"buffer_load_dwordx4 {g.v_big[124:128]}, {t0}, {g.q_tab}, {a[0]} offen")
    def h1_dma():
        g(f"v_lshlrev_b32 {t0}, 4, {g.v_lane}")
        g(f"s_mul_i32 {a[0]}, {g.s_w}, 5120\ns_add_u32 {a[1]}, {a[0]}, {L_H1 - 5120}\ns_add_u32 {a[0]}, {a[0]}, fnet_tab-Lpc+{g.toff['H1'] - 5120}")
        for n in range(5):
            g(f"s_add_u32 m0, {a[1]}, {1024*n}")
            g(f"s_add_u32 {a[2]}, {a[0]}, {1024*n}")
            g.lines.append(f"buffer_load_dwordx4 {t0}, {g.q_tab}, {a[2]} offen lds")
    H1LATE = os.environ.get("H1LATE") == "1"
    if not H1LATE: h1_dma()
    ph_s0.tab_touch(g, t0)
    NROLE = 2 if H1LATE else 7
    if os.environ.get("TLB") == "1":
        g(f"s_cmp_eq_u32 {g.s_w}, 3\ns_cselect_b32 {a[1]}, 0, {BIG}")
        g(f"v_lshlrev_b32 {t0}, 20, {g.v_lane}\nv_cmp_gt_u32 vcc, {(WS_USED >> 20) + 1}, {g.v_lane}\nv_mov_b32 {t1}, {BIG}\nv_cndmask_b32 {t0}, {t1}, {t0}, vcc\nv_add_u32 {t0}, {a[1]}, {t0}")
        g.lines.append(f"buffer_load_dword {g.v_big[122]}, {t0}, {g.q_ws}, 0 offen")
        q = g.S.alloc("q_o", 4)
        g.srd(q, p[8], p[9], S * 1280)
        g(f"v_min_u32 {t0}, 63, {g.v_lane}\nv_lshlrev_b32 {t0}, 19, {t0}\nv_cmp_gt_u32 vcc, 6, {g.v_lane}\nv_cndmask_b32 {t0}, {t1}, {t0}, vcc\nv_add_u32 {t0}, {a[1]}, {t0}")
        g.lines.append(f"buffer_load_dword {g.v_big[121]}, {t0}, {q}, 0 offen")
        g.S.free(q)
        NROLE = 9
    g(f"s_branch {lx}")
    g(f"{lw0}:")
    g(f"s_mov_b32 {g.s_fast}, 1")
    sk = g.label("wz")
    g(f"s_cmp_ge_u32 {g.s_wost}, 80\ns_cbranch_scc1 {sk}")
    ph_s0.wo_touch(g)
    ph_s0.wo_rows(g)
    g(f"s_mov_b32 {g.s_fast}, 2")
    g(f"{sk}:")
    kp = g.v_big[0:4]
    for q_ in range(4): g(f"v_mov_b32 {kp[q_]}, -1")
    g(f"s_lshl_b32 {a[4]}, {g.s_j}, 14\ns_lshl_b32 {a[5]}, {g.s_tb}, 11\ns_add_u32 {a[4]}, {a[4]}, {a[5]}\nv_lshlrev_b32 {t0}, 4, {g.v_lane}")
    for l in range(2):
        g(f"s_add_u32 {a[5]}, {a[4]}, {KVB[l]}")
        g.lines.append(f"buffer_store_dwordx4 {kp}, {t0}, {g.q_ws}, {a[5]} offen sc1")
        g.lines.append(f"buffer_store_dwordx4 {kp}, {t0}, {g.q_ws}, {a[5]} offen offset:1024 sc1")
    g(f"{lx}:")
    NPF0, NPF1 = [int(x) for x in os.environ.get('NPF', '10,8').split(',')]
    rest = ph_s0.w_prefetch(g, NPF0, gs["q_w"], pf)
    ph_s0.gather_setup(g, gs)
    ph_p1.p1_setup(g)
    publish_setup(g, pb, q_dbg)
    st = ln_addr(g)
    call_phi = g.make_sub("phi", lambda: ph_s0.phi_build(g, wait=False))
    call_raw = g.make_sub("raw", lambda: raw_stage(g, src, st))
    xa = g.label("xa"); xb = g.label("xb"); xc = g.label("xc")
    g(f"s_cmp_eq_u32 {g.s_fast}, 0\ns_cbranch_scc1 {xa}\ns_cmp_eq_u32 {g.s_fast}, 1\ns_cbranch_scc1 {xb}")
    g.lines.append(f"s_waitcnt vmcnt({NPF0 + 6})")
    g(f"s_branch {xc}\n{xb}:")
    g.lines.append(f"s_waitcnt vmcnt({NPF0 + 4})")
    g(f"s_branch {xc}\n{xa}:")
    g.lines.append(f"s_waitcnt vmcnt({NPF0 + NROLE})")
    g(f"{xc}:")
    g.stamp(3)
    emit_ln(g, src, st, rest, NPF1)
    lw0 = g.label("w0b")
    g(f"s_cmp_eq_u32 {g.s_w}, 0\ns_cbranch_scc1 {lw0}")
    g("s_barrier")
    g.stamp(4)
    for _ in rest: pass
    call_raw()
    call_phi()
    g.lines.append("s_waitcnt vmcnt(0)")
    g.stamp(6)
    g("s_barrier")
    ph_s0.w_gather(g, gs)
    g.lines.append("s_waitcnt vmcnt(0) lgkmcnt(0)")
    g.stamp(1)
    g("s_barrier")
    if H1LATE: h1_dma()
    g(f"v_mov_b32 {t1}, {L_MISC}")
    g.lines.append(f"ds_read_b32 {t0}, {t1}")
    g.lines.append("s_waitcnt lgkmcnt(0)")
    g(f"v_readfirstlane_b32 {g.s_fast}, {t0}")
    goto_path(g, "entry")
    g(f"{lw0}:")
    g("s_barrier")
    g.stamp(4)
    sk = g.label("z0"); sk2 = g.label("z1")
    g(f"v_mov_b32 {t0}, 0\ns_cmp_lg_u32 {g.s_j}, 0\ns_cbranch_scc1 {sk}")
    g.lines.append(f"buffer_store_dword {t0}, {g.v_lfall}, {g.q_ws}, 0 offen sc1")
    g(f"{sk}:")
    np_ = g.label("np"); nk = g.label("nk"); n2 = g.label("n2")
    g(f"s_cmp_ge_u32 {g.s_wost}, 80\ns_cbranch_scc1 {np_}")
    ph_s0.wo_stage(g)
    g(f"v_mov_b32 {t0}, 0\ns_lshl_b32 {a[4]}, {g.s_wost}, 6\ns_add_u32 {a[4]}, {a[4]}, {WOFL}\nv_mov_b32 {t1}, {a[4]}\ns_mov_b64 {g.s_ex}, exec\ns_mov_b64 exec, 1")
    g.lines.append(f"buffer_store_dword {t0}, {t1}, {g.q_ws}, 0 offen sc1")
    g(f"s_mov_b64 exec, {g.s_ex}")
    g(f"{np_}:")
    ph_s0.x_store(g, raw=False, sc=" sc1")
    g(f"s_cmp_ge_u32 {g.s_wost}, 80\ns_cbranch_scc1 {n2}")
    g.lines.append("s_waitcnt vmcnt(11)")
    wf = ph_s0.wo_frag_a(g, guard=False)
    ph_s0.wo_frag_b(g, wf, guard=False)
    g.lines.append("s_waitcnt vmcnt(10)")
    g(f"s_branch {nk}\n{n2}:")
    g.lines.append("s_waitcnt vmcnt(0)")
    g(f"{nk}:")
    if g.stop_after == "s0b": g.stamp(10)
    publish_purity(g, pb, q_dbg)
    if os.environ.get("PUBW") == "1":
        g.lines.append("s_waitcnt vmcnt(0)")
        g.stamp(15)
    g("s_barrier")
    g.stamp(5)
    call_raw()
    call_phi()
    ph_s0.x_store(g, raw=True, sc=" sc1")
    if g.stop_after == "s0b": g.stamp(11)
    if g.stop_after == "s0b": g.stamp(12)
    g("s_barrier")
    if g.stop_after == "s0b": g.stamp(13)
    ph_s0.wo_flag(g)
    if g.stop_after == "s0b": g.stamp(14)
    purity(g, pb, q_dbg)
    g.stamp(2)
    g.lines.append("s_waitcnt lgkmcnt(0)")
    g("s_barrier")
    V.free(src, st)
    V.free(pb); g.S.free(q_dbg, g.wo_rows)
    ph_s0.gather_free(g, gs)
    g.S.free(pf[0]); V.free(pf[1])
    goto_path(g, "entry")

def ln_addr(g):
    a = g.s_a; V = g.V; t0, t1 = g.v_t0, g.v_t1
    st = g.vv("xst", 4); e2 = g.vv("e2"); rb = g.vv("rb")
    g(f"s_lshl_b32 {a[4]}, {g.s_w}, 5\ns_add_u32 {a[4]}, {a[4]}, {L_XST}\nv_lshrrev_b32 {rb}, 5, {g.v_lane}\nv_lshlrev_b32 {rb}, 4, {rb}\nv_add_u32 {rb}, {a[4]}, {rb}")
    for c in range(4):
        g(f"v_lshl_add_u32 {e2}, {g.v_l31}, 2, {c}")
        g.code_of_e2(st[c], e2, t0)
        g(f"v_lshl_add_u32 {st[c]}, {st[c]}, 7, {rb}")
    g(f"v_cmp_gt_u32 vcc, 20, {g.v_l31}\nv_mov_b32 {t0}, {L_XST + 20480}")
    for c in range(4): g(f"v_cndmask_b32 {st[c]}, {t0}, {st[c]}, vcc")
    V.free(e2, rb)
    return st

def sprinkle(g, body, filler, every):
    k = 0
    for l in body:
        g.lines.append(l); k += 1
        if filler is not None and k % every == 0 and not l.startswith("v_cmp") and not l.endswith(":"):
            try: next(filler)
            except StopIteration: filler = None

def emit_ln(g, src, st, filler, nfill=0):
    a = g.s_a; V = g.V; t0, t1 = g.v_t0, g.v_t1
    real = g.lines
    g.lines = []
    xf = g.vv("xf", 32, 4); sm, sq = g.vv("sm", 2, 2), g.vv("sq", 2, 2)
    pk = g.vv("pk", 16, 4)
    for i in range(8):
        g(f"v_lshlrev_b32 {xf[0*8+i]}, 16, {src[2*i]}\nv_and_b32 {xf[1*8+i]}, 0xffff0000, {src[2*i]}")
        g(f"v_lshlrev_b32 {xf[2*8+i]}, 16, {src[2*i+1]}\nv_and_b32 {xf[3*8+i]}, 0xffff0000, {src[2*i+1]}")
    g(f"v_pk_add_f32 {sm}, {xf[0:2]}, {xf[2:4]}\nv_pk_mul_f32 {sq}, {xf[0:2]}, {xf[0:2]}\nv_pk_fma_f32 {sq}, {xf[2:4]}, {xf[2:4]}, {sq}")
    for i in range(2, 16):
        g(f"v_pk_add_f32 {sm}, {sm}, {xf[2*i:2*i+2]}\nv_pk_fma_f32 {sq}, {xf[2*i:2*i+2]}, {xf[2*i:2*i+2]}, {sq}")
    g(f"v_add_f32 {sm[0]}, {sm[0]}, {sm[1]}\nv_add_f32 {sq[0]}, {sq[0]}, {sq[1]}")
    g.red32(sm[0], t0); g.red32(sq[0], t1)
    g(f"v_mul_f32 {sm[0]}, {lit(1/640)}, {sm[0]}\nv_mul_f32 {sq[0]}, {lit(1/640)}, {sq[0]}")
    g(f"v_fma_f32 {sq[0]}, -{sm[0]}, {sm[0]}, {sq[0]}\nv_add_f32 {sq[0]}, {lit(1e-5)}, {sq[0]}\nv_rsq_f32 {sq[0]}, {sq[0]}")
    g(f"v_mul_f32_e64 {sm[0]}, -{sm[0]}, {sq[0]}")
    for i in range(16):
        g(f"v_pk_fma_f32 {xf[2*i:2*i+2]}, {xf[2*i:2*i+2]}, {sq}, {sm} op_sel_hi:[1,0,0]")
    for c in range(4):
        for i2 in range(4):
            g(f"v_cvt_pk_bf16_f32 {pk[c*4+i2]}, {xf[c*8+2*i2]}, {xf[c*8+2*i2+1]}")
        g.lines.append(f"ds_write_b128 {st[c]}, {pk[4*c:4*c+4]}")
    g.lines.append("s_waitcnt lgkmcnt(0)")
    V.free(xf, sm, sq, pk)
    body = g.lines; g.lines = real
    if nfill:
        import itertools
        sprinkle(g, body, itertools.islice(filler, nfill), len(body) // (nfill + 1))
    else: g.lines.extend(body)

def raw_stage(g, src, st):
    a = g.s_a
    pk = g.vv("pkr", 8, 4)
    g(f"s_mov_b32 {a[3]}, 0x05040100\ns_mov_b32 {a[4]}, 0x07060302")
    for c in range(4):
        r = pk[4*(c & 1):4*(c & 1) + 4]
        for i2 in range(4):
            g(f"v_perm_b32 {r[i2]}, {src[2*(2*i2+1) + (c >> 1)]}, {src[2*(2*i2) + (c >> 1)]}, {a[3 + (c & 1)]}")
        g.lines.append(f"ds_write_b128 {st[c]}, {r} offset:10240")
    g.V.free(pk)

def publish_setup(g, pb, q):
    p = g.p_in; a = g.s_a
    g(f"s_getreg_b32 {a[4]}, hwreg(HW_REG_XCC_ID, 0, 4)\ns_add_u32 {a[4]}, {a[4]}, 1")
    g(f"s_lshl_b32 {a[5]}, {g.s_tb}, 5\ns_add_u32 {a[6]}, {a[5]}, {g.s_j}")
    g(f"v_mov_b32 {pb[0]}, {a[4]}\nv_mov_b32 {pb[1]}, {a[6]}")
    g(f"v_and_b32 {pb[2]}, 7, {g.v_lane}\nv_lshlrev_b32 {pb[2]}, 2, {pb[2]}\nv_add_u32 {pb[2]}, {a[5]}, {pb[2]}")
    g(f"v_mov_b32 {pb[3]}, {L_MISC}")

def publish_purity(g, pb, q):
    g(f"s_mov_b64 {g.s_ex}, exec\ns_mov_b64 exec, 1")
    g.lines.append(f"buffer_store_byte {pb[0]}, {pb[1]}, {q}, 0 offen sc1")
    g(f"s_mov_b64 exec, {g.s_ex}")

def purity(g, pb, q):
    a = g.s_a; t0, t1 = g.v_t0, g.v_t1
    pv = pb[0]
    lp = g.label("pp"); dn = g.label("ppd")
    g(f"s_mov_b32 {g.s_spin}, {1 << 20}")
    g(f"{lp}:")
    g.lines.append(f"buffer_load_dword {pv}, {pb[2]}, {q}, 0 offen sc1")
    g.lines.append("s_waitcnt vmcnt(0)")
    g(f"v_subrev_u32 {t0}, 0x01010101, {pv}\nv_bfi_b32 {t0}, {pv}, 0, {t0}\nv_and_b32 {t0}, 0x80808080, {t0}")
    g(f"v_cmp_ne_u32 vcc, 0, {t0}\ns_cbranch_vccz {dn}")
    g(f"s_sub_u32 {g.s_spin}, {g.s_spin}, 1\ns_cmp_lg_u32 {g.s_spin}, 0\ns_cbranch_scc1 {lp}")
    g(f"{dn}:")
    g(f"v_readfirstlane_b32 {a[5]}, {pv}\ns_and_b32 {a[5]}, {a[5]}, 0xff\ns_mul_i32 {a[5]}, {a[5]}, 0x01010101")
    g(f"v_cmp_ne_u32 vcc, {a[5]}, {pv}\ns_cmp_eq_u64 vcc, 0\ns_cselect_b32 {g.s_fast}, 1, 0\nv_mov_b32 {t0}, {g.s_fast}")
    g.lines.append(f"ds_write_b32 {pb[3]}, {t0}")

def finish(g, fast):
    g.stamp(31)
    g.wait0()
    g.flush_stamps()

def body(g, fast):
    import ph_s0, ph_p1, ph_p2, ph_b
    sc = "" if fast else " sc1"
    g.sc = sc; g.fast = fast
    tag = "fast" if fast else "slow"
    for nm in ("s_xn", "s_xr", "s_kvb", "s_ob", "s_x1", "s_gb", "s_stb", "s_zb"): setattr(g, nm, None)
    g(f"Lentry_{tag}:")
    g.vm = []; g.lg = []
    ph_s0.after_s0(g)
    if g.stop_after in ("s0", "s0b"): return finish(g, fast)
    lay = g.label("layer")
    g(f"s_mov_b32 {g.s_layer}, 0")
    g(f"{lay}:")
    g.vm = []; g.lg = []
    ph_p1.set_layer(g)
    ph_p1.p1(g)
    if g.stop_after == "p1": return finish(g, fast)
    ph_p2.p2(g)
    if g.stop_after == "p2": return finish(g, fast)
    ph_b.b1(g)
    if g.stop_after == "b1": return finish(g, fast)
    ph_b.b2(g, lay)
    finish(g, fast)
```

```python
from emit import *
from maps import *
from gen_main import lit, f2u, LOG2E
BIG = 0x7ff00000
import os
EXPW = int(os.environ.get('EXPW', '2'))
NR = 10
DUMMY = L_MISC + 512

def drain(gen):
    for _ in gen: pass

def p1_alloc(g):
    g.v_Aq = g.vv("Aq", 2); g.v_Ak = g.vv("Ak", 2)
    g.v_x16 = g.vv("x16")
    g.v_img = g.vv("img"); g.v_vA = g.vv("vA"); g.v_vC = g.vv("vC"); g.v_T = g.vv("vT"); g.v_K = g.vv("vK")
    g.s_l2e2 = g.sv("l2e", 2); g.s_l2e = g.s_l2e2[0]; g.s_hi = g.sv("hi", 2); g.v_one = g.vv("one")

def p1_setup(g):
    t0, t1 = g.v_t0, g.v_t1; V = g.V; a = g.s_a; L = g.v_lane
    r, c, khh, ch = g.vv("r"), g.vv("c"), g.vv("khh"), g.vv("ch")
    g(f"v_bfe_u32 {r}, {L}, 2, 2\nv_and_b32 {c}, 3, {L}\nv_lshrrev_b32 {khh}, 5, {L}\nv_bfe_u32 {ch}, {L}, 4, 1")
    g(f"v_lshl_add_u32 {t0}, {khh}, 3, {r}")
    g(f"v_lshlrev_b32 {t1}, 5, {ch}\nv_lshl_add_u32 {t1}, {c}, 3, {t1}")
    g(f"v_lshl_add_u32 {g.v_Aq[0]}, {t0}, 7, {t1}")
    g(f"v_mul_u32_u24 {g.v_T}, {RS}, {t0}\nv_add_u32 {g.v_T}, {g.v_T}, {t1}")
    g(f"v_bfe_u32 {t0}, {L}, 3, 1\nv_lshl_add_u32 {g.v_Aq[0]}, {t0}, 6, {g.v_Aq[0]}")
    g(f"v_xor_b32 {g.v_Ak[0]}, 64, {g.v_Aq[0]}")
    g(f"v_add_u32 {g.v_Aq[1]}, 0x10000, {g.v_Aq[0]}\nv_add_u32 {g.v_Ak[1]}, 0x10000, {g.v_Ak[0]}")
    g(f"s_mul_i32 {a[0]}, {g.s_w}, {IMG}\ns_add_u32 {a[0]}, {a[0]}, {L_SCR}")
    g(f"v_add_u32 {g.v_T}, {a[0]}, {g.v_T}")
    g(f"v_lshlrev_b32 {g.v_x16}, 4, {L}")
    g(f"v_and_b32 {t0}, 31, {L}\nv_mul_u32_u24 {t1}, {RS}, {t0}\nv_add_u32 {t1}, {a[0]}, {t1}")
    g(f"v_lshl_add_u32 {g.v_img}, {khh}, 5, {t1}")
    g(f"v_lshl_add_u32 {g.v_vA}, {khh}, 3, {t1}\nv_add_u32 {g.v_vA}, 136, {g.v_vA}")
    g(f"v_cmp_eq_u32 vcc, 0, {khh}\nv_cndmask_b32_e64 {g.v_vC}, 0, 40, vcc\nv_add_u32 {g.v_vC}, {g.v_vC}, {t1}\nv_add_u32 {g.v_vC}, 128, {g.v_vC}")
    g(f"s_mul_i32 {a[1]}, {g.s_w}, {IMG}\ns_add_u32 {a[1]}, {a[1]}, {L_KVS}")
    g(f"v_mul_u32_u24 {g.v_K}, 384, {khh}\nv_lshl_add_u32 {g.v_K}, {t0}, 2, {g.v_K}\nv_add_u32 {g.v_K}, {a[1]}, {g.v_K}")
    V.free(r, c, khh, ch)
    z = g.vv("z", 4)
    for i in range(4): g(f"v_mov_b32 {z[i]}, 0")
    g(f"v_lshlrev_b32 {t0}, 4, v0\nv_add_u32 {t0}, {L_KVA}, {t0}")
    g(f"v_cmp_gt_u32 vcc, 192, v0\nv_mov_b32 {t1}, {DUMMY}\nv_cndmask_b32 {t0}, {t1}, {t0}, vcc")
    g.lines.append(f"ds_write_b128 {t0}, {z}")
    V.free(z)
    g(f"s_mov_b32 {g.s_l2e}, {lit(LOG2E)}\ns_mov_b32 {g.s_l2e2[1]}, {lit(LOG2E)}\ns_mov_b32 {g.s_hi[0]}, 0\ns_mov_b32 {g.s_hi[1]}, -1\nv_mov_b32 {g.v_one}, 0x3f80")

def ga_setup(g):
    t0, t1 = g.v_t0, g.v_t1; V = g.V
    g.v_ga = g.vv("ga", 4); g.v_ga3 = g.vv("gaz")
    row, q, kh, slot, c, m = g.vv("row"), g.vv("q"), g.vv("kh"), g.vv("slot"), g.vv("c"), g.vv("m")
    g(f"v_mul_u32_u24 {row}, 10923, v0\nv_lshrrev_b32 {row}, 16, {row}")
    g(f"v_mul_u32_u24 {t0}, 6, {row}\nv_sub_u32 {q}, v0, {t0}")
    g(f"v_cmp_lt_u32 vcc, 19, {row}\nv_cndmask_b32_e64 {kh}, 0, 1, vcc\nv_mul_u32_u24 {t0}, 20, {kh}\nv_sub_u32 {slot}, {row}, {t0}")
    g(f"v_mul_u32_u24 {kh}, 48, {kh}\nv_lshl_add_u32 {kh}, {slot}, 1, {kh}\nv_add_u32 {kh}, {L_KVA}, {kh}")
    for e in range(4):
        g(f"v_lshl_add_u32 {c}, {q}, 2, {e}")
        g(f"v_cmp_lt_u32 vcc, 9, {c}\nv_cndmask_b32_e64 {t0}, 0, 1, vcc\nv_mul_u32_u24 {t1}, 10, {t0}\nv_sub_u32 {t1}, {c}, {t1}")
        g(f"v_lshrrev_b32 {m}, 2, {t1}\nv_lshlrev_b32 {m}, 3, {m}\nv_lshl_add_u32 {m}, {t0}, 2, {m}\nv_and_b32 {t1}, 3, {t1}\nv_add_u32 {m}, {m}, {t1}")
        g(f"v_cmp_eq_u32 vcc, 20, {c}\nv_cndmask_b32_e64 {m}, {m}, 18, vcc")
        g(f"v_mul_u32_u24 {g.v_ga[e]}, 96, {m}\nv_add_u32 {g.v_ga[e]}, {g.v_ga[e]}, {kh}")
        g(f"v_mov_b32 {t1}, {DUMMY}\nv_cmp_lt_u32 vcc, 20, {c}\nv_cndmask_b32 {g.v_ga[e]}, {g.v_ga[e]}, {t1}, vcc")
        g(f"v_cmp_lt_u32 vcc, 239, v0\nv_cndmask_b32 {g.v_ga[e]}, {g.v_ga[e]}, {t1}, vcc")
    g(f"v_add_u32 {g.v_ga3}, 384, {g.v_ga[0]}\nv_mov_b32 {t1}, {DUMMY}\nv_cmp_ne_u32 vcc, 5, {q}\nv_cndmask_b32 {g.v_ga3}, {g.v_ga3}, {t1}, vcc")
    g(f"v_cmp_lt_u32 vcc, 239, v0\nv_cndmask_b32 {g.v_ga3}, {g.v_ga3}, {t1}, vcc")
    V.free(row, q, kh, slot, c, m)

def set_layer(g):
    for nm, arr in (("s_xn", XN_IN), ("s_xr", X_IN), ("s_kvb", KVB), ("s_ob", OB), ("s_x1", X1), ("s_gb", GB), ("s_stb", STB), ("s_zb", ZB)):
        if not hasattr(g, nm) or getattr(g, nm) is None: setattr(g, nm, g.sv(nm))
        r = getattr(g, nm)
        g(f"s_cmp_eq_u32 {g.s_layer}, 0\ns_cselect_b32 {r}, {arr[0]}, {arr[1]}") if False else None
        g(f"s_mul_i32 {r}, {g.s_layer}, {arr[1] - arr[0]}\ns_add_u32 {r}, {r}, {arr[0]}")

def softmax_gen(g, acc, pk, outp, outm, T, packed, skip_pack=False):
    d2, ep, em = T["d2"], T["ep"], T["em"]
    mx, mn, t2, sp, sm_ = T["mx"], T["mn"], T["t2"], T["sp"], T["sm"]
    if not skip_pack:
        for q in range(8):
            g(f"v_cvt_pk_bf16_f32 {pk[q]}, {acc[2*q]}, {acc[2*q+1]}"); yield 1
    g(f"v_mfma_f32_32x32x16_bf16 {d2}, {g.v_phi[0:4]}, {pk[0:4]}, 0"); yield "mfma"
    g(f"v_mfma_f32_32x32x16_bf16 {d2}, {g.v_phi[4:8]}, {pk[4:8]}, {d2}"); yield "mfma"
    yield "gap"
    g(f"v_max3_f32 {mx}, {d2[0]}, {d2[1]}, {d2[2]}"); yield 1
    g(f"v_min3_f32 {mn}, {d2[0]}, {d2[1]}, {d2[2]}"); yield 1
    for i in (3, 5, 7):
        g(f"v_max3_f32 {mx}, {mx}, {d2[i]}, {d2[i+1]}"); yield 1
        g(f"v_min3_f32 {mn}, {mn}, {d2[i]}, {d2[i+1]}"); yield 1
    g(f"v_max_f32 {mx}, {mx}, {d2[9]}"); yield 1
    g(f"v_min_f32 {mn}, {mn}, {d2[9]}"); yield 1
    g(f"v_mov_b32 {t2}, {mx}"); yield 1
    g(f"v_mov_b32 {sp}, {mn}"); yield 1
    g("s_nop 0"); yield 1
    g(f"v_permlane32_swap_b32 {t2}, {mx}"); yield 1
    g(f"v_permlane32_swap_b32 {sp}, {mn}"); yield 1
    g(f"v_max_f32 {mx}, {mx}, {t2}"); yield 1
    g(f"v_min_f32 {mn}, {mn}, {sp}"); yield 1
    g(f"v_mul_f32 {mx}, {lit(-LOG2E)}, {mx}"); yield 1
    g(f"v_mul_f32 {mn}, {lit(LOG2E)}, {mn}"); yield 1
    if packed:
        for i in range(5):
            g(f"v_pk_fma_f32 {ep[2*i:2*i+2]}, {d2[2*i:2*i+2]}, {g.s_l2e2}, {T['cc']} op_sel_hi:[1,1,0]"); yield 1
            g(f"v_pk_fma_f32 {em[2*i:2*i+2]}, {d2[2*i:2*i+2]}, {g.s_l2e2}, {T['cc']} op_sel:[0,0,1] op_sel_hi:[1,1,1] neg_lo:[1,0,0] neg_hi:[1,0,0]"); yield 1
    else:
        for i in range(10):
            g(f"v_fma_f32 {ep[i]}, {d2[i]}, {g.s_l2e}, {mx}"); yield 1
            g(f"v_fma_f32 {em[i]}, {d2[i]}, -{g.s_l2e}, {mn}"); yield 1
    for i in range(10):
        g(f"v_exp_f32 {ep[i]}, {ep[i]}"); yield EXPW
        g(f"v_exp_f32 {em[i]}, {em[i]}"); yield EXPW
    if packed:
        for e, k in ((ep, 0), (em, 4)):
            g(f"v_pk_add_f32 {d2[k:k+2]}, {e[0:2]}, {e[2:4]}"); yield 1
            g(f"v_pk_add_f32 {d2[k+2:k+4]}, {e[4:6]}, {e[6:8]}"); yield 1
        for e, k in ((ep, 0), (em, 4)):
            g(f"v_pk_add_f32 {d2[k:k+2]}, {d2[k:k+2]}, {e[8:10]}"); yield 1
        for e, k in ((ep, 0), (em, 4)):
            g(f"v_pk_add_f32 {d2[k:k+2]}, {d2[k:k+2]}, {d2[k+2:k+4]}"); yield 1
        g(f"v_add_f32 {sp}, {d2[0]}, {d2[1]}"); yield 1
        g(f"v_add_f32 {sm_}, {d2[4]}, {d2[5]}"); yield 1
    else:
        g(f"v_add_f32 {sp}, {ep[0]}, {ep[1]}"); yield 1
        g(f"v_add_f32 {sm_}, {em[0]}, {em[1]}"); yield 1
        for i in range(2, 10):
            g(f"v_add_f32 {sp}, {sp}, {ep[i]}"); yield 1
            g(f"v_add_f32 {sm_}, {sm_}, {em[i]}"); yield 1
    g(f"v_mov_b32 {t2}, {sp}"); yield 1
    g(f"v_mov_b32 {mx}, {sm_}"); yield 1
    g("s_nop 0"); yield 1
    g(f"v_permlane32_swap_b32 {t2}, {sp}"); yield 1
    g(f"v_permlane32_swap_b32 {mx}, {sm_}"); yield 1
    g(f"v_add_f32 {sp}, {sp}, {t2}"); yield 1
    g(f"v_add_f32 {sm_}, {sm_}, {mx}"); yield 1
    g(f"v_rcp_f32 {d2[0]}, {sp}"); yield 2
    g(f"v_rcp_f32 {d2[2]}, {sm_}"); yield 2
    if packed:
        for i in range(5):
            g(f"v_pk_mul_f32 {ep[2*i:2*i+2]}, {ep[2*i:2*i+2]}, {d2[0:2]} op_sel_hi:[1,0]"); yield 1
            g(f"v_pk_mul_f32 {em[2*i:2*i+2]}, {em[2*i:2*i+2]}, {d2[2:4]} op_sel_hi:[1,0]"); yield 1
    else:
        for i in range(10):
            g(f"v_mul_f32 {ep[i]}, {ep[i]}, {d2[0]}"); yield 1
            g(f"v_mul_f32 {em[i]}, {em[i]}, {d2[2]}"); yield 1
    for i in range(5):
        g(f"v_cvt_pk_bf16_f32 {outp[i]}, {ep[2*i]}, {ep[2*i+1]}"); yield 1
        g(f"v_cvt_pk_bf16_f32 {outm[i]}, {em[2*i]}, {em[2*i+1]}"); yield 1

def k_epilogue_gen(g, pi, Aq, Ak, pq, T, KV, packed):
    pk, fo = T["pk"], T["fo"]
    ro = pi * 32 * RS
    for q in range(8):
        g(f"v_cvt_pk_bf16_f32 {pk[q]}, {Ak[2*q]}, {Ak[2*q+1]}"); yield 1
    sgen = softmax_gen(g, None, pk, fo[0:5], fo[6:11], T, packed, skip_pack=True)
    yield next(sgen); yield next(sgen)
    next(sgen)
    for q in range(8):
        g(f"v_cvt_pk_bf16_f32 {pq[q]}, {Aq[2*q]}, {Aq[2*q+1]}"); yield 1
    vc = T["fa"][0:2]
    g(f"v_cndmask_b32_e64 {vc[0]}, {g.v_one}, {pq[4]}, {g.s_hi}"); yield 1
    g(f"v_cndmask_b32_e64 {vc[1]}, 0, {pq[5]}, {g.s_hi}"); yield 1
    g(f"ds_write_b64 {g.v_vA}, {pq[6:8]} offset:{ro}"); yield 1
    g(f"ds_write_b64 {g.v_vA}, {pk[6:8]} offset:{ro + 16}"); yield 1
    g(f"ds_write_b64 {g.v_vC}, {vc} offset:{ro}"); yield 1
    yield from sgen
    g(f"ds_write_b128 {g.v_img}, {fo[0:4]} offset:{ro}"); yield 1
    g(f"ds_write_b32 {g.v_img}, {fo[4]} offset:{ro + 16}"); yield 1
    g(f"ds_write_b128 {g.v_img}, {fo[6:10]} offset:{ro + 64}"); yield 1
    g(f"ds_write_b32 {g.v_img}, {fo[10]} offset:{ro + 80}"); yield 1
    mk = g.lg_mark()
    yield "gap"
    fa = T["fa"]; fb = T["fb"]
    g.wait(lg=mk); yield 1
    ms = []
    for ks, f in ((0, fa), (1, fb)):
        rb = (32 * pi + 16 * ks) * RS
        for tile in range(3):
            for t in range(2):
                g(f"ds_read_b64_tr_b16 {f[4*tile+2*t:4*tile+2*t+2]}, {g.v_T} offset:{rb + 4*t*RS + 64*tile}"); yield 1
        ms.append(g.lg_mark())
    for ks, f in ((0, fa), (1, fb)):
        g.wait(lg=ms[ks]); yield 1
        first = (pi == 0 and ks == 0)
        g(f"v_mfma_f32_32x32x16_bf16 {KV[0]}, {f[0:4]}, {f[8:12]}, {0 if first else KV[0]}"); yield "mfma"
        g(f"v_mfma_f32_32x32x16_bf16 {KV[1]}, {f[4:8]}, {f[8:12]}, {0 if first else KV[1]}"); yield "mfma"

def p1(g):
    V = g.V; a = g.s_a; t0, t1 = g.v_t0, g.v_t1; sc = g.sc
    import ph_s0
    g.c("==== P1 ====")
    g.stamp(8)
    ring = g.vv("ring", 4 * NR, 4)
    acc = [[g.vv("aq0", 16, 4), g.vv("ak0", 16, 4)], [g.vv("aq1", 16, 4), g.vv("ak1", 16, 4)]]
    fr = [g.vv("fr0", 8, 4), g.vv("fr1", 8, 4), g.vv("fr2", 8, 4)]
    pq = [g.vv("pq0", 8, 4), g.vv("pq1", 8, 4)]
    T = dict(d2=g.vv("d2", 16, 4), ep=g.vv("ep", 10, 2), em=g.vv("em", 10, 2), pk=g.vv("pk", 8, 4), fo=g.vv("fo", 12, 4),
             fa=g.vv("fa", 12, 4), cc=g.vv("cc", 2, 2), sp=g.vv("sp"), sm=g.vv("sm"), t2=g.vv("t2"))
    T["fb"] = T["d2"][0:12]
    T["mx"], T["mn"] = T["cc"][0], T["cc"][1]
    KV = [acc[0][0], acc[0][1]]
    pre = g.vv("pre", 3, 1); q_dbg = g.S.alloc("q_dbg", 4)
    g.srd(q_dbg, g.p_in[10], g.p_in[11], 256)
    sx = g.sv("sx")
    g(f"s_mul_i32 {sx}, {g.s_tb}, {XSZ}\ns_mul_i32 {a[0]}, {g.s_w}, 81920\ns_add_u32 {sx}, {sx}, {a[0]}\ns_add_u32 {sx}, {sx}, {g.s_xn}")
    marks = {}
    def xload(s):
        if s % 4 == 0 and s > 0: g(f"s_add_u32 {sx}, {sx}, 4096")
        r = ring[4 * (s % NR):4 * (s % NR) + 4]
        g(f"buffer_load_dwordx4 {r}, {g.v_x16}, {g.q_ws}, {sx} offen offset:{1024 * (s % 4)} sc1")
        marks[s] = g.vm_mark()
    def aload(s, tile):
        b = s % 40; f = fr[s % 3]; hi = 1 if b >= 32 else 0; off = (b - 32 * hi) * 2048
        ad = (g.v_Aq, g.v_Ak)[tile]
        for t in range(2):
            g(f"ds_read_b64_tr_b16 {f[4*tile+2*t:4*tile+2*t+2]}, {ad[hi]} offset:{off + 512*t}")
    import os
    PT = os.environ.get("PT", "kvld")
    def pretouch(cond=True):
        sk = g.label("pt")
        if cond: g(f"s_cmp_lg_u32 {g.s_layer}, 0\ns_cbranch_scc1 {sk}")
        g(f"s_lshl_b32 {a[0]}, {g.s_j}, 2\ns_add_u32 {a[0]}, {a[0]}, {g.s_w}\ns_mul_i32 {a[0]}, {a[0]}, {21*128}\ns_mul_i32 {a[1]}, {g.s_tb}, {LOCSZ}\ns_add_u32 {a[0]}, {a[0]}, {a[1]}\ns_add_u32 {a[0]}, {a[0]}, {LOC}")
        g(f"v_lshlrev_b32 {t0}, 7, {g.v_lane}\nv_cmp_gt_u32 vcc, 21, {g.v_lane}\nv_mov_b32 {t1}, {BIG}\nv_cndmask_b32 {t0}, {t1}, {t0}, vcc")
        if PT.endswith("ld"): g.lines.append(f"buffer_load_dword {pre[0]}, {t0}, {g.q_ws}, {a[0]} offen")
        else: g.lines.append(f"buffer_store_dword {t1}, {t0}, {g.q_ws}, {a[0]} offen")
        g(f"{sk}:")
    if g.fast and PT.startswith("start"): pretouch()
    am = {}
    for s in (0, 1):
        aload(s, 0); aload(s, 1); am[s] = g.lg_mark()
    for s in range(NR): xload(s)
    g.stamp(19)
    filler = None; hold = 0
    HOLD_ = [int(os.environ.get('FILL', '5,5,2').split(',')[2])]
    def fill(budget):
        nonlocal filler, hold
        if filler is None: return
        if hold > 0:
            hold -= 1; return
        while budget > 0:
            try: r = next(filler)
            except StopIteration:
                filler = None; return
            if r == "gap": hold = HOLD_[0]; return
            if r == "mfma": budget -= 3
            else: budget -= r
    mpre_ = {}
    FA, FB, HOLD = [int(x) for x in os.environ.get('FILL', '5,5,2').split(',')]
    def step(s, hooks=None):
        nonlocal filler
        pi = s // 40
        if s == 40:
            g.stamp(18)
        if s == 41: filler = k_epilogue_gen(g, 0, acc[0][0], acc[0][1], pq[0], T, KV, packed=False)
        if s == 55:
            g(f"v_lshlrev_b32 {t0}, 2, {g.v_lane}")
            g(f"buffer_load_dword {pre[0]}, {t0}, {q_dbg}, 0 offen sc1")
        if s == 72:
            g(f"v_lshlrev_b32 {t0}, 6, {g.v_lane}\nv_add_u32 {t0}, {WOFL}, {t0}")
            g(f"buffer_load_dword {pre[1]}, {t0}, {g.q_ws}, 0 offen sc1")
            g(f"v_min_u32 {t0}, 15, {g.v_lane}\nv_lshlrev_b32 {t0}, 6, {t0}\nv_add_u32 {t0}, {WOFL + 4096}, {t0}")
            g(f"buffer_load_dword {pre[2]}, {t0}, {g.q_ws}, 0 offen sc1")
            mpre_[0] = g.vm_mark()
        if hooks: hooks[0](s)
        g.wait(vm=marks[s], lg=am[s])
        b = ring[4 * (s % NR):4 * (s % NR) + 4]; f = fr[s % 3]
        c0 = (s % 40 == 0)
        g(f"v_mfma_f32_32x32x16_bf16 {acc[pi][0]}, {f[0:4]}, {b}, {0 if c0 else acc[pi][0]}")
        nA = FA
        if s + 2 < 80: aload(s + 2, 0); nA -= 2
        if s >= 1 and s - 1 + NR < 80: xload(s - 1 + NR); nA -= 1
        if hooks: hooks[1](s)
        fill(nA)
        g(f"v_mfma_f32_32x32x16_bf16 {acc[pi][1]}, {f[4:8]}, {b}, {0 if c0 else acc[pi][1]}")
        nB = FB
        if s + 2 < 80:
            aload(s + 2, 1); nB -= 2; am[s + 2] = g.lg_mark()
        if hooks: hooks[2](s)
        fill(nB)
    Q0, LAGS = 9, 8
    def stream_setup():
        L = g.v_lane; e = T["ep"]
        R = dict(up=e[0], dn=e[1], src=e[2], wd0=e[3], wd1=e[4], cc=e[5], q_w=g.S.alloc("q_ws2", 4), si=g.S.alloc("si2", 2))
        tl, p8, pc = e[6], e[7], e[8]
        g.srd(R["q_w"], g.p_in[2], g.p_in[3], 640 * 3840)
        g(f"v_bfe_u32 {tl}, {L}, 3, 1\nv_and_b32 {p8}, 7, {L}\nv_lshrrev_b32 {R['cc']}, 4, {L}")
        g(f"v_mul_u32_u24 {pc}, 1280, {tl}\nv_lshl_add_u32 {pc}, {p8}, 3, {pc}")
        g(f"v_lshlrev_b32 {t1}, 4, {tl}\nv_lshl_add_u32 {t1}, {p8}, 3, {t1}\nv_add_u32 {t1}, 2520, {t1}")
        g(f"v_cmp_lt_u32 vcc, 4, {p8}\nv_cndmask_b32 {pc}, {pc}, {t1}, vcc")
        g(f"s_mul_i32 {a[0]}, {g.s_j}, 40\nv_add_u32 {pc}, {a[0]}, {pc}")
        g(f"v_mul_u32_u24 {t0}, 3840, {R['cc']}\nv_add_u32 {R['up']}, {t0}, {pc}\nv_add_u32 {R['up']}, {(4*Q0 - 2)*3840}, {R['up']}")
        g(f"v_sub_u32 {R['dn']}, {pc}, {t0}\nv_add_u32 {R['dn']}, {(120 - 4*(Q0 + 1))*3840}, {R['dn']}")
        g(f"s_and_b32 {a[0]}, {g.s_w}, 1\nv_xor_b32 {tl}, {a[0]}, {tl}\nv_lshlrev_b32 {t0}, 10, {R['cc']}\nv_lshl_add_u32 {t0}, {p8}, 3, {t0}\nv_lshl_add_u32 {t0}, {tl}, 6, {t0}")
        g(f"s_lshl_b32 {a[0]}, {g.s_w}, 8\nv_add_u32 {R['wd0']}, {a[0]}, {t0}\nv_add_u32 {R['wd1']}, 0x10000, {R['wd0']}")
        g(f"s_mul_i32 {R['si'][0]}, {g.s_w}, {2*80*3840}\ns_add_u32 {R['si'][1]}, {R['si'][0]}, {80*3840}")
        return R
    def stream_hooks(R):
        slots = [T["fo"][2*k:2*k+2] for k in range(6)] + [T["fa"][2*k:2*k+2] for k in range(4)]
        gm = {}; wm = {}
        NL = 2 * (20 - Q0)
        def h0(s):
            if s in (16, 24, 32):
                g.wait(lg=wm[min(s - 1, NL - 1 + LAGS)])
                g("s_barrier")
        def h1(s):
            if s < NL:
                q, t = Q0 + (s >> 1), s & 1
                if t == 0 and q == 10:
                    g(f"v_add_u32 {R['up']}, {4*3840}, {R['up']}\nv_cmp_gt_u32 vcc, 2, {R['cc']}\nv_cndmask_b32 {R['src']}, {R['dn']}, {R['up']}, vcc")
                if t == 0 and q > 10: g(f"v_subrev_u32 {R['dn']}, {4*3840}, {R['dn']}")
                ad = R["up"] if q < 10 else (R["src"] if q == 10 else R["dn"])
                g(f"buffer_load_dwordx2 {slots[s % 10]}, {ad}, {R['q_w']}, {R['si'][t]} offen")
                gm[s] = g.vm_mark()
        def h2(s):
            n = s - LAGS
            if 0 <= n < NL:
                q, t = Q0 + (n >> 1), n & 1
                g.wait(vm=gm[n])
                g(f"ds_write_b64 {R['wd1'] if q >= 16 else R['wd0']}, {slots[n % 10]} offset:{(q % 16) * 4096 + 128 * t}")
                wm[s] = g.lg_mark()
        return (h0, h1, h2)
    if ph_s0.STREAM:
        l1 = g.label("p0n"); l2 = g.label("p0j")
        vm0, lg0, marks0, am0 = list(g.vm), list(g.lg), dict(marks), dict(am)
        g(f"s_cmp_lg_u32 {g.s_layer}, 0\ns_cbranch_scc1 {l1}")
        R = stream_setup()
        hk = stream_hooks(R)
        for s in range(40): step(s, hk)
        g.S.free(R["q_w"], R["si"])
        g(f"s_branch {l2}\n{l1}:")
        g.vm, g.lg = vm0, lg0; marks.clear(); marks.update(marks0); am.clear(); am.update(am0)
        for s in range(40): step(s)
        g(f"{l2}:")
    else:
        for s in range(40): step(s)
    for s in range(40, 80): step(s)
    mpre = mpre_[0]
    if filler is not None: drain(filler)
    g.stamp(9)
    wsetup, wo_gen, tab_gen, g.wo_sb = ph_s0.wo_loader(g)
    g.wo_gen = wo_gen
    sk = g.label("wo")
    g(f"s_cmp_lg_u32 {g.s_layer}, 0\ns_cbranch_scc1 {sk}")
    vm0 = list(g.vm)
    wo_ready(g, pre, mpre)
    g.vm = vm0
    g.stamp(14)
    wsetup()
    g(f"{sk}:")
    if g.fast and PT.startswith("p1end"): pretouch()
    z_poison(g)
    def dual(make, extra, n, tail0=None, tail1=None, head0=None):
        l1 = g.label("d1"); l2 = g.label("d2")
        lg0 = list(g.lg); vm0 = list(g.vm)
        g(f"s_cmp_lg_u32 {g.s_layer}, 0\ns_cbranch_scc1 {l1}")
        if head0: head0()
        real = g.lines; g.lines = []
        drain(make()); body = g.lines; g.lines = real
        step = len(body) / (n + 1); k = 0
        for i, l in enumerate(body):
            g.lines.append(l)
            if k < n and i + 1 >= (k + 1) * step and not l.startswith(("v_cmp", "s_cmp")):
                next(extra); k += 1
        while k < n: next(extra); k += 1
        if tail0: tail0()
        g(f"s_branch {l2}\n{l1}:")
        g.lg = lg0; g.vm = vm0
        drain(make())
        if tail1: tail1()
        g(f"{l2}:")
    def kepi1():
        yield from k_epilogue_gen(g, 1, acc[1][0], acc[1][1], pq[1], T, KV, packed=True)
    def slabs():
        g(f"s_mov_b64 {g.s_ex}, exec\ns_mov_b32 exec_lo, 0x00ffffff\ns_mov_b32 exec_hi, 0x00ffffff")
        for sg in range(2):
            for i in (0, 2):
                for jj in range(4):
                    g(f"ds_write_b32 {g.v_K}, {KV[sg][4*i+jj]} offset:{(((i>>1)*2 + sg)*10 + jj)*96}")
        g(f"s_mov_b32 exec_hi, 0")
        for sg in range(2):
            for i in (1, 3):
                for jj in range(2):
                    g(f"ds_write_b32 {g.v_K}, {KV[sg][4*i+jj]} offset:{(((i>>1)*2 + sg)*10 + 8 + jj)*96}")
        g(f"s_mov_b64 exec, {g.s_ex}")
    NW1, NW2, NW3 = [int(x) for x in os.environ.get('NW', '24,5,11').split(',')]
    dual(kepi1, wo_gen, NW1)
    g.stamp(16)
    slabs()
    g.wait0(vm=False)
    g("s_barrier")
    g.stamp(17)
    pub = T["d2"]
    g(f"v_lshlrev_b32 {t0}, 4, v0\nv_add_u32 {t1}, {L_KVS}, {t0}")
    for w in range(4): g(f"ds_read_b128 {pub[4*w:4*w+4]}, {t1} offset:{IMG*w}")
    skv = g.sv("skv")
    g(f"s_lshl_b32 {skv}, {g.s_j}, 14\ns_add_u32 {skv}, {skv}, {g.s_kvb}")
    g(f"s_lshl_b32 {a[0]}, {g.s_tb}, 11\ns_add_u32 {a[0]}, {a[0]}, {skv}")
    vkv = g.vv("vkv")
    g(f"v_lshrrev_b32 {vkv}, 1, {t0}")
    g(f"v_cmp_gt_u32 vcc, 240, v0\nv_mov_b32 {t1}, {BIG}\nv_cndmask_b32 {vkv}, {t1}, {vkv}, vcc")
    g.wait0(vm=False)
    for w in range(1, 4):
        g(f"v_pk_add_f32 {pub[0:2]}, {pub[0:2]}, {pub[4*w:4*w+2]}\nv_pk_add_f32 {pub[2:4]}, {pub[2:4]}, {pub[4*w+2:4*w+4]}")
    g(f"v_cvt_pk_bf16_f32 {pub[4]}, {pub[0]}, {pub[1]}\nv_cvt_pk_bf16_f32 {pub[5]}, {pub[2]}, {pub[3]}")
    l1 = g.label("zw"); l2 = g.label("zw")
    g(f"s_cmp_lg_u32 {g.s_layer}, 0\ns_cbranch_scc1 {l1}")
    g.lines.append(f"s_waitcnt vmcnt({NW1})")
    g(f"s_branch {l2}\n{l1}:")
    g.lines.append("s_waitcnt vmcnt(0)")
    g(f"{l2}:")
    g.lines.append(f"buffer_store_dwordx2 {pub[4:6]}, {vkv}, {g.q_ws}, {a[0]} offen sc1")
    g.stamp(10)
    if g.fast and PT.startswith("pub"): pretouch()
    fq = [acc[1][0][0:12], acc[1][1][0:12]]
    gd = ring[0:16]
    g.vm = []
    def gather():
        g(f"s_mov_b32 {a[4]}, {skv}")
        for tb in range(8):
            g.lines.append(f"buffer_load_dwordx2 {gd[2*tb:2*tb+2]}, {vkv}, {g.q_ws}, {a[4]} offen sc1")
            if tb < 7: g(f"s_add_u32 {a[4]}, {a[4]}, 2048")
    import itertools
    def qs(pi):
        def mk():
            g(f"v_mov_b32 {fq[pi][10]}, 0\nv_mov_b32 {fq[pi][11]}, 0")
            yield from q_softmax(g, pq[pi], fq[pi], T)
        return mk
    dual(qs(0), itertools.chain(tab_gen, wo_gen), 10 + NW2)
    gather()
    dual(qs(1), wo_gen, NW3)
    V.free(T["d2"], T["ep"], T["em"], T["pk"], T["fo"], *fr, *pq)
    ga_setup(g)
    g.stamp(11)
    lp = g.label("kvp"); dn = g.label("kvd"); ck = g.label("kvc")
    g(f"s_mov_b32 {g.s_spin}, {1 << 18}")
    g(f"s_cmp_lg_u32 {g.s_layer}, 0\ns_cbranch_scc1 {lp}")
    late = g.fast and PT.startswith("kv")
    if late: pretouch(cond=False)
    g.lines.append(f"s_waitcnt vmcnt({NW3 + (1 if late else 0)})")
    g(f"s_branch {ck}")
    g(f"{lp}:")
    g.lines.append("s_waitcnt vmcnt(0)")
    g(f"{ck}:")
    mxr = ring[16]
    g(f"v_max3_u32 {mxr}, {gd[0]}, {gd[1]}, {gd[2]}")
    for q in range(3, 15, 2): g(f"v_max3_u32 {mxr}, {mxr}, {gd[q]}, {gd[q+1]}")
    g(f"v_max_u32 {mxr}, {mxr}, {gd[15]}\nv_cmp_eq_u32 vcc, -1, {mxr}\ns_cbranch_vccz {dn}")
    gather()
    g(f"s_sub_u32 {g.s_spin}, {g.s_spin}, 1\ns_cmp_lg_u32 {g.s_spin}, 0\ns_cbranch_scc1 {lp}")
    g.lines.append("s_waitcnt vmcnt(0)")
    g(f"{dn}:")
    g.stamp(12)
    sv = ring[20:28]; uv = ring[28:32]
    g(f"v_lshlrev_b32 {sv[0]}, 16, {gd[0]}\nv_and_b32 {sv[1]}, 0xffff0000, {gd[0]}\nv_lshlrev_b32 {sv[2]}, 16, {gd[1]}\nv_and_b32 {sv[3]}, 0xffff0000, {gd[1]}")
    for tb in range(1, 8):
        g(f"v_lshlrev_b32 {uv[0]}, 16, {gd[2*tb]}\nv_and_b32 {uv[1]}, 0xffff0000, {gd[2*tb]}\nv_lshlrev_b32 {uv[2]}, 16, {gd[2*tb+1]}\nv_and_b32 {uv[3]}, 0xffff0000, {gd[2*tb+1]}")
        g(f"v_pk_add_f32 {sv[0:2]}, {sv[0:2]}, {uv[0:2]}\nv_pk_add_f32 {sv[2:4]}, {sv[2:4]}, {uv[2:4]}")
    gd = ring[32:40]
    g(f"v_cvt_pk_bf16_f32 {gd[4]}, {sv[0]}, {sv[1]}\nv_cvt_pk_bf16_f32 {gd[5]}, {sv[2]}, {sv[3]}")
    g(f"ds_write_b16 {g.v_ga[0]}, {gd[4]}\nds_write_b16_d16_hi {g.v_ga[1]}, {gd[4]}\nds_write_b16 {g.v_ga[2]}, {gd[5]}\nds_write_b16_d16_hi {g.v_ga[3]}, {gd[5]}")
    g(f"ds_write_b16 {g.v_ga3}, {gd[4]}")
    V.free(vkv)
    V.free(g.v_ga, g.v_ga3)
    g.wait0(vm=False)
    g("s_barrier")
    g.stamp(30) if g.fine else None
    ka = T["fa"]
    g(f"v_and_b32 {t0}, 31, {g.v_lane}\nv_mul_u32_u24 {t0}, 96, {t0}\nv_lshrrev_b32 {t1}, 5, {g.v_lane}\nv_mul_u32_u24 {t1}, 48, {t1}\nv_add_u32 {t0}, {t0}, {t1}\nv_add_u32 {t0}, {L_KVA}, {t0}")
    for st in range(3): g(f"ds_read_b128 {ka[4*st:4*st+4]}, {t0} offset:{16*st}")
    vo = T["t2"]; vt = T["sm"]
    g(f"v_bfe_u32 {t0}, {g.v_lane}, 4, 1\nv_mul_u32_u24 {vo}, 20480, {t0}\nv_and_b32 {t0}, 15, {g.v_lane}")
    g(f"v_lshl_add_u32 {vt}, {t0}, 3, {vo}\nv_lshl_add_u32 {vo}, {t0}, 4, {vo}\nv_lshrrev_b32 {t1}, 5, {g.v_lane}\nv_lshl_add_u32 {vo}, {t1}, 8, {vo}")
    g(f"s_mul_i32 {a[0]}, {g.s_tb}, {LOCSZ}\ns_add_u32 {a[0]}, {a[0]}, {g.s_ob}\ns_mul_i32 {a[1]}, {g.s_w}, {4*20480}\ns_add_u32 {a[0]}, {a[0]}, {a[1]}")
    g(f"s_lshl_b32 {a[1]}, {g.s_j}, 7\ns_add_u32 {a[1]}, {a[1]}, {a[0]}\ns_add_u32 {a[1]}, {a[1]}, 16384")
    g(f"s_lshr_b32 {a[2]}, {g.s_j}, 1\ns_lshl_b32 {a[2]}, {a[2]}, 10\ns_add_u32 {a[0]}, {a[0]}, {a[2]}\ns_and_b32 {a[2]}, {g.s_j}, 1\ns_lshl_b32 {a[2]}, {a[2]}, 9\ns_add_u32 {a[0]}, {a[0]}, {a[2]}")
    g.wait0(vm=False)
    D3 = [acc[0][0], acc[0][1]]
    for pi in range(2):
        for st in range(3):
            g(f"v_mfma_f32_32x32x16_bf16 {D3[pi]}, {ka[4*st:4*st+4]}, {fq[pi][4*st:4*st+4]}, {0 if st == 0 else D3[pi]}")
    for pi in range(2):
        d = D3[pi]
        g(f"v_add_f32 {T['cc'][0]}, {lit(1e-6)}, {d[10]}\nv_rcp_f32 {T['cc'][0]}, {T['cc'][0]}")
        for i in range(5):
            g(f"v_pk_mul_f32 {d[2*i:2*i+2]}, {d[2*i:2*i+2]}, {T['cc']} op_sel_hi:[1,0]")
        op = fq[pi]
        for i in range(5): g(f"v_cvt_pk_bf16_f32 {op[i]}, {d[2*i]}, {d[2*i+1]}")
        if pi == 1: g(f"s_add_u32 {a[0]}, {a[0]}, {2*20480}\ns_add_u32 {a[1]}, {a[1]}, {2*20480}")
        g(f"buffer_store_dwordx4 {op[0:4]}, {vo}, {g.q_ws}, {a[0]} offen{sc}")
        g(f"v_mov_b32 {op[6]}, {op[4]}\nv_mov_b32 {op[7]}, {op[4]}\nv_permlane32_swap_b32 {op[6]}, {op[7]}")
        g(f"s_mov_b64 {g.s_ex}, exec\ns_mov_b32 exec_hi, 0")
        g(f"buffer_store_dwordx2 {op[6:8]}, {vt}, {g.q_ws}, {a[1]} offen{sc}")
        g(f"s_mov_b64 exec, {g.s_ex}")
    g.stamp(13)
    V.free(ring, *acc[0], *acc[1], T["fa"], T["cc"], T["sp"], T["sm"], T["t2"])
    g.S.free(sx, skv, q_dbg); V.free(pre)

def q_softmax(g, pq, out, T):
    yield from softmax_gen(g, None, pq, out[0:5], out[5:10], T, packed=True, skip_pack=True)

def init_wait(g, cond=True):
    sk = g.label("iw"); t0 = g.v_t0
    if cond: g(f"s_cmp_lg_u32 {g.s_layer}, 0\ns_cbranch_scc1 {sk}")
    q = g.S.alloc("q_dbg", 4); pv = g.vv("pv"); pa = g.vv("pa")
    g.srd(q, g.p_in[10], g.p_in[11], 256)
    g(f"v_lshlrev_b32 {pa}, 2, {g.v_lane}")
    lp = g.label("iwp"); dn = g.label("iwd")
    g(f"s_mov_b32 {g.s_spin}, {1 << 20}")
    g(f"{lp}:")
    g.lines.append(f"buffer_load_dword {pv}, {pa}, {q}, 0 offen sc1")
    g.lines.append("s_waitcnt vmcnt(0)")
    g(f"v_subrev_u32 {t0}, 0x01010101, {pv}\nv_bfi_b32 {t0}, {pv}, 0, {t0}\nv_and_b32 {t0}, 0x80808080, {t0}")
    g(f"v_cmp_ne_u32 vcc, 0, {t0}\ns_cbranch_vccz {dn}")
    g(f"s_sub_u32 {g.s_spin}, {g.s_spin}, 1\ns_cmp_lg_u32 {g.s_spin}, 0\ns_cbranch_scc1 {lp}")
    g(f"{dn}:")
    g.S.free(q); g.V.free(pv, pa)
    g(f"{sk}:")

def wo_ready(g, pre, mpre):
    t0 = g.v_t0
    ok = g.label("wok"); slow = g.label("wsl")
    g.wait(vm=mpre)
    pv = pre[0]
    g(f"v_subrev_u32 {t0}, 0x01010101, {pv}\nv_bfi_b32 {t0}, {pv}, 0, {t0}\nv_and_b32 {t0}, 0x80808080, {t0}")
    g(f"v_cmp_ne_u32 vcc, 0, {t0}\ns_cbranch_vccnz {slow}")
    g(f"v_and_b32 {t0}, {pre[1]}, {pre[2]}\nv_cmp_ne_u32 vcc, 1, {t0}\ns_cbranch_vccz {ok}")
    g(f"{slow}:")
    init_wait(g, cond=False)
    pa = g.vv("pa", 2, 1); pv = pre[1:3]
    g(f"v_lshlrev_b32 {pa[0]}, 6, {g.v_lane}\nv_add_u32 {pa[0]}, {WOFL}, {pa[0]}")
    g(f"v_min_u32 {pa[1]}, 15, {g.v_lane}\nv_lshlrev_b32 {pa[1]}, 6, {pa[1]}\nv_add_u32 {pa[1]}, {WOFL + 4096}, {pa[1]}")
    lp = g.label("wrp"); dn = g.label("wrd")
    g(f"s_mov_b32 {g.s_spin}, {1 << 20}")
    g(f"{lp}:")
    for q in range(2): g.lines.append(f"buffer_load_dword {pv[q]}, {pa[q]}, {g.q_ws}, 0 offen sc1")
    g.lines.append("s_waitcnt vmcnt(0)")
    g(f"v_and_b32 {t0}, {pv[0]}, {pv[1]}\nv_cmp_ne_u32 vcc, 1, {t0}\ns_cbranch_vccz {dn}")
    g(f"s_sub_u32 {g.s_spin}, {g.s_spin}, 1\ns_cmp_lg_u32 {g.s_spin}, 0\ns_cbranch_scc1 {lp}")
    g(f"{dn}:")
    g.V.free(pa)
    g(f"{ok}:")

def z_poison(g):
    a = g.s_a; t0 = g.v_t0
    sk = g.label("zp")
    pz = g.vv("pz", 4, 4)
    g(f"s_cmp_gt_u32 {g.s_j}, 20\ns_cbranch_scc1 {sk}")
    for q in range(4): g(f"v_mov_b32 {pz[q]}, -1")
    g(f"s_mul_i32 {a[0]}, {g.s_tb}, {ZSZ}\ns_add_u32 {a[0]}, {a[0]}, {g.s_zb}\ns_lshl_b32 {a[1]}, {g.s_j}, 14\ns_add_u32 {a[0]}, {a[0]}, {a[1]}\ns_lshl_b32 {a[1]}, {g.s_w}, 12\ns_add_u32 {a[0]}, {a[0]}, {a[1]}")
    for q in range(4):
        g.lines.append(f"buffer_store_dwordx4 {pz}, {g.v_x16}, {g.q_ws}, {a[0]} offen offset:{1024*q} sc1")
    g(f"{sk}:")
    g.V.free(pz)
```

```python
from emit import *
from maps import *
from gen_main import lit, f2u, LOG2E
BIG = 0x7ff00000
WO_STRIDE = 1296

def wo_stage(g):
    p = g.p_in; a = g.s_a
    va = g.vv("wova")
    g.srd(g.q_in, p[6], p[7], 640 * 1280)
    g(f"v_lshlrev_b32 {va}, 4, {g.v_lane}")
    g(f"s_mul_i32 {a[4]}, {g.s_wost}, 10\ns_sub_u32 {a[5]}, {g.s_wost}, 64\ns_mul_i32 {a[5]}, {a[5]}, 40")
    g(f"s_cmp_lt_u32 {g.s_wost}, 64\ns_cselect_b32 {a[4]}, {a[4]}, {a[5]}\ns_cselect_b32 {a[5]}, 1, 0")
    tail = (8, 9, 18, 19, 28, 29, 38, 39)
    rows = g.S.alloc("worows", 8)
    for r in range(8):
        g(f"s_cmp_eq_u32 {a[5]}, 1\ns_cselect_b32 {rows[r]}, {r}, {tail[r]}\ns_add_u32 {rows[r]}, {rows[r]}, {a[4]}\ns_mul_i32 {rows[r]}, {rows[r]}, 1280")
    for r in range(8):
        g(f"s_mov_b32 m0, {L_SCR + r*WO_STRIDE}")
        g("s_nop 0")
        g.lines.append(f"buffer_load_dwordx4 {va}, {g.q_in}, {rows[r]} offen lds")
    g(f"s_mov_b64 {g.s_ex}, exec\ns_mov_b64 exec, 0xffff")
    for r in range(8):
        g(f"s_mov_b32 m0, {L_SCR + r*WO_STRIDE + 1024}\ns_add_u32 {rows[r]}, {rows[r]}, 1024")
        g.lines.append(f"buffer_load_dwordx4 {va}, {g.q_in}, {rows[r]} offen lds")
    g(f"s_mov_b64 exec, {g.s_ex}")
    g.S.free(rows)
    g.V.free(va)

def wo_touch(g):
    p = g.p_in; a = g.s_a; t0, t1 = g.v_t0, g.v_t1; L = g.v_lane
    va = g.vv("wta")
    g.srd(g.q_in, p[6], p[7], 640 * 1280)
    g(f"s_mul_i32 {a[4]}, {g.s_wost}, 12800\ns_sub_u32 {a[5]}, {g.s_wost}, 64\ns_mul_i32 {a[5]}, {a[5]}, 51200\ns_add_u32 {a[5]}, {a[5]}, 10240")
    g(f"s_cmp_lt_u32 {g.s_wost}, 64\ns_cselect_b32 {a[4]}, {a[4]}, {a[5]}\ns_mov_b32 {a[6]}, 12800\ns_cselect_b32 {a[5]}, 2560, {a[6]}")
    g(f"v_cmp_lt_u32 vcc, 19, {L}\nv_cndmask_b32_e64 {t0}, 0, 1, vcc\nv_mul_u32_u24 {t1}, 20, {t0}\nv_sub_u32 {t1}, {L}, {t1}\nv_lshlrev_b32 {t1}, 7, {t1}")
    g(f"v_mul_u32_u24 {va}, {a[5]}, {t0}\nv_add_u32 {va}, {va}, {t1}\nv_cmp_gt_u32 vcc, 40, {L}\nv_mov_b32 {t1}, {BIG}\nv_cndmask_b32 {va}, {t1}, {va}, vcc")
    g.lines.append(f"buffer_load_dword {g.v_big[120]}, {va}, {g.q_in}, {a[4]} offen")
    g(f"s_lshl_b32 {a[5]}, {a[5]}, 1\ns_add_u32 {a[4]}, {a[4]}, {a[5]}")
    g.lines.append(f"buffer_load_dword {g.v_big[121]}, {va}, {g.q_in}, {a[4]} offen")
    g.V.free(va)

def w_prefetch(g, first, q_w, pf):
    a = g.s_a; L = g.v_lane
    so, va = pf
    g(f"s_mul_i32 {so}, {g.s_j}, 76800\ns_mul_i32 {a[1]}, {g.s_w}, 20480\ns_sub_u32 {a[1]}, {a[1]}, 4096\ns_max_i32 {a[1]}, {a[1]}, 0\ns_add_u32 {so}, {so}, {a[1]}")
    g(f"v_lshlrev_b32 {va}, 4, {L}")
    def gen():
        for n in range(20):
            g.lines.append(f"buffer_load_dwordx4 {g.v_big[124:128]}, {va}, {q_w}, {so} offen offset:{1024*(n%4)}")
            if n % 4 == 3: g(f"s_add_u32 {so}, {so}, 4096")
            yield
    it = gen()
    for _ in range(first): next(it)
    return it

import os
STREAM = os.environ.get("STREAM", "0") == "1"
NQW = 3 if STREAM else 7
def gather_alloc(g):
    return dict(q_w=g.S.alloc("q_wg", 4), si=g.S.alloc("si", 8), wd=g.vv("wdst", 2), src=g.vv("wsrc", NQW))
def gather_free(g, gs):
    g.S.free(gs["q_w"], gs["si"]); g.V.free(gs["wd"], gs["src"])

def gather_setup(g, gs):
    p = g.p_in; a = g.s_a; t0, t1 = g.v_t0, g.v_t1; L = g.v_lane
    q_w, si, wd, src = gs["q_w"], gs["si"], gs["wd"], gs["src"]
    pc, tl, p8, cc = g.vv("wpc"), g.vv("tl"), g.vv("p8"), g.vv("cc")
    cod = g.vv("cod"); e2 = g.vv("e2"); up, dn = g.vv("up"), g.vv("dn")
    g(f"v_bfe_u32 {tl}, {L}, 3, 1\nv_and_b32 {p8}, 7, {L}\nv_lshrrev_b32 {cc}, 4, {L}")
    g(f"v_mul_u32_u24 {pc}, 1280, {tl}\nv_lshl_add_u32 {pc}, {p8}, 3, {pc}")
    g(f"v_lshlrev_b32 {t1}, 4, {tl}\nv_lshl_add_u32 {t1}, {p8}, 3, {t1}\nv_add_u32 {t1}, 2520, {t1}")
    g(f"v_cmp_lt_u32 vcc, 4, {p8}\nv_cndmask_b32 {pc}, {pc}, {t1}, vcc")
    g(f"s_mul_i32 {a[0]}, {g.s_j}, 40\nv_add_u32 {pc}, {a[0]}, {pc}")
    g(f"s_sub_u32 {a[2]}, {g.s_w}, 1\ns_mul_i32 {a[2]}, {a[2]}, {4*NQW}")
    g(f"v_add_u32 {cod}, {a[2]}, {cc}")
    g.e2_of_code(e2, cod, t0)
    g(f"v_mul_u32_u24 {src[0]}, 3840, {e2}\nv_add_u32 {src[0]}, {src[0]}, {pc}")
    g(f"v_mul_u32_u24 {t0}, 3840, {cod}\nv_add_u32 {up}, {t0}, {pc}\nv_sub_u32 {dn}, {pc}, {t0}")
    g(f"v_add_u32 {up}, {-2*3840 & 0xffffffff}, {up}\nv_add_u32 {dn}, {120*3840}, {dn}")
    for q in range(1, NQW):
        g(f"v_add_u32 {up}, {4*3840}, {up}\nv_subrev_u32 {dn}, {4*3840}, {dn}")
        g(f"v_cmp_lt_u32 vcc, {41 - 4*q}, {cod}\nv_cndmask_b32 {src[q]}, {up}, {dn}, vcc")
    g(f"v_lshlrev_b32 {t0}, 10, {cod}\nv_lshl_add_u32 {t0}, {p8}, 3, {t0}")
    g(f"v_lshl_add_u32 {wd[0]}, {tl}, 6, {t0}\nv_xor_b32 {wd[1]}, 64, {wd[0]}")
    for i in range(8): g(f"s_mov_b32 {si[i]}, {80*3840*i}")
    g.V.free(pc, tl, p8, cc, cod, e2, up, dn)

def w_gather(g, gs):
    q_w, si, wd, src = gs["q_w"], gs["si"], gs["wd"], gs["src"]
    dbg = g.stop_after == "s0b"
    LAG = 24
    def load(n):
        g.lines.append(f"buffer_load_dwordx2 {g.v_big[2*n:2*n+2]}, {src[n // 8]}, {q_w}, {si[n % 8]} offen")
    def write(n, cnt):
        if cnt is not None: g.lines.append(f"s_waitcnt vmcnt({cnt})")
        g.lines.append(f"ds_write_b64 {wd[((n % 8) >> 1) & 1]}, {g.v_big[2*n:2*n+2]} offset:{4096*(n // 8) + 128*(n % 8)}")
    if dbg: g.stamp(9)
    if STREAM:
        N = 8 * NQW
        for n in range(N): load(n)
        if dbg: g.stamp(12)
        g("s_barrier")
        for n in range(N): write(n, (N - 4 - n) if n % 4 == 0 else None)
        return
    for n in range(48):
        load(n)
        if n >= LAG: write(n - LAG, LAG)
    w3 = g.label("wg3"); wj = g.label("wgj")
    g(f"s_cmp_eq_u32 {g.s_w}, 3\ns_cbranch_scc1 {w3}")
    for n in range(48, 56):
        load(n); write(n - LAG, LAG)
    if dbg: g.stamp(12)
    g("s_barrier")
    for n in range(56 - LAG, 56): write(n, (52 - n) if n % 4 == 0 else None)
    g(f"s_branch {wj}\n{w3}:")
    g("s_barrier")
    for n in range(48 - LAG, 48): write(n, (44 - n) if n % 4 == 0 else None)
    g(f"{wj}:")

def phi_build(g, wait):
    t0, t1 = g.v_t0, g.v_t1; V = g.V
    l31, va, vb, f = g.vv("l31b"), g.vv("va"), g.vv("vb"), g.vv("f"); ph = g.vv("phraw", 12)
    if wait: g.lines.append("s_waitcnt vmcnt(0)")
    g(f"v_and_b32 {l31}, 31, {g.v_lane}")
    g(f"v_lshrrev_b32 {t0}, 3, {l31}\nv_lshlrev_b32 {t0}, 2, {t0}\nv_and_b32 {t1}, 3, {l31}\nv_add_u32 {t0}, {t0}, {t1}")
    g(f"v_bfe_u32 {t1}, {l31}, 2, 1\nv_mul_u32_u24 {f}, 10, {t1}\nv_add_u32 {f}, {f}, {t0}")
    g(f"v_lshrrev_b32 {t1}, 5, {g.v_lane}\nv_mul_u32_u24 {va}, 80, {t1}\nv_add_u32 {va}, {va}, {f}\nv_lshlrev_b32 {va}, 1, {va}\nv_add_u32 {va}, {L_PHI}, {va}")
    for u in range(8):
        g.lines.append(f"ds_read_u16 {ph[u]}, {va} offset:{(8*(u>>2) + (u&3))*40}")
    for u in range(4):
        g.lines.append(f"ds_read_u16 {ph[8+u]}, {va} offset:{(16+u)*40}")
    g.lines.append("s_waitcnt lgkmcnt(0)")
    for q in range(6):
        g(f"v_lshl_or_b32 {g.v_phi[q]}, {ph[2*q+1]}, 16, {ph[2*q]}")
    g(f"v_cmp_gt_u32 vcc, 10, {t0}")
    for q in range(6): g(f"v_cndmask_b32 {g.v_phi[q]}, 0, {g.v_phi[q]}, vcc")
    g(f"v_cmp_gt_u32 vcc, 32, {g.v_lane}")
    for q in (4, 5): g(f"v_cndmask_b32 {g.v_phi[q]}, 0, {g.v_phi[q]}, vcc")
    g(f"v_mov_b32 {g.v_phi[6]}, 0\nv_mov_b32 {g.v_phi[7]}, 0")
    V.free(l31, va, vb, f, ph)

def x_store(g, raw, sc):
    a = g.s_a; t0, t1 = g.v_t0, g.v_t1; V = g.V
    ad, ds = g.vv("ad"), g.vv("ds"); d = g.v_big
    g(f"v_lshlrev_b32 {ad}, 4, {g.v_lane}\nv_add_u32 {ad}, {L_XST + (10240 if raw else 0)}, {ad}")
    g(f"v_lshrrev_b32 {ds}, 3, {g.v_lane}\nv_lshlrev_b32 {ds}, 9, {ds}\nv_and_b32 {t0}, 7, {g.v_lane}\nv_lshl_add_u32 {ds}, {t0}, 4, {ds}")
    g(f"s_mul_i32 {a[0]}, {g.s_tb}, {XSZ}\ns_lshr_b32 {a[1]}, {g.s_j}, 2\ns_mul_i32 {a[1]}, {a[1]}, 40960\ns_add_u32 {a[0]}, {a[0]}, {a[1]}")
    g(f"s_and_b32 {a[1]}, {g.s_j}, 3\ns_lshl_b32 {a[1]}, {a[1]}, 7\ns_add_u32 {a[0]}, {a[0]}, {a[1]}")
    g.lines.append("s_waitcnt lgkmcnt(0)")
    for n in range(10):
        g.lines.append(f"ds_read_b128 {d[4*n:4*n+4]}, {ad} offset:{n*1024}")
    for n in range(10):
        g.lines.append(f"s_waitcnt lgkmcnt({9 - n})")
        g(f"s_add_u32 {a[1]}, {a[0]}, {(X_IN[0] if raw else XN_IN[0]) + n * 4096}")
        g.lines.append(f"buffer_store_dwordx4 {d[4*n:4*n+4]}, {ds}, {g.q_ws}, {a[1]} offen{sc}")
    V.free(ad, ds)

def trig4(g, ang0, slope, csts, cs, sn):
    for r in range(4):
        if csts[r] == 0: g(f"v_mov_b32 {sn[r]}, {ang0}")
        else: g(f"v_fmamk_f32 {sn[r]}, {slope}, {lit(float(csts[r]))}, {ang0}")
        g(f"v_cos_f32 {cs[r]}, {sn[r]}\nv_sin_f32 {sn[r]}, {sn[r]}")

def reim_frags(g, cs, sn, tmp, dre, dim):
    g(f"v_cvt_pk_bf16_f32 {tmp[0]}, {cs[0]}, {cs[1]}\nv_cvt_pk_bf16_f32 {tmp[1]}, {cs[2]}, {cs[3]}")
    g(f"v_cvt_pk_bf16_f32 {tmp[2]}, {sn[0]}, {sn[1]}\nv_cvt_pk_bf16_f32 {tmp[3]}, {sn[2]}, {sn[3]}")
    for q in range(4): g(f"v_accvgpr_write_b32 {dre[q]}, {tmp[q]}")
    g(f"v_accvgpr_write_b32 {dim[2]}, {tmp[0]}\nv_accvgpr_write_b32 {dim[3]}, {tmp[1]}")
    g(f"v_xor_b32 {tmp[2]}, 0x80008000, {tmp[2]}\nv_xor_b32 {tmp[3]}, 0x80008000, {tmp[3]}")
    g(f"v_accvgpr_write_b32 {dim[0]}, {tmp[2]}\nv_accvgpr_write_b32 {dim[1]}, {tmp[3]}")

def constants(g, parts):
    a = g.s_a; t0, t1 = g.v_t0, g.v_t1; V = g.V
    n15, gq = g.vv("n15"), g.vv("gq")
    g(f"v_and_b32 {n15}, 15, {g.v_lane}\nv_lshrrev_b32 {gq}, 4, {g.v_lane}")
    cs, sn, tmp = g.vv("cs", 4), g.vv("sn", 4), g.vv("tmp", 4)
    ang, sl, f1, f2 = g.vv("ang"), g.vv("sl"), g.vv("f1"), g.vv("f2")
    if 's1' in parts:
        g(f"v_cvt_f32_u32 {sl}, {n15}\nv_mul_f32 {sl}, {lit(1/16)}, {sl}")
        g(f"v_lshlrev_b32 {t0}, 2, {gq}\nv_cvt_f32_u32 {ang}, {t0}\nv_mul_f32 {ang}, {ang}, {sl}")
        trig4(g, ang, sl, [0, 1, 2, 3], cs, sn)
        reim_frags(g, cs, sn, tmp, g.a_s1[0:4], g.a_s1[4:8])
    if 's2' in parts:
        g(f"v_lshlrev_b32 {t0}, 5, {gq}\nv_add_u32 {t0}, {g.s_tb}, {t0}\nv_cvt_f32_u32 {f1}, {t0}")
        g(f"s_lshl_b32 {a[4]}, {g.s_w}, 2")
        for q in range(4):
            g(f"v_lshlrev_b32 {t0}, 4, {n15}\nv_add_u32 {t0}, {a[4]}, {t0}")
            if q: g(f"v_add_u32 {t0}, {q}, {t0}")
            g(f"v_cvt_f32_u32 {sl}, {t0}\nv_mul_f32 {sl}, {lit(1/2048)}, {sl}\nv_mul_f32 {ang}, {f1}, {sl}")
            trig4(g, ang, sl, [0, 8, 16, 24], cs, sn)
            reim_frags(g, cs, sn, tmp, g.a_s2[8*q:8*q+4], g.a_s2[8*q+4:8*q+8])
    if 'h2' in parts:
        e2, P0, P1, Q1, R1, T1 = g.vv("e2"), g.vv("P0"), g.vv("P1"), g.vv("Q1"), g.vv("R1"), g.vv("T1")
        g(f"v_lshrrev_b32 {t0}, 1, {gq}")
        g(f"s_lshl_b32 {a[4]}, {g.s_j}, 1\ns_sub_u32 {a[4]}, {a[4]}, 2\ns_mov_b32 {a[5]}, 1")
        g(f"s_cmp_eq_u32 {g.s_j}, 0\ns_cselect_b32 {a[4]}, 0, {a[4]}\ns_cselect_b32 {a[5]}, 40, {a[5]}")
        g(f"s_cmp_eq_u32 {g.s_j}, 1\ns_cselect_b32 {a[4]}, 1, {a[4]}\ns_mov_b32 {a[6]}, 78\ns_cselect_b32 {a[5]}, {a[6]}, {a[5]}")
        g(f"v_mul_u32_u24 {e2}, {a[5]}, {t0}\nv_add_u32 {e2}, {a[4]}, {e2}")
        g(f"v_and_b32 {t1}, 7, {n15}\nv_mul_u32_u24 {t1}, 80, {t1}\nv_add_u32 {e2}, {e2}, {t1}")
        g(f"v_cvt_f32_u32 {sl}, {e2}\nv_mul_f32 {sl}, {lit(1/640)}, {sl}")
        g(f"v_lshrrev_b32 {t1}, 3, {n15}\nv_cmp_eq_u32 vcc, {t0}, {t1}\nv_cndmask_b32_e64 {f2}, 0, 1.0, vcc")
        g(f"v_cmp_eq_u32 vcc, 0, {e2}\nv_cndmask_b32_e64 {f2}, {f2}, 0, vcc")
        g(f"v_cvt_f32_u32 {f1}, {t0}")
        g(f"s_cmp_eq_u32 {g.s_j}, 0\ns_cselect_b32 {a[4]}, 1.0, 0\ns_cselect_b32 {a[6]}, 0, 1.0")
        g(f"s_cmp_eq_u32 {g.s_j}, 1\ns_cselect_b32 {a[5]}, -2.0, 0")
        g(f"v_mul_f32 {P1}, {a[4]}, {f1}")
        g(f"v_sub_f32 {P0}, 1.0, {P1}")
        g(f"v_mul_f32 {Q1}, {a[5]}, {f1}\nv_add_f32 {Q1}, 1.0, {Q1}\nv_mul_f32 {Q1}, {a[6]}, {Q1}")
        g(f"v_mov_b32 {R1}, {Q1}\nv_sub_f32 {T1}, 0, {P1}")
        for x in (P0, P1, Q1, R1, T1): g(f"v_mul_f32 {x}, {x}, {f2}")
        g(f"v_and_b32 {t0}, 1, {gq}\nv_lshlrev_b32 {t0}, 2, {t0}\nv_cvt_f32_u32 {ang}, {t0}\nv_mul_f32 {ang}, {ang}, {sl}")
        trig4(g, ang, sl, [0, 1, 2, 3], cs, sn)
        for dd in range(4):
            g(f"v_mul_f32 {t0}, {P0}, {cs[dd]}\nv_mul_f32 {t1}, {P1}, {cs[dd]}\nv_fmac_f32 {t1}, {Q1}, {sn[dd]}")
            g(f"v_cvt_pk_bf16_f32 {tmp[0]}, {t0}, {t1}\nv_accvgpr_write_b32 {g.a_h2[dd]}, {tmp[0]}")
            g(f"v_mul_f32_e64 {t0}, -{P0}, {sn[dd]}\nv_mul_f32 {t1}, {R1}, {cs[dd]}\nv_fmac_f32 {t1}, {T1}, {sn[dd]}")
            g(f"v_cvt_pk_bf16_f32 {tmp[1]}, {t0}, {t1}\nv_accvgpr_write_b32 {g.a_h2[4+dd]}, {tmp[1]}")
        V.free(e2, P0, P1, Q1, R1, T1)
    if 'b2' in parts:
        tt, msk = g.vv("tt"), g.vv("msk")
        g(f"v_and_b32 {t0}, 1, {n15}\nv_lshrrev_b32 {t1}, 1, {gq}\nv_cmp_eq_u32 vcc, {t0}, {t1}\nv_cndmask_b32_e64 {msk}, 0, 1.0, vcc")
        for mir in range(2):
            g(f"v_lshrrev_b32 {tt}, 1, {n15}")
            if mir:
                g(f"s_or_b32 {a[4]}, {g.s_tb}, {g.s_j}\ns_cmp_eq_u32 {a[4]}, 0\ns_cselect_b32 {a[4]}, 1, 0")
                g(f"v_lshrrev_b32 {t0}, 1, {gq}\nv_sub_u32 {t0}, 1, {t0}\nv_mul_u32_u24 {t0}, {a[4]}, {t0}")
                g(f"v_sub_u32 {tt}, 7, {tt}\nv_add_u32 {tt}, {tt}, {t0}\nv_and_b32 {tt}, 7, {tt}")
            g(f"v_cvt_f32_u32 {sl}, {tt}\nv_mul_f32 {sl}, {lit(1/8)}, {sl}")
            g(f"v_and_b32 {t0}, 1, {gq}\nv_lshlrev_b32 {t0}, 2, {t0}\nv_cvt_f32_u32 {ang}, {t0}\nv_mul_f32 {ang}, {ang}, {sl}")
            trig4(g, ang, sl, [0, 1, 2, 3], cs, sn)
            for dd in range(4):
                g(f"v_mul_f32 {t0}, {msk}, {cs[dd]}\nv_mul_f32 {t1}, {msk}, {sn[dd]}\nv_cvt_pk_bf16_f32 {tmp[0]}, {t0}, {t1}")
                g(f"v_accvgpr_write_b32 {g.a_b2[4*mir+dd]}, {tmp[0]}")
        V.free(tt, msk)
    if 'h1' in parts:
        d2b, K2, rho = g.vv("d2b"), g.vv("K2"), g.vv("rho")
        val = g.vv("val", 8); adr = g.vv("adr")
        g(f"v_lshrrev_b32 {t0}, 1, {gq}\nv_and_b32 {t1}, 1, {gq}\nv_mul_u32_u24 {t1}, 40, {t1}\nv_add_u32 {t0}, {t0}, {t1}\nv_cvt_f32_u32 {d2b}, {t0}")
        for n in range(5):
            sk = g.label("h1")
            g(f"s_add_u32 {a[4]}, {g.s_w}, {3*n - 1}")
            g(f"s_mul_i32 {a[5]}, {a[4]}, 43\ns_lshr_b32 {a[5]}, {a[5]}, 7")
            g(f"s_mul_i32 {a[6]}, {a[5]}, 3\ns_sub_u32 {a[6]}, {a[4]}, {a[6]}")
            g(f"s_lshl_b32 {a[7]}, {a[5]}, 4\nv_add_u32 {rho}, {a[7]}, {n15}")
            g(f"v_lshrrev_b32 {t0}, 1, {rho}\nv_cmp_eq_u32 vcc, 1, {rho}\nv_cndmask_b32_e64 {t0}, {t0}, 40, vcc")
            g(f"v_cvt_f32_u32 {sl}, {t0}\nv_mul_f32 {sl}, {lit(1/80)}, {sl}")
            g(f"v_and_b32 {t1}, 1, {rho}\nv_cndmask_b32_e64 {t1}, {t1}, 0, vcc\nv_cvt_f32_u32 {K2}, {t1}\nv_mul_f32 {K2}, 0.25, {K2}")
            g(f"s_lshl_b32 {a[7]}, {a[6]}, 2\nv_cvt_f32_u32 {ang}, {a[7]}\nv_add_f32 {ang}, {d2b}, {ang}\nv_fma_f32 {ang}, {ang}, {sl}, {K2}")
            g(f"s_cmp_eq_u32 {a[6]}, 2\ns_cselect_b32 {a[7]}, 0, 1.0")
            for u in range(8):
                c = 2 * (u >> 2) + 10 * (u & 3)
                if c: g(f"v_fmamk_f32 {val[u]}, {sl}, {lit(float(c))}, {ang}")
                else: g(f"v_mov_b32 {val[u]}, {ang}")
                g(f"v_cos_f32 {val[u]}, {val[u]}")
                if u >= 4: g(f"v_mul_f32 {val[u]}, {a[7]}, {val[u]}")
            for q in range(4): g(f"v_cvt_pk_bf16_f32 {tmp[q]}, {val[2*q]}, {val[2*q+1]}")
            g(f"s_lshl_b32 {a[7]}, {a[4]}, 10\ns_add_u32 {a[7]}, {a[7]}, {L_H1}\nv_lshlrev_b32 {adr}, 4, {g.v_lane}\nv_add_u32 {adr}, {a[7]}, {adr}")
            g.lines.append(f"ds_write_b128 {adr}, {tmp}")
            g(f"{sk}:")
        V.free(d2b, K2, rho, val, adr)
    V.free(n15, gq, cs, sn, tmp, ang, sl, f1, f2)

def wo_frag_a(g, guard=True):
    a = g.s_a; V = g.V; t0, t1 = g.v_t0, g.v_t1
    sk = g.label("wog")
    if guard: g(f"s_cmp_ge_u32 {g.s_wost}, 80\ns_cbranch_scc1 {sk}")
    ad = g.vv("ad"); raw = g.vv("raw", 8); fr = g.v_big[64:104]; dst = g.vv("dst")
    g(f"v_lshrrev_b32 {t0}, 4, {g.v_lane}\nv_lshlrev_b32 {ad}, 2, {t0}")
    g(f"v_mul_u32_u24 {dst}, {2*5*20*1024}, {t0}\nv_and_b32 {t1}, 15, {g.v_lane}\nv_lshl_add_u32 {dst}, {t1}, 4, {dst}")
    g(f"v_bfe_u32 {t0}, {g.v_lane}, 3, 1\nv_lshl_add_u32 {ad}, {t0}, 4, {ad}")
    g(f"v_and_b32 {t0}, 7, {g.v_lane}\nv_mul_u32_u24 {t0}, 160, {t0}\nv_add_u32 {ad}, {ad}, {t0}\nv_add_u32 {ad}, {L_SCR}, {ad}")
    g(f"s_mov_b32 {a[3]}, 0x05040100\ns_mov_b32 {a[4]}, 0x07060302")
    for i in range(5):
        for ii in range(8):
            g.lines.append(f"ds_read_b32 {raw[ii]}, {ad} offset:{ii*WO_STRIDE + 32*i}")
        g.lines.append("s_waitcnt lgkmcnt(0)")
        for q in range(4):
            g(f"v_perm_b32 {fr[8*i+q]}, {raw[2*q+1]}, {raw[2*q]}, {a[3]}\nv_perm_b32 {fr[8*i+4+q]}, {raw[2*q+1]}, {raw[2*q]}, {a[4]}")
    g(f"{sk}:")
    V.free(ad, raw)
    return fr, dst

def wo_frag_b(g, wf, guard=True):
    a = g.s_a; fr, dst = wf
    sk = g.label("wog")
    if guard: g(f"s_cmp_ge_u32 {g.s_wost}, 80\ns_cbranch_scc1 {sk}")
    g(f"s_lshr_b32 {a[0]}, {g.s_wost}, 2\ns_lshl_b32 {a[0]}, {a[0]}, 10\ns_and_b32 {a[1]}, {g.s_wost}, 3\ns_lshl_b32 {a[1]}, {a[1]}, 8")
    g(f"s_add_u32 {a[0]}, {a[0]}, {a[1]}\ns_add_u32 {a[0]}, {a[0]}, {WOF}")
    for i in range(5):
        g(f"s_add_u32 {a[1]}, {a[0]}, {i*20*1024}\ns_add_u32 {a[2]}, {a[1]}, {5*20*1024}")
        g.lines.append(f"buffer_store_dwordx4 {fr[8*i:8*i+4]}, {dst}, {g.q_ws}, {a[1]} offen sc1")
        g.lines.append(f"buffer_store_dwordx4 {fr[8*i+4:8*i+8]}, {dst}, {g.q_ws}, {a[2]} offen sc1")
    g(f"{sk}:")
    g.V.free(dst)

def after_s0(g):
    V = g.V
    g.a_wo = g.A.alloc("wo", 200, at=0)
    g.a_s2 = g.A.alloc("st2", 32, at=200)
    g.a_h2 = g.A.alloc("h2", 8, at=232)
    g.a_s1 = g.A.alloc("st1", 8, at=240)
    g.a_b2 = g.A.alloc("b2", 8, at=248)
    V.free(g.v_big, g.v_l31)
    g.stamp(7)

def wo_loader(g):
    a = g.s_a
    sb = g.S.alloc("wob", 3)
    def setup():
        g(f"s_lshr_b32 {sb[1]}, {g.s_j}, 2\ns_mul_i32 {sb[1]}, {sb[1]}, {5*20*1024}\ns_add_u32 {sb[1]}, {sb[1]}, {WOF}")
        g(f"s_lshr_b32 {sb[2]}, {g.s_w}, 1\ns_lshl_b32 {sb[0]}, {sb[2]}, 13\ns_add_u32 {sb[0]}, {sb[1]}, {sb[0]}")
        g(f"s_lshl_b32 {sb[2]}, {sb[2]}, 11\ns_add_u32 {sb[1]}, {sb[1]}, {sb[2]}\ns_add_u32 {sb[1]}, {sb[1]}, {16*1024}")
    def wo():
        for u in range(10):
            for i in range(5):
                r = (u * 5 + i) * 4
                if u < 8: g(f"s_add_u32 {sb[2]}, {sb[0]}, {(i*20 + u)*1024}")
                else: g(f"s_add_u32 {sb[2]}, {sb[1]}, {(i*20 + u - 8)*1024}")
                g.lines.append(f"buffer_load_dwordx4 {g.a_wo[r:r+4]}, {g.v_x16}, {g.q_ws}, {sb[2]} offen")
                yield
    def tab():
        T = g.toff; base = "fnet_tab-Lpc+"
        def ld(dst):
            g.lines.append(f"buffer_load_dwordx4 {dst}, {g.v_x16}, {g.q_tab}, {sb[2]} offen")
        for h in range(2):
            g(f"s_mov_b32 {sb[2]}, {base}{T['S1'] + 1024*h}"); ld(g.a_s1[4*h:4*h+4]); yield
        for h in range(2):
            g(f"s_min_u32 {sb[2]}, {g.s_j}, 20\ns_lshl_b32 {sb[2]}, {sb[2]}, 11\ns_add_u32 {sb[2]}, {sb[2]}, {base}{T['H2'] + 1024*h}"); ld(g.a_h2[4*h:4*h+4]); yield
        g(f"s_mov_b32 {sb[2]}, {base}{T['B2']}"); ld(g.a_b2[0:4]); yield
        g(f"s_or_b32 {sb[2]}, {g.s_tb}, {g.s_j}\ns_cmp_eq_u32 {sb[2]}, 0\ns_cselect_b32 {sb[2]}, 2048, 1024\ns_add_u32 {sb[2]}, {sb[2]}, {base}{T['B2']}" if False else
          f"s_or_b32 {sb[2]}, {g.s_tb}, {g.s_j}\ns_min_u32 {sb[2]}, {sb[2]}, 1\ns_lshl_b32 {sb[2]}, {sb[2]}, 10\ns_sub_u32 {sb[2]}, {base}{T['B2'] + 2048}, {sb[2]}"); ld(g.a_b2[4:8]); yield
        for q in range(4):
            g(f"s_lshl_b32 {sb[2]}, {g.s_tb}, 2\ns_add_u32 {sb[2]}, {sb[2]}, {g.s_w}\ns_lshl_b32 {sb[2]}, {sb[2]}, 12\ns_add_u32 {sb[2]}, {sb[2]}, {base}{T['S2'] + 1024*q}")
            ld(g.a_s2[8*q:8*q+4]); yield
    return setup, wo(), tab(), sb

def s2_fix(g):
    t0, t1 = g.v_t0, g.v_t1
    for q in range(4):
        re, im = g.a_s2[8*q:8*q+4], g.a_s2[8*q+4:8*q+8]
        g(f"v_accvgpr_read_b32 {t0}, {re[2]}\nv_accvgpr_read_b32 {t1}, {re[3]}")
        g(f"v_accvgpr_mov_b32 {im[2]}, {re[0]}\nv_accvgpr_mov_b32 {im[3]}, {re[1]}")
        g(f"v_xor_b32 {t0}, 0x80008000, {t0}\nv_xor_b32 {t1}, 0x80008000, {t1}")
        g(f"v_accvgpr_write_b32 {im[0]}, {t0}\nv_accvgpr_write_b32 {im[1]}, {t1}")

def tab_touch(g, va):
    a = g.s_a; T = g.toff
    TM = sum(1 << j for j in (0, 1, 4, 10, 11, 26, 27, 29, 30, 31))
    g(f"s_lshl_b32 {a[2]}, 1, {g.s_j}\ns_sub_u32 {a[3]}, {a[2]}, 1\ns_and_b32 {a[3]}, {a[3]}, {TM}\ns_bcnt1_i32_b32 {a[3]}, {a[3]}")
    g(f"s_lshl_b32 {a[0]}, {a[3]}, 13\ns_lshl_b32 {a[1]}, {g.s_tb}, 14\ns_add_u32 {a[1]}, {a[1]}, {T['S2'] - 8*8192}\ns_add_u32 {a[1]}, {a[1]}, {a[0]}")
    g(f"s_cmp_lt_u32 {a[3]}, 8\ns_cselect_b32 {a[0]}, {a[0]}, {a[1]}\ns_add_u32 {a[0]}, {a[0]}, fnet_tab-Lpc")
    g(f"s_min_u32 {a[0]}, {a[0]}, fnet_tab_end-Lpc-8192")
    g(f"s_and_b32 {a[2]}, {a[2]}, {TM}\ns_cselect_b32 {a[1]}, 1, 0\ns_cmp_eq_u32 {g.s_w}, 3\ns_cselect_b32 {a[1]}, {a[1]}, 0\ns_cmp_eq_u32 {a[1]}, 1\ns_cselect_b32 {a[1]}, 0, {BIG}")
    g(f"v_lshlrev_b32 {va}, 7, {g.v_lane}\nv_add_u32 {va}, {a[1]}, {va}")
    g.lines.append(f"buffer_load_dword {g.v_big[123]}, {va}, {g.q_tab}, {a[0]} offen")

def wo_flag(g):
    a = g.s_a; t0, t1 = g.v_t0, g.v_t1
    sk = g.label("wf")
    g(f"s_cmp_ge_u32 {g.s_wost}, 80\ns_cbranch_scc1 {sk}")
    g(f"s_lshl_b32 {a[0]}, {g.s_wost}, 6\ns_add_u32 {a[0]}, {a[0]}, {WOFL}\nv_mov_b32 {t0}, {a[0]}\nv_mov_b32 {t1}, 1")
    g.lines.append("s_waitcnt vmcnt(0)")
    g(f"s_mov_b64 {g.s_ex}, exec\ns_mov_b64 exec, 1")
    g.lines.append(f"buffer_store_dword {t1}, {t0}, {g.q_ws}, 0 offen sc1")
    g(f"s_mov_b64 exec, {g.s_ex}")
    g(f"{sk}:")
```

```python
from emit import *
from maps import *
from gen_main import lit, f2u, LOG2E
BIG = 0x7ff00000
import os
EXPW = int(os.environ.get('EXPW', '2'))
NR = 10
DUMMY = L_MISC + 512

def drain(gen):
    for _ in gen: pass

def p1_alloc(g):
    g.v_Aq = g.vv("Aq", 2); g.v_Ak = g.vv("Ak", 2)
    g.v_x16 = g.vv("x16")
    g.v_img = g.vv("img"); g.v_vA = g.vv("vA"); g.v_vC = g.vv("vC"); g.v_T = g.vv("vT"); g.v_K = g.vv("vK")
    g.s_l2e2 = g.sv("l2e", 2); g.s_l2e = g.s_l2e2[0]; g.s_hi = g.sv("hi", 2); g.v_one = g.vv("one")

def p1_setup(g):
    t0, t1 = g.v_t0, g.v_t1; V = g.V; a = g.s_a; L = g.v_lane
    r, c, khh, ch = g.vv("r"), g.vv("c"), g.vv("khh"), g.vv("ch")
    g(f"v_bfe_u32 {r}, {L}, 2, 2\nv_and_b32 {c}, 3, {L}\nv_lshrrev_b32 {khh}, 5, {L}\nv_bfe_u32 {ch}, {L}, 4, 1")
    g(f"v_lshl_add_u32 {t0}, {khh}, 3, {r}")
    g(f"v_lshlrev_b32 {t1}, 5, {ch}\nv_lshl_add_u32 {t1}, {c}, 3, {t1}")
    g(f"v_lshl_add_u32 {g.v_Aq[0]}, {t0}, 7, {t1}")
    g(f"v_mul_u32_u24 {g.v_T}, {RS}, {t0}\nv_add_u32 {g.v_T}, {g.v_T}, {t1}")
    g(f"v_bfe_u32 {t0}, {L}, 3, 1\nv_lshl_add_u32 {g.v_Aq[0]}, {t0}, 6, {g.v_Aq[0]}")
    g(f"v_xor_b32 {g.v_Ak[0]}, 64, {g.v_Aq[0]}")
    g(f"v_add_u32 {g.v_Aq[1]}, 0x10000, {g.v_Aq[0]}\nv_add_u32 {g.v_Ak[1]}, 0x10000, {g.v_Ak[0]}")
    g(f"s_mul_i32 {a[0]}, {g.s_w}, {IMG}\ns_add_u32 {a[0]}, {a[0]}, {L_SCR}")
    g(f"v_add_u32 {g.v_T}, {a[0]}, {g.v_T}")
    g(f"v_lshlrev_b32 {g.v_x16}, 4, {L}")
    g(f"v_and_b32 {t0}, 31, {L}\nv_mul_u32_u24 {t1}, {RS}, {t0}\nv_add_u32 {t1}, {a[0]}, {t1}")
    g(f"v_lshl_add_u32 {g.v_img}, {khh}, 5, {t1}")
    g(f"v_lshl_add_u32 {g.v_vA}, {khh}, 3, {t1}\nv_add_u32 {g.v_vA}, 136, {g.v_vA}")
    g(f"v_cmp_eq_u32 vcc, 0, {khh}\nv_cndmask_b32_e64 {g.v_vC}, 0, 40, vcc\nv_add_u32 {g.v_vC}, {g.v_vC}, {t1}\nv_add_u32 {g.v_vC}, 128, {g.v_vC}")
    g(f"s_mul_i32 {a[1]}, {g.s_w}, {IMG}\ns_add_u32 {a[1]}, {a[1]}, {L_KVS}")
    g(f"v_mul_u32_u24 {g.v_K}, 384, {khh}\nv_lshl_add_u32 {g.v_K}, {t0}, 2, {g.v_K}\nv_add_u32 {g.v_K}, {a[1]}, {g.v_K}")
    V.free(r, c, khh, ch)
    z = g.vv("z", 4)
    for i in range(4): g(f"v_mov_b32 {z[i]}, 0")
    g(f"v_lshlrev_b32 {t0}, 4, v0\nv_add_u32 {t0}, {L_KVA}, {t0}")
    g(f"v_cmp_gt_u32 vcc, 192, v0\nv_mov_b32 {t1}, {DUMMY}\nv_cndmask_b32 {t0}, {t1}, {t0}, vcc")
    g.lines.append(f"ds_write_b128 {t0}, {z}")
    V.free(z)
    g(f"s_mov_b32 {g.s_l2e}, {lit(LOG2E)}\ns_mov_b32 {g.s_l2e2[1]}, {lit(LOG2E)}\ns_mov_b32 {g.s_hi[0]}, 0\ns_mov_b32 {g.s_hi[1]}, -1\nv_mov_b32 {g.v_one}, 0x3f80")

def ga_setup(g):
    t0, t1 = g.v_t0, g.v_t1; V = g.V
    g.v_ga = g.vv("ga", 4); g.v_ga3 = g.vv("gaz")
    row, q, kh, slot, c, m = g.vv("row"), g.vv("q"), g.vv("kh"), g.vv("slot"), g.vv("c"), g.vv("m")
    g(f"v_mul_u32_u24 {row}, 10923, v0\nv_lshrrev_b32 {row}, 16, {row}")
    g(f"v_mul_u32_u24 {t0}, 6, {row}\nv_sub_u32 {q}, v0, {t0}")
    g(f"v_cmp_lt_u32 vcc, 19, {row}\nv_cndmask_b32_e64 {kh}, 0, 1, vcc\nv_mul_u32_u24 {t0}, 20, {kh}\nv_sub_u32 {slot}, {row}, {t0}")
    g(f"v_mul_u32_u24 {kh}, 48, {kh}\nv_lshl_add_u32 {kh}, {slot}, 1, {kh}\nv_add_u32 {kh}, {L_KVA}, {kh}")
    for e in range(4):
        g(f"v_lshl_add_u32 {c}, {q}, 2, {e}")
        g(f"v_cmp_lt_u32 vcc, 9, {c}\nv_cndmask_b32_e64 {t0}, 0, 1, vcc\nv_mul_u32_u24 {t1}, 10, {t0}\nv_sub_u32 {t1}, {c}, {t1}")
        g(f"v_lshrrev_b32 {m}, 2, {t1}\nv_lshlrev_b32 {m}, 3, {m}\nv_lshl_add_u32 {m}, {t0}, 2, {m}\nv_and_b32 {t1}, 3, {t1}\nv_add_u32 {m}, {m}, {t1}")
        g(f"v_cmp_eq_u32 vcc, 20, {c}\nv_cndmask_b32_e64 {m}, {m}, 18, vcc")
        g(f"v_mul_u32_u24 {g.v_ga[e]}, 96, {m}\nv_add_u32 {g.v_ga[e]}, {g.v_ga[e]}, {kh}")
        g(f"v_mov_b32 {t1}, {DUMMY}\nv_cmp_lt_u32 vcc, 20, {c}\nv_cndmask_b32 {g.v_ga[e]}, {g.v_ga[e]}, {t1}, vcc")
        g(f"v_cmp_lt_u32 vcc, 239, v0\nv_cndmask_b32 {g.v_ga[e]}, {g.v_ga[e]}, {t1}, vcc")
    g(f"v_add_u32 {g.v_ga3}, 384, {g.v_ga[0]}\nv_mov_b32 {t1}, {DUMMY}\nv_cmp_ne_u32 vcc, 5, {q}\nv_cndmask_b32 {g.v_ga3}, {g.v_ga3}, {t1}, vcc")
    g(f"v_cmp_lt_u32 vcc, 239, v0\nv_cndmask_b32 {g.v_ga3}, {g.v_ga3}, {t1}, vcc")
    V.free(row, q, kh, slot, c, m)

def set_layer(g):
    for nm, arr in (("s_xn", XN_IN), ("s_xr", X_IN), ("s_kvb", KVB), ("s_ob", OB), ("s_x1", X1), ("s_gb", GB), ("s_stb", STB), ("s_zb", ZB)):
        if not hasattr(g, nm) or getattr(g, nm) is None: setattr(g, nm, g.sv(nm))
        r = getattr(g, nm)
        g(f"s_cmp_eq_u32 {g.s_layer}, 0\ns_cselect_b32 {r}, {arr[0]}, {arr[1]}") if False else None
        g(f"s_mul_i32 {r}, {g.s_layer}, {arr[1] - arr[0]}\ns_add_u32 {r}, {r}, {arr[0]}")

def softmax_gen(g, acc, pk, outp, outm, T, packed, skip_pack=False):
    d2, ep, em = T["d2"], T["ep"], T["em"]
    mx, mn, t2, sp, sm_ = T["mx"], T["mn"], T["t2"], T["sp"], T["sm"]
    if not skip_pack:
        for q in range(8):
            g(f"v_cvt_pk_bf16_f32 {pk[q]}, {acc[2*q]}, {acc[2*q+1]}"); yield 1
    g(f"v_mfma_f32_32x32x16_bf16 {d2}, {g.v_phi[0:4]}, {pk[0:4]}, 0"); yield "mfma"
    g(f"v_mfma_f32_32x32x16_bf16 {d2}, {g.v_phi[4:8]}, {pk[4:8]}, {d2}"); yield "mfma"
    yield "gap"
    g(f"v_max3_f32 {mx}, {d2[0]}, {d2[1]}, {d2[2]}"); yield 1
    g(f"v_min3_f32 {mn}, {d2[0]}, {d2[1]}, {d2[2]}"); yield 1
    for i in (3, 5, 7):
        g(f"v_max3_f32 {mx}, {mx}, {d2[i]}, {d2[i+1]}"); yield 1
        g(f"v_min3_f32 {mn}, {mn}, {d2[i]}, {d2[i+1]}"); yield 1
    g(f"v_max_f32 {mx}, {mx}, {d2[9]}"); yield 1
    g(f"v_min_f32 {mn}, {mn}, {d2[9]}"); yield 1
    g(f"v_mov_b32 {t2}, {mx}"); yield 1
    g(f"v_mov_b32 {sp}, {mn}"); yield 1
    g("s_nop 0"); yield 1
    g(f"v_permlane32_swap_b32 {t2}, {mx}"); yield 1
    g(f"v_permlane32_swap_b32 {sp}, {mn}"); yield 1
    g(f"v_max_f32 {mx}, {mx}, {t2}"); yield 1
    g(f"v_min_f32 {mn}, {mn}, {sp}"); yield 1
    g(f"v_mul_f32 {mx}, {lit(-LOG2E)}, {mx}"); yield 1
    g(f"v_mul_f32 {mn}, {lit(LOG2E)}, {mn}"); yield 1
    if packed:
        for i in range(5):
            g(f"v_pk_fma_f32 {ep[2*i:2*i+2]}, {d2[2*i:2*i+2]}, {g.s_l2e2}, {T['cc']} op_sel_hi:[1,1,0]"); yield 1
            g(f"v_pk_fma_f32 {em[2*i:2*i+2]}, {d2[2*i:2*i+2]}, {g.s_l2e2}, {T['cc']} op_sel:[0,0,1] op_sel_hi:[1,1,1] neg_lo:[1,0,0] neg_hi:[1,0,0]"); yield 1
    else:
        for i in range(10):
            g(f"v_fma_f32 {ep[i]}, {d2[i]}, {g.s_l2e}, {mx}"); yield 1
            g(f"v_fma_f32 {em[i]}, {d2[i]}, -{g.s_l2e}, {mn}"); yield 1
    for i in range(10):
        g(f"v_exp_f32 {ep[i]}, {ep[i]}"); yield EXPW
        g(f"v_exp_f32 {em[i]}, {em[i]}"); yield EXPW
    if packed:
        for e, k in ((ep, 0), (em, 4)):
            g(f"v_pk_add_f32 {d2[k:k+2]}, {e[0:2]}, {e[2:4]}"); yield 1
            g(f"v_pk_add_f32 {d2[k+2:k+4]}, {e[4:6]}, {e[6:8]}"); yield 1
        for e, k in ((ep, 0), (em, 4)):
            g(f"v_pk_add_f32 {d2[k:k+2]}, {d2[k:k+2]}, {e[8:10]}"); yield 1
        for e, k in ((ep, 0), (em, 4)):
            g(f"v_pk_add_f32 {d2[k:k+2]}, {d2[k:k+2]}, {d2[k+2:k+4]}"); yield 1
        g(f"v_add_f32 {sp}, {d2[0]}, {d2[1]}"); yield 1
        g(f"v_add_f32 {sm_}, {d2[4]}, {d2[5]}"); yield 1
    else:
        g(f"v_add_f32 {sp}, {ep[0]}, {ep[1]}"); yield 1
        g(f"v_add_f32 {sm_}, {em[0]}, {em[1]}"); yield 1
        for i in range(2, 10):
            g(f"v_add_f32 {sp}, {sp}, {ep[i]}"); yield 1
            g(f"v_add_f32 {sm_}, {sm_}, {em[i]}"); yield 1
    g(f"v_mov_b32 {t2}, {sp}"); yield 1
    g(f"v_mov_b32 {mx}, {sm_}"); yield 1
    g("s_nop 0"); yield 1
    g(f"v_permlane32_swap_b32 {t2}, {sp}"); yield 1
    g(f"v_permlane32_swap_b32 {mx}, {sm_}"); yield 1
    g(f"v_add_f32 {sp}, {sp}, {t2}"); yield 1
    g(f"v_add_f32 {sm_}, {sm_}, {mx}"); yield 1
    g(f"v_rcp_f32 {d2[0]}, {sp}"); yield 2
    g(f"v_rcp_f32 {d2[2]}, {sm_}"); yield 2
    if packed:
        for i in range(5):
            g(f"v_pk_mul_f32 {ep[2*i:2*i+2]}, {ep[2*i:2*i+2]}, {d2[0:2]} op_sel_hi:[1,0]"); yield 1
            g(f"v_pk_mul_f32 {em[2*i:2*i+2]}, {em[2*i:2*i+2]}, {d2[2:4]} op_sel_hi:[1,0]"); yield 1
    else:
        for i in range(10):
            g(f"v_mul_f32 {ep[i]}, {ep[i]}, {d2[0]}"); yield 1
            g(f"v_mul_f32 {em[i]}, {em[i]}, {d2[2]}"); yield 1
    for i in range(5):
        g(f"v_cvt_pk_bf16_f32 {outp[i]}, {ep[2*i]}, {ep[2*i+1]}"); yield 1
        g(f"v_cvt_pk_bf16_f32 {outm[i]}, {em[2*i]}, {em[2*i+1]}"); yield 1

def k_epilogue_gen(g, pi, Aq, Ak, pq, T, KV, packed):
    pk, fo = T["pk"], T["fo"]
    ro = pi * 32 * RS
    for q in range(8):
        g(f"v_cvt_pk_bf16_f32 {pk[q]}, {Ak[2*q]}, {Ak[2*q+1]}"); yield 1
    sgen = softmax_gen(g, None, pk, fo[0:5], fo[6:11], T, packed, skip_pack=True)
    yield next(sgen); yield next(sgen)
    next(sgen)
    for q in range(8):
        g(f"v_cvt_pk_bf16_f32 {pq[q]}, {Aq[2*q]}, {Aq[2*q+1]}"); yield 1
    vc = T["fa"][0:2]
    g(f"v_cndmask_b32_e64 {vc[0]}, {g.v_one}, {pq[4]}, {g.s_hi}"); yield 1
    g(f"v_cndmask_b32_e64 {vc[1]}, 0, {pq[5]}, {g.s_hi}"); yield 1
    g(f"ds_write_b64 {g.v_vA}, {pq[6:8]} offset:{ro}"); yield 1
    g(f"ds_write_b64 {g.v_vA}, {pk[6:8]} offset:{ro + 16}"); yield 1
    g(f"ds_write_b64 {g.v_vC}, {vc} offset:{ro}"); yield 1
    yield from sgen
    g(f"ds_write_b128 {g.v_img}, {fo[0:4]} offset:{ro}"); yield 1
    g(f"ds_write_b32 {g.v_img}, {fo[4]} offset:{ro + 16}"); yield 1
    g(f"ds_write_b128 {g.v_img}, {fo[6:10]} offset:{ro + 64}"); yield 1
    g(f"ds_write_b32 {g.v_img}, {fo[10]} offset:{ro + 80}"); yield 1
    mk = g.lg_mark()
    yield "gap"
    fa = T["fa"]; fb = T["fb"]
    g.wait(lg=mk); yield 1
    ms = []
    for ks, f in ((0, fa), (1, fb)):
        rb = (32 * pi + 16 * ks) * RS
        for tile in range(3):
            for t in range(2):
                g(f"ds_read_b64_tr_b16 {f[4*tile+2*t:4*tile+2*t+2]}, {g.v_T} offset:{rb + 4*t*RS + 64*tile}"); yield 1
        ms.append(g.lg_mark())
    for ks, f in ((0, fa), (1, fb)):
        g.wait(lg=ms[ks]); yield 1
        first = (pi == 0 and ks == 0)
        g(f"v_mfma_f32_32x32x16_bf16 {KV[0]}, {f[0:4]}, {f[8:12]}, {0 if first else KV[0]}"); yield "mfma"
        g(f"v_mfma_f32_32x32x16_bf16 {KV[1]}, {f[4:8]}, {f[8:12]}, {0 if first else KV[1]}"); yield "mfma"

def p1(g):
    V = g.V; a = g.s_a; t0, t1 = g.v_t0, g.v_t1; sc = g.sc
    import ph_s0
    g.c("==== P1 ====")
    g.stamp(8)
    ring = g.vv("ring", 4 * NR, 4)
    acc = [[g.vv("aq0", 16, 4), g.vv("ak0", 16, 4)], [g.vv("aq1", 16, 4), g.vv("ak1", 16, 4)]]
    fr = [g.vv("fr0", 8, 4), g.vv("fr1", 8, 4), g.vv("fr2", 8, 4)]
    pq = [g.vv("pq0", 8, 4), g.vv("pq1", 8, 4)]
    T = dict(d2=g.vv("d2", 16, 4), ep=g.vv("ep", 10, 2), em=g.vv("em", 10, 2), pk=g.vv("pk", 8, 4), fo=g.vv("fo", 12, 4),
             fa=g.vv("fa", 12, 4), cc=g.vv("cc", 2, 2), sp=g.vv("sp"), sm=g.vv("sm"), t2=g.vv("t2"))
    T["fb"] = T["d2"][0:12]
    T["mx"], T["mn"] = T["cc"][0], T["cc"][1]
    KV = [acc[0][0], acc[0][1]]
    pre = g.vv("pre", 3, 1); q_dbg = g.S.alloc("q_dbg", 4)
    g.srd(q_dbg, g.p_in[10], g.p_in[11], 256)
    sx = g.sv("sx")
    g(f"s_mul_i32 {sx}, {g.s_tb}, {XSZ}\ns_mul_i32 {a[0]}, {g.s_w}, 81920\ns_add_u32 {sx}, {sx}, {a[0]}\ns_add_u32 {sx}, {sx}, {g.s_xn}")
    marks = {}
    def xload(s):
        if s % 4 == 0 and s > 0: g(f"s_add_u32 {sx}, {sx}, 4096")
        r = ring[4 * (s % NR):4 * (s % NR) + 4]
        g(f"buffer_load_dwordx4 {r}, {g.v_x16}, {g.q_ws}, {sx} offen offset:{1024 * (s % 4)} sc1")
        marks[s] = g.vm_mark()
    def aload(s, tile):
        b = s % 40; f = fr[s % 3]; hi = 1 if b >= 32 else 0; off = (b - 32 * hi) * 2048
        ad = (g.v_Aq, g.v_Ak)[tile]
        for t in range(2):
            g(f"ds_read_b64_tr_b16 {f[4*tile+2*t:4*tile+2*t+2]}, {ad[hi]} offset:{off + 512*t}")
    import os
    PT = os.environ.get("PT", "kvld")
    def pretouch(cond=True):
        sk = g.label("pt")
        if cond: g(f"s_cmp_lg_u32 {g.s_layer}, 0\ns_cbranch_scc1 {sk}")
        g(f"s_lshl_b32 {a[0]}, {g.s_j}, 2\ns_add_u32 {a[0]}, {a[0]}, {g.s_w}\ns_mul_i32 {a[0]}, {a[0]}, {21*128}\ns_mul_i32 {a[1]}, {g.s_tb}, {LOCSZ}\ns_add_u32 {a[0]}, {a[0]}, {a[1]}\ns_add_u32 {a[0]}, {a[0]}, {LOC}")
        g(f"v_lshlrev_b32 {t0}, 7, {g.v_lane}\nv_cmp_gt_u32 vcc, 21, {g.v_lane}\nv_mov_b32 {t1}, {BIG}\nv_cndmask_b32 {t0}, {t1}, {t0}, vcc")
        if PT.endswith("ld"): g.lines.append(f"buffer_load_dword {pre[0]}, {t0}, {g.q_ws}, {a[0]} offen")
        else: g.lines.append(f"buffer_store_dword {t1}, {t0}, {g.q_ws}, {a[0]} offen")
        g(f"{sk}:")
    if g.fast and PT.startswith("start"): pretouch()
    am = {}
    for s in (0, 1):
        aload(s, 0); aload(s, 1); am[s] = g.lg_mark()
    NP0 = int(os.environ.get('NP0', '10'))
    nxt = [NP0]
    for s in range(NP0): xload(s)
    g.stamp(19)
    filler = None; hold = 0
    HOLD_ = [int(os.environ.get('FILL', '5,5,2').split(',')[2])]
    def fill(budget):
        nonlocal filler, hold
        if filler is None: return
        if hold > 0:
            hold -= 1; return
        while budget > 0:
            try: r = next(filler)
            except StopIteration:
                filler = None; return
            if r == "gap": hold = HOLD_[0]; return
            if r == "mfma": budget -= 3
            else: budget -= r
    mpre_ = {}
    FA, FB, HOLD = [int(x) for x in os.environ.get('FILL', '5,5,2').split(',')]
    def step(s, hooks=None):
        nonlocal filler
        pi = s // 40
        if s == 40:
            g.stamp(18)
        if s == 41: filler = k_epilogue_gen(g, 0, acc[0][0], acc[0][1], pq[0], T, KV, packed=False)
        if s == 55:
            g(f"v_lshlrev_b32 {t0}, 2, {g.v_lane}")
            g(f"buffer_load_dword {pre[0]}, {t0}, {q_dbg}, 0 offen sc1")
        if s == 72:
            g(f"v_lshlrev_b32 {t0}, 6, {g.v_lane}\nv_add_u32 {t0}, {WOFL}, {t0}")
            g(f"buffer_load_dword {pre[1]}, {t0}, {g.q_ws}, 0 offen sc1")
            g(f"v_min_u32 {t0}, 15, {g.v_lane}\nv_lshlrev_b32 {t0}, 6, {t0}\nv_add_u32 {t0}, {WOFL + 4096}, {t0}")
            g(f"buffer_load_dword {pre[2]}, {t0}, {g.q_ws}, 0 offen sc1")
            mpre_[0] = g.vm_mark()
        if hooks: hooks[0](s)
        g.wait(vm=marks[s], lg=am[s])
        b = ring[4 * (s % NR):4 * (s % NR) + 4]; f = fr[s % 3]
        c0 = (s % 40 == 0)
        g(f"v_mfma_f32_32x32x16_bf16 {acc[pi][0]}, {f[0:4]}, {b}, {0 if c0 else acc[pi][0]}")
        nA = FA
        if s + 2 < 80: aload(s + 2, 0); nA -= 2
        lim = min(80, s + NR)
        if nxt[0] < lim: xload(nxt[0]); nxt[0] += 1; nA -= 1
        if hooks: hooks[1](s)
        fill(nA)
        g(f"v_mfma_f32_32x32x16_bf16 {acc[pi][1]}, {f[4:8]}, {b}, {0 if c0 else acc[pi][1]}")
        nB = FB
        if s + 2 < 80:
            aload(s + 2, 1); nB -= 2; am[s + 2] = g.lg_mark()
        if nxt[0] < lim: xload(nxt[0]); nxt[0] += 1; nB -= 1
        if hooks: hooks[2](s)
        fill(nB)
    Q0, LAGS = 9, 8
    def stream_setup():
        L = g.v_lane; e = T["ep"]
        R = dict(up=e[0], dn=e[1], src=e[2], wd0=e[3], wd1=e[4], cc=e[5], q_w=g.S.alloc("q_ws2", 4), si=g.S.alloc("si2", 2))
        tl, p8, pc = e[6], e[7], e[8]
        g.srd(R["q_w"], g.p_in[2], g.p_in[3], 640 * 3840)
        g(f"v_bfe_u32 {tl}, {L}, 3, 1\nv_and_b32 {p8}, 7, {L}\nv_lshrrev_b32 {R['cc']}, 4, {L}")
        g(f"v_mul_u32_u24 {pc}, 1280, {tl}\nv_lshl_add_u32 {pc}, {p8}, 3, {pc}")
        g(f"v_lshlrev_b32 {t1}, 4, {tl}\nv_lshl_add_u32 {t1}, {p8}, 3, {t1}\nv_add_u32 {t1}, 2520, {t1}")
        g(f"v_cmp_lt_u32 vcc, 4, {p8}\nv_cndmask_b32 {pc}, {pc}, {t1}, vcc")
        g(f"s_mul_i32 {a[0]}, {g.s_j}, 40\nv_add_u32 {pc}, {a[0]}, {pc}")
        g(f"v_mul_u32_u24 {t0}, 3840, {R['cc']}\nv_add_u32 {R['up']}, {t0}, {pc}\nv_add_u32 {R['up']}, {(4*Q0 - 2)*3840}, {R['up']}")
        g(f"v_sub_u32 {R['dn']}, {pc}, {t0}\nv_add_u32 {R['dn']}, {(120 - 4*(Q0 + 1))*3840}, {R['dn']}")
        g(f"s_and_b32 {a[0]}, {g.s_w}, 1\nv_xor_b32 {tl}, {a[0]}, {tl}\nv_lshlrev_b32 {t0}, 10, {R['cc']}\nv_lshl_add_u32 {t0}, {p8}, 3, {t0}\nv_lshl_add_u32 {t0}, {tl}, 6, {t0}")
        g(f"s_lshl_b32 {a[0]}, {g.s_w}, 8\nv_add_u32 {R['wd0']}, {a[0]}, {t0}\nv_add_u32 {R['wd1']}, 0x10000, {R['wd0']}")
        g(f"s_mul_i32 {R['si'][0]}, {g.s_w}, {2*80*3840}\ns_add_u32 {R['si'][1]}, {R['si'][0]}, {80*3840}")
        return R
    def stream_hooks(R):
        slots = [T["fo"][2*k:2*k+2] for k in range(6)] + [T["fa"][2*k:2*k+2] for k in range(4)]
        gm = {}; wm = {}
        NL = 2 * (20 - Q0)
        def h0(s):
            if s in (16, 24, 32):
                g.wait(lg=wm[min(s - 1, NL - 1 + LAGS)])
                g("s_barrier")
        def h1(s):
            if s < NL:
                q, t = Q0 + (s >> 1), s & 1
                if t == 0 and q == 10:
                    g(f"v_add_u32 {R['up']}, {4*3840}, {R['up']}\nv_cmp_gt_u32 vcc, 2, {R['cc']}\nv_cndmask_b32 {R['src']}, {R['dn']}, {R['up']}, vcc")
                if t == 0 and q > 10: g(f"v_subrev_u32 {R['dn']}, {4*3840}, {R['dn']}")
                ad = R["up"] if q < 10 else (R["src"] if q == 10 else R["dn"])
                g(f"buffer_load_dwordx2 {slots[s % 10]}, {ad}, {R['q_w']}, {R['si'][t]} offen")
                gm[s] = g.vm_mark()
        def h2(s):
            n = s - LAGS
            if 0 <= n < NL:
                q, t = Q0 + (n >> 1), n & 1
                g.wait(vm=gm[n])
                g(f"ds_write_b64 {R['wd1'] if q >= 16 else R['wd0']}, {slots[n % 10]} offset:{(q % 16) * 4096 + 128 * t}")
                wm[s] = g.lg_mark()
        return (h0, h1, h2)
    if ph_s0.STREAM:
        l1 = g.label("p0n"); l2 = g.label("p0j")
        vm0, lg0, marks0, am0 = list(g.vm), list(g.lg), dict(marks), dict(am)
        g(f"s_cmp_lg_u32 {g.s_layer}, 0\ns_cbranch_scc1 {l1}")
        R = stream_setup()
        hk = stream_hooks(R)
        for s in range(40): step(s, hk)
        g.S.free(R["q_w"], R["si"])
        g(f"s_branch {l2}\n{l1}:")
        g.vm, g.lg = vm0, lg0; marks.clear(); marks.update(marks0); am.clear(); am.update(am0)
        for s in range(40): step(s)
        g(f"{l2}:")
    else:
        for s in range(40): step(s)
    for s in range(40, 80): step(s)
    mpre = mpre_[0]
    if filler is not None: drain(filler)
    g.stamp(9)
    wsetup, wo_gen, tab_gen, g.wo_sb = ph_s0.wo_loader(g)
    g.wo_gen = wo_gen
    sk = g.label("wo")
    g(f"s_cmp_lg_u32 {g.s_layer}, 0\ns_cbranch_scc1 {sk}")
    vm0 = list(g.vm)
    wo_ready(g, pre, mpre)
    g.vm = vm0
    g.stamp(14)
    wsetup()
    g(f"{sk}:")
    if g.fast and PT.startswith("p1end"): pretouch()
    z_poison(g)
    def dual(make, extra, n, tail0=None, tail1=None, head0=None):
        l1 = g.label("d1"); l2 = g.label("d2")
        lg0 = list(g.lg); vm0 = list(g.vm)
        g(f"s_cmp_lg_u32 {g.s_layer}, 0\ns_cbranch_scc1 {l1}")
        if head0: head0()
        real = g.lines; g.lines = []
        drain(make()); body = g.lines; g.lines = real
        step = len(body) / (n + 1); k = 0
        for i, l in enumerate(body):
            g.lines.append(l)
            if k < n and i + 1 >= (k + 1) * step and not l.startswith(("v_cmp", "s_cmp")):
                next(extra); k += 1
        while k < n: next(extra); k += 1
        if tail0: tail0()
        g(f"s_branch {l2}\n{l1}:")
        g.lg = lg0; g.vm = vm0
        drain(make())
        if tail1: tail1()
        g(f"{l2}:")
    def kepi1():
        yield from k_epilogue_gen(g, 1, acc[1][0], acc[1][1], pq[1], T, KV, packed=True)
    def slabs():
        g(f"s_mov_b64 {g.s_ex}, exec\ns_mov_b32 exec_lo, 0x00ffffff\ns_mov_b32 exec_hi, 0x00ffffff")
        for sg in range(2):
            for i in (0, 2):
                for jj in range(4):
                    g(f"ds_write_b32 {g.v_K}, {KV[sg][4*i+jj]} offset:{(((i>>1)*2 + sg)*10 + jj)*96}")
        g(f"s_mov_b32 exec_hi, 0")
        for sg in range(2):
            for i in (1, 3):
                for jj in range(2):
                    g(f"ds_write_b32 {g.v_K}, {KV[sg][4*i+jj]} offset:{(((i>>1)*2 + sg)*10 + 8 + jj)*96}")
        g(f"s_mov_b64 exec, {g.s_ex}")
    NW1, NW2, NW3 = [int(x) for x in os.environ.get('NW', '24,5,11').split(',')]
    dual(kepi1, wo_gen, NW1)
    g.stamp(16)
    slabs()
    g.wait0(vm=False)
    g("s_barrier")
    g.stamp(17)
    pub = T["d2"]
    g(f"v_lshlrev_b32 {t0}, 4, v0\nv_add_u32 {t1}, {L_KVS}, {t0}")
    for w in range(4): g(f"ds_read_b128 {pub[4*w:4*w+4]}, {t1} offset:{IMG*w}")
    skv = g.sv("skv")
    g(f"s_lshl_b32 {skv}, {g.s_j}, 14\ns_add_u32 {skv}, {skv}, {g.s_kvb}")
    g(f"s_lshl_b32 {a[0]}, {g.s_tb}, 11\ns_add_u32 {a[0]}, {a[0]}, {skv}")
    vkv = g.vv("vkv")
    g(f"v_lshrrev_b32 {vkv}, 1, {t0}")
    g(f"v_cmp_gt_u32 vcc, 240, v0\nv_mov_b32 {t1}, {BIG}\nv_cndmask_b32 {vkv}, {t1}, {vkv}, vcc")
    g.wait0(vm=False)
    for w in range(1, 4):
        g(f"v_pk_add_f32 {pub[0:2]}, {pub[0:2]}, {pub[4*w:4*w+2]}\nv_pk_add_f32 {pub[2:4]}, {pub[2:4]}, {pub[4*w+2:4*w+4]}")
    g(f"v_cvt_pk_bf16_f32 {pub[4]}, {pub[0]}, {pub[1]}\nv_cvt_pk_bf16_f32 {pub[5]}, {pub[2]}, {pub[3]}")
    l1 = g.label("zw"); l2 = g.label("zw")
    g(f"s_cmp_lg_u32 {g.s_layer}, 0\ns_cbranch_scc1 {l1}")
    g.lines.append(f"s_waitcnt vmcnt({NW1})")
    g(f"s_branch {l2}\n{l1}:")
    g.lines.append("s_waitcnt vmcnt(0)")
    g(f"{l2}:")
    g.lines.append(f"buffer_store_dwordx2 {pub[4:6]}, {vkv}, {g.q_ws}, {a[0]} offen sc1")
    g.stamp(10)
    if g.fast and PT.startswith("pub"): pretouch()
    fq = [acc[1][0][0:12], acc[1][1][0:12]]
    gd = ring[0:16]
    g.vm = []
    def gather():
        g(f"s_mov_b32 {a[4]}, {skv}")
        for tb in range(8):
            g.lines.append(f"buffer_load_dwordx2 {gd[2*tb:2*tb+2]}, {vkv}, {g.q_ws}, {a[4]} offen sc1")
            if tb < 7: g(f"s_add_u32 {a[4]}, {a[4]}, 2048")
    import itertools
    def qs(pi):
        def mk():
            g(f"v_mov_b32 {fq[pi][10]}, 0\nv_mov_b32 {fq[pi][11]}, 0")
            yield from q_softmax(g, pq[pi], fq[pi], T)
        return mk
    dual(qs(0), itertools.chain(tab_gen, wo_gen), 10 + NW2)
    KVL = os.environ.get("KVL") == "1"
    if not KVL: gather()
    dual(qs(1), wo_gen, NW3)
    if KVL: gather()
    V.free(T["d2"], T["ep"], T["em"], T["pk"], T["fo"], *fr, *pq)
    ga_setup(g)
    g.stamp(11)
    lp = g.label("kvp"); dn = g.label("kvd"); ck = g.label("kvc")
    g(f"s_mov_b32 {g.s_spin}, {1 << 18}")
    g(f"s_cmp_lg_u32 {g.s_layer}, 0\ns_cbranch_scc1 {lp}")
    late = g.fast and PT.startswith("kv")
    if late: pretouch(cond=False)
    g.lines.append(f"s_waitcnt vmcnt({(0 if KVL else NW3) + (1 if late else 0)})")
    g(f"s_branch {ck}")
    g(f"{lp}:")
    g.lines.append("s_waitcnt vmcnt(0)")
    g(f"{ck}:")
    mxr = ring[16]
    g(f"v_max3_u32 {mxr}, {gd[0]}, {gd[1]}, {gd[2]}")
    for q in range(3, 15, 2): g(f"v_max3_u32 {mxr}, {mxr}, {gd[q]}, {gd[q+1]}")
    g(f"v_max_u32 {mxr}, {mxr}, {gd[15]}\nv_cmp_eq_u32 vcc, -1, {mxr}\ns_cbranch_vccz {dn}")
    gather()
    g(f"s_sub_u32 {g.s_spin}, {g.s_spin}, 1\ns_cmp_lg_u32 {g.s_spin}, 0\ns_cbranch_scc1 {lp}")
    g.lines.append("s_waitcnt vmcnt(0)")
    g(f"{dn}:")
    g.stamp(12)
    sv = ring[20:28]; uv = ring[28:32]
    g(f"v_lshlrev_b32 {sv[0]}, 16, {gd[0]}\nv_and_b32 {sv[1]}, 0xffff0000, {gd[0]}\nv_lshlrev_b32 {sv[2]}, 16, {gd[1]}\nv_and_b32 {sv[3]}, 0xffff0000, {gd[1]}")
    for tb in range(1, 8):
        g(f"v_lshlrev_b32 {uv[0]}, 16, {gd[2*tb]}\nv_and_b32 {uv[1]}, 0xffff0000, {gd[2*tb]}\nv_lshlrev_b32 {uv[2]}, 16, {gd[2*tb+1]}\nv_and_b32 {uv[3]}, 0xffff0000, {gd[2*tb+1]}")
        g(f"v_pk_add_f32 {sv[0:2]}, {sv[0:2]}, {uv[0:2]}\nv_pk_add_f32 {sv[2:4]}, {sv[2:4]}, {uv[2:4]}")
    gd = ring[32:40]
    g(f"v_cvt_pk_bf16_f32 {gd[4]}, {sv[0]}, {sv[1]}\nv_cvt_pk_bf16_f32 {gd[5]}, {sv[2]}, {sv[3]}")
    g(f"ds_write_b16 {g.v_ga[0]}, {gd[4]}\nds_write_b16_d16_hi {g.v_ga[1]}, {gd[4]}\nds_write_b16 {g.v_ga[2]}, {gd[5]}\nds_write_b16_d16_hi {g.v_ga[3]}, {gd[5]}")
    g(f"ds_write_b16 {g.v_ga3}, {gd[4]}")
    V.free(vkv)
    V.free(g.v_ga, g.v_ga3)
    g.wait0(vm=False)
    g("s_barrier")
    g.stamp(30) if g.fine else None
    ka = T["fa"]
    g(f"v_and_b32 {t0}, 31, {g.v_lane}\nv_mul_u32_u24 {t0}, 96, {t0}\nv_lshrrev_b32 {t1}, 5, {g.v_lane}\nv_mul_u32_u24 {t1}, 48, {t1}\nv_add_u32 {t0}, {t0}, {t1}\nv_add_u32 {t0}, {L_KVA}, {t0}")
    for st in range(3): g(f"ds_read_b128 {ka[4*st:4*st+4]}, {t0} offset:{16*st}")
    vo = T["t2"]; vt = T["sm"]
    g(f"v_bfe_u32 {t0}, {g.v_lane}, 4, 1\nv_mul_u32_u24 {vo}, 20480, {t0}\nv_and_b32 {t0}, 15, {g.v_lane}")
    g(f"v_lshl_add_u32 {vt}, {t0}, 3, {vo}\nv_lshl_add_u32 {vo}, {t0}, 4, {vo}\nv_lshrrev_b32 {t1}, 5, {g.v_lane}\nv_lshl_add_u32 {vo}, {t1}, 8, {vo}")
    g(f"s_mul_i32 {a[0]}, {g.s_tb}, {LOCSZ}\ns_add_u32 {a[0]}, {a[0]}, {g.s_ob}\ns_mul_i32 {a[1]}, {g.s_w}, {4*20480}\ns_add_u32 {a[0]}, {a[0]}, {a[1]}")
    g(f"s_lshl_b32 {a[1]}, {g.s_j}, 7\ns_add_u32 {a[1]}, {a[1]}, {a[0]}\ns_add_u32 {a[1]}, {a[1]}, 16384")
    g(f"s_lshr_b32 {a[2]}, {g.s_j}, 1\ns_lshl_b32 {a[2]}, {a[2]}, 10\ns_add_u32 {a[0]}, {a[0]}, {a[2]}\ns_and_b32 {a[2]}, {g.s_j}, 1\ns_lshl_b32 {a[2]}, {a[2]}, 9\ns_add_u32 {a[0]}, {a[0]}, {a[2]}")
    g.wait0(vm=False)
    D3 = [acc[0][0], acc[0][1]]
    for pi in range(2):
        for st in range(3):
            g(f"v_mfma_f32_32x32x16_bf16 {D3[pi]}, {ka[4*st:4*st+4]}, {fq[pi][4*st:4*st+4]}, {0 if st == 0 else D3[pi]}")
    for pi in range(2):
        d = D3[pi]
        g(f"v_add_f32 {T['cc'][0]}, {lit(1e-6)}, {d[10]}\nv_rcp_f32 {T['cc'][0]}, {T['cc'][0]}")
        for i in range(5):
            g(f"v_pk_mul_f32 {d[2*i:2*i+2]}, {d[2*i:2*i+2]}, {T['cc']} op_sel_hi:[1,0]")
        op = fq[pi]
        for i in range(5): g(f"v_cvt_pk_bf16_f32 {op[i]}, {d[2*i]}, {d[2*i+1]}")
        if pi == 1: g(f"s_add_u32 {a[0]}, {a[0]}, {2*20480}\ns_add_u32 {a[1]}, {a[1]}, {2*20480}")
        g(f"buffer_store_dwordx4 {op[0:4]}, {vo}, {g.q_ws}, {a[0]} offen{sc}")
        g(f"v_mov_b32 {op[6]}, {op[4]}\nv_mov_b32 {op[7]}, {op[4]}\nv_permlane32_swap_b32 {op[6]}, {op[7]}")
        g(f"s_mov_b64 {g.s_ex}, exec\ns_mov_b32 exec_hi, 0")
        g(f"buffer_store_dwordx2 {op[6:8]}, {vt}, {g.q_ws}, {a[1]} offen{sc}")
        g(f"s_mov_b64 exec, {g.s_ex}")
    g.stamp(13)
    V.free(ring, *acc[0], *acc[1], T["fa"], T["cc"], T["sp"], T["sm"], T["t2"])
    g.S.free(sx, skv, q_dbg); V.free(pre)

def q_softmax(g, pq, out, T):
    yield from softmax_gen(g, None, pq, out[0:5], out[5:10], T, packed=True, skip_pack=True)

def init_wait(g, cond=True):
    sk = g.label("iw"); t0 = g.v_t0
    if cond: g(f"s_cmp_lg_u32 {g.s_layer}, 0\ns_cbranch_scc1 {sk}")
    q = g.S.alloc("q_dbg", 4); pv = g.vv("pv"); pa = g.vv("pa")
    g.srd(q, g.p_in[10], g.p_in[11], 256)
    g(f"v_lshlrev_b32 {pa}, 2, {g.v_lane}")
    lp = g.label("iwp"); dn = g.label("iwd")
    g(f"s_mov_b32 {g.s_spin}, {1 << 20}")
    g(f"{lp}:")
    g.lines.append(f"buffer_load_dword {pv}, {pa}, {q}, 0 offen sc1")
    g.lines.append("s_waitcnt vmcnt(0)")
    g(f"v_subrev_u32 {t0}, 0x01010101, {pv}\nv_bfi_b32 {t0}, {pv}, 0, {t0}\nv_and_b32 {t0}, 0x80808080, {t0}")
    g(f"v_cmp_ne_u32 vcc, 0, {t0}\ns_cbranch_vccz {dn}")
    g(f"s_sub_u32 {g.s_spin}, {g.s_spin}, 1\ns_cmp_lg_u32 {g.s_spin}, 0\ns_cbranch_scc1 {lp}")
    g(f"{dn}:")
    g.S.free(q); g.V.free(pv, pa)
    g(f"{sk}:")

def wo_ready(g, pre, mpre):
    t0 = g.v_t0
    ok = g.label("wok"); slow = g.label("wsl")
    g.wait(vm=mpre)
    pv = pre[0]
    g(f"v_subrev_u32 {t0}, 0x01010101, {pv}\nv_bfi_b32 {t0}, {pv}, 0, {t0}\nv_and_b32 {t0}, 0x80808080, {t0}")
    g(f"v_cmp_ne_u32 vcc, 0, {t0}\ns_cbranch_vccnz {slow}")
    g(f"v_and_b32 {t0}, {pre[1]}, {pre[2]}\nv_cmp_ne_u32 vcc, 1, {t0}" + ("" if os.environ.get("WOSLOW") == "1" else f"\ns_cbranch_vccz {ok}"))
    g(f"{slow}:")
    init_wait(g, cond=False)
    pa = g.vv("pa", 2, 1); pv = pre[1:3]
    g(f"v_lshlrev_b32 {pa[0]}, 6, {g.v_lane}\nv_add_u32 {pa[0]}, {WOFL}, {pa[0]}")
    g(f"v_min_u32 {pa[1]}, 15, {g.v_lane}\nv_lshlrev_b32 {pa[1]}, 6, {pa[1]}\nv_add_u32 {pa[1]}, {WOFL + 4096}, {pa[1]}")
    lp = g.label("wrp"); dn = g.label("wrd")
    g(f"s_mov_b32 {g.s_spin}, {1 << 20}")
    g(f"{lp}:")
    for q in range(2): g.lines.append(f"buffer_load_dword {pv[q]}, {pa[q]}, {g.q_ws}, 0 offen sc1")
    g.lines.append("s_waitcnt vmcnt(0)")
    g(f"v_and_b32 {t0}, {pv[0]}, {pv[1]}\nv_cmp_ne_u32 vcc, 1, {t0}\ns_cbranch_vccz {dn}")
    g(f"s_sub_u32 {g.s_spin}, {g.s_spin}, 1\ns_cmp_lg_u32 {g.s_spin}, 0\ns_cbranch_scc1 {lp}")
    g(f"{dn}:")
    g.V.free(pa)
    g(f"{ok}:")

def z_poison(g):
    a = g.s_a; t0 = g.v_t0
    sk = g.label("zp")
    pz = g.vv("pz", 4, 4)
    g(f"s_cmp_gt_u32 {g.s_j}, 20\ns_cbranch_scc1 {sk}")
    for q in range(4): g(f"v_mov_b32 {pz[q]}, -1")
    g(f"s_mul_i32 {a[0]}, {g.s_tb}, {ZSZ}\ns_add_u32 {a[0]}, {a[0]}, {g.s_zb}\ns_lshl_b32 {a[1]}, {g.s_j}, 14\ns_add_u32 {a[0]}, {a[0]}, {a[1]}\ns_lshl_b32 {a[1]}, {g.s_w}, 12\ns_add_u32 {a[0]}, {a[0]}, {a[1]}")
    for q in range(4):
        g.lines.append(f"buffer_store_dwordx4 {pz}, {g.v_x16}, {g.q_ws}, {a[0]} offen offset:{1024*q} sc1")
    g(f"{sk}:")
    g.V.free(pz)
```

```python
from emit import *
from maps import *
from gen_main import lit, f2u, LOG2E
BIG = 0x7ff00000
WO_STRIDE = 1296

def wo_rows(g):
    a = g.s_a
    g(f"s_mul_i32 {a[4]}, {g.s_wost}, 10\ns_sub_u32 {a[5]}, {g.s_wost}, 64\ns_mul_i32 {a[5]}, {a[5]}, 40")
    g(f"s_cmp_lt_u32 {g.s_wost}, 64\ns_cselect_b32 {a[4]}, {a[4]}, {a[5]}\ns_cselect_b32 {a[5]}, 1, 0")
    tail = (8, 9, 18, 19, 28, 29, 38, 39)
    rows = g.wo_rows
    for r in range(8):
        g(f"s_cmp_eq_u32 {a[5]}, 1\ns_cselect_b32 {rows[r]}, {r}, {tail[r]}\ns_add_u32 {rows[r]}, {rows[r]}, {a[4]}\ns_mul_i32 {rows[r]}, {rows[r]}, 1280")

def wo_stage(g):
    p = g.p_in; a = g.s_a
    va = g.vv("wova")
    g.srd(g.q_in, p[6], p[7], 640 * 1280)
    g(f"v_lshlrev_b32 {va}, 4, {g.v_lane}")
    rows = g.wo_rows
    for r in range(8):
        g(f"s_mov_b32 m0, {L_SCR + r*WO_STRIDE}")
        g("s_nop 0")
        g.lines.append(f"buffer_load_dwordx4 {va}, {g.q_in}, {rows[r]} offen lds")
    g(f"s_mov_b64 {g.s_ex}, exec\ns_mov_b64 exec, 0xffff")
    for r in range(8):
        g(f"s_mov_b32 m0, {L_SCR + r*WO_STRIDE + 1024}\ns_add_u32 {rows[r]}, {rows[r]}, 1024")
        g.lines.append(f"buffer_load_dwordx4 {va}, {g.q_in}, {rows[r]} offen lds")
    g(f"s_mov_b64 exec, {g.s_ex}")
    g.V.free(va)

def wo_touch(g):
    p = g.p_in; a = g.s_a; t0, t1 = g.v_t0, g.v_t1; L = g.v_lane
    va = g.vv("wta")
    g.srd(g.q_in, p[6], p[7], 640 * 1280)
    g(f"s_mul_i32 {a[4]}, {g.s_wost}, 12800\ns_sub_u32 {a[5]}, {g.s_wost}, 64\ns_mul_i32 {a[5]}, {a[5]}, 51200\ns_add_u32 {a[5]}, {a[5]}, 10240")
    g(f"s_cmp_lt_u32 {g.s_wost}, 64\ns_cselect_b32 {a[4]}, {a[4]}, {a[5]}\ns_mov_b32 {a[6]}, 12800\ns_cselect_b32 {a[5]}, 2560, {a[6]}")
    g(f"v_cmp_lt_u32 vcc, 19, {L}\nv_cndmask_b32_e64 {t0}, 0, 1, vcc\nv_mul_u32_u24 {t1}, 20, {t0}\nv_sub_u32 {t1}, {L}, {t1}\nv_lshlrev_b32 {t1}, 7, {t1}")
    g(f"v_mul_u32_u24 {va}, {a[5]}, {t0}\nv_add_u32 {va}, {va}, {t1}\nv_cmp_gt_u32 vcc, 40, {L}\nv_mov_b32 {t1}, {BIG}\nv_cndmask_b32 {va}, {t1}, {va}, vcc")
    g.lines.append(f"buffer_load_dword {g.v_big[120]}, {va}, {g.q_in}, {a[4]} offen")
    g(f"s_lshl_b32 {a[5]}, {a[5]}, 1\ns_add_u32 {a[4]}, {a[4]}, {a[5]}")
    g.lines.append(f"buffer_load_dword {g.v_big[121]}, {va}, {g.q_in}, {a[4]} offen")
    g.V.free(va)

def w_prefetch(g, first, q_w, pf):
    a = g.s_a; L = g.v_lane
    so, va = pf
    g(f"s_mul_i32 {so}, {g.s_j}, 76800\ns_mul_i32 {a[1]}, {g.s_w}, 20480\ns_sub_u32 {a[1]}, {a[1]}, 4096\ns_max_i32 {a[1]}, {a[1]}, 0\ns_add_u32 {so}, {so}, {a[1]}")
    g(f"v_lshlrev_b32 {va}, 4, {L}")
    def gen():
        for n in range(20):
            g.lines.append(f"buffer_load_dwordx4 {g.v_big[124:128]}, {va}, {q_w}, {so} offen offset:{1024*(n%4)}")
            if n % 4 == 3: g(f"s_add_u32 {so}, {so}, 4096")
            yield
    it = gen()
    for _ in range(first): next(it)
    return it

import os
STREAM = os.environ.get("STREAM", "0") == "1"
NQW = 3 if STREAM else 7
def gather_alloc(g):
    return dict(q_w=g.S.alloc("q_wg", 4), si=g.S.alloc("si", 8), wd=g.vv("wdst", 2), src=g.vv("wsrc", NQW))
def gather_free(g, gs):
    g.S.free(gs["q_w"], gs["si"]); g.V.free(gs["wd"], gs["src"])

def gather_setup(g, gs):
    p = g.p_in; a = g.s_a; t0, t1 = g.v_t0, g.v_t1; L = g.v_lane
    q_w, si, wd, src = gs["q_w"], gs["si"], gs["wd"], gs["src"]
    pc, tl, p8, cc = g.vv("wpc"), g.vv("tl"), g.vv("p8"), g.vv("cc")
    cod = g.vv("cod"); e2 = g.vv("e2"); up, dn = g.vv("up"), g.vv("dn")
    g(f"v_bfe_u32 {tl}, {L}, 3, 1\nv_and_b32 {p8}, 7, {L}\nv_lshrrev_b32 {cc}, 4, {L}")
    g(f"v_mul_u32_u24 {pc}, 1280, {tl}\nv_lshl_add_u32 {pc}, {p8}, 3, {pc}")
    g(f"v_lshlrev_b32 {t1}, 4, {tl}\nv_lshl_add_u32 {t1}, {p8}, 3, {t1}\nv_add_u32 {t1}, 2520, {t1}")
    g(f"v_cmp_lt_u32 vcc, 4, {p8}\nv_cndmask_b32 {pc}, {pc}, {t1}, vcc")
    g(f"s_mul_i32 {a[0]}, {g.s_j}, 40\nv_add_u32 {pc}, {a[0]}, {pc}")
    g(f"s_sub_u32 {a[2]}, {g.s_w}, 1\ns_mul_i32 {a[2]}, {a[2]}, {4*NQW}")
    g(f"v_add_u32 {cod}, {a[2]}, {cc}")
    g.e2_of_code(e2, cod, t0)
    g(f"v_mul_u32_u24 {src[0]}, 3840, {e2}\nv_add_u32 {src[0]}, {src[0]}, {pc}")
    g(f"v_mul_u32_u24 {t0}, 3840, {cod}\nv_add_u32 {up}, {t0}, {pc}\nv_sub_u32 {dn}, {pc}, {t0}")
    g(f"v_add_u32 {up}, {-2*3840 & 0xffffffff}, {up}\nv_add_u32 {dn}, {120*3840}, {dn}")
    for q in range(1, NQW):
        g(f"v_add_u32 {up}, {4*3840}, {up}\nv_subrev_u32 {dn}, {4*3840}, {dn}")
        g(f"v_cmp_lt_u32 vcc, {41 - 4*q}, {cod}\nv_cndmask_b32 {src[q]}, {up}, {dn}, vcc")
    g(f"v_lshlrev_b32 {t0}, 10, {cod}\nv_lshl_add_u32 {t0}, {p8}, 3, {t0}")
    g(f"v_lshl_add_u32 {wd[0]}, {tl}, 6, {t0}\nv_xor_b32 {wd[1]}, 64, {wd[0]}")
    for i in range(8): g(f"s_mov_b32 {si[i]}, {80*3840*i}")
    g.V.free(pc, tl, p8, cc, cod, e2, up, dn)

def w_gather(g, gs):
    q_w, si, wd, src = gs["q_w"], gs["si"], gs["wd"], gs["src"]
    dbg = g.stop_after == "s0b"
    LAG = int(os.environ.get("LAG", "24"))
    def load(n):
        g.lines.append(f"buffer_load_dwordx2 {g.v_big[2*n:2*n+2]}, {src[n // 8]}, {q_w}, {si[n % 8]} offen")
    def write(n, cnt):
        if cnt is not None: g.lines.append(f"s_waitcnt vmcnt({cnt})")
        g.lines.append(f"ds_write_b64 {wd[((n % 8) >> 1) & 1]}, {g.v_big[2*n:2*n+2]} offset:{4096*(n // 8) + 128*(n % 8)}")
    if dbg: g.stamp(9)
    if STREAM:
        N = 8 * NQW
        for n in range(N): load(n)
        if dbg: g.stamp(12)
        g("s_barrier")
        for n in range(N): write(n, (N - 4 - n) if n % 4 == 0 else None)
        return
    for n in range(48):
        load(n)
        if n >= LAG: write(n - LAG, LAG)
    w3 = g.label("wg3"); wj = g.label("wgj")
    g(f"s_cmp_eq_u32 {g.s_w}, 3\ns_cbranch_scc1 {w3}")
    for n in range(48, 56):
        load(n); write(n - LAG, LAG)
    if dbg: g.stamp(12)
    g("s_barrier")
    for n in range(56 - LAG, 56): write(n, (52 - n) if n % 4 == 0 else None)
    g(f"s_branch {wj}\n{w3}:")
    g("s_barrier")
    for n in range(48 - LAG, 48): write(n, (44 - n) if n % 4 == 0 else None)
    g(f"{wj}:")

def phi_build(g, wait):
    t0, t1 = g.v_t0, g.v_t1; V = g.V
    l31, va, vb, f = g.vv("l31b"), g.vv("va"), g.vv("vb"), g.vv("f"); ph = g.vv("phraw", 12)
    if wait: g.lines.append("s_waitcnt vmcnt(0)")
    g(f"v_and_b32 {l31}, 31, {g.v_lane}")
    g(f"v_lshrrev_b32 {t0}, 3, {l31}\nv_lshlrev_b32 {t0}, 2, {t0}\nv_and_b32 {t1}, 3, {l31}\nv_add_u32 {t0}, {t0}, {t1}")
    g(f"v_bfe_u32 {t1}, {l31}, 2, 1\nv_mul_u32_u24 {f}, 10, {t1}\nv_add_u32 {f}, {f}, {t0}")
    g(f"v_lshrrev_b32 {t1}, 5, {g.v_lane}\nv_mul_u32_u24 {va}, 80, {t1}\nv_add_u32 {va}, {va}, {f}\nv_lshlrev_b32 {va}, 1, {va}\nv_add_u32 {va}, {L_PHI}, {va}")
    for u in range(8):
        g.lines.append(f"ds_read_u16 {ph[u]}, {va} offset:{(8*(u>>2) + (u&3))*40}")
    for u in range(4):
        g.lines.append(f"ds_read_u16 {ph[8+u]}, {va} offset:{(16+u)*40}")
    g.lines.append("s_waitcnt lgkmcnt(0)")
    for q in range(6):
        g(f"v_lshl_or_b32 {g.v_phi[q]}, {ph[2*q+1]}, 16, {ph[2*q]}")
    g(f"v_cmp_gt_u32 vcc, 10, {t0}")
    for q in range(6): g(f"v_cndmask_b32 {g.v_phi[q]}, 0, {g.v_phi[q]}, vcc")
    g(f"v_cmp_gt_u32 vcc, 32, {g.v_lane}")
    for q in (4, 5): g(f"v_cndmask_b32 {g.v_phi[q]}, 0, {g.v_phi[q]}, vcc")
    g(f"v_mov_b32 {g.v_phi[6]}, 0\nv_mov_b32 {g.v_phi[7]}, 0")
    V.free(l31, va, vb, f, ph)

def x_store(g, raw, sc):
    a = g.s_a; t0, t1 = g.v_t0, g.v_t1; V = g.V
    ad, ds = g.vv("ad"), g.vv("ds"); d = g.v_big
    g(f"v_lshlrev_b32 {ad}, 4, {g.v_lane}\nv_add_u32 {ad}, {L_XST + (10240 if raw else 0)}, {ad}")
    g(f"v_lshrrev_b32 {ds}, 3, {g.v_lane}\nv_lshlrev_b32 {ds}, 9, {ds}\nv_and_b32 {t0}, 7, {g.v_lane}\nv_lshl_add_u32 {ds}, {t0}, 4, {ds}")
    g(f"s_mul_i32 {a[0]}, {g.s_tb}, {XSZ}\ns_lshr_b32 {a[1]}, {g.s_j}, 2\ns_mul_i32 {a[1]}, {a[1]}, 40960\ns_add_u32 {a[0]}, {a[0]}, {a[1]}")
    g(f"s_and_b32 {a[1]}, {g.s_j}, 3\ns_lshl_b32 {a[1]}, {a[1]}, 7\ns_add_u32 {a[0]}, {a[0]}, {a[1]}")
    g.lines.append("s_waitcnt lgkmcnt(0)")
    for n in range(10):
        g.lines.append(f"ds_read_b128 {d[4*n:4*n+4]}, {ad} offset:{n*1024}")
    for n in range(10):
        g.lines.append(f"s_waitcnt lgkmcnt({9 - n})")
        g(f"s_add_u32 {a[1]}, {a[0]}, {(X_IN[0] if raw else XN_IN[0]) + n * 4096}")
        g.lines.append(f"buffer_store_dwordx4 {d[4*n:4*n+4]}, {ds}, {g.q_ws}, {a[1]} offen{sc}")
    V.free(ad, ds)

def trig4(g, ang0, slope, csts, cs, sn):
    for r in range(4):
        if csts[r] == 0: g(f"v_mov_b32 {sn[r]}, {ang0}")
        else: g(f"v_fmamk_f32 {sn[r]}, {slope}, {lit(float(csts[r]))}, {ang0}")
        g(f"v_cos_f32 {cs[r]}, {sn[r]}\nv_sin_f32 {sn[r]}, {sn[r]}")

def reim_frags(g, cs, sn, tmp, dre, dim):
    g(f"v_cvt_pk_bf16_f32 {tmp[0]}, {cs[0]}, {cs[1]}\nv_cvt_pk_bf16_f32 {tmp[1]}, {cs[2]}, {cs[3]}")
    g(f"v_cvt_pk_bf16_f32 {tmp[2]}, {sn[0]}, {sn[1]}\nv_cvt_pk_bf16_f32 {tmp[3]}, {sn[2]}, {sn[3]}")
    for q in range(4): g(f"v_accvgpr_write_b32 {dre[q]}, {tmp[q]}")
    g(f"v_accvgpr_write_b32 {dim[2]}, {tmp[0]}\nv_accvgpr_write_b32 {dim[3]}, {tmp[1]}")
    g(f"v_xor_b32 {tmp[2]}, 0x80008000, {tmp[2]}\nv_xor_b32 {tmp[3]}, 0x80008000, {tmp[3]}")
    g(f"v_accvgpr_write_b32 {dim[0]}, {tmp[2]}\nv_accvgpr_write_b32 {dim[1]}, {tmp[3]}")

def constants(g, parts):
    a = g.s_a; t0, t1 = g.v_t0, g.v_t1; V = g.V
    n15, gq = g.vv("n15"), g.vv("gq")
    g(f"v_and_b32 {n15}, 15, {g.v_lane}\nv_lshrrev_b32 {gq}, 4, {g.v_lane}")
    cs, sn, tmp = g.vv("cs", 4), g.vv("sn", 4), g.vv("tmp", 4)
    ang, sl, f1, f2 = g.vv("ang"), g.vv("sl"), g.vv("f1"), g.vv("f2")
    if 's1' in parts:
        g(f"v_cvt_f32_u32 {sl}, {n15}\nv_mul_f32 {sl}, {lit(1/16)}, {sl}")
        g(f"v_lshlrev_b32 {t0}, 2, {gq}\nv_cvt_f32_u32 {ang}, {t0}\nv_mul_f32 {ang}, {ang}, {sl}")
        trig4(g, ang, sl, [0, 1, 2, 3], cs, sn)
        reim_frags(g, cs, sn, tmp, g.a_s1[0:4], g.a_s1[4:8])
    if 's2' in parts:
        g(f"v_lshlrev_b32 {t0}, 5, {gq}\nv_add_u32 {t0}, {g.s_tb}, {t0}\nv_cvt_f32_u32 {f1}, {t0}")
        g(f"s_lshl_b32 {a[4]}, {g.s_w}, 2")
        for q in range(4):
            g(f"v_lshlrev_b32 {t0}, 4, {n15}\nv_add_u32 {t0}, {a[4]}, {t0}")
            if q: g(f"v_add_u32 {t0}, {q}, {t0}")
            g(f"v_cvt_f32_u32 {sl}, {t0}\nv_mul_f32 {sl}, {lit(1/2048)}, {sl}\nv_mul_f32 {ang}, {f1}, {sl}")
            trig4(g, ang, sl, [0, 8, 16, 24], cs, sn)
            reim_frags(g, cs, sn, tmp, g.a_s2[8*q:8*q+4], g.a_s2[8*q+4:8*q+8])
    if 'h2' in parts:
        e2, P0, P1, Q1, R1, T1 = g.vv("e2"), g.vv("P0"), g.vv("P1"), g.vv("Q1"), g.vv("R1"), g.vv("T1")
        g(f"v_lshrrev_b32 {t0}, 1, {gq}")
        g(f"s_lshl_b32 {a[4]}, {g.s_j}, 1\ns_sub_u32 {a[4]}, {a[4]}, 2\ns_mov_b32 {a[5]}, 1")
        g(f"s_cmp_eq_u32 {g.s_j}, 0\ns_cselect_b32 {a[4]}, 0, {a[4]}\ns_cselect_b32 {a[5]}, 40, {a[5]}")
        g(f"s_cmp_eq_u32 {g.s_j}, 1\ns_cselect_b32 {a[4]}, 1, {a[4]}\ns_mov_b32 {a[6]}, 78\ns_cselect_b32 {a[5]}, {a[6]}, {a[5]}")
        g(f"v_mul_u32_u24 {e2}, {a[5]}, {t0}\nv_add_u32 {e2}, {a[4]}, {e2}")
        g(f"v_and_b32 {t1}, 7, {n15}\nv_mul_u32_u24 {t1}, 80, {t1}\nv_add_u32 {e2}, {e2}, {t1}")
        g(f"v_cvt_f32_u32 {sl}, {e2}\nv_mul_f32 {sl}, {lit(1/640)}, {sl}")
        g(f"v_lshrrev_b32 {t1}, 3, {n15}\nv_cmp_eq_u32 vcc, {t0}, {t1}\nv_cndmask_b32_e64 {f2}, 0, 1.0, vcc")
        g(f"v_cmp_eq_u32 vcc, 0, {e2}\nv_cndmask_b32_e64 {f2}, {f2}, 0, vcc")
        g(f"v_cvt_f32_u32 {f1}, {t0}")
        g(f"s_cmp_eq_u32 {g.s_j}, 0\ns_cselect_b32 {a[4]}, 1.0, 0\ns_cselect_b32 {a[6]}, 0, 1.0")
        g(f"s_cmp_eq_u32 {g.s_j}, 1\ns_cselect_b32 {a[5]}, -2.0, 0")
        g(f"v_mul_f32 {P1}, {a[4]}, {f1}")
        g(f"v_sub_f32 {P0}, 1.0, {P1}")
        g(f"v_mul_f32 {Q1}, {a[5]}, {f1}\nv_add_f32 {Q1}, 1.0, {Q1}\nv_mul_f32 {Q1}, {a[6]}, {Q1}")
        g(f"v_mov_b32 {R1}, {Q1}\nv_sub_f32 {T1}, 0, {P1}")
        for x in (P0, P1, Q1, R1, T1): g(f"v_mul_f32 {x}, {x}, {f2}")
        g(f"v_and_b32 {t0}, 1, {gq}\nv_lshlrev_b32 {t0}, 2, {t0}\nv_cvt_f32_u32 {ang}, {t0}\nv_mul_f32 {ang}, {ang}, {sl}")
        trig4(g, ang, sl, [0, 1, 2, 3], cs, sn)
        for dd in range(4):
            g(f"v_mul_f32 {t0}, {P0}, {cs[dd]}\nv_mul_f32 {t1}, {P1}, {cs[dd]}\nv_fmac_f32 {t1}, {Q1}, {sn[dd]}")
            g(f"v_cvt_pk_bf16_f32 {tmp[0]}, {t0}, {t1}\nv_accvgpr_write_b32 {g.a_h2[dd]}, {tmp[0]}")
            g(f"v_mul_f32_e64 {t0}, -{P0}, {sn[dd]}\nv_mul_f32 {t1}, {R1}, {cs[dd]}\nv_fmac_f32 {t1}, {T1}, {sn[dd]}")
            g(f"v_cvt_pk_bf16_f32 {tmp[1]}, {t0}, {t1}\nv_accvgpr_write_b32 {g.a_h2[4+dd]}, {tmp[1]}")
        V.free(e2, P0, P1, Q1, R1, T1)
    if 'b2' in parts:
        tt, msk = g.vv("tt"), g.vv("msk")
        g(f"v_and_b32 {t0}, 1, {n15}\nv_lshrrev_b32 {t1}, 1, {gq}\nv_cmp_eq_u32 vcc, {t0}, {t1}\nv_cndmask_b32_e64 {msk}, 0, 1.0, vcc")
        for mir in range(2):
            g(f"v_lshrrev_b32 {tt}, 1, {n15}")
            if mir:
                g(f"s_or_b32 {a[4]}, {g.s_tb}, {g.s_j}\ns_cmp_eq_u32 {a[4]}, 0\ns_cselect_b32 {a[4]}, 1, 0")
                g(f"v_lshrrev_b32 {t0}, 1, {gq}\nv_sub_u32 {t0}, 1, {t0}\nv_mul_u32_u24 {t0}, {a[4]}, {t0}")
                g(f"v_sub_u32 {tt}, 7, {tt}\nv_add_u32 {tt}, {tt}, {t0}\nv_and_b32 {tt}, 7, {tt}")
            g(f"v_cvt_f32_u32 {sl}, {tt}\nv_mul_f32 {sl}, {lit(1/8)}, {sl}")
            g(f"v_and_b32 {t0}, 1, {gq}\nv_lshlrev_b32 {t0}, 2, {t0}\nv_cvt_f32_u32 {ang}, {t0}\nv_mul_f32 {ang}, {ang}, {sl}")
            trig4(g, ang, sl, [0, 1, 2, 3], cs, sn)
            for dd in range(4):
                g(f"v_mul_f32 {t0}, {msk}, {cs[dd]}\nv_mul_f32 {t1}, {msk}, {sn[dd]}\nv_cvt_pk_bf16_f32 {tmp[0]}, {t0}, {t1}")
                g(f"v_accvgpr_write_b32 {g.a_b2[4*mir+dd]}, {tmp[0]}")
        V.free(tt, msk)
    if 'h1' in parts:
        d2b, K2, rho = g.vv("d2b"), g.vv("K2"), g.vv("rho")
        val = g.vv("val", 8); adr = g.vv("adr")
        g(f"v_lshrrev_b32 {t0}, 1, {gq}\nv_and_b32 {t1}, 1, {gq}\nv_mul_u32_u24 {t1}, 40, {t1}\nv_add_u32 {t0}, {t0}, {t1}\nv_cvt_f32_u32 {d2b}, {t0}")
        for n in range(5):
            sk = g.label("h1")
            g(f"s_add_u32 {a[4]}, {g.s_w}, {3*n - 1}")
            g(f"s_mul_i32 {a[5]}, {a[4]}, 43\ns_lshr_b32 {a[5]}, {a[5]}, 7")
            g(f"s_mul_i32 {a[6]}, {a[5]}, 3\ns_sub_u32 {a[6]}, {a[4]}, {a[6]}")
            g(f"s_lshl_b32 {a[7]}, {a[5]}, 4\nv_add_u32 {rho}, {a[7]}, {n15}")
            g(f"v_lshrrev_b32 {t0}, 1, {rho}\nv_cmp_eq_u32 vcc, 1, {rho}\nv_cndmask_b32_e64 {t0}, {t0}, 40, vcc")
            g(f"v_cvt_f32_u32 {sl}, {t0}\nv_mul_f32 {sl}, {lit(1/80)}, {sl}")
            g(f"v_and_b32 {t1}, 1, {rho}\nv_cndmask_b32_e64 {t1}, {t1}, 0, vcc\nv_cvt_f32_u32 {K2}, {t1}\nv_mul_f32 {K2}, 0.25, {K2}")
            g(f"s_lshl_b32 {a[7]}, {a[6]}, 2\nv_cvt_f32_u32 {ang}, {a[7]}\nv_add_f32 {ang}, {d2b}, {ang}\nv_fma_f32 {ang}, {ang}, {sl}, {K2}")
            g(f"s_cmp_eq_u32 {a[6]}, 2\ns_cselect_b32 {a[7]}, 0, 1.0")
            for u in range(8):
                c = 2 * (u >> 2) + 10 * (u & 3)
                if c: g(f"v_fmamk_f32 {val[u]}, {sl}, {lit(float(c))}, {ang}")
                else: g(f"v_mov_b32 {val[u]}, {ang}")
                g(f"v_cos_f32 {val[u]}, {val[u]}")
                if u >= 4: g(f"v_mul_f32 {val[u]}, {a[7]}, {val[u]}")
            for q in range(4): g(f"v_cvt_pk_bf16_f32 {tmp[q]}, {val[2*q]}, {val[2*q+1]}")
            g(f"s_lshl_b32 {a[7]}, {a[4]}, 10\ns_add_u32 {a[7]}, {a[7]}, {L_H1}\nv_lshlrev_b32 {adr}, 4, {g.v_lane}\nv_add_u32 {adr}, {a[7]}, {adr}")
            g.lines.append(f"ds_write_b128 {adr}, {tmp}")
            g(f"{sk}:")
        V.free(d2b, K2, rho, val, adr)
    V.free(n15, gq, cs, sn, tmp, ang, sl, f1, f2)

def wo_frag_a(g, guard=True):
    a = g.s_a; V = g.V; t0, t1 = g.v_t0, g.v_t1
    sk = g.label("wog")
    if guard: g(f"s_cmp_ge_u32 {g.s_wost}, 80\ns_cbranch_scc1 {sk}")
    ad = g.vv("ad"); raw = g.vv("raw", 8); fr = g.v_big[64:104]; dst = g.vv("dst")
    g(f"v_lshrrev_b32 {t0}, 4, {g.v_lane}\nv_lshlrev_b32 {ad}, 2, {t0}")
    g(f"v_mul_u32_u24 {dst}, {2*5*20*1024}, {t0}\nv_and_b32 {t1}, 15, {g.v_lane}\nv_lshl_add_u32 {dst}, {t1}, 4, {dst}")
    g(f"v_bfe_u32 {t0}, {g.v_lane}, 3, 1\nv_lshl_add_u32 {ad}, {t0}, 4, {ad}")
    g(f"v_and_b32 {t0}, 7, {g.v_lane}\nv_mul_u32_u24 {t0}, 160, {t0}\nv_add_u32 {ad}, {ad}, {t0}\nv_add_u32 {ad}, {L_SCR}, {ad}")
    g(f"s_mov_b32 {a[3]}, 0x05040100\ns_mov_b32 {a[4]}, 0x07060302")
    for i in range(5):
        for ii in range(8):
            g.lines.append(f"ds_read_b32 {raw[ii]}, {ad} offset:{ii*WO_STRIDE + 32*i}")
        g.lines.append("s_waitcnt lgkmcnt(0)")
        for q in range(4):
            g(f"v_perm_b32 {fr[8*i+q]}, {raw[2*q+1]}, {raw[2*q]}, {a[3]}\nv_perm_b32 {fr[8*i+4+q]}, {raw[2*q+1]}, {raw[2*q]}, {a[4]}")
    g(f"{sk}:")
    V.free(ad, raw)
    return fr, dst

def wo_frag_b(g, wf, guard=True):
    a = g.s_a; fr, dst = wf
    sk = g.label("wog")
    if guard: g(f"s_cmp_ge_u32 {g.s_wost}, 80\ns_cbranch_scc1 {sk}")
    g(f"s_lshr_b32 {a[0]}, {g.s_wost}, 2\ns_lshl_b32 {a[0]}, {a[0]}, 10\ns_and_b32 {a[1]}, {g.s_wost}, 3\ns_lshl_b32 {a[1]}, {a[1]}, 8")
    g(f"s_add_u32 {a[0]}, {a[0]}, {a[1]}\ns_add_u32 {a[0]}, {a[0]}, {WOF}")
    for i in range(5):
        g(f"s_add_u32 {a[1]}, {a[0]}, {i*20*1024}\ns_add_u32 {a[2]}, {a[1]}, {5*20*1024}")
        g.lines.append(f"buffer_store_dwordx4 {fr[8*i:8*i+4]}, {dst}, {g.q_ws}, {a[1]} offen sc1")
        g.lines.append(f"buffer_store_dwordx4 {fr[8*i+4:8*i+8]}, {dst}, {g.q_ws}, {a[2]} offen sc1")
    g(f"{sk}:")
    g.V.free(dst)

def after_s0(g):
    V = g.V
    g.a_wo = g.A.alloc("wo", 200, at=0)
    g.a_s2 = g.A.alloc("st2", 32, at=200)
    g.a_h2 = g.A.alloc("h2", 8, at=232)
    g.a_s1 = g.A.alloc("st1", 8, at=240)
    g.a_b2 = g.A.alloc("b2", 8, at=248)
    V.free(g.v_big, g.v_l31)
    g.stamp(7)

def wo_loader(g):
    a = g.s_a
    sb = g.S.alloc("wob", 3)
    def setup():
        g(f"s_lshr_b32 {sb[1]}, {g.s_j}, 2\ns_mul_i32 {sb[1]}, {sb[1]}, {5*20*1024}\ns_add_u32 {sb[1]}, {sb[1]}, {WOF}")
        g(f"s_lshr_b32 {sb[2]}, {g.s_w}, 1\ns_lshl_b32 {sb[0]}, {sb[2]}, 13\ns_add_u32 {sb[0]}, {sb[1]}, {sb[0]}")
        g(f"s_lshl_b32 {sb[2]}, {sb[2]}, 11\ns_add_u32 {sb[1]}, {sb[1]}, {sb[2]}\ns_add_u32 {sb[1]}, {sb[1]}, {16*1024}")
    def wo():
        for u in range(10):
            for i in range(5):
                r = (u * 5 + i) * 4
                if u < 8: g(f"s_add_u32 {sb[2]}, {sb[0]}, {(i*20 + u)*1024}")
                else: g(f"s_add_u32 {sb[2]}, {sb[1]}, {(i*20 + u - 8)*1024}")
                g.lines.append(f"buffer_load_dwordx4 {g.a_wo[r:r+4]}, {g.v_x16}, {g.q_ws}, {sb[2]} offen")
                yield
    def tab():
        T = g.toff; base = "fnet_tab-Lpc+"
        def ld(dst):
            g.lines.append(f"buffer_load_dwordx4 {dst}, {g.v_x16}, {g.q_tab}, {sb[2]} offen")
        for h in range(2):
            g(f"s_mov_b32 {sb[2]}, {base}{T['S1'] + 1024*h}"); ld(g.a_s1[4*h:4*h+4]); yield
        for h in range(2):
            g(f"s_min_u32 {sb[2]}, {g.s_j}, 20\ns_lshl_b32 {sb[2]}, {sb[2]}, 11\ns_add_u32 {sb[2]}, {sb[2]}, {base}{T['H2'] + 1024*h}"); ld(g.a_h2[4*h:4*h+4]); yield
        g(f"s_mov_b32 {sb[2]}, {base}{T['B2']}"); ld(g.a_b2[0:4]); yield
        g(f"s_or_b32 {sb[2]}, {g.s_tb}, {g.s_j}\ns_cmp_eq_u32 {sb[2]}, 0\ns_cselect_b32 {sb[2]}, 2048, 1024\ns_add_u32 {sb[2]}, {sb[2]}, {base}{T['B2']}" if False else
          f"s_or_b32 {sb[2]}, {g.s_tb}, {g.s_j}\ns_min_u32 {sb[2]}, {sb[2]}, 1\ns_lshl_b32 {sb[2]}, {sb[2]}, 10\ns_sub_u32 {sb[2]}, {base}{T['B2'] + 2048}, {sb[2]}"); ld(g.a_b2[4:8]); yield
        for q in range(4):
            g(f"s_lshl_b32 {sb[2]}, {g.s_tb}, 2\ns_add_u32 {sb[2]}, {sb[2]}, {g.s_w}\ns_lshl_b32 {sb[2]}, {sb[2]}, 12\ns_add_u32 {sb[2]}, {sb[2]}, {base}{T['S2'] + 1024*q}")
            ld(g.a_s2[8*q:8*q+4]); yield
    return setup, wo(), tab(), sb

def s2_fix(g):
    t0, t1 = g.v_t0, g.v_t1
    for q in range(4):
        re, im = g.a_s2[8*q:8*q+4], g.a_s2[8*q+4:8*q+8]
        g(f"v_accvgpr_read_b32 {t0}, {re[2]}\nv_accvgpr_read_b32 {t1}, {re[3]}")
        g(f"v_accvgpr_mov_b32 {im[2]}, {re[0]}\nv_accvgpr_mov_b32 {im[3]}, {re[1]}")
        g(f"v_xor_b32 {t0}, 0x80008000, {t0}\nv_xor_b32 {t1}, 0x80008000, {t1}")
        g(f"v_accvgpr_write_b32 {im[0]}, {t0}\nv_accvgpr_write_b32 {im[1]}, {t1}")

def tab_touch(g, va):
    a = g.s_a; T = g.toff
    TM = sum(1 << j for j in (0, 1, 4, 10, 11, 26, 27, 29, 30, 31))
    g(f"s_lshl_b32 {a[2]}, 1, {g.s_j}\ns_sub_u32 {a[3]}, {a[2]}, 1\ns_and_b32 {a[3]}, {a[3]}, {TM}\ns_bcnt1_i32_b32 {a[3]}, {a[3]}")
    g(f"s_lshl_b32 {a[0]}, {a[3]}, 13\ns_lshl_b32 {a[1]}, {g.s_tb}, 14\ns_add_u32 {a[1]}, {a[1]}, {T['S2'] - 8*8192}\ns_add_u32 {a[1]}, {a[1]}, {a[0]}")
    g(f"s_cmp_lt_u32 {a[3]}, 8\ns_cselect_b32 {a[0]}, {a[0]}, {a[1]}\ns_add_u32 {a[0]}, {a[0]}, fnet_tab-Lpc")
    g(f"s_min_u32 {a[0]}, {a[0]}, fnet_tab_end-Lpc-8192")
    g(f"s_and_b32 {a[2]}, {a[2]}, {TM}\ns_cselect_b32 {a[1]}, 1, 0\ns_cmp_eq_u32 {g.s_w}, 3\ns_cselect_b32 {a[1]}, {a[1]}, 0\ns_cmp_eq_u32 {a[1]}, 1\ns_cselect_b32 {a[1]}, 0, {BIG}")
    g(f"v_lshlrev_b32 {va}, 7, {g.v_lane}\nv_add_u32 {va}, {a[1]}, {va}")
    g.lines.append(f"buffer_load_dword {g.v_big[123]}, {va}, {g.q_tab}, {a[0]} offen")

def wo_flag(g):
    a = g.s_a; t0, t1 = g.v_t0, g.v_t1
    sk = g.label("wf")
    g(f"s_cmp_ge_u32 {g.s_wost}, 80\ns_cbranch_scc1 {sk}")
    g(f"s_lshl_b32 {a[0]}, {g.s_wost}, 6\ns_add_u32 {a[0]}, {a[0]}, {WOFL}\nv_mov_b32 {t0}, {a[0]}\nv_mov_b32 {t1}, 1")
    g.lines.append("s_waitcnt vmcnt(0)")
    g(f"s_mov_b64 {g.s_ex}, exec\ns_mov_b64 exec, 1")
    g.lines.append(f"buffer_store_dword {t1}, {t0}, {g.q_ws}, 0 offen sc1")
    g(f"s_mov_b64 exec, {g.s_ex}")
    g(f"{sk}:")
```
